```python
import torch

def _softmax(x, axis=-1):
    return torch.softmax(x, dim=axis)
def _gelu(x):
    return torch.nn.functional.gelu(x, approximate="tanh")
def _silu(x):
    return torch.nn.functional.silu(x)
def _sigmoid(x):
    return torch.sigmoid(x)
def _layernorm(x, axis=-1, eps=1e-5):
    m = x.mean(dim=axis, keepdim=True)
    v = x.var(dim=axis, keepdim=True, unbiased=False)
    return (x - m) / torch.sqrt(v + eps)
def _scatter_add(tgt, idx, src, axis=0):
    return tgt.clone().index_add_(axis, idx, src)
def _segment_sum(src, seg, n):
    out = torch.zeros((n,) + src.shape[1:], dtype=src.dtype)
    return out.index_add_(0, seg, src)
def _pad(x, pw):
    flat = tuple(v for pair in reversed(pw) for v in pair)
    return torch.nn.functional.pad(x, flat)

kernel_name = 'concat_heads__gqa_block_cached__gqa_block_cached__near_ridge'

def setup_inputs():

    _w = (lambda a: (lambda t: t.to(torch.bfloat16) if t.is_floating_point() else t)(torch.as_tensor(a)))
    def _A_setup():
        B, Sq, D = 8, 48, 512
        Hq, Hkv, Sk, Dh = 32, 8, 1024, 128
        assert Hq % Hkv == 0, (Hq, Hkv)
        return {
            "x": _w((lambda *s: torch.randn(*s, dtype=torch.bfloat16) * 0.8)(B, Sq, D)),
            "k_cache": _w((lambda *s: torch.randn(*s, dtype=torch.bfloat16) * 0.8)(B, Hkv, Sk, Dh)),
            "v_cache": _w((lambda *s: torch.randn(*s, dtype=torch.bfloat16) * 0.05)(B, Hkv, Sk, Dh)),
            "wq": _w((lambda *s: torch.randn(*s, dtype=torch.bfloat16) * 0.8)(D, Hq * Dh) * (D ** -0.5)),
            "wo": _w((lambda *s: torch.randn(*s, dtype=torch.bfloat16) * 0.05)(Hq * Dh, D) * ((Hq * Dh) ** -0.5)),
        }
    _A_in = _A_setup()

    def _B_setup():
        B, Sq, D = 8, 48, 512
        Hq, Hkv, Sk, Dh = 32, 8, 1024, 128
        assert Hq % Hkv == 0, (Hq, Hkv)
        return {
            "x": _w((lambda *s: torch.randn(*s, dtype=torch.bfloat16) * 0.8)(B, Sq, D)),
            "k_cache": _w((lambda *s: torch.randn(*s, dtype=torch.bfloat16) * 0.8)(B, Hkv, Sk, Dh)),
            "v_cache": _w((lambda *s: torch.randn(*s, dtype=torch.bfloat16) * 0.05)(B, Hkv, Sk, Dh)),
            "wq": _w((lambda *s: torch.randn(*s, dtype=torch.bfloat16) * 0.8)(D, Hq * Dh) * (D ** -0.5)),
            "wo": _w((lambda *s: torch.randn(*s, dtype=torch.bfloat16) * 0.05)(Hq * Dh, D) * ((Hq * Dh) ** -0.5)),
        }
    _B_in = _B_setup()

    return {
        "A_x": _A_in["x"],
        "A_k_cache": _A_in["k_cache"],
        "A_v_cache": _A_in["v_cache"],
        "A_wq": _A_in["wq"],
        "A_wo": _A_in["wo"],
        "B_x": _B_in["x"],
        "B_k_cache": _B_in["k_cache"],
        "B_v_cache": _B_in["v_cache"],
        "B_wq": _B_in["wq"],
        "B_wo": _B_in["wo"],
    }

def reference(A_x, A_k_cache, A_v_cache, A_wq, A_wo, B_x, B_k_cache, B_v_cache, B_wq, B_wo):
    def _A_ref(x, k_cache, v_cache, wq, wo):
        B, Sq, D = x.shape
        Hq, Dh = 32, 128
        Hkv = k_cache.shape[1]
        rep = Hq // Hkv
        q = (lambda x, *d: x.permute(*d))((x @ wq).reshape(B, Sq, Hq, Dh), 0, 2, 1, 3)
        k = (lambda x, n, axis: torch.repeat_interleave(x, n, dim=axis))(k_cache, rep, axis=1)
        v = (lambda x, n, axis: torch.repeat_interleave(x, n, dim=axis))(v_cache, rep, axis=1)
        scores = torch.einsum("bhqd,bhkd->bhqk", q, k) * (Dh ** -0.5)
        p = _softmax(scores, axis=-1)
        o = torch.einsum("bhqk,bhkd->bhqd", p, v)
        return (lambda x, *d: x.permute(*d))(o, 0, 2, 1, 3).reshape(B, Sq, Hq * Dh) @ wo

    def _B_ref(x, k_cache, v_cache, wq, wo):
        B, Sq, D = x.shape
        Hq, Dh = 32, 128
        Hkv = k_cache.shape[1]
        rep = Hq // Hkv
        q = (lambda x, *d: x.permute(*d))((x @ wq).reshape(B, Sq, Hq, Dh), 0, 2, 1, 3)
        k = (lambda x, n, axis: torch.repeat_interleave(x, n, dim=axis))(k_cache, rep, axis=1)
        v = (lambda x, n, axis: torch.repeat_interleave(x, n, dim=axis))(v_cache, rep, axis=1)
        scores = torch.einsum("bhqd,bhkd->bhqk", q, k) * (Dh ** -0.5)
        p = _softmax(scores, axis=-1)
        o = torch.einsum("bhqk,bhkd->bhqd", p, v)
        return (lambda x, *d: x.permute(*d))(o, 0, 2, 1, 3).reshape(B, Sq, Hq * Dh) @ wo

    a = _A_ref(A_x, A_k_cache, A_v_cache, A_wq, A_wo)
    b = _B_ref(B_x, B_k_cache, B_v_cache, B_wq, B_wo)
    return torch.concatenate([a, b], axis=-1)
```

```python
import sys, math

NAME = "concat_heads__gqa_block_cached__gqa_block_cached__near_ridge"

class Opt:
    fused_tail = False
    kv_aux = "nt"
    w_aux = ""
    part_store_aux = ""
    part_load_aux = ""
    dump = None
    L = 4
    thr_log2 = 12
    stamps = False

opt = Opt()

KB = 1024
K_BASE = 0
V_BASE = 64 * KB
M_BASE = 128 * KB
X_BASE = 112 * KB
W_BASE = 32 * KB
LDS_BYTES = 160 * KB
VPOS = [4, 5, 0, 1, 2, 3, 6, 7]

WS_PART = 0
WS_PART_BYTES = 16 * 16 * 16 * 3072
WS_DUMP = 16 << 20
WS_STAMP = 48 << 20
WS_BYTES = 268435456

sWG = 2
sW = 3
sB = 4
sHP = 5
sBR = 6
sKVH = 7
SRD_X, SRD_WQ, SRD_K, SRD_V, SRD_WO, SRD_WS = 8, 12, 16, 20, 24, 28
sT0, sT1, sT2, sT3, sT4, sT5 = 32, 33, 34, 35, 36, 37
sGRP = 38
sOFF = 39
sPASS = 40
sTHR = 41
sKS = 42
sPOFF = 43
sSTAMP = 44
sDBG = 46
SRD_OUT = 48
SRD_ST = 52
sSTOFF = 92
P_X, P_K, P_V, P_WQ, P_WO = 56, 58, 60, 62, 90
KA = 64

vL = 0
vT = [1, 2, 3, 4, 5, 6, 7, 8, 9]
vKA = list(range(10, 18))
vVA = list(range(18, 22))
vWA = list(range(22, 26))
vXB, vXT = 26, 27
vPSA, vPSB, vLACC, vTMP = 28, 29, 30, 31
vQ = 32
vO = 64
vS = [128, 144]
vNM = 160
vP = [176, 184]
vF = 192
vE = 224
vVV = 232
vQW = 233
vOW = 234
vOR = [235, 236, 237, 238]
vWOA = 239
vWOT = 240
vST = 241
NVGPR = 244
vACC1 = 64
vA1 = [128, 144]
vB1 = [160, 172]
vB3 = 32
vA3 = [128, 160]
vACC3 = [192, 204]
vPK3 = 216
vLW = list(range(10, 26))
vLK = list(range(26, 30))
vLWO = list(range(30, 34))


class Prog:
    def __init__(self):
        self.lines = []
        self.bars = {}
    def __call__(self, s):
        for ln in s.split("\n"):
            self.lines.append(ln)
    def label(self, s):
        self.lines.append(s + ":")
    def text(self):
        out = []
        for ln in self.lines:
            ln = ln.strip()
            if not ln:
                continue
            out.append(ln if ln.endswith(":") or ln.startswith(".") or ln.startswith(";") else "    " + ln)
        return "\n".join(out) + "\n"


def vr(b, n):
    return "v[%d:%d]" % (b, b + n - 1) if n > 1 else "v%d" % b
def sr(b, n):
    return "s[%d:%d]" % (b, b + n - 1) if n > 1 else "s%d" % b


class Queue:
    def __init__(self, limit):
        self.q = []
        self.limit = limit
    def issue(self, tag, n=1):
        self.q += [tag] * n
    def need(self, tags):
        last = -1
        for i, t in enumerate(self.q):
            if t in tags:
                last = i
        if last < 0:
            return None
        n = len(self.q) - 1 - last
        self.q = self.q[last + 1:]
        return n
    def drain(self):
        self.q = []
    def room(self, a, n):
        if len(self.q) + n > self.limit:
            keep = self.limit - n
            a("s_waitcnt vmcnt(%d)" % keep)
            self.q = self.q[len(self.q) - keep:]


def srd(a, base, ptr, size, off_s=None, off_shift=None):
    if off_s is None:
        a("s_mov_b32 s%d, s%d" % (base, ptr))
        a("s_mov_b32 s%d, s%d" % (base + 1, ptr + 1))
    else:
        a("s_add_u32 s%d, s%d, s%d" % (base, ptr, off_s))
        a("s_addc_u32 s%d, s%d, 0" % (base + 1, ptr + 1))
    a("s_mov_b32 s%d, 0x%x" % (base + 2, size))
    a("s_mov_b32 s%d, 0x20000" % (base + 3))


def stamp(a, idx):
    if not opt.stamps:
        return
    a("s_memrealtime s[%d:%d]" % (sSTAMP, sSTAMP + 1))
    a("s_waitcnt lgkmcnt(0)")
    a("v_mov_b32 v242, s%d" % sSTAMP)
    a("v_mov_b32 v243, s%d" % sSTOFF)
    a("buffer_store_dword v242, v243, s[%d:%d], 0 offen offset:%d" % (SRD_ST, SRD_ST + 3, idx * 4))


def gen_main(a):
    name = NAME + "_kernel" if not multi() else "attn_main_kernel"
    bars = {"W": [], "V": [], "L": []}

    a.label(name)
    a("s_cmp_ge_u32 s2, 256")
    a("s_cbranch_scc1 L_END")
    a("s_load_dwordx16 s[%d:%d], s[0:1], 0" % (KA, KA + 15))
    a("s_load_dwordx8 s[%d:%d], s[0:1], 64" % (KA + 16, KA + 23))
    a("s_load_dwordx2 s[%d:%d], s[0:1], 96" % (KA + 24, KA + 25))
    a("s_and_b32 s%d, s2, 7" % sT0)
    a("s_lshr_b32 s%d, s2, 3" % sT1)
    a("s_lshr_b32 s%d, s%d, 4" % (sT2, sT1))
    a("s_lshl_b32 s%d, s%d, 1" % (sT0, sT0))
    a("s_add_u32 s%d, s%d, s%d" % (sT0, sT0, sT2))
    a("s_lshr_b32 s%d, s%d, 3" % (sBR, sT0))
    a("s_and_b32 s%d, s%d, 7" % (sKVH, sT0))
    a("s_bfe_u32 s%d, s%d, 0x30001" % (sB, sT1))
    a("s_and_b32 s%d, s%d, 1" % (sT2, sT1))
    a("s_lshl_b32 s%d, s%d, 1" % (sHP, sKVH))
    a("s_add_u32 s%d, s%d, s%d" % (sHP, sHP, sT2))
    a("s_lshl_b32 s%d, s%d, 3" % (sGRP, sBR))
    a("s_add_u32 s%d, s%d, s%d" % (sGRP, sGRP, sB))
    a("v_lshrrev_b32 v1, 6, v0")
    a("v_and_b32 v0, 63, v0")
    a("v_readfirstlane_b32 s%d, v1" % sW)
    a("s_waitcnt lgkmcnt(0)")
    a("s_cmp_eq_u32 s%d, 0" % sBR)
    for dst, pa, pb in ((P_X, KA + 0, KA + 10), (P_K, KA + 2, KA + 12), (P_V, KA + 4, KA + 14),
                        (P_WQ, KA + 6, KA + 16), (P_WO, KA + 8, KA + 18)):
        a("s_cselect_b32 s%d, s%d, s%d" % (dst, pa, pb))
        a("s_cselect_b32 s%d, s%d, s%d" % (dst + 1, pa + 1, pb + 1))
    P_OUT, P_DBG, P_WS = KA + 20, KA + 22, KA + 24
    if opt.stamps:
        a("s_mov_b32 s%d, s%d" % (SRD_ST, P_WS))
        a("s_mov_b32 s%d, s%d" % (SRD_ST + 1, P_WS + 1))
        a("s_mov_b32 s%d, 0x%x" % (SRD_ST + 2, WS_BYTES))
        a("s_mov_b32 s%d, 0x20000" % (SRD_ST + 3))
    a("s_cmp_eq_u32 s%d, 4" % sW)
    a("s_cbranch_scc1 L_LOADER")

    def stamp_setup():
        if opt.stamps:
            a("s_mul_i32 s%d, s2, 5" % sSTOFF)
            a("s_add_u32 s%d, s%d, s%d" % (sSTOFF, sSTOFF, sW))
            a("s_lshl_b32 s%d, s%d, 8" % (sSTOFF, sSTOFF))
            a("s_add_u32 s%d, s%d, 0x%x" % (sSTOFF, sSTOFF, WS_STAMP))

    stamp_setup()
    stamp(a, 0)
    a("s_cmp_eq_u32 s%d, 3" % sW)
    a("s_cbranch_scc1 L_W3_START")
    a("s_mul_i32 s%d, s%d, 49152" % (sT0, sB))
    srd(a, SRD_X, P_X, 49152, sT0)
    a("v_lshlrev_b32 v2, 4, v0")
    a("s_lshl_b32 s%d, s%d, 14" % (sT1, sW))
    for i in range(16):
        if i % 4 == 0:
            a("s_add_u32 s%d, s%d, %d" % (sT2, sT1, (i // 4) * 4096))
            a("s_add_u32 m0, s%d, %d" % (sT2, X_BASE))
        a("v_xor_b32 v3, %d, v2" % (i * 16))
        a("buffer_load_dwordx4 v3, s[%d:%d], s%d offen offset:%d %s lds" % (SRD_X, SRD_X + 3, sT2, (i % 4) * 1024, opt.w_aux))
    a("s_branch L_WORK_SETUP")

    a.label("L_W3_START")
    a("s_lshl_b32 s%d, s%d, 3" % (sT0, sB))
    a("s_add_u32 s%d, s%d, s%d" % (sT0, sT0, sKVH))
    a("s_lshl_b32 s%d, s%d, 18" % (sT0, sT0))
    srd(a, SRD_K, P_K, 262144, sT0)
    srd(a, SRD_V, P_V, 262144, sT0)
    kv_offsets(a, [vE, vE + 1, vE + 2, vE + 3], vVV)
    qV = Queue(63)
    for t in range(4):
        dma_k(a, [vE, vE + 1, vE + 2, vE + 3], t)
        qV.issue("K%d" % t, 8)
        if t in (1, 2):
            dma_v(a, t - 1)
            qV.issue("V%d" % (t - 1), 8)

    a.label("L_WORK_SETUP")
    l = vL
    t1, t2, t3, t4, t5 = vT[0:5]
    a("v_and_b32 v%d, 31, v%d" % (t1, l))
    a("v_lshrrev_b32 v%d, 5, v%d" % (t2, l))
    a("v_and_b32 v%d, 15, v%d" % (t3, l))
    a("v_xor_b32 v%d, v%d, v%d" % (t4, t2, t3))
    a("v_lshlrev_b32 v%d, 4, v%d" % (t4, t4))
    a("v_lshl_add_u32 v%d, v%d, 8, v%d" % (vKA[0], t1, t4))
    for ks in range(1, 8):
        a("v_xor_b32 v%d, %d, v%d" % (vKA[ks], ks * 32, vKA[0]))
    a("v_lshlrev_b32 v%d, 4, v%d" % (t4, t3))
    a("v_lshl_add_u32 v%d, v%d, 8, v%d" % (t4, t1, t4))
    a("v_lshl_add_u32 v%d, v%d, 3, v%d" % (t4, t2, t4))
    a("s_lshl_b32 s%d, s%d, 13" % (sT0, sW))
    a("s_add_u32 s%d, s%d, %d" % (sT0, sT0, M_BASE))
    a("v_add_u32 v%d, s%d, v%d" % (vOW, sT0, t4))
    G, rp, cp = vT[5], vT[6], vT[7]
    a("v_lshrrev_b32 v%d, 4, v%d" % (G, l))
    a("v_bfe_u32 v%d, v%d, 2, 2" % (rp, l))
    a("v_and_b32 v%d, 3, v%d" % (cp, l))
    a("v_lshl_add_u32 v%d, v%d, 2, v%d" % (t1, t2, rp))
    a("v_and_b32 v%d, 1, v%d" % (t4, G))
    a("v_lshlrev_b32 v%d, 1, v%d" % (t4, t4))
    a("v_lshrrev_b32 v%d, 1, v%d" % (t5, cp))
    a("v_add_u32 v%d, v%d, v%d" % (t4, t4, t5))
    a("v_lshlrev_b32 v%d, 2, v%d" % (t5, rp))
    a("v_xor_b32 v%d, v%d, v%d" % (t4, t4, t5))
    a("v_lshlrev_b32 v%d, 4, v%d" % (t4, t4))
    a("v_lshl_add_u32 v%d, v%d, 8, v%d" % (t4, t1, t4))
    a("v_and_b32 v%d, 1, v%d" % (t5, cp))
    a("v_lshl_add_u32 v%d, v%d, 3, v%d" % (t4, t5, t4))
    a("v_add_u32 v%d, 0x%x, v%d" % (vVA[0], V_BASE, t4))
    for db in range(1, 4):
        a("v_xor_b32 v%d, %d, v%d" % (vVA[db], db * 64, vVA[0]))
    a("v_and_b32 v%d, 1, v%d" % (t4, G))
    a("v_lshl_add_u32 v%d, v%d, 2, v%d" % (t4, t4, rp))
    a("s_lshl_b32 s%d, s%d, 2" % (sT0, sW))
    a("v_xor_b32 v%d, s%d, v%d" % (t5, sT0, t4))
    a("v_lshlrev_b32 v%d, 5, v%d" % (t5, t5))
    a("v_lshl_add_u32 v%d, v%d, 3, v%d" % (t1, G, rp))
    a("v_lshl_add_u32 v%d, v%d, 9, v%d" % (t5, t1, t5))
    a("v_lshl_add_u32 v%d, v%d, 3, v%d" % (t5, cp, t5))
    a("v_add_u32 v%d, 0x%x, v%d" % (vWA[0], W_BASE, t5))
    for nb in range(1, 4):
        a("v_xor_b32 v%d, %d, v%d" % (vWA[nb], nb * 32, vWA[0]))
    a("v_and_b32 v%d, 1, v%d" % (t4, G))
    a("v_lshlrev_b32 v%d, 1, v%d" % (t4, t4))
    a("v_lshrrev_b32 v%d, 1, v%d" % (t5, rp))
    a("v_or_b32 v%d, v%d, v%d" % (t4, t4, t5))
    a("v_xor_b32 v%d, s%d, v%d" % (t4, sW, t4))
    a("v_lshlrev_b32 v%d, 5, v%d" % (t4, t4))
    a("v_lshl_add_u32 v%d, v%d, 7, v%d" % (t4, t1, t4))
    a("v_lshl_add_u32 v%d, v%d, 3, v%d" % (vWOA, cp, t4))
    a("v_xor_b32 v%d, v%d, v%d" % (t4, G, t3))
    a("v_lshlrev_b32 v%d, 4, v%d" % (t4, t4))
    a("v_lshl_add_u32 v%d, v%d, 10, v%d" % (t4, t3, t4))
    a("v_add_u32 v%d, 0x%x, v%d" % (vXB, X_BASE, t4))
    a("v_xor_b32 v%d, v%d, v%d" % (t4, G, t3))
    a("v_lshlrev_b32 v%d, 4, v%d" % (t4, t4))
    a("v_lshl_add_u32 v%d, v%d, 8, v%d" % (t4, t3, t4))
    a("v_add_u32 v%d, 0x%x, v%d" % (vOR[0], M_BASE, t4))
    for k in range(1, 4):
        a("v_xor_b32 v%d, %d, v%d" % (vOR[k], k * 64, vOR[0]))
    a("s_and_b32 s%d, s%d, 1" % (sT0, sW))
    a("s_lshl_b32 s%d, s%d, 3" % (sT0, sT0))
    a("v_lshrrev_b32 v%d, 1, v%d" % (t4, G))
    a("v_add_u32 v%d, s%d, v%d" % (t4, sT0, t4))
    a("v_xor_b32 v%d, v%d, v%d" % (t4, t4, t3))
    a("v_lshlrev_b32 v%d, 4, v%d" % (t4, t4))
    a("v_lshl_add_u32 v%d, v%d, 8, v%d" % (t4, t3, t4))
    a("v_and_b32 v%d, 1, v%d" % (t5, G))
    a("v_lshl_add_u32 v%d, v%d, 3, v%d" % (t4, t5, t4))
    a("s_lshr_b32 s%d, s%d, 1" % (sT0, sW))
    a("s_mul_i32 s%d, s%d, %d" % (sT0, sT0, 48 * 256))
    a("s_add_u32 s%d, s%d, %d" % (sT0, sT0, M_BASE))
    a("v_add_u32 v%d, s%d, v%d" % (vQW, sT0, t4))
    a("v_lshlrev_b32 v%d, 3, v%d" % (vST, l))
    a("s_lshl_b32 s%d, s%d, 8" % (sT0, sGRP))
    a("s_add_u32 s%d, s%d, s%d" % (sT0, sT0, sHP))
    a("s_lshr_b32 s%d, s%d, 1" % (sT1, sW))
    a("s_lshl_b32 s%d, s%d, 4" % (sT1, sT1))
    a("s_add_u32 s%d, s%d, s%d" % (sT0, sT0, sT1))
    a("s_mul_i32 s%d, s%d, 3072" % (sPOFF, sT0))
    a("s_and_b32 s%d, s%d, 1" % (sT1, sW))
    a("s_mul_i32 s%d, s%d, 1536" % (sT1, sT1))
    a("s_add_u32 s%d, s%d, s%d" % (sPOFF, sPOFF, sT1))
    srd(a, SRD_WS, P_WS, WS_BYTES)
    a("s_mov_b32 s%d, 0x%08x" % (sTHR, f32bits(2.0 ** opt.thr_log2)))
    for r in range(48):
        a("v_mov_b32 v%d, 0" % (vACC1 + r))
    for r in range(16):
        a("v_mov_b32 v%d, 0" % (vA1[1] + r))
    for r in range(12):
        a("v_mov_b32 v%d, 0" % (vB1[1] + r))
    a("s_cmp_eq_u32 s%d, 3" % sW)
    a("s_cbranch_scc1 L_Q_START")
    a("s_waitcnt vmcnt(0)")
    a.label("L_Q_START")
    stamp(a, 1)

    def bar(role, nm):
        a("s_barrier")
        for r in role:
            bars[r].append(nm)

    def q_mfmas(pb):
        for nb in range(4):
            for qb in range(3):
                acc = vACC1 + (nb * 3 + qb) * 4
                a("v_mfma_f32_16x16x32_bf16 %s, %s, %s, %s" % (vr(acc, 4), vr(vA1[pb] + nb * 4, 4), vr(vB1[pb] + qb * 4, 4), vr(acc, 4)))
    for e in range(16):
        bar("WV", "Q%d" % e)
        pb = e & 1
        a("s_lshl_b32 s%d, s%d, 1" % (sT0, sB))
        a("s_add_u32 s%d, s%d, %d" % (sT0, sT0, e))
        a("s_and_b32 s%d, s%d, 3" % (sT1, sT0))
        a("s_lshl_b32 s%d, s%d, 6" % (sT1, sT1))
        a("s_bfe_u32 s%d, s%d, 0x20002" % (sT2, sT0))
        a("s_lshl_b32 s%d, s%d, 8" % (sT2, sT2))
        a("v_xor_b32 v%d, s%d, v%d" % (vXT, sT1, vXB))
        a("v_add_u32 v%d, s%d, v%d" % (vXT, sT2, vXT))
        for qb in range(3):
            a("ds_read_b128 %s, v%d offset:%d" % (vr(vB1[pb] + qb * 4, 4), vXT, qb * 16384))
        for nb in range(4):
            for jj in range(2):
                a("ds_read_b64_tr_b16 %s, v%d offset:%d" % (vr(vA1[pb] + nb * 4 + jj * 2, 2), vWA[nb], (e & 3) * 16384 + jj * 2048))
        q_mfmas(pb ^ 1)
        a("s_waitcnt lgkmcnt(0)")
    a("s_waitcnt vmcnt(0)")
    qV.drain()
    bar("WV", "Q16")
    q_mfmas(1)
    a("s_cmp_lg_u32 s%d, 3" % sW)
    a("s_cbranch_scc1 L_NOV")
    for t in range(2, 8):
        dma_v(a, t)
        qV.issue("V%d" % t, 8)
    a.label("L_NOV")
    a("s_nop 7")
    scale = math.log2(math.e) / math.sqrt(128.0)
    a("s_mov_b32 s%d, 0x%08x" % (sT0, f32bits(scale)))
    for nb in range(4):
        a("v_xor_b32 v%d, %d, v%d" % (vT[0], nb * 32, vQW))
        for qb in range(3):
            acc = vACC1 + (nb * 3 + qb) * 4
            for r in range(4):
                a("v_mul_f32 v%d, s%d, v%d" % (acc + r, sT0, acc + r))
            a("v_cvt_pk_bf16_f32 v%d, v%d, v%d" % (acc, acc, acc + 1))
            a("v_cvt_pk_bf16_f32 v%d, v%d, v%d" % (acc + 1, acc + 2, acc + 3))
            a("ds_write_b64 v%d, %s offset:%d" % (vT[0], vr(acc, 2), qb * 4096))
    a("s_waitcnt lgkmcnt(0)")
    bar("WV", "Q17")
    stamp(a, 2)
    a("s_cmp_eq_u32 s%d, 3" % sW)
    a("s_cbranch_scc1 L_VLOADER")

    a("s_lshl_b32 s%d, s%d, 13" % (sT0, sW))
    a("s_add_u32 s%d, s%d, %d" % (sT0, sT0, M_BASE))
    for ks in range(8):
        a("v_add_u32 v%d, s%d, v%d" % (vT[ks], sT0, vKA[ks]))
    for ks in range(8):
        a("ds_read_b128 %s, v%d" % (vr(vQ + ks * 4, 4), vT[ks]))
    dq = Queue(15)
    L = opt.L

    def frag_read(t, p):
        if p >= 16:
            t, p = t + 1, p - 16
        fb = vF + (p & 7) * 4
        if p < 8:
            kt = t + 1
            a("ds_read_b128 %s, v%d offset:%d" % (vr(fb, 4), vKA[p], (kt & 7) * 8192))
            dq.issue("F%d" % (p & 7), 1)
        else:
            vt = t - 1
            u, db = (p - 8) >> 2, (p - 8) & 3
            for jj in range(2):
                a("ds_read_b64_tr_b16 %s, v%d offset:%d" % (vr(fb + jj * 2, 2), vVA[db], VPOS[vt & 7] * 8192 + (16 * u + 8 * jj) * 256))
            dq.issue("F%d" % (p & 7), 2)

    def wait_frag(p):
        n = dq.need({"F%d" % (p & 7)})
        if n is not None:
            a("s_waitcnt lgkmcnt(%d)" % n)

    def sm_ops(t):
        S, P = vS[t & 1], vP[t & 1]
        slots = [[] for _ in range(16)]
        for k in range(8):
            e0, e1 = vE + (k & 1) * 2, vE + (k & 1) * 2 + 1
            slots[2 * k] += ["v_exp_f32 v%d, v%d" % (e0, S + 2 * k), "v_exp_f32 v%d, v%d" % (e1, S + 2 * k + 1)]
            if k == 0:
                slots[2 * k + 1] += ["v_mov_b32 v%d, v%d" % (vPSA, e0), "v_mov_b32 v%d, v%d" % (vPSB, e1)]
            else:
                slots[2 * k + 1] += ["v_add_f32 v%d, v%d, v%d" % (vPSA, vPSA, e0), "v_add_f32 v%d, v%d, v%d" % (vPSB, vPSB, e1)]
            slots[2 * k + 1] += ["v_cvt_pk_bf16_f32 v%d, v%d, v%d" % (P + k, e0, e1)]
        return slots

    rare = []

    def period(t, tag, do_qk, do_sm, do_pv, c_zero=False, has_bar=True, next_qk=True):
        sm = sm_ops(t) if do_sm else [[] for _ in range(16)]
        Sn = vS[(t + 1) & 1]
        Pp = vP[(t - 1) & 1]
        for p in range(16):
            mf = None
            if p < 8 and do_qk:
                c = "0" if (p == 0 and c_zero) else (vr(vNM, 16) if p == 0 else vr(Sn, 16))
                mf = "v_mfma_f32_32x32x16_bf16 %s, %s, %s, %s" % (vr(Sn, 16), vr(vF + (p & 7) * 4, 4), vr(vQ + p * 4, 4), c)
            if p >= 8 and do_pv:
                u, db = (p - 8) >> 2, (p - 8) & 3
                mf = "v_mfma_f32_32x32x16_bf16 %s, %s, %s, %s" % (vr(vO + db * 16, 16), vr(vF + (p & 7) * 4, 4), vr(Pp + u * 4, 4), vr(vO + db * 16, 16))
            if mf:
                wait_frag(p)
                a(mf)
            if p == 16 - L and has_bar:
                bar("W", "A%s" % tag)
            pn = p + L
            want = (pn < 8 and do_qk) or (8 <= pn < 16 and do_pv) or (pn >= 16 and next_qk)
            if want:
                frag_read(t, pn)
            for ins in sm[p]:
                a(ins)
        if do_sm:
            lab = "L_RARE_%s" % tag
            a("v_add_f32 v%d, v%d, v%d" % (vPSA, vPSA, vPSB))
            a("v_cmp_nge_f32 vcc, s%d, v%d" % (sTHR, vPSA))
            a("s_cbranch_vccnz %s" % lab)
            a.label(lab + "_BACK")
            a("v_add_f32 v%d, v%d, v%d" % (vLACC, vLACC, vPSA))
            rare.append((lab, t, do_qk))

    def row_max(S, dst):
        a("v_max3_f32 v%d, v%d, v%d, v%d" % (dst, S, S + 1, S + 2))
        for r in range(3, 15, 2):
            a("v_max3_f32 v%d, v%d, v%d, v%d" % (dst, dst, S + r, S + r + 1))
        a("v_max_f32 v%d, v%d, v%d" % (dst, dst, S + 15))
        a("v_mov_b32 v%d, v%d" % (vTMP, dst))
        a("s_nop 1")
        a("v_permlane32_swap_b32 v%d, v%d" % (dst, vTMP))
        a("s_nop 1")
        a("v_max_f32 v%d, v%d, v%d" % (dst, dst, vTMP))

    def emit_rare(lab, t, fix_next):
        S, Sn, P = vS[t & 1], vS[(t + 1) & 1], vP[t & 1]
        d, f = vE + 4, vE + 5
        a.label(lab)
        a("s_nop 15")
        row_max(S, d)
        a("v_max_f32 v%d, 0, v%d" % (d, d))
        a("v_exp_f32 v%d, -v%d" % (f, d))
        for r in range(16):
            a("v_sub_f32 v%d, v%d, v%d" % (vNM + r, vNM + r, d))
        for r in range(16):
            a("v_sub_f32 v%d, v%d, v%d" % (S + r, S + r, d))
        if fix_next:
            for r in range(16):
                a("v_sub_f32 v%d, v%d, v%d" % (Sn + r, Sn + r, d))
        for r in range(64):
            a("v_mul_f32 v%d, v%d, v%d" % (vO + r, vO + r, f))
        a("v_mul_f32 v%d, v%d, v%d" % (vLACC, vLACC, f))
        a("v_mov_b32 v%d, 0" % vPSA)
        for k in range(8):
            a("v_exp_f32 v%d, v%d" % (vE, S + 2 * k))
            a("v_exp_f32 v%d, v%d" % (vE + 1, S + 2 * k + 1))
            a("v_add_f32 v%d, v%d, v%d" % (vPSA, vPSA, vE))
            a("v_add_f32 v%d, v%d, v%d" % (vPSA, vPSA, vE + 1))
            a("v_cvt_pk_bf16_f32 v%d, v%d, v%d" % (P + k, vE, vE + 1))
        a("s_nop 1")
        a("s_branch %s_BACK" % lab)

    for p in range(L):
        frag_read(-1, p)
    dq.q = ["Q"] * 8 + dq.q
    for r in range(64):
        a("v_mov_b32 v%d, 0" % (vO + r))
    a("v_mov_b32 v%d, 0" % vLACC)
    n = dq.need({"Q"})
    a("s_waitcnt lgkmcnt(%d)" % n)
    if opt.dump == "q":
        dump_regs(a, vQ, 32, 0)
    period(-1, "m1", True, False, False, c_zero=True)
    a("s_nop 15")
    row_max(vS[0], vE + 4)
    for r in range(16):
        a("v_sub_f32 v%d, 0, v%d" % (vNM + r, vE + 4))
    for r in range(16):
        a("v_sub_f32 v%d, v%d, v%d" % (vS[0] + r, vS[0] + r, vE + 4))
    a("s_nop 1")
    period(0, "0", True, True, False)
    bars["W"] = bars["W"]
    q_entry = list(dq.q)
    a("s_mov_b32 s%d, 0" % sPASS)
    a(".p2align 3")
    a.label("L_ATT_LOOP")
    loop_bars_start = len(bars["W"])
    for t in range(1, 9):
        period(t, "L%d" % t, True, True, True)
        if t == 6:
            q_exit = list(dq.q)
            a("s_cmp_eq_u32 s%d, 3" % sPASS)
            a("s_cbranch_scc1 L_ATT_EXIT")
    assert dq.q == q_entry, (dq.q, q_entry)
    a("s_add_u32 s%d, s%d, 1" % (sPASS, sPASS))
    a("s_branch L_ATT_LOOP")
    del bars["W"][loop_bars_start:]
    bars["W"] += ["A%d" % t for t in range(1, 31)]
    a.label("L_ATT_EXIT")
    dq.q = list(q_exit)
    period(31, "31", False, True, True, next_qk=False)
    period(32, "32", False, False, True, has_bar=False, next_qk=False)
    stamp(a, 3)
    a("v_mov_b32 v%d, v%d" % (vTMP, vLACC))
    a("s_nop 1")
    a("v_permlane32_swap_b32 v%d, v%d" % (vLACC, vTMP))
    a("s_nop 1")
    a("v_add_f32 v%d, v%d, v%d" % (vLACC, vLACC, vTMP))
    a("v_rcp_f32 v%d, v%d" % (vLACC, vLACC))
    a("s_nop 7")
    for db in range(4):
        for rr in range(4):
            b = vO + db * 16 + rr * 4
            for e in range(4):
                a("v_mul_f32 v%d, v%d, v%d" % (b + e, b + e, vLACC))
            a("v_cvt_pk_bf16_f32 v%d, v%d, v%d" % (b, b, b + 1))
            a("v_cvt_pk_bf16_f32 v%d, v%d, v%d" % (b + 1, b + 2, b + 3))
            a("v_xor_b32 v%d, %d, v%d" % (vT[rr], (4 * db + rr) * 16, vOW))
            a("ds_write_b64 v%d, %s" % (vT[rr], vr(b, 2)))
    a("s_waitcnt lgkmcnt(0)")
    a("s_branch L_E0")

    a.label("L_VLOADER")
    for t in range(-1, 32):
        if t >= 0:
            n = qV.need({"V%d" % t})
            if n is not None:
                a("s_waitcnt vmcnt(%d)" % n)
        a("s_barrier")
        bars["V"].append("A%s" % ("m1" if t < 0 else str(t)))
        if t >= 2 and t + 6 <= 31:
            dma_v(a, t + 6)
            qV.issue("V%d" % (t + 6), 8)
            assert len(qV.q) <= 63

    a.label("L_E0")
    bar("WV", "E0")
    stamp(a, 4)
    for ks in range(8):
        for qb in range(3):
            a("ds_read_b128 %s, v%d offset:%d" % (vr(vB3 + (ks * 3 + qb) * 4, 4), vOR[ks & 3], (48 * (ks >> 2) + 16 * qb) * 256))
    if opt.dump == "o":
        a("s_waitcnt lgkmcnt(0)")
        dump_regs(a, vB3, 96, 0, five=True)

    def a3_reads(p):
        a("v_add_u32 v%d, 0x%x, v%d" % (vWOT, (p & 3) * 32768, vWOA))
        for ks in range(8):
            for jj in range(2):
                a("ds_read_b64_tr_b16 %s, v%d offset:%d" % (vr(vA3[p & 1] + ks * 4 + jj * 2, 2), vWOT, ks * 4096 + jj * 512))
    def mf3(p):
        for ks in range(8):
            for qb in range(3):
                acc = vACC3[p & 1] + qb * 4
                c = "0" if ks == 0 else vr(acc, 4)
                a("v_mfma_f32_16x16x32_bf16 %s, %s, %s, %s" % (vr(acc, 4), vr(vA3[p & 1] + ks * 4, 4), vr(vB3 + (ks * 3 + qb) * 4, 4), c))
    def st3(p):
        a("s_add_u32 s%d, s%d, %d" % (sT0, sB, p))
        a("s_and_b32 s%d, s%d, 7" % (sT0, sT0))
        a("s_mul_i32 s%d, s%d, %d" % (sT0, sT0, 2 * 16 * 3072))
        a("s_add_u32 s%d, s%d, s%d" % (sT0, sT0, sPOFF))
        for qb in range(3):
            acc = vACC3[p & 1] + qb * 4
            a("v_cvt_pk_bf16_f32 v%d, v%d, v%d" % (vPK3 + qb * 2, acc, acc + 1))
            a("v_cvt_pk_bf16_f32 v%d, v%d, v%d" % (vPK3 + qb * 2 + 1, acc + 2, acc + 3))
        for qb in range(3):
            a("buffer_store_dwordx2 %s, v%d, s[%d:%d], s%d offen offset:%d %s" % (vr(vPK3 + qb * 2, 2), vST, SRD_WS, SRD_WS + 3, sT0, qb * 512, opt.part_store_aux))
    for p in range(8):
        if p > 0:
            bar("WV", "P%d" % p)
        a3_reads(p)
        if p >= 2:
            st3(p - 2)
        if p >= 1:
            mf3(p - 1)
        a("s_waitcnt lgkmcnt(0)")
    st3(6)
    mf3(7)
    a("s_nop 7")
    st3(7)
    stamp(a, 5)
    a("s_waitcnt vmcnt(0)")
    stamp(a, 6)
    a("s_branch L_END")

    a.label("L_LOADER")
    stamp_setup()
    stamp(a, 0)
    qL = Queue(63)
    a("s_lshl_b32 s%d, s%d, 9" % (sT0, sHP))
    srd(a, SRD_WQ, P_WQ, 4194304 - 15 * 512, sT0)
    t1, t2, t3, t4 = vT[0:4]
    a("v_lshrrev_b32 v%d, 5, v%d" % (t1, vL))
    a("v_and_b32 v%d, 31, v%d" % (t2, vL))
    a("v_lshlrev_b32 v%d, 1, v%d" % (t3, t1))
    a("v_xor_b32 v%d, v%d, v%d" % (t2, t2, t3))
    a("v_lshlrev_b32 v%d, 4, v%d" % (t2, t2))
    a("v_lshl_add_u32 v%d, v%d, 13, v%d" % (t2, t1, t2))
    a("s_lshl_b32 s%d, s%d, 1" % (sKS, sB))
    def w_voffsets(i):
        x = ((2 * (i & 1)) | (((i >> 2) & 1) << 2)) << 1 << 4
        c = 2 * i * 8192 - (i & 3) * 1024
        if x:
            a("v_xor_b32 v%d, %d, v%d" % (vLW[i], x, t2))
            a("v_add_u32 v%d, 0x%x, v%d" % (vLW[i], c, vLW[i]))
        else:
            a("v_add_u32 v%d, 0x%x, v%d" % (vLW[i], c, t2))
    def dma_w(e, first=False):
        a("s_add_u32 s%d, s%d, %d" % (sT0, sKS, e))
        a("s_and_b32 s%d, s%d, 15" % (sT0, sT0))
        a("s_lshl_b32 s%d, s%d, 18" % (sT0, sT0))
        for i in range(16):
            if i % 4 == 0:
                a("s_mov_b32 m0, 0x%x" % (W_BASE + (e & 3) * 16384 + (i >> 2) * 4096))
            if first:
                w_voffsets(i)
            elif i % 4 == 0:
                a("s_nop 0")
            a("buffer_load_dwordx4 v%d, s[%d:%d], s%d offen offset:%d %s lds" % (vLW[i], SRD_WQ, SRD_WQ + 3, sT0, (i & 3) * 1024, opt.w_aux))
        qL.issue("W%d" % e, 16)
    dma_w(0, True)
    dma_w(1)
    dma_w(2)
    a("s_lshl_b32 s%d, s%d, 3" % (sT0, sB))
    a("s_add_u32 s%d, s%d, s%d" % (sT0, sT0, sKVH))
    a("s_lshl_b32 s%d, s%d, 18" % (sT0, sT0))
    srd(a, SRD_K, P_K, 262144, sT0)
    a("s_lshl_b32 s%d, s%d, 18" % (sT0, sHP))
    srd(a, SRD_WO, P_WO, 262144, sT0)
    kv_offsets(a, vLK, None)
    a("v_lshrrev_b32 v%d, 3, v%d" % (t1, vL))
    a("v_and_b32 v%d, 7, v%d" % (t2, vL))
    a("v_bfe_u32 v%d, v%d, 4, 1" % (t3, vL))
    a("v_lshlrev_b32 v%d, 1, v%d" % (t3, t3))
    a("v_xor_b32 v%d, v%d, v%d" % (t2, t2, t3))
    a("v_lshlrev_b32 v%d, 4, v%d" % (t2, t2))
    a("v_lshl_add_u32 v%d, v%d, 10, v%d" % (t2, t1, t2))
    for aa in range(4):
        x = ((aa & 1) << 1) << 1 << 4
        if x:
            a("v_xor_b32 v%d, %d, v%d" % (vLWO[aa], x, t2))
            a("v_add_u32 v%d, %d, v%d" % (vLWO[aa], 7 * aa * 1024, vLWO[aa]))
        else:
            a("v_add_u32 v%d, %d, v%d" % (vLWO[aa], 7 * aa * 1024, t2))
    def dma_wo(p):
        a("s_add_u32 s%d, s%d, %d" % (sT0, sB, p))
        a("s_and_b32 s%d, s%d, 7" % (sT0, sT0))
        a("s_lshl_b32 s%d, s%d, 7" % (sT0, sT0))
        for i in range(32):
            if i % 4 == 0:
                qL.room(a, 4)
                qL.issue("WO%d" % p, 4)
                a("s_mov_b32 m0, 0x%x" % ((p & 3) * 32768 + (i >> 2) * 4096))
                if i:
                    a("s_add_u32 s%d, s%d, 32768" % (sT0, sT0))
                else:
                    a("s_nop 0")
            a("buffer_load_dwordx4 v%d, s[%d:%d], s%d offen offset:%d %s lds" % (vLWO[i & 3], SRD_WO, SRD_WO + 3, sT0, (i & 3) * 1024, opt.w_aux))
    def lwait(tags):
        n = qL.need(set(tags))
        if n is not None:
            a("s_waitcnt vmcnt(%d)" % min(n, 63))
    def lbar(nm):
        a("s_barrier")
        bars["L"].append(nm)
    def lk(t):
        dma_k(a, vLK, t)
        qL.issue("K%d" % t, 8)
    for e in range(16):
        lwait(["W%d" % e])
        lbar("Q%d" % e)
        if e + 3 <= 15:
            dma_w(e + 3)
        if e == 13:
            lk(4); lk(5)
        if e == 14:
            lk(6); lk(7)
        assert len(qL.q) <= 63, (e, len(qL.q))
    lbar("Q16")
    lbar("Q17")
    stamp(a, 2)
    for t in range(-1, 32):
        lwait(["K%d" % (t + 2)])
        lbar("A%s" % ("m1" if t < 0 else str(t)))
        if t + 9 <= 31:
            lk(t + 9)
            assert len(qL.q) <= 63, (t, len(qL.q))
        if t == 26:
            dma_wo(0)
        if t == 30:
            dma_wo(1)
        if t == 31:
            lwait(["WO0"])
            dma_wo(2)
    lwait(["WO0"])
    lbar("E0")
    stamp(a, 4)
    dma_wo(3)
    for p in range(1, 8):
        lwait(["WO%d" % p])
        lbar("P%d" % p)
        if p + 3 <= 7:
            dma_wo(p + 3)
    stamp(a, 6)

    a.label("L_END")
    a("s_endpgm")
    for lab, t, fix in rare:
        emit_rare(lab, t, fix)

    assert bars["W"] == bars["V"] == bars["L"], "barrier sequences differ:\n%s\n%s\n%s" % (bars["W"], bars["V"], bars["L"])
    return name


def kv_offsets(a, vk, vv):
    t1, t2, t3 = vT[0:3]
    a("v_lshrrev_b32 v%d, 4, v%d" % (t1, vL))
    a("v_and_b32 v%d, 15, v%d" % (t2, vL))
    a("v_xor_b32 v%d, v%d, v%d" % (t3, t2, t1))
    a("v_lshlrev_b32 v%d, 4, v%d" % (t3, t3))
    a("v_lshl_add_u32 v%d, v%d, 8, v%d" % (vk[0], t1, t3))
    for aa in range(1, 4):
        a("v_xor_b32 v%d, %d, v%d" % (vk[aa], aa * 4 * 16, vk[0]))
    if vv is not None:
        a("v_lshlrev_b32 v%d, 2, v%d" % (t3, t1))
        a("v_xor_b32 v%d, v%d, v%d" % (t3, t2, t3))
        a("v_lshlrev_b32 v%d, 4, v%d" % (t3, t3))
        a("v_lshl_add_u32 v%d, v%d, 8, v%d" % (vv, t1, t3))


def dma_k(a, vk, t):
    for i in range(8):
        if i % 4 == 0:
            a("s_mov_b32 m0, 0x%x" % (K_BASE + (t & 7) * 8192 + (i >> 2) * 4096))
            a("s_mov_b32 s%d, 0x%x" % (sOFF, t * 8192 + (i >> 2) * 4096))
        a("buffer_load_dwordx4 v%d, s[%d:%d], s%d offen offset:%d %s lds" % (vk[i & 3], SRD_K, SRD_K + 3, sOFF, (i & 3) * 1024, opt.kv_aux))


def dma_v(a, t):
    for i in range(8):
        if i % 4 == 0:
            a("s_mov_b32 m0, 0x%x" % (V_BASE + VPOS[t & 7] * 8192 + (i >> 2) * 4096))
            a("s_mov_b32 s%d, 0x%x" % (sOFF, t * 8192 + (i >> 2) * 4096))
        a("buffer_load_dwordx4 v%d, s[%d:%d], s%d offen offset:%d %s lds" % (vVV, SRD_V, SRD_V + 3, sOFF, (i & 3) * 1024, opt.kv_aux))


def dump_regs(a, base, n, slot, five=False):
    a("s_mul_i32 s%d, s2, 5" % sT0)
    a("s_add_u32 s%d, s%d, s%d" % (sT0, sT0, sW))
    a("s_mul_i32 s%d, s%d, %d" % (sT0, sT0, 96 * 256))
    a("s_add_u32 s%d, s%d, 0x%x" % (sT0, sT0, WS_DUMP))
    a("v_lshlrev_b32 v%d, 4, v%d" % (vT[8], vL))
    for g in range(n // 4):
        a("buffer_store_dwordx4 %s, v%d, s[%d:%d], s%d offen" % (vr(base + g * 4, 4), vT[8], SRD_WS, SRD_WS + 3, sT0))
        a("s_add_u32 s%d, s%d, 1024" % (sT0, sT0))
    a("s_waitcnt vmcnt(0)")


def f32bits(x):
    import struct
    return struct.unpack("<I", struct.pack("<f", x))[0]


def multi():
    return not opt.fused_tail


def gen_reduce(a):
    name = "attn_reduce_kernel"
    a(".p2align 8")
    a(".globl %s" % name)
    a(".type %s,@function" % name)
    a.label(name)
    a("s_cmp_ge_u32 s2, 256")
    a("s_cbranch_scc1 R_END")
    a("s_load_dwordx2 s[4:5], s[0:1], 80")
    a("s_load_dwordx2 s[6:7], s[0:1], 96")
    a("v_lshrrev_b32 v1, 6, v0")
    a("v_and_b32 v0, 63, v0")
    a("v_readfirstlane_b32 s3, v1")
    a("v_lshlrev_b32 v2, 3, v0")
    a("s_mul_i32 s16, s2, %d" % (16 * 3072))
    a("s_lshl_b32 s17, s3, 9")
    a("s_add_u32 s16, s16, s17")
    a("s_waitcnt lgkmcnt(0)")
    a("s_mov_b32 s8, s6\ns_mov_b32 s9, s7\ns_mov_b32 s10, 0x%x\ns_mov_b32 s11, 0x20000" % WS_PART_BYTES)
    for s in range(16):
        a("buffer_load_dwordx2 %s, v2, s[8:11], s16 offen %s" % (vr(8 + 2 * s, 2), opt.part_load_aux))
        if s < 15:
            a("s_add_u32 s16, s16, 3072")
    a("s_mov_b32 s12, s4\ns_mov_b32 s13, s5\ns_mov_b32 s14, %d\ns_mov_b32 s15, 0x20000" % (8 * 48 * 1024 * 2))
    a("s_lshr_b32 s18, s2, 4")
    a("s_and_b32 s19, s2, 15")
    a("s_and_b32 s20, s18, 7")
    a("s_lshr_b32 s21, s18, 3")
    a("s_cmp_ge_u32 s3, 3")
    a("s_cselect_b32 s22, 1, 0")
    a("s_mul_i32 s23, s22, 3")
    a("s_sub_u32 s23, s3, s23")
    a("s_mul_i32 s24, s20, 48")
    a("s_lshl_b32 s25, s23, 4")
    a("s_add_u32 s24, s24, s25")
    a("s_lshl_b32 s24, s24, 11")
    a("s_lshl_b32 s25, s21, 10")
    a("s_add_u32 s24, s24, s25")
    a("s_lshl_b32 s25, s19, 6")
    a("s_add_u32 s24, s24, s25")
    a("s_lshl_b32 s25, s22, 5")
    a("s_add_u32 s24, s24, s25")
    a("v_and_b32 v3, 15, v0")
    a("v_lshrrev_b32 v4, 4, v0")
    a("v_lshlrev_b32 v3, 11, v3")
    a("v_lshl_add_u32 v3, v4, 3, v3")
    a("s_mov_b32 s26, 0xffff0000")
    for s in range(16):
        a("s_waitcnt vmcnt(%d)" % (15 - s))
        x0, x1 = 8 + 2 * s, 9 + 2 * s
        if s == 0:
            a("v_lshlrev_b32 v4, 16, v%d" % x0)
            a("v_and_b32 v5, s26, v%d" % x0)
            a("v_lshlrev_b32 v6, 16, v%d" % x1)
            a("v_and_b32 v7, s26, v%d" % x1)
        else:
            a("v_lshlrev_b32 v40, 16, v%d" % x0)
            a("v_and_b32 v41, s26, v%d" % x0)
            a("v_lshlrev_b32 v42, 16, v%d" % x1)
            a("v_and_b32 v43, s26, v%d" % x1)
            a("v_add_f32 v4, v4, v40\nv_add_f32 v5, v5, v41\nv_add_f32 v6, v6, v42\nv_add_f32 v7, v7, v43")
    a("v_cvt_pk_bf16_f32 v8, v4, v5")
    a("v_cvt_pk_bf16_f32 v9, v6, v7")
    a("buffer_store_dwordx2 v[8:9], v3, s[12:15], s24 offen")
    a.label("R_END")
    a("s_endpgm")
    return name


def kd(name, vgpr, sgpr):
    acc = (vgpr + 3) // 4 * 4
    return """.p2align 6
.amdhsa_kernel %s
  .amdhsa_next_free_vgpr %d
  .amdhsa_next_free_sgpr %d
  .amdhsa_accum_offset %d
  .amdhsa_group_segment_fixed_size 0
  .amdhsa_kernarg_size 104
  .amdhsa_user_sgpr_count 2
  .amdhsa_user_sgpr_kernarg_segment_ptr 1
  .amdhsa_system_sgpr_workgroup_id_x 1
.end_amdhsa_kernel
""" % (name, vgpr, sgpr, acc)


def build():
    hdr = open("cdna_kernels/%s.s.ref" % NAME).read().split("\n")
    head = [ln for ln in hdr if ln.startswith(";") and "@launch" not in ln and "Override launch" not in ln and "grid=ceil" not in ln]
    head = head[:14]
    a = Prog()
    main = "attn_main_kernel" if multi() else NAME + "_kernel"
    if multi():
        head.append("; @launch kernel=attn_main_kernel grid=(256,1,1) block=(320,1,1) lds=%d" % LDS_BYTES)
        head.append("; @launch kernel=attn_reduce_kernel grid=(256,1,1) block=(384,1,1) lds=0")
    else:
        head.append("; @launch grid=(256,1,1) block=(320,1,1) lds=%d" % LDS_BYTES)
    a('.amdgcn_target "amdgcn-amd-amdhsa--gfx950"')
    a(".text")
    a(".globl %s" % main)
    a(".p2align 8")
    a(".type %s,@function" % main)
    gen_main(a)
    kds = kd(main, NVGPR, 96)
    if multi():
        r = gen_reduce(a)
        kds += kd(r, 48, 32)
    return "\n".join(head) + "\n" + a.text() + '.section .rodata,"a"\n' + kds


if __name__ == "__main__":
    out = sys.argv[1] if len(sys.argv) > 1 else "cdna_kernels/%s.s" % NAME
    for kv in sys.argv[2:]:
        k, v = kv.split("=", 1)
        cur = getattr(opt, k)
        if isinstance(cur, bool):
            v = v in ("1", "True", "true")
        elif isinstance(cur, int):
            v = int(v)
        elif v == "None":
            v = None
        setattr(opt, k, v)
    s = build()
    open(out, "w").write(s)
    print("wrote", out, len(s), "bytes,", s.count("\n"), "lines")
```

```python
import sys, math

NAME = "concat_heads__gqa_block_cached__gqa_block_cached__near_ridge"

class Opt:
    fused_tail = False
    kv_aux = "nt"
    w_aux = ""
    part_store_aux = ""
    part_load_aux = ""
    dump = None
    L = 4
    thr_log2 = 12
    stamps = False
    x_nobar = False
    x_nowait = False
    x_nosm = False
    x_nods = False
    x_nomfma = False
    pairwait = False
    x_norare = False

opt = Opt()

KB = 1024
K_BASE = 0
V_BASE = 64 * KB
M_BASE = 128 * KB
X_BASE = 112 * KB
W_BASE = 32 * KB
LDS_BYTES = 160 * KB
VPOS = [4, 5, 0, 1, 2, 3, 6, 7]

WS_PART = 0
WS_PART_BYTES = 16 * 16 * 16 * 3072
WS_DUMP = 16 << 20
WS_STAMP = 48 << 20
WS_BYTES = 268435456

sWG = 2
sW = 3
sB = 4
sHP = 5
sBR = 6
sKVH = 7
SRD_X, SRD_WQ, SRD_K, SRD_V, SRD_WO, SRD_WS = 8, 12, 16, 20, 24, 28
sT0, sT1, sT2, sT3, sT4, sT5 = 32, 33, 34, 35, 36, 37
sGRP = 38
sOFF = 39
sPASS = 40
sTHR = 41
sKS = 42
sPOFF = 43
sSTAMP = 44
sDBG = 46
SRD_OUT = 48
SRD_ST = 52
sSTOFF = 92
P_X, P_K, P_V, P_WQ, P_WO = 56, 58, 60, 62, 90
KA = 64

vL = 0
vT = [1, 2, 3, 4, 5, 6, 7, 8, 9]
vKA = list(range(10, 18))
vVA = list(range(18, 22))
vWA = list(range(22, 26))
vXB, vXT = 26, 27
vPSA, vPSB, vLACC, vTMP = 28, 29, 30, 31
vQ = 32
vO = 64
vS = [128, 144]
vNM = 160
vP = [176, 184]
vF = 192
vE = 224
vVV = 232
vQW = 233
vOW = 234
vOR = [235, 236, 237, 238]
vWOA = 239
vWOT = 240
vST = 241
NVGPR = 244
vACC1 = 64
vA1 = [128, 144]
vB1 = [160, 172]
vB3 = 32
vA3 = [128, 160]
vACC3 = [192, 204]
vPK3 = 216
vLW = list(range(10, 26))
vLK = list(range(26, 30))
vLWO = list(range(30, 34))


class Prog:
    def __init__(self):
        self.lines = []
        self.bars = {}
    def __call__(self, s):
        for ln in s.split("\n"):
            self.lines.append(ln)
    def label(self, s):
        self.lines.append(s + ":")
    def text(self):
        out = []
        for ln in self.lines:
            ln = ln.strip()
            if not ln:
                continue
            out.append(ln if ln.endswith(":") or ln.startswith(".") or ln.startswith(";") else "    " + ln)
        return "\n".join(out) + "\n"


def vr(b, n):
    return "v[%d:%d]" % (b, b + n - 1) if n > 1 else "v%d" % b
def sr(b, n):
    return "s[%d:%d]" % (b, b + n - 1) if n > 1 else "s%d" % b


class Queue:
    def __init__(self, limit):
        self.q = []
        self.limit = limit
    def issue(self, tag, n=1):
        self.q += [tag] * n
    def need(self, tags):
        last = -1
        for i, t in enumerate(self.q):
            if t in tags:
                last = i
        if last < 0:
            return None
        n = len(self.q) - 1 - last
        self.q = self.q[last + 1:]
        return n
    def drain(self):
        self.q = []
    def room(self, a, n):
        if len(self.q) + n > self.limit:
            keep = self.limit - n
            a("s_waitcnt vmcnt(%d)" % keep)
            self.q = self.q[len(self.q) - keep:]


def srd(a, base, ptr, size, off_s=None, off_shift=None):
    if off_s is None:
        a("s_mov_b32 s%d, s%d" % (base, ptr))
        a("s_mov_b32 s%d, s%d" % (base + 1, ptr + 1))
    else:
        a("s_add_u32 s%d, s%d, s%d" % (base, ptr, off_s))
        a("s_addc_u32 s%d, s%d, 0" % (base + 1, ptr + 1))
    a("s_mov_b32 s%d, 0x%x" % (base + 2, size))
    a("s_mov_b32 s%d, 0x20000" % (base + 3))


def stamp(a, idx):
    if not opt.stamps:
        return
    a("s_memrealtime s[%d:%d]" % (sSTAMP, sSTAMP + 1))
    a("s_memtime s[%d:%d]" % (sDBG, sDBG + 1))
    a("s_waitcnt lgkmcnt(0)")
    a("v_mov_b32 v242, s%d" % sSTAMP)
    a("v_mov_b32 v243, s%d" % sSTOFF)
    a("buffer_store_dword v242, v243, s[%d:%d], 0 offen offset:%d" % (SRD_ST, SRD_ST + 3, idx * 4))
    a("v_mov_b32 v242, s%d" % sDBG)
    a("buffer_store_dword v242, v243, s[%d:%d], 0 offen offset:%d" % (SRD_ST, SRD_ST + 3, 128 + idx * 4))


def gen_main(a):
    name = NAME + "_kernel" if not multi() else "attn_main_kernel"
    bars = {"W": [], "V": [], "L": []}

    a.label(name)
    a("s_cmp_ge_u32 s2, 256")
    a("s_cbranch_scc1 L_END")
    a("s_load_dwordx16 s[%d:%d], s[0:1], 0" % (KA, KA + 15))
    a("s_load_dwordx8 s[%d:%d], s[0:1], 64" % (KA + 16, KA + 23))
    a("s_load_dwordx2 s[%d:%d], s[0:1], 96" % (KA + 24, KA + 25))
    a("s_and_b32 s%d, s2, 7" % sT0)
    a("s_lshr_b32 s%d, s2, 3" % sT1)
    a("s_lshr_b32 s%d, s%d, 4" % (sT2, sT1))
    a("s_lshl_b32 s%d, s%d, 1" % (sT0, sT0))
    a("s_add_u32 s%d, s%d, s%d" % (sT0, sT0, sT2))
    a("s_lshr_b32 s%d, s%d, 3" % (sBR, sT0))
    a("s_and_b32 s%d, s%d, 7" % (sKVH, sT0))
    a("s_bfe_u32 s%d, s%d, 0x30001" % (sB, sT1))
    a("s_and_b32 s%d, s%d, 1" % (sT2, sT1))
    a("s_lshl_b32 s%d, s%d, 1" % (sHP, sKVH))
    a("s_add_u32 s%d, s%d, s%d" % (sHP, sHP, sT2))
    a("s_lshl_b32 s%d, s%d, 3" % (sGRP, sBR))
    a("s_add_u32 s%d, s%d, s%d" % (sGRP, sGRP, sB))
    a("v_lshrrev_b32 v1, 6, v0")
    a("v_and_b32 v0, 63, v0")
    a("v_readfirstlane_b32 s%d, v1" % sW)
    a("s_waitcnt lgkmcnt(0)")
    a("s_cmp_eq_u32 s%d, 0" % sBR)
    for dst, pa, pb in ((P_X, KA + 0, KA + 10), (P_K, KA + 2, KA + 12), (P_V, KA + 4, KA + 14),
                        (P_WQ, KA + 6, KA + 16), (P_WO, KA + 8, KA + 18)):
        a("s_cselect_b32 s%d, s%d, s%d" % (dst, pa, pb))
        a("s_cselect_b32 s%d, s%d, s%d" % (dst + 1, pa + 1, pb + 1))
    P_OUT, P_DBG, P_WS = KA + 20, KA + 22, KA + 24
    if opt.stamps:
        a("s_mov_b32 s%d, s%d" % (SRD_ST, P_WS))
        a("s_mov_b32 s%d, s%d" % (SRD_ST + 1, P_WS + 1))
        a("s_mov_b32 s%d, 0x%x" % (SRD_ST + 2, WS_BYTES))
        a("s_mov_b32 s%d, 0x20000" % (SRD_ST + 3))
    a("s_cmp_eq_u32 s%d, 4" % sW)
    a("s_cbranch_scc1 L_LOADER")

    def stamp_setup():
        if opt.stamps:
            a("s_mul_i32 s%d, s2, 5" % sSTOFF)
            a("s_add_u32 s%d, s%d, s%d" % (sSTOFF, sSTOFF, sW))
            a("s_lshl_b32 s%d, s%d, 8" % (sSTOFF, sSTOFF))
            a("s_add_u32 s%d, s%d, 0x%x" % (sSTOFF, sSTOFF, WS_STAMP))

    stamp_setup()
    stamp(a, 0)
    a("s_cmp_eq_u32 s%d, 3" % sW)
    a("s_cbranch_scc1 L_W3_START")
    a("s_mul_i32 s%d, s%d, 49152" % (sT0, sB))
    srd(a, SRD_X, P_X, 49152, sT0)
    a("v_lshlrev_b32 v2, 4, v0")
    a("s_lshl_b32 s%d, s%d, 14" % (sT1, sW))
    for i in range(16):
        if i % 4 == 0:
            a("s_add_u32 s%d, s%d, %d" % (sT2, sT1, (i // 4) * 4096))
            a("s_add_u32 m0, s%d, %d" % (sT2, X_BASE))
        a("v_xor_b32 v3, %d, v2" % (i * 16))
        a("buffer_load_dwordx4 v3, s[%d:%d], s%d offen offset:%d %s lds" % (SRD_X, SRD_X + 3, sT2, (i % 4) * 1024, opt.w_aux))
    a("s_branch L_WORK_SETUP")

    a.label("L_W3_START")
    a("s_lshl_b32 s%d, s%d, 3" % (sT0, sB))
    a("s_add_u32 s%d, s%d, s%d" % (sT0, sT0, sKVH))
    a("s_lshl_b32 s%d, s%d, 18" % (sT0, sT0))
    srd(a, SRD_K, P_K, 262144, sT0)
    srd(a, SRD_V, P_V, 262144, sT0)
    kv_offsets(a, [vE, vE + 1, vE + 2, vE + 3], vVV)
    qV = Queue(63)
    for t in range(4):
        dma_k(a, [vE, vE + 1, vE + 2, vE + 3], t)
        qV.issue("K%d" % t, 8)
        if t in (1, 2):
            dma_v(a, t - 1)
            qV.issue("V%d" % (t - 1), 8)

    a.label("L_WORK_SETUP")
    l = vL
    t1, t2, t3, t4, t5 = vT[0:5]
    a("v_and_b32 v%d, 31, v%d" % (t1, l))
    a("v_lshrrev_b32 v%d, 5, v%d" % (t2, l))
    a("v_and_b32 v%d, 15, v%d" % (t3, l))
    a("v_xor_b32 v%d, v%d, v%d" % (t4, t2, t3))
    a("v_lshlrev_b32 v%d, 4, v%d" % (t4, t4))
    a("v_lshl_add_u32 v%d, v%d, 8, v%d" % (vKA[0], t1, t4))
    for ks in range(1, 8):
        a("v_xor_b32 v%d, %d, v%d" % (vKA[ks], ks * 32, vKA[0]))
    a("v_lshlrev_b32 v%d, 4, v%d" % (t4, t3))
    a("v_lshl_add_u32 v%d, v%d, 8, v%d" % (t4, t1, t4))
    a("v_lshl_add_u32 v%d, v%d, 3, v%d" % (t4, t2, t4))
    a("s_lshl_b32 s%d, s%d, 13" % (sT0, sW))
    a("s_add_u32 s%d, s%d, %d" % (sT0, sT0, M_BASE))
    a("v_add_u32 v%d, s%d, v%d" % (vOW, sT0, t4))
    G, rp, cp = vT[5], vT[6], vT[7]
    a("v_lshrrev_b32 v%d, 4, v%d" % (G, l))
    a("v_bfe_u32 v%d, v%d, 2, 2" % (rp, l))
    a("v_and_b32 v%d, 3, v%d" % (cp, l))
    a("v_lshl_add_u32 v%d, v%d, 2, v%d" % (t1, t2, rp))
    a("v_and_b32 v%d, 1, v%d" % (t4, G))
    a("v_lshlrev_b32 v%d, 1, v%d" % (t4, t4))
    a("v_lshrrev_b32 v%d, 1, v%d" % (t5, cp))
    a("v_add_u32 v%d, v%d, v%d" % (t4, t4, t5))
    a("v_lshlrev_b32 v%d, 2, v%d" % (t5, rp))
    a("v_xor_b32 v%d, v%d, v%d" % (t4, t4, t5))
    a("v_lshlrev_b32 v%d, 4, v%d" % (t4, t4))
    a("v_lshl_add_u32 v%d, v%d, 8, v%d" % (t4, t1, t4))
    a("v_and_b32 v%d, 1, v%d" % (t5, cp))
    a("v_lshl_add_u32 v%d, v%d, 3, v%d" % (t4, t5, t4))
    a("v_add_u32 v%d, 0x%x, v%d" % (vVA[0], V_BASE, t4))
    for db in range(1, 4):
        a("v_xor_b32 v%d, %d, v%d" % (vVA[db], db * 64, vVA[0]))
    a("v_and_b32 v%d, 1, v%d" % (t4, G))
    a("v_lshl_add_u32 v%d, v%d, 2, v%d" % (t4, t4, rp))
    a("s_lshl_b32 s%d, s%d, 2" % (sT0, sW))
    a("v_xor_b32 v%d, s%d, v%d" % (t5, sT0, t4))
    a("v_lshlrev_b32 v%d, 5, v%d" % (t5, t5))
    a("v_lshl_add_u32 v%d, v%d, 3, v%d" % (t1, G, rp))
    a("v_lshl_add_u32 v%d, v%d, 9, v%d" % (t5, t1, t5))
    a("v_lshl_add_u32 v%d, v%d, 3, v%d" % (t5, cp, t5))
    a("v_add_u32 v%d, 0x%x, v%d" % (vWA[0], W_BASE, t5))
    for nb in range(1, 4):
        a("v_xor_b32 v%d, %d, v%d" % (vWA[nb], nb * 32, vWA[0]))
    a("v_and_b32 v%d, 1, v%d" % (t4, G))
    a("v_lshlrev_b32 v%d, 1, v%d" % (t4, t4))
    a("v_lshrrev_b32 v%d, 1, v%d" % (t5, rp))
    a("v_or_b32 v%d, v%d, v%d" % (t4, t4, t5))
    a("v_xor_b32 v%d, s%d, v%d" % (t4, sW, t4))
    a("v_lshlrev_b32 v%d, 5, v%d" % (t4, t4))
    a("v_lshl_add_u32 v%d, v%d, 7, v%d" % (t4, t1, t4))
    a("v_lshl_add_u32 v%d, v%d, 3, v%d" % (vWOA, cp, t4))
    a("v_xor_b32 v%d, v%d, v%d" % (t4, G, t3))
    a("v_lshlrev_b32 v%d, 4, v%d" % (t4, t4))
    a("v_lshl_add_u32 v%d, v%d, 10, v%d" % (t4, t3, t4))
    a("v_add_u32 v%d, 0x%x, v%d" % (vXB, X_BASE, t4))
    a("v_xor_b32 v%d, v%d, v%d" % (t4, G, t3))
    a("v_lshlrev_b32 v%d, 4, v%d" % (t4, t4))
    a("v_lshl_add_u32 v%d, v%d, 8, v%d" % (t4, t3, t4))
    a("v_add_u32 v%d, 0x%x, v%d" % (vOR[0], M_BASE, t4))
    for k in range(1, 4):
        a("v_xor_b32 v%d, %d, v%d" % (vOR[k], k * 64, vOR[0]))
    a("s_and_b32 s%d, s%d, 1" % (sT0, sW))
    a("s_lshl_b32 s%d, s%d, 3" % (sT0, sT0))
    a("v_lshrrev_b32 v%d, 1, v%d" % (t4, G))
    a("v_add_u32 v%d, s%d, v%d" % (t4, sT0, t4))
    a("v_xor_b32 v%d, v%d, v%d" % (t4, t4, t3))
    a("v_lshlrev_b32 v%d, 4, v%d" % (t4, t4))
    a("v_lshl_add_u32 v%d, v%d, 8, v%d" % (t4, t3, t4))
    a("v_and_b32 v%d, 1, v%d" % (t5, G))
    a("v_lshl_add_u32 v%d, v%d, 3, v%d" % (t4, t5, t4))
    a("s_lshr_b32 s%d, s%d, 1" % (sT0, sW))
    a("s_mul_i32 s%d, s%d, %d" % (sT0, sT0, 48 * 256))
    a("s_add_u32 s%d, s%d, %d" % (sT0, sT0, M_BASE))
    a("v_add_u32 v%d, s%d, v%d" % (vQW, sT0, t4))
    a("v_lshlrev_b32 v%d, 3, v%d" % (vST, l))
    a("s_lshl_b32 s%d, s%d, 8" % (sT0, sGRP))
    a("s_add_u32 s%d, s%d, s%d" % (sT0, sT0, sHP))
    a("s_lshr_b32 s%d, s%d, 1" % (sT1, sW))
    a("s_lshl_b32 s%d, s%d, 4" % (sT1, sT1))
    a("s_add_u32 s%d, s%d, s%d" % (sT0, sT0, sT1))
    a("s_mul_i32 s%d, s%d, 3072" % (sPOFF, sT0))
    a("s_and_b32 s%d, s%d, 1" % (sT1, sW))
    a("s_mul_i32 s%d, s%d, 1536" % (sT1, sT1))
    a("s_add_u32 s%d, s%d, s%d" % (sPOFF, sPOFF, sT1))
    srd(a, SRD_WS, P_WS, WS_BYTES)
    a("s_mov_b32 s%d, 0x%08x" % (sTHR, f32bits(2.0 ** opt.thr_log2)))
    for r in range(48):
        a("v_mov_b32 v%d, 0" % (vACC1 + r))
    for r in range(16):
        a("v_mov_b32 v%d, 0" % (vA1[1] + r))
    for r in range(12):
        a("v_mov_b32 v%d, 0" % (vB1[1] + r))
    a("s_cmp_eq_u32 s%d, 3" % sW)
    a("s_cbranch_scc1 L_Q_START")
    a("s_waitcnt vmcnt(0)")
    a.label("L_Q_START")
    stamp(a, 1)

    def bar(role, nm):
        a("s_barrier")
        for r in role:
            bars[r].append(nm)

    def q_mfmas(pb):
        for nb in range(4):
            for qb in range(3):
                acc = vACC1 + (nb * 3 + qb) * 4
                a("v_mfma_f32_16x16x32_bf16 %s, %s, %s, %s" % (vr(acc, 4), vr(vA1[pb] + nb * 4, 4), vr(vB1[pb] + qb * 4, 4), vr(acc, 4)))
    for e in range(16):
        bar("WV", "Q%d" % e)
        pb = e & 1
        a("s_lshl_b32 s%d, s%d, 1" % (sT0, sB))
        a("s_add_u32 s%d, s%d, %d" % (sT0, sT0, e))
        a("s_and_b32 s%d, s%d, 3" % (sT1, sT0))
        a("s_lshl_b32 s%d, s%d, 6" % (sT1, sT1))
        a("s_bfe_u32 s%d, s%d, 0x20002" % (sT2, sT0))
        a("s_lshl_b32 s%d, s%d, 8" % (sT2, sT2))
        a("v_xor_b32 v%d, s%d, v%d" % (vXT, sT1, vXB))
        a("v_add_u32 v%d, s%d, v%d" % (vXT, sT2, vXT))
        for qb in range(3):
            a("ds_read_b128 %s, v%d offset:%d" % (vr(vB1[pb] + qb * 4, 4), vXT, qb * 16384))
        for nb in range(4):
            for jj in range(2):
                a("ds_read_b64_tr_b16 %s, v%d offset:%d" % (vr(vA1[pb] + nb * 4 + jj * 2, 2), vWA[nb], (e & 3) * 16384 + jj * 2048))
        q_mfmas(pb ^ 1)
        a("s_waitcnt lgkmcnt(0)")
    a("s_waitcnt vmcnt(0)")
    qV.drain()
    bar("WV", "Q16")
    q_mfmas(1)
    a("s_cmp_lg_u32 s%d, 3" % sW)
    a("s_cbranch_scc1 L_NOV")
    for t in range(2, 8):
        dma_v(a, t)
        qV.issue("V%d" % t, 8)
    a.label("L_NOV")
    a("s_nop 7")
    scale = math.log2(math.e) / math.sqrt(128.0)
    a("s_mov_b32 s%d, 0x%08x" % (sT0, f32bits(scale)))
    for nb in range(4):
        a("v_xor_b32 v%d, %d, v%d" % (vT[0], nb * 32, vQW))
        for qb in range(3):
            acc = vACC1 + (nb * 3 + qb) * 4
            for r in range(4):
                a("v_mul_f32 v%d, s%d, v%d" % (acc + r, sT0, acc + r))
            a("v_cvt_pk_bf16_f32 v%d, v%d, v%d" % (acc, acc, acc + 1))
            a("v_cvt_pk_bf16_f32 v%d, v%d, v%d" % (acc + 1, acc + 2, acc + 3))
            a("ds_write_b64 v%d, %s offset:%d" % (vT[0], vr(acc, 2), qb * 4096))
    a("s_waitcnt lgkmcnt(0)")
    bar("WV", "Q17")
    stamp(a, 2)
    a("s_cmp_eq_u32 s%d, 3" % sW)
    a("s_cbranch_scc1 L_VLOADER")

    a("s_lshl_b32 s%d, s%d, 13" % (sT0, sW))
    a("s_add_u32 s%d, s%d, %d" % (sT0, sT0, M_BASE))
    for ks in range(8):
        a("v_add_u32 v%d, s%d, v%d" % (vT[ks], sT0, vKA[ks]))
    for ks in range(8):
        a("ds_read_b128 %s, v%d" % (vr(vQ + ks * 4, 4), vT[ks]))
    dq = Queue(15)
    L = opt.L

    def frag_read(t, p):
        if p >= 16:
            t, p = t + 1, p - 16
        fb = vF + (p & 7) * 4
        if p < 8:
            kt = t + 1
            if not opt.x_nods:
                a("ds_read_b128 %s, v%d offset:%d" % (vr(fb, 4), vKA[p], (kt & 7) * 8192))
            dq.issue("F%d" % (p & 7), 1)
        else:
            vt = t - 1
            u, db = (p - 8) >> 2, (p - 8) & 3
            for jj in range(2):
                if not opt.x_nods:
                    a("ds_read_b64_tr_b16 %s, v%d offset:%d" % (vr(fb + jj * 2, 2), vVA[db], VPOS[vt & 7] * 8192 + (16 * u + 8 * jj) * 256))
            dq.issue("F%d" % (p & 7), 2)

    def wait_frag(p):
        tags = {"F%d" % (p & 7)}
        if opt.pairwait and p % 2 == 0:
            tags.add("F%d" % ((p + 1) & 7))
        n = dq.need(tags)
        if n is not None and not opt.x_nowait:
            a("s_waitcnt lgkmcnt(%d)" % n)

    def sm_ops(t):
        S, P = vS[t & 1], vP[t & 1]
        slots = [[] for _ in range(16)]
        for k in range(8):
            e0, e1 = vE + (k & 1) * 2, vE + (k & 1) * 2 + 1
            slots[2 * k] += ["v_exp_f32 v%d, v%d" % (e0, S + 2 * k), "v_exp_f32 v%d, v%d" % (e1, S + 2 * k + 1)]
            if k == 0:
                slots[2 * k + 1] += ["v_mov_b32 v%d, v%d" % (vPSA, e0), "v_mov_b32 v%d, v%d" % (vPSB, e1)]
            else:
                slots[2 * k + 1] += ["v_add_f32 v%d, v%d, v%d" % (vPSA, vPSA, e0), "v_add_f32 v%d, v%d, v%d" % (vPSB, vPSB, e1)]
            slots[2 * k + 1] += ["v_cvt_pk_bf16_f32 v%d, v%d, v%d" % (P + k, e0, e1)]
        return slots

    rare = []

    def period(t, tag, do_qk, do_sm, do_pv, c_zero=False, has_bar=True, next_qk=True):
        sm = sm_ops(t) if do_sm else [[] for _ in range(16)]
        Sn = vS[(t + 1) & 1]
        Pp = vP[(t - 1) & 1]
        for p in range(16):
            mf = None
            if p < 8 and do_qk:
                c = "0" if (p == 0 and c_zero) else (vr(vNM, 16) if p == 0 else vr(Sn, 16))
                mf = "v_mfma_f32_32x32x16_bf16 %s, %s, %s, %s" % (vr(Sn, 16), vr(vF + (p & 7) * 4, 4), vr(vQ + p * 4, 4), c)
            if p >= 8 and do_pv:
                u, db = (p - 8) >> 2, (p - 8) & 3
                mf = "v_mfma_f32_32x32x16_bf16 %s, %s, %s, %s" % (vr(vO + db * 16, 16), vr(vF + (p & 7) * 4, 4), vr(Pp + u * 4, 4), vr(vO + db * 16, 16))
            if mf:
                wait_frag(p)
                if not opt.x_nomfma:
                    a(mf)
            if p == 16 - L and has_bar:
                if opt.x_nobar:
                    bars["W"].append("A%s" % tag)
                else:
                    bar("W", "A%s" % tag)
            pn = p + L
            want = (pn < 8 and do_qk) or (8 <= pn < 16 and do_pv) or (pn >= 16 and next_qk)
            if want:
                frag_read(t, pn)
            for ins in sm[p]:
                if not opt.x_nosm:
                    a(ins)
        if do_sm:
            lab = "L_RARE_%s" % tag
            a("v_add_f32 v%d, v%d, v%d" % (vPSA, vPSA, vPSB))
            a("v_cmp_nge_f32 vcc, s%d, v%d" % (sTHR, vPSA))
            if not opt.x_norare:
                a("s_cbranch_vccnz %s" % lab)
            a.label(lab + "_BACK")
            a("v_add_f32 v%d, v%d, v%d" % (vLACC, vLACC, vPSA))
            rare.append((lab, t, do_qk))

    def row_max(S, dst):
        a("v_max3_f32 v%d, v%d, v%d, v%d" % (dst, S, S + 1, S + 2))
        for r in range(3, 15, 2):
            a("v_max3_f32 v%d, v%d, v%d, v%d" % (dst, dst, S + r, S + r + 1))
        a("v_max_f32 v%d, v%d, v%d" % (dst, dst, S + 15))
        a("v_mov_b32 v%d, v%d" % (vTMP, dst))
        a("s_nop 1")
        a("v_permlane32_swap_b32 v%d, v%d" % (dst, vTMP))
        a("s_nop 1")
        a("v_max_f32 v%d, v%d, v%d" % (dst, dst, vTMP))

    def emit_rare(lab, t, fix_next):
        S, Sn, P = vS[t & 1], vS[(t + 1) & 1], vP[t & 1]
        d, f = vE + 4, vE + 5
        a.label(lab)
        a("s_nop 15")
        row_max(S, d)
        a("v_max_f32 v%d, 0, v%d" % (d, d))
        a("v_exp_f32 v%d, -v%d" % (f, d))
        for r in range(16):
            a("v_sub_f32 v%d, v%d, v%d" % (vNM + r, vNM + r, d))
        for r in range(16):
            a("v_sub_f32 v%d, v%d, v%d" % (S + r, S + r, d))
        if fix_next:
            for r in range(16):
                a("v_sub_f32 v%d, v%d, v%d" % (Sn + r, Sn + r, d))
        for r in range(64):
            a("v_mul_f32 v%d, v%d, v%d" % (vO + r, vO + r, f))
        a("v_mul_f32 v%d, v%d, v%d" % (vLACC, vLACC, f))
        a("v_mov_b32 v%d, 0" % vPSA)
        for k in range(8):
            a("v_exp_f32 v%d, v%d" % (vE, S + 2 * k))
            a("v_exp_f32 v%d, v%d" % (vE + 1, S + 2 * k + 1))
            a("v_add_f32 v%d, v%d, v%d" % (vPSA, vPSA, vE))
            a("v_add_f32 v%d, v%d, v%d" % (vPSA, vPSA, vE + 1))
            a("v_cvt_pk_bf16_f32 v%d, v%d, v%d" % (P + k, vE, vE + 1))
        a("s_nop 1")
        a("s_branch %s_BACK" % lab)

    for p in range(L):
        frag_read(-1, p)
    dq.q = ["Q"] * 8 + dq.q
    for r in range(64):
        a("v_mov_b32 v%d, 0" % (vO + r))
    a("v_mov_b32 v%d, 0" % vLACC)
    n = dq.need({"Q"})
    a("s_waitcnt lgkmcnt(%d)" % n)
    if opt.dump == "q":
        dump_regs(a, vQ, 32, 0)
    period(-1, "m1", True, False, False, c_zero=True)
    a("s_nop 15")
    row_max(vS[0], vE + 4)
    for r in range(16):
        a("v_sub_f32 v%d, 0, v%d" % (vNM + r, vE + 4))
    for r in range(16):
        a("v_sub_f32 v%d, v%d, v%d" % (vS[0] + r, vS[0] + r, vE + 4))
    a("s_nop 1")
    period(0, "0", True, True, False)
    bars["W"] = bars["W"]
    q_entry = list(dq.q)
    a("s_mov_b32 s%d, 0" % sPASS)
    a(".p2align 3")
    a.label("L_ATT_LOOP")
    loop_bars_start = len(bars["W"])
    for t in range(1, 9):
        period(t, "L%d" % t, True, True, True)
        if t == 6:
            q_exit = list(dq.q)
            a("s_cmp_eq_u32 s%d, 3" % sPASS)
            a("s_cbranch_scc1 L_ATT_EXIT")
    assert dq.q == q_entry, (dq.q, q_entry)
    a("s_add_u32 s%d, s%d, 1" % (sPASS, sPASS))
    a("s_branch L_ATT_LOOP")
    del bars["W"][loop_bars_start:]
    bars["W"] += ["A%d" % t for t in range(1, 31)]
    a.label("L_ATT_EXIT")
    dq.q = list(q_exit)
    period(31, "31", False, True, True, next_qk=False)
    period(32, "32", False, False, True, has_bar=False, next_qk=False)
    stamp(a, 3)
    a("v_mov_b32 v%d, v%d" % (vTMP, vLACC))
    a("s_nop 1")
    a("v_permlane32_swap_b32 v%d, v%d" % (vLACC, vTMP))
    a("s_nop 1")
    a("v_add_f32 v%d, v%d, v%d" % (vLACC, vLACC, vTMP))
    a("v_rcp_f32 v%d, v%d" % (vLACC, vLACC))
    a("s_nop 7")
    for db in range(4):
        for rr in range(4):
            b = vO + db * 16 + rr * 4
            for e in range(4):
                a("v_mul_f32 v%d, v%d, v%d" % (b + e, b + e, vLACC))
            a("v_cvt_pk_bf16_f32 v%d, v%d, v%d" % (b, b, b + 1))
            a("v_cvt_pk_bf16_f32 v%d, v%d, v%d" % (b + 1, b + 2, b + 3))
            a("v_xor_b32 v%d, %d, v%d" % (vT[rr], (4 * db + rr) * 16, vOW))
            a("ds_write_b64 v%d, %s" % (vT[rr], vr(b, 2)))
    a("s_waitcnt lgkmcnt(0)")
    a("s_branch L_E0")

    a.label("L_VLOADER")
    for t in range(-1, 32):
        if t >= 0:
            n = qV.need({"V%d" % t})
            if n is not None:
                a("s_waitcnt vmcnt(%d)" % n)
        if not opt.x_nobar:
            a("s_barrier")
        bars["V"].append("A%s" % ("m1" if t < 0 else str(t)))
        if t >= 2 and t + 6 <= 31:
            dma_v(a, t + 6)
            qV.issue("V%d" % (t + 6), 8)
            assert len(qV.q) <= 63

    a.label("L_E0")
    bar("WV", "E0")
    stamp(a, 4)
    for ks in range(8):
        for qb in range(3):
            a("ds_read_b128 %s, v%d offset:%d" % (vr(vB3 + (ks * 3 + qb) * 4, 4), vOR[ks & 3], (48 * (ks >> 2) + 16 * qb) * 256))
    if opt.dump == "o":
        a("s_waitcnt lgkmcnt(0)")
        dump_regs(a, vB3, 96, 0, five=True)

    def a3_reads(p):
        a("v_add_u32 v%d, 0x%x, v%d" % (vWOT, (p & 3) * 32768, vWOA))
        for ks in range(8):
            for jj in range(2):
                a("ds_read_b64_tr_b16 %s, v%d offset:%d" % (vr(vA3[p & 1] + ks * 4 + jj * 2, 2), vWOT, ks * 4096 + jj * 512))
    def mf3(p):
        for ks in range(8):
            for qb in range(3):
                acc = vACC3[p & 1] + qb * 4
                c = "0" if ks == 0 else vr(acc, 4)
                a("v_mfma_f32_16x16x32_bf16 %s, %s, %s, %s" % (vr(acc, 4), vr(vA3[p & 1] + ks * 4, 4), vr(vB3 + (ks * 3 + qb) * 4, 4), c))
    def st3(p):
        a("s_add_u32 s%d, s%d, %d" % (sT0, sB, p))
        a("s_and_b32 s%d, s%d, 7" % (sT0, sT0))
        a("s_mul_i32 s%d, s%d, %d" % (sT0, sT0, 2 * 16 * 3072))
        a("s_add_u32 s%d, s%d, s%d" % (sT0, sT0, sPOFF))
        for qb in range(3):
            acc = vACC3[p & 1] + qb * 4
            a("v_cvt_pk_bf16_f32 v%d, v%d, v%d" % (vPK3 + qb * 2, acc, acc + 1))
            a("v_cvt_pk_bf16_f32 v%d, v%d, v%d" % (vPK3 + qb * 2 + 1, acc + 2, acc + 3))
        for qb in range(3):
            a("buffer_store_dwordx2 %s, v%d, s[%d:%d], s%d offen offset:%d %s" % (vr(vPK3 + qb * 2, 2), vST, SRD_WS, SRD_WS + 3, sT0, qb * 512, opt.part_store_aux))
    for p in range(8):
        if p > 0:
            bar("WV", "P%d" % p)
        a3_reads(p)
        if p >= 2:
            st3(p - 2)
        if p >= 1:
            mf3(p - 1)
        a("s_waitcnt lgkmcnt(0)")
    st3(6)
    mf3(7)
    a("s_nop 7")
    st3(7)
    stamp(a, 5)
    a("s_waitcnt vmcnt(0)")
    stamp(a, 6)
    a("s_branch L_END")

    a.label("L_LOADER")
    stamp_setup()
    stamp(a, 0)
    qL = Queue(63)
    a("s_lshl_b32 s%d, s%d, 9" % (sT0, sHP))
    srd(a, SRD_WQ, P_WQ, 4194304 - 15 * 512, sT0)
    t1, t2, t3, t4 = vT[0:4]
    a("v_lshrrev_b32 v%d, 5, v%d" % (t1, vL))
    a("v_and_b32 v%d, 31, v%d" % (t2, vL))
    a("v_lshlrev_b32 v%d, 1, v%d" % (t3, t1))
    a("v_xor_b32 v%d, v%d, v%d" % (t2, t2, t3))
    a("v_lshlrev_b32 v%d, 4, v%d" % (t2, t2))
    a("v_lshl_add_u32 v%d, v%d, 13, v%d" % (t2, t1, t2))
    a("s_lshl_b32 s%d, s%d, 1" % (sKS, sB))
    def w_voffsets(i):
        x = ((2 * (i & 1)) | (((i >> 2) & 1) << 2)) << 1 << 4
        c = 2 * i * 8192 - (i & 3) * 1024
        if x:
            a("v_xor_b32 v%d, %d, v%d" % (vLW[i], x, t2))
            a("v_add_u32 v%d, 0x%x, v%d" % (vLW[i], c, vLW[i]))
        else:
            a("v_add_u32 v%d, 0x%x, v%d" % (vLW[i], c, t2))
    def dma_w(e, first=False):
        a("s_add_u32 s%d, s%d, %d" % (sT0, sKS, e))
        a("s_and_b32 s%d, s%d, 15" % (sT0, sT0))
        a("s_lshl_b32 s%d, s%d, 18" % (sT0, sT0))
        for i in range(16):
            if i % 4 == 0:
                a("s_mov_b32 m0, 0x%x" % (W_BASE + (e & 3) * 16384 + (i >> 2) * 4096))
            if first:
                w_voffsets(i)
            elif i % 4 == 0:
                a("s_nop 0")
            a("buffer_load_dwordx4 v%d, s[%d:%d], s%d offen offset:%d %s lds" % (vLW[i], SRD_WQ, SRD_WQ + 3, sT0, (i & 3) * 1024, opt.w_aux))
        qL.issue("W%d" % e, 16)
    dma_w(0, True)
    dma_w(1)
    dma_w(2)
    a("s_lshl_b32 s%d, s%d, 3" % (sT0, sB))
    a("s_add_u32 s%d, s%d, s%d" % (sT0, sT0, sKVH))
    a("s_lshl_b32 s%d, s%d, 18" % (sT0, sT0))
    srd(a, SRD_K, P_K, 262144, sT0)
    a("s_lshl_b32 s%d, s%d, 18" % (sT0, sHP))
    srd(a, SRD_WO, P_WO, 262144, sT0)
    kv_offsets(a, vLK, None)
    a("v_lshrrev_b32 v%d, 3, v%d" % (t1, vL))
    a("v_and_b32 v%d, 7, v%d" % (t2, vL))
    a("v_bfe_u32 v%d, v%d, 4, 1" % (t3, vL))
    a("v_lshlrev_b32 v%d, 1, v%d" % (t3, t3))
    a("v_xor_b32 v%d, v%d, v%d" % (t2, t2, t3))
    a("v_lshlrev_b32 v%d, 4, v%d" % (t2, t2))
    a("v_lshl_add_u32 v%d, v%d, 10, v%d" % (t2, t1, t2))
    for aa in range(4):
        x = ((aa & 1) << 1) << 1 << 4
        if x:
            a("v_xor_b32 v%d, %d, v%d" % (vLWO[aa], x, t2))
            a("v_add_u32 v%d, %d, v%d" % (vLWO[aa], 7 * aa * 1024, vLWO[aa]))
        else:
            a("v_add_u32 v%d, %d, v%d" % (vLWO[aa], 7 * aa * 1024, t2))
    def dma_wo(p):
        a("s_add_u32 s%d, s%d, %d" % (sT0, sB, p))
        a("s_and_b32 s%d, s%d, 7" % (sT0, sT0))
        a("s_lshl_b32 s%d, s%d, 7" % (sT0, sT0))
        for i in range(32):
            if i % 4 == 0:
                qL.room(a, 4)
                qL.issue("WO%d" % p, 4)
                a("s_mov_b32 m0, 0x%x" % ((p & 3) * 32768 + (i >> 2) * 4096))
                if i:
                    a("s_add_u32 s%d, s%d, 32768" % (sT0, sT0))
                else:
                    a("s_nop 0")
            a("buffer_load_dwordx4 v%d, s[%d:%d], s%d offen offset:%d %s lds" % (vLWO[i & 3], SRD_WO, SRD_WO + 3, sT0, (i & 3) * 1024, opt.w_aux))
    def lwait(tags):
        n = qL.need(set(tags))
        if n is not None:
            a("s_waitcnt vmcnt(%d)" % min(n, 63))
    def lbar(nm):
        a("s_barrier")
        bars["L"].append(nm)
    def lk(t):
        dma_k(a, vLK, t)
        qL.issue("K%d" % t, 8)
    for e in range(16):
        lwait(["W%d" % e])
        lbar("Q%d" % e)
        if e + 3 <= 15:
            dma_w(e + 3)
        if e == 13:
            lk(4); lk(5)
        if e == 14:
            lk(6); lk(7)
        assert len(qL.q) <= 63, (e, len(qL.q))
    lbar("Q16")
    lbar("Q17")
    stamp(a, 2)
    for t in range(-1, 32):
        lwait(["K%d" % (t + 2)])
        if opt.x_nobar:
            bars["L"].append("A%s" % ("m1" if t < 0 else str(t)))
        else:
            lbar("A%s" % ("m1" if t < 0 else str(t)))
        if t + 9 <= 31:
            lk(t + 9)
            assert len(qL.q) <= 63, (t, len(qL.q))
        if t == 26:
            dma_wo(0)
        if t == 30:
            dma_wo(1)
        if t == 31:
            lwait(["WO0"])
            dma_wo(2)
    lwait(["WO0"])
    lbar("E0")
    stamp(a, 4)
    dma_wo(3)
    for p in range(1, 8):
        lwait(["WO%d" % p])
        lbar("P%d" % p)
        if p + 3 <= 7:
            dma_wo(p + 3)
    stamp(a, 6)

    a.label("L_END")
    a("s_endpgm")
    for lab, t, fix in rare:
        emit_rare(lab, t, fix)

    assert bars["W"] == bars["V"] == bars["L"], "barrier sequences differ:\n%s\n%s\n%s" % (bars["W"], bars["V"], bars["L"])
    return name


def kv_offsets(a, vk, vv):
    t1, t2, t3 = vT[0:3]
    a("v_lshrrev_b32 v%d, 4, v%d" % (t1, vL))
    a("v_and_b32 v%d, 15, v%d" % (t2, vL))
    a("v_xor_b32 v%d, v%d, v%d" % (t3, t2, t1))
    a("v_lshlrev_b32 v%d, 4, v%d" % (t3, t3))
    a("v_lshl_add_u32 v%d, v%d, 8, v%d" % (vk[0], t1, t3))
    for aa in range(1, 4):
        a("v_xor_b32 v%d, %d, v%d" % (vk[aa], aa * 4 * 16, vk[0]))
    if vv is not None:
        a("v_lshlrev_b32 v%d, 2, v%d" % (t3, t1))
        a("v_xor_b32 v%d, v%d, v%d" % (t3, t2, t3))
        a("v_lshlrev_b32 v%d, 4, v%d" % (t3, t3))
        a("v_lshl_add_u32 v%d, v%d, 8, v%d" % (vv, t1, t3))


def dma_k(a, vk, t):
    for i in range(8):
        if i % 4 == 0:
            a("s_mov_b32 m0, 0x%x" % (K_BASE + (t & 7) * 8192 + (i >> 2) * 4096))
            a("s_mov_b32 s%d, 0x%x" % (sOFF, t * 8192 + (i >> 2) * 4096))
        a("buffer_load_dwordx4 v%d, s[%d:%d], s%d offen offset:%d %s lds" % (vk[i & 3], SRD_K, SRD_K + 3, sOFF, (i & 3) * 1024, opt.kv_aux))


def dma_v(a, t):
    for i in range(8):
        if i % 4 == 0:
            a("s_mov_b32 m0, 0x%x" % (V_BASE + VPOS[t & 7] * 8192 + (i >> 2) * 4096))
            a("s_mov_b32 s%d, 0x%x" % (sOFF, t * 8192 + (i >> 2) * 4096))
        a("buffer_load_dwordx4 v%d, s[%d:%d], s%d offen offset:%d %s lds" % (vVV, SRD_V, SRD_V + 3, sOFF, (i & 3) * 1024, opt.kv_aux))


def dump_regs(a, base, n, slot, five=False):
    a("s_mul_i32 s%d, s2, 5" % sT0)
    a("s_add_u32 s%d, s%d, s%d" % (sT0, sT0, sW))
    a("s_mul_i32 s%d, s%d, %d" % (sT0, sT0, 96 * 256))
    a("s_add_u32 s%d, s%d, 0x%x" % (sT0, sT0, WS_DUMP))
    a("v_lshlrev_b32 v%d, 4, v%d" % (vT[8], vL))
    for g in range(n // 4):
        a("buffer_store_dwordx4 %s, v%d, s[%d:%d], s%d offen" % (vr(base + g * 4, 4), vT[8], SRD_WS, SRD_WS + 3, sT0))
        a("s_add_u32 s%d, s%d, 1024" % (sT0, sT0))
    a("s_waitcnt vmcnt(0)")


def f32bits(x):
    import struct
    return struct.unpack("<I", struct.pack("<f", x))[0]


def multi():
    return not opt.fused_tail


def gen_reduce(a):
    name = "attn_reduce_kernel"
    a(".p2align 8")
    a(".globl %s" % name)
    a(".type %s,@function" % name)
    a.label(name)
    a("s_cmp_ge_u32 s2, 256")
    a("s_cbranch_scc1 R_END")
    a("s_load_dwordx2 s[4:5], s[0:1], 80")
    a("s_load_dwordx2 s[6:7], s[0:1], 96")
    a("v_lshrrev_b32 v1, 6, v0")
    a("v_and_b32 v0, 63, v0")
    a("v_readfirstlane_b32 s3, v1")
    a("v_lshlrev_b32 v2, 3, v0")
    a("s_mul_i32 s16, s2, %d" % (16 * 3072))
    a("s_lshl_b32 s17, s3, 9")
    a("s_add_u32 s16, s16, s17")
    a("s_waitcnt lgkmcnt(0)")
    a("s_mov_b32 s8, s6\ns_mov_b32 s9, s7\ns_mov_b32 s10, 0x%x\ns_mov_b32 s11, 0x20000" % WS_PART_BYTES)
    for s in range(16):
        a("buffer_load_dwordx2 %s, v2, s[8:11], s16 offen %s" % (vr(8 + 2 * s, 2), opt.part_load_aux))
        if s < 15:
            a("s_add_u32 s16, s16, 3072")
    a("s_mov_b32 s12, s4\ns_mov_b32 s13, s5\ns_mov_b32 s14, %d\ns_mov_b32 s15, 0x20000" % (8 * 48 * 1024 * 2))
    a("s_lshr_b32 s18, s2, 4")
    a("s_and_b32 s19, s2, 15")
    a("s_and_b32 s20, s18, 7")
    a("s_lshr_b32 s21, s18, 3")
    a("s_cmp_ge_u32 s3, 3")
    a("s_cselect_b32 s22, 1, 0")
    a("s_mul_i32 s23, s22, 3")
    a("s_sub_u32 s23, s3, s23")
    a("s_mul_i32 s24, s20, 48")
    a("s_lshl_b32 s25, s23, 4")
    a("s_add_u32 s24, s24, s25")
    a("s_lshl_b32 s24, s24, 11")
    a("s_lshl_b32 s25, s21, 10")
    a("s_add_u32 s24, s24, s25")
    a("s_lshl_b32 s25, s19, 6")
    a("s_add_u32 s24, s24, s25")
    a("s_lshl_b32 s25, s22, 5")
    a("s_add_u32 s24, s24, s25")
    a("v_and_b32 v3, 15, v0")
    a("v_lshrrev_b32 v4, 4, v0")
    a("v_lshlrev_b32 v3, 11, v3")
    a("v_lshl_add_u32 v3, v4, 3, v3")
    a("s_mov_b32 s26, 0xffff0000")
    for s in range(16):
        a("s_waitcnt vmcnt(%d)" % (15 - s))
        x0, x1 = 8 + 2 * s, 9 + 2 * s
        if s == 0:
            a("v_lshlrev_b32 v4, 16, v%d" % x0)
            a("v_and_b32 v5, s26, v%d" % x0)
            a("v_lshlrev_b32 v6, 16, v%d" % x1)
            a("v_and_b32 v7, s26, v%d" % x1)
        else:
            a("v_lshlrev_b32 v40, 16, v%d" % x0)
            a("v_and_b32 v41, s26, v%d" % x0)
            a("v_lshlrev_b32 v42, 16, v%d" % x1)
            a("v_and_b32 v43, s26, v%d" % x1)
            a("v_add_f32 v4, v4, v40\nv_add_f32 v5, v5, v41\nv_add_f32 v6, v6, v42\nv_add_f32 v7, v7, v43")
    a("v_cvt_pk_bf16_f32 v8, v4, v5")
    a("v_cvt_pk_bf16_f32 v9, v6, v7")
    a("buffer_store_dwordx2 v[8:9], v3, s[12:15], s24 offen")
    a.label("R_END")
    a("s_endpgm")
    return name


def kd(name, vgpr, sgpr):
    acc = (vgpr + 3) // 4 * 4
    return """.p2align 6
.amdhsa_kernel %s
  .amdhsa_next_free_vgpr %d
  .amdhsa_next_free_sgpr %d
  .amdhsa_accum_offset %d
  .amdhsa_group_segment_fixed_size 0
  .amdhsa_kernarg_size 104
  .amdhsa_user_sgpr_count 2
  .amdhsa_user_sgpr_kernarg_segment_ptr 1
  .amdhsa_system_sgpr_workgroup_id_x 1
.end_amdhsa_kernel
""" % (name, vgpr, sgpr, acc)


def build():
    hdr = open("cdna_kernels/%s.s.ref" % NAME).read().split("\n")
    head = [ln for ln in hdr if ln.startswith(";") and "@launch" not in ln and "Override launch" not in ln and "grid=ceil" not in ln]
    head = head[:14]
    a = Prog()
    main = "attn_main_kernel" if multi() else NAME + "_kernel"
    if multi():
        head.append("; @launch kernel=attn_main_kernel grid=(256,1,1) block=(320,1,1) lds=%d" % LDS_BYTES)
        head.append("; @launch kernel=attn_reduce_kernel grid=(256,1,1) block=(384,1,1) lds=0")
    else:
        head.append("; @launch grid=(256,1,1) block=(320,1,1) lds=%d" % LDS_BYTES)
    a('.amdgcn_target "amdgcn-amd-amdhsa--gfx950"')
    a(".text")
    a(".globl %s" % main)
    a(".p2align 8")
    a(".type %s,@function" % main)
    gen_main(a)
    kds = kd(main, NVGPR, 96)
    if multi():
        r = gen_reduce(a)
        kds += kd(r, 48, 32)
    return "\n".join(head) + "\n" + a.text() + '.section .rodata,"a"\n' + kds


if __name__ == "__main__":
    out = sys.argv[1] if len(sys.argv) > 1 else "cdna_kernels/%s.s" % NAME
    for kv in sys.argv[2:]:
        k, v = kv.split("=", 1)
        cur = getattr(opt, k)
        if isinstance(cur, bool):
            v = v in ("1", "True", "true")
        elif isinstance(cur, int):
            v = int(v)
        elif v == "None":
            v = None
        setattr(opt, k, v)
    s = build()
    open(out, "w").write(s)
    print("wrote", out, len(s), "bytes,", s.count("\n"), "lines")
```

```python
import sys, math, struct, re

NAME = "concat_heads__gqa_block_cached__gqa_block_cached__near_ridge"


class Opt:
    fused_tail = False
    kv_aux = "nt"
    w_aux = ""
    dump = None
    L = 6
    waitstep = 4
    thr_log2 = 12
    stamps = False
    sumop = "add"
    prio = 0
    klead = 9
    vlead = 6
    spin_limit = 1 << 20
    tlbwarm = False
    lstamps = False
    dscost = 4
    slotcap = 32
    fill = 0
    align = True
    x_nobar = False
    x_nosm = False
    x_nods = False
    x_norare = False
    x_nomfma = False
    x_q_nomfma = False
    x_q_nods = False
    x_q_nodma = False
    x_o_nodma = False
    x_o_nomfma = False
    x_o_nost = False
    x_o_nods = False


opt = Opt()

KB = 1024
K_BASE = 0
V_BASE = 64 * KB
M_BASE = 128 * KB
X_BASE = 112 * KB
NWS = 7
LDS_BYTES = 160 * KB
KPOS = [4, 5, 6, 7, 0, 1, 2, 3]
RWO = [32 * KB, 64 * KB, 0, 96 * KB]

WS_PART_BYTES = 16 * 16 * 16 * 3072
WS_DUMP = 16 << 20
WS_STAMP = 48 << 20
WS_BYTES = 268435456

sW = 3
sB, sHP, sBR, sKVH = 4, 5, 6, 7
SRD_X, SRD_WQ, SRD_K, SRD_V, SRD_WO, SRD_WS = 8, 12, 16, 20, 24, 28
sT0, sT1, sT2, sT3, sT4, sT5 = 32, 33, 34, 35, 36, 37
sGRP = 38
sOFF = 39
sPASS = 40
sTHR = 41
sKS = 42
sPOFF = 43
sSTAMP = 44
sDBG = 46
SRD_OUT = 48
SRD_ST = 52
P_X, P_K, P_V, P_WQ = 56, 58, 60, 62
KA = 64
P_OUT, P_DBG, P_WS = KA + 20, KA + 22, KA + 24
P_WO = 90
sSTOFF = 92
sJ, sJ64K, sJ2K = 93, 94, 95
SRD_DBG = 96
NSGPR = 100

vL = 0
vT = [1, 2, 3, 4, 5, 6, 7, 8, 9]
vKA = list(range(10, 18))
vVA = list(range(18, 22))
vWA = list(range(22, 26))
vXB, vXT = 26, 27
vPSA, vPSB, vLACC, vTMP = 28, 29, 30, 31
vQ = 32
vO = 64
vS = [128, 144]
vNM = 160
vP = [176, 184]
vF = 192
vE = 224
vWA2 = [232, 233, 234, 235]
vQW = 236
vOW = 237
vOR = [240, 241, 242, 243]
vWOA = 244
vWOT = [245, 246]
vST = 247
vONE = 248
vDUM = 249
vSTA, vSTB = 250, 251
NVGPR = 252
vACC1 = 64
vA1 = [128, 144]
vB1 = [160, 172]
vB3 = 32
vA3 = [128, 160]
vACC3 = [192, 216]
vLW = [10, 11, 12, 13]
vLK = [14, 15]
vLV = 16
vLWO = [18, 19, 20, 21]


def f32bits(x):
    return struct.unpack("<I", struct.pack("<f", x))[0]


class Prog:
    def __init__(self):
        self.lines = []
    def __call__(self, s):
        self.lines += s.split("\n")
    def label(self, s):
        self.lines.append(s + ":")
    def text(self):
        out = []
        for ln in self.lines:
            ln = ln.strip()
            if ln:
                out.append(ln if ln.endswith(":") or ln[0] in ".;" else "    " + ln)
        return "\n".join(out) + "\n"


def vr(b, n):
    return "v[%d:%d]" % (b, b + n - 1) if n > 1 else "v%d" % b


class Queue:
    def __init__(self, limit):
        self.q = []
        self.limit = limit
    def issue(self, tag, n=1):
        self.q += [tag] * n
        assert len(self.q) <= self.limit, (tag, len(self.q))
    def need(self, tags):
        last = -1
        for i, t in enumerate(self.q):
            if t in tags:
                last = i
        if last < 0:
            return None
        n = len(self.q) - 1 - last
        self.q = self.q[last + 1:]
        return n
    def drain(self):
        self.q = []


def srd(a, base, ptr, size, off_s=None):
    if off_s is None:
        a("s_mov_b32 s%d, s%d" % (base, ptr))
        a("s_mov_b32 s%d, s%d" % (base + 1, ptr + 1))
    else:
        a("s_add_u32 s%d, s%d, s%d" % (base, ptr, off_s))
        a("s_addc_u32 s%d, s%d, 0" % (base + 1, ptr + 1))
    a("s_mov_b32 s%d, 0x%x" % (base + 2, size))
    a("s_mov_b32 s%d, 0x20000" % (base + 3))


def stamp(a, idx):
    if not opt.stamps:
        return
    a("s_memrealtime s[%d:%d]" % (sSTAMP, sSTAMP + 1))
    a("s_memtime s[%d:%d]" % (sDBG, sDBG + 1))
    a("s_waitcnt lgkmcnt(0)")
    a("v_mov_b32 v%d, s%d" % (vSTA, sSTAMP))
    a("v_mov_b32 v%d, s%d" % (vSTB, sSTOFF))
    a("buffer_store_dword v%d, v%d, s[%d:%d], 0 offen offset:%d" % (vSTA, vSTB, SRD_ST, SRD_ST + 3, idx * 4))
    a("v_mov_b32 v%d, s%d" % (vSTA, sDBG))
    a("buffer_store_dword v%d, v%d, s[%d:%d], 0 offen offset:%d" % (vSTA, vSTB, SRD_ST, SRD_ST + 3, 128 + idx * 4))


def fill_cost(ins):
    op = ins.split()[0]
    return 8 if op.startswith(("ds_", "buffer_", "v_exp", "v_rcp")) else 4


def interleave(a, mfmas, fill, gap=8):
    total = sum(fill_cost(f) for f in fill)
    per = max(gap, -(-total // max(len(mfmas), 1))) if mfmas else 0
    i, credit = 0, 0
    for m in mfmas:
        a(m)
        credit += per
        while i < len(fill) and fill_cost(fill[i]) <= credit:
            credit -= fill_cost(fill[i])
            a(fill[i]); i += 1
    while i < len(fill):
        a(fill[i]); i += 1


def multi():
    return not opt.fused_tail


def dump_regs(a, base, n):
    a("s_lshl_b32 s%d, s2, 3" % sT0)
    a("s_add_u32 s%d, s%d, s%d" % (sT0, sT0, sW))
    a("s_mul_i32 s%d, s%d, %d" % (sT0, sT0, 96 * 256))
    a("s_add_u32 s%d, s%d, 0x%x" % (sT0, sT0, WS_DUMP))
    a("v_lshlrev_b32 v%d, 4, v%d" % (vT[8], vL))
    for g in range(n // 4):
        a("buffer_store_dwordx4 %s, v%d, s[%d:%d], s%d offen" % (vr(base + g * 4, 4), vT[8], SRD_WS, SRD_WS + 3, sT0))
        a("s_add_u32 s%d, s%d, 1024" % (sT0, sT0))
    a("s_waitcnt vmcnt(0)")


def reduce_body(a, s_w, s_wgoff, srd_ws, srd_out, s_grp, s_dest, aux, lds_base):
    t = [sT0, sT1, sT2, sT3, sT4, sT5]
    a("s_cmp_ge_u32 s%d, 3" % s_w)
    a("s_cselect_b32 s%d, 1, 0" % t[3])
    a("s_mul_i32 s%d, s%d, 3" % (t[4], t[3]))
    a("s_sub_u32 s%d, s%d, s%d" % (t[4], s_w, t[4]))
    a("v_lshlrev_b32 v2, 4, v0")
    a("s_lshl_b32 s%d, s%d, 10" % (t[0], t[4]))
    a("s_add_u32 s%d, s%d, s%d" % (t[0], t[0], s_wgoff))
    a("s_mul_i32 s%d, s%d, %d" % (t[1], t[3], 8 * 3072))
    a("s_add_u32 s%d, s%d, s%d" % (t[0], t[0], t[1]))
    for s in range(8):
        a("buffer_load_dwordx4 %s, v2, s[%d:%d], s%d offen %s" % (vr(12 + 4 * s, 4), srd_ws, srd_ws + 3, t[0], aux))
        if s < 7:
            a("s_add_u32 s%d, s%d, 3072" % (t[0], t[0]))
    a("s_lshl_b32 s%d, s%d, 11" % (t[0], t[4]))
    a("s_add_u32 s%d, s%d, %d" % (t[0], t[0], lds_base))
    a("v_lshlrev_b32 v1, 5, v0")
    a("v_add_u32 v1, s%d, v1" % t[0])
    a("s_and_b32 s%d, s%d, 7" % (t[1], s_grp))
    a("s_lshr_b32 s%d, s%d, 3" % (t[2], s_grp))
    a("s_mul_i32 s%d, s%d, 48" % (t[1], t[1]))
    a("s_lshl_b32 s%d, s%d, 4" % (t[4], t[4]))
    a("s_add_u32 s%d, s%d, s%d" % (t[1], t[1], t[4]))
    a("s_lshl_b32 s%d, s%d, 11" % (t[1], t[1]))
    a("s_lshl_b32 s%d, s%d, 10" % (t[2], t[2]))
    a("s_add_u32 s%d, s%d, s%d" % (t[1], t[1], t[2]))
    a("s_lshl_b32 s%d, s%d, 6" % (t[2], s_dest))
    a("s_add_u32 s%d, s%d, s%d" % (t[1], t[1], t[2]))
    a("v_and_b32 v3, 15, v0")
    a("v_lshrrev_b32 v4, 4, v0")
    a("v_lshlrev_b32 v3, 11, v3")
    a("v_lshl_add_u32 v3, v4, 3, v3")
    a("s_mov_b32 s%d, 0xffff0000" % t[5])
    for s in range(8):
        a("s_waitcnt vmcnt(%d)" % (7 - s))
        for d in range(4):
            x = 12 + 4 * s + d
            if s == 0:
                a("v_lshlrev_b32 v%d, 16, v%d" % (4 + 2 * d, x))
                a("v_and_b32 v%d, s%d, v%d" % (5 + 2 * d, t[5], x))
            else:
                a("v_lshlrev_b32 v44, 16, v%d" % x)
                a("v_and_b32 v45, s%d, v%d" % (t[5], x))
                a("v_add_f32 v%d, v%d, v44" % (4 + 2 * d, 4 + 2 * d))
                a("v_add_f32 v%d, v%d, v45" % (5 + 2 * d, 5 + 2 * d))
    a("s_cmp_eq_u32 s%d, 0" % t[3])
    a("s_cbranch_scc1 L_RED_LOW")
    a("ds_write_b128 v1, v[4:7]")
    a("ds_write_b128 v1, v[8:11] offset:16")
    a("s_waitcnt lgkmcnt(0)")
    a("s_barrier")
    a("s_branch L_RED_DONE")
    a.label("L_RED_LOW")
    a("s_barrier")
    a("ds_read_b128 v[12:15], v1")
    a("ds_read_b128 v[16:19], v1 offset:16")
    a("s_waitcnt lgkmcnt(0)")
    for d in range(8):
        a("v_add_f32 v%d, v%d, v%d" % (4 + d, 4 + d, 12 + d))
    for d in range(4):
        a("v_cvt_pk_bf16_f32 v%d, v%d, v%d" % (4 + d, 4 + 2 * d, 5 + 2 * d))
    a("buffer_store_dwordx2 v[4:5], v3, s[%d:%d], s%d offen" % (srd_out, srd_out + 3, t[1]))
    a("buffer_store_dwordx2 v[6:7], v3, s[%d:%d], s%d offen offset:32" % (srd_out, srd_out + 3, t[1]))
    a.label("L_RED_DONE")


def gen_main(a, name):
    bars = {"C": [], "I": [], "L": []}
    part_aux = "sc1" if opt.fused_tail else ""

    def bar(roles, nm, skip=False):
        if not skip:
            a("s_barrier")
        for r in roles:
            bars[r].append(nm)

    a.label(name)
    a("s_cmp_ge_u32 s2, 256")
    a("s_cbranch_scc1 L_END")
    a("s_load_dwordx16 s[%d:%d], s[0:1], 0" % (KA, KA + 15))
    a("s_load_dwordx8 s[%d:%d], s[0:1], 64" % (KA + 16, KA + 23))
    a("s_load_dwordx2 s[%d:%d], s[0:1], 96" % (KA + 24, KA + 25))
    a("s_and_b32 s%d, s2, 7" % sT0)
    a("s_lshr_b32 s%d, s2, 3" % sT1)
    a("s_lshr_b32 s%d, s%d, 4" % (sT2, sT1))
    a("s_lshl_b32 s%d, s%d, 1" % (sT0, sT0))
    a("s_add_u32 s%d, s%d, s%d" % (sT0, sT0, sT2))
    a("s_lshr_b32 s%d, s%d, 3" % (sBR, sT0))
    a("s_and_b32 s%d, s%d, 7" % (sKVH, sT0))
    a("s_bfe_u32 s%d, s%d, 0x30001" % (sB, sT1))
    a("s_and_b32 s%d, s%d, 1" % (sT2, sT1))
    a("s_lshl_b32 s%d, s%d, 1" % (sHP, sKVH))
    a("s_add_u32 s%d, s%d, s%d" % (sHP, sHP, sT2))
    a("v_lshrrev_b32 v1, 6, v0")
    a("v_and_b32 v0, 63, v0")
    a("v_readfirstlane_b32 s%d, v1" % sW)
    a("s_lshl_b32 s%d, s%d, 3" % (sGRP, sBR))
    a("s_add_u32 s%d, s%d, s%d" % (sGRP, sGRP, sB))
    a("s_waitcnt lgkmcnt(0)")
    a("s_cmp_eq_u32 s%d, 0" % sBR)
    for dst, pa, pb in ((P_WQ, KA + 6, KA + 16), (P_X, KA + 0, KA + 10), (P_K, KA + 2, KA + 12),
                        (P_V, KA + 4, KA + 14), (P_WO, KA + 8, KA + 18)):
        a("s_cselect_b32 s%d, s%d, s%d" % (dst, pa, pb))
        a("s_cselect_b32 s%d, s%d, s%d" % (dst + 1, pa + 1, pb + 1))
    if opt.stamps:
        srd(a, SRD_ST, P_WS, WS_BYTES)
        a("s_lshl_b32 s%d, s2, 3" % sSTOFF)
        a("s_add_u32 s%d, s%d, s%d" % (sSTOFF, sSTOFF, sW))
        a("s_lshl_b32 s%d, s%d, 8" % (sSTOFF, sSTOFF))
        a("s_add_u32 s%d, s%d, 0x%x" % (sSTOFF, sSTOFF, WS_STAMP))
        stamp(a, 0)
    a("s_cmp_ge_u32 s%d, 4" % sW)
    a("s_cbranch_scc1 L_LOADER")

    a("s_cmp_eq_u32 s%d, 3" % sW)
    a("s_cbranch_scc1 L_W3_START")
    a("s_mul_i32 s%d, s%d, 49152" % (sT0, sB))
    srd(a, SRD_X, P_X, 49152, sT0)
    a("v_lshlrev_b32 v2, 4, v0")
    a("s_lshl_b32 s%d, s%d, 14" % (sT1, sW))
    for i in range(16):
        if i % 4 == 0:
            a("s_add_u32 s%d, s%d, %d" % (sT2, sT1, (i // 4) * 4096))
            a("s_add_u32 m0, s%d, %d" % (sT2, X_BASE))
        a("v_xor_b32 v3, %d, v2" % (i * 16))
        a("buffer_load_dwordx4 v3, s[%d:%d], s%d offen offset:%d %s lds" % (SRD_X, SRD_X + 3, sT2, (i % 4) * 1024, opt.w_aux))

    a("s_branch L_WORK_SETUP")
    a.label("L_W3_START")
    if opt.tlbwarm:
        a("s_lshl_b32 s%d, s%d, 3" % (sT0, sB))
        a("s_add_u32 s%d, s%d, s%d" % (sT0, sT0, sKVH))
        a("s_lshl_b32 s%d, s%d, 18" % (sT0, sT0))
        srd(a, SRD_K, P_K, 262144, sT0)
        srd(a, SRD_V, P_V, 262144, sT0)
        a("s_lshl_b32 s%d, s%d, 18" % (sT0, sHP))
        srd(a, SRD_WO, P_WO, 262144, sT0)
        a("v_lshlrev_b32 v2, 12, v0")
        a("buffer_load_dword v%d, v2, s[%d:%d], 0 offen nt" % (vDUM, SRD_K, SRD_K + 3))
        a("buffer_load_dword v%d, v2, s[%d:%d], 0 offen nt" % (vDUM, SRD_V, SRD_V + 3))
        a("buffer_load_dword v%d, v2, s[%d:%d], 0 offen" % (vDUM, SRD_WO, SRD_WO + 3))
        srd(a, SRD_WS, P_WS, WS_PART_BYTES)
        a("s_mul_i32 s%d, s%d, %d" % (sT0, sGRP, 256 * 3072))
        a("v_mul_u32_u24 v2, 12288, v0")
        a("buffer_load_dword v%d, v2, s[%d:%d], s%d offen" % (vDUM, SRD_WS, SRD_WS + 3, sT0))

    a.label("L_WORK_SETUP")
    l = vL
    t1, t2, t3, t4, t5 = vT[0:5]
    G, rp, cp = vT[5], vT[6], vT[7]
    a("v_and_b32 v%d, 15, v%d" % (t3, l))
    a("v_lshrrev_b32 v%d, 4, v%d" % (G, l))
    a("v_bfe_u32 v%d, v%d, 2, 2" % (rp, l))
    a("v_and_b32 v%d, 3, v%d" % (cp, l))
    a("v_xor_b32 v%d, v%d, v%d" % (t4, G, t3))
    a("v_lshlrev_b32 v%d, 4, v%d" % (t4, t4))
    a("v_lshl_add_u32 v%d, v%d, 10, v%d" % (t5, t3, t4))
    a("v_add_u32 v%d, 0x%x, v%d" % (vXB, X_BASE, t5))
    a("v_lshl_add_u32 v%d, v%d, 8, v%d" % (t5, t3, t4))
    a("v_add_u32 v%d, 0x%x, v%d" % (vOR[0], M_BASE, t5))
    for k in range(1, 4):
        a("v_xor_b32 v%d, %d, v%d" % (vOR[k], k * 64, vOR[0]))
    a("v_and_b32 v%d, 1, v%d" % (t4, G))
    a("v_lshl_add_u32 v%d, v%d, 2, v%d" % (t4, t4, rp))
    a("s_lshl_b32 s%d, s%d, 2" % (sT0, sW))
    a("v_xor_b32 v%d, s%d, v%d" % (t5, sT0, t4))
    a("v_lshlrev_b32 v%d, 5, v%d" % (t5, t5))
    a("v_lshl_add_u32 v%d, v%d, 3, v%d" % (t1, G, rp))
    a("v_lshl_add_u32 v%d, v%d, 9, v%d" % (t5, t1, t5))
    a("v_lshl_add_u32 v%d, v%d, 3, v%d" % (vWA[0], cp, t5))
    for nb in range(1, 4):
        a("v_xor_b32 v%d, %d, v%d" % (vWA[nb], nb * 32, vWA[0]))
    for nb in range(4):
        a("v_add_u32 v%d, 0x10000, v%d" % (vWA2[nb], vWA[nb]))
    a("s_lshl_b32 s%d, s%d, 1" % (sT0, sW))
    a("v_xor_b32 v%d, s%d, v%d" % (t5, sT0, t4))
    a("v_lshlrev_b32 v%d, 5, v%d" % (t5, t5))
    a("v_lshl_add_u32 v%d, v%d, 8, v%d" % (t5, t1, t5))
    a("v_lshl_add_u32 v%d, v%d, 3, v%d" % (vWOA, cp, t5))
    a("s_and_b32 s%d, s%d, 1" % (sT0, sW))
    a("s_lshl_b32 s%d, s%d, 3" % (sT0, sT0))
    a("v_lshrrev_b32 v%d, 1, v%d" % (t4, G))
    a("v_add_u32 v%d, s%d, v%d" % (t4, sT0, t4))
    a("v_xor_b32 v%d, v%d, v%d" % (t4, t4, t3))
    a("v_lshlrev_b32 v%d, 4, v%d" % (t4, t4))
    a("v_lshl_add_u32 v%d, v%d, 8, v%d" % (t4, t3, t4))
    a("v_and_b32 v%d, 1, v%d" % (t5, G))
    a("v_lshl_add_u32 v%d, v%d, 3, v%d" % (t4, t5, t4))
    a("s_lshr_b32 s%d, s%d, 1" % (sT0, sW))
    a("s_mul_i32 s%d, s%d, %d" % (sT0, sT0, 48 * 256))
    a("s_add_u32 s%d, s%d, %d" % (sT0, sT0, M_BASE))
    a("v_add_u32 v%d, s%d, v%d" % (vQW, sT0, t4))
    a("v_and_b32 v%d, 31, v%d" % (t1, l))
    a("v_lshrrev_b32 v%d, 5, v%d" % (t2, l))
    a("v_xor_b32 v%d, v%d, v%d" % (t4, t2, t3))
    a("v_lshlrev_b32 v%d, 4, v%d" % (t4, t4))
    a("v_lshl_add_u32 v%d, v%d, 8, v%d" % (vKA[0], t1, t4))
    for ks in range(1, 8):
        a("v_xor_b32 v%d, %d, v%d" % (vKA[ks], ks * 32, vKA[0]))
    a("v_lshlrev_b32 v%d, 4, v%d" % (t4, t3))
    a("v_lshl_add_u32 v%d, v%d, 8, v%d" % (t4, t1, t4))
    a("v_lshl_add_u32 v%d, v%d, 3, v%d" % (t4, t2, t4))
    a("s_lshl_b32 s%d, s%d, 13" % (sT0, sW))
    a("s_add_u32 s%d, s%d, %d" % (sT0, sT0, M_BASE))
    a("v_add_u32 v%d, s%d, v%d" % (vOW, sT0, t4))
    a("v_lshl_add_u32 v%d, v%d, 2, v%d" % (t1, t2, rp))
    a("v_and_b32 v%d, 1, v%d" % (t4, G))
    a("v_lshlrev_b32 v%d, 1, v%d" % (t4, t4))
    a("v_lshrrev_b32 v%d, 1, v%d" % (t5, cp))
    a("v_add_u32 v%d, v%d, v%d" % (t4, t4, t5))
    a("v_lshlrev_b32 v%d, 2, v%d" % (t5, rp))
    a("v_xor_b32 v%d, v%d, v%d" % (t4, t4, t5))
    a("v_lshlrev_b32 v%d, 4, v%d" % (t4, t4))
    a("v_lshl_add_u32 v%d, v%d, 8, v%d" % (t4, t1, t4))
    a("v_and_b32 v%d, 1, v%d" % (t5, cp))
    a("v_lshl_add_u32 v%d, v%d, 3, v%d" % (t4, t5, t4))
    a("v_add_u32 v%d, 0x%x, v%d" % (vVA[0], V_BASE, t4))
    for db in range(1, 4):
        a("v_xor_b32 v%d, %d, v%d" % (vVA[db], db * 64, vVA[0]))
    a("v_lshlrev_b32 v%d, 4, v%d" % (vST, l))
    a("s_lshl_b32 s%d, s%d, 8" % (sT0, sGRP))
    a("s_add_u32 s%d, s%d, s%d" % (sT0, sT0, sHP))
    a("s_lshl_b32 s%d, s%d, 4" % (sT1, sW))
    a("s_add_u32 s%d, s%d, s%d" % (sT0, sT0, sT1))
    a("s_mul_i32 s%d, s%d, 3072" % (sPOFF, sT0))
    srd(a, SRD_WS, P_WS, WS_BYTES)
    a("s_mov_b32 s%d, 0x%08x" % (sTHR, f32bits(2.0 ** opt.thr_log2)))
    a("v_mov_b32 v%d, 0x3f803f80" % vONE)
    for r in range(48):
        a("v_mov_b32 v%d, 0" % (vACC1 + r))
    for r in range(16):
        a("v_mov_b32 v%d, 0" % (vA1[1] + r))
    for r in range(12):
        a("v_mov_b32 v%d, 0" % (vB1[1] + r))
    a("s_cmp_eq_u32 s%d, 3" % sW)
    a("s_cbranch_scc1 L_X_LANDED")
    a("s_waitcnt vmcnt(0)")
    a.label("L_X_LANDED")
    stamp(a, 1)

    def q_mfma_list(pb):
        if opt.x_q_nomfma:
            return []
        out = []
        for nb in range(4):
            for qb in range(3):
                acc = vACC1 + (nb * 3 + qb) * 4
                out.append("v_mfma_f32_16x16x32_bf16 %s, %s, %s, %s" % (vr(acc, 4), vr(vA1[pb] + nb * 4, 4), vr(vB1[pb] + qb * 4, 4), vr(acc, 4)))
        return out
    vXTT = [vXT, vT[8]]
    def x_addr(e):
        v = vXTT[e & 1]
        return ["s_lshl_b32 s%d, s%d, 1" % (sT0, sB),
                "s_add_u32 s%d, s%d, %d" % (sT0, sT0, e),
                "s_and_b32 s%d, s%d, 3" % (sT1, sT0),
                "s_lshl_b32 s%d, s%d, 6" % (sT1, sT1),
                "s_bfe_u32 s%d, s%d, 0x20002" % (sT2, sT0),
                "s_lshl_b32 s%d, s%d, 8" % (sT2, sT2),
                "v_xor_b32 v%d, s%d, v%d" % (v, sT1, vXB),
                "v_add_u32 v%d, s%d, v%d" % (v, sT2, v)]
    for ins in x_addr(0):
        a(ins)
    for e in range(16):
        bar("CI", "Q%d" % e)
        if e in (0, 4, 8, 12):
            stamp(a, 9 + e // 4)
        pb = e & 1
        slot = e % NWS
        wa, so = (vWA, slot * 16384) if slot < 4 else (vWA2, (slot - 4) * 16384)
        fill = []
        if not opt.x_q_nods:
            for nb in range(4):
                for jj in range(2):
                    fill.append("ds_read_b64_tr_b16 %s, v%d offset:%d" % (vr(vA1[pb] + nb * 4 + jj * 2, 2), wa[nb], so + jj * 2048))
                if nb == 0:
                    for qb in range(3):
                        fill.append("ds_read_b128 %s, v%d offset:%d" % (vr(vB1[pb] + qb * 4, 4), vXTT[e & 1], qb * 16384))
        if e < 15:
            fill += x_addr(e + 1)
        interleave(a, q_mfma_list(pb ^ 1), fill)
        a("s_waitcnt lgkmcnt(0)")
    bar("CI", "Q16")
    stamp(a, 13)
    for m in q_mfma_list(1):
        a(m)
    a("s_nop 7")
    scale = math.log2(math.e) / math.sqrt(128.0)
    a("s_mov_b32 s%d, 0x%08x" % (sT0, f32bits(scale)))
    for nb in range(4):
        a("v_xor_b32 v%d, %d, v%d" % (vT[0], nb * 32, vQW))
        for qb in range(3):
            acc = vACC1 + (nb * 3 + qb) * 4
            for r in range(4):
                a("v_mul_f32 v%d, s%d, v%d" % (acc + r, sT0, acc + r))
            a("v_cvt_pk_bf16_f32 v%d, v%d, v%d" % (acc, acc, acc + 1))
            a("v_cvt_pk_bf16_f32 v%d, v%d, v%d" % (acc + 1, acc + 2, acc + 3))
            a("ds_write_b64 v%d, %s offset:%d" % (vT[0], vr(acc, 2), qb * 4096))
    a("s_waitcnt lgkmcnt(0)")
    bar("CI", "Q17")
    stamp(a, 2)
    a("s_cmp_eq_u32 s%d, 3" % sW)
    a("s_cbranch_scc1 L_IDLE3")

    if opt.prio:
        a("s_setprio %d" % opt.prio)
    a("s_lshl_b32 s%d, s%d, 13" % (sT0, sW))
    a("s_add_u32 s%d, s%d, %d" % (sT0, sT0, M_BASE))
    for ks in range(8):
        a("v_add_u32 v%d, s%d, v%d" % (vT[ks], sT0, vKA[ks]))
    dq = Queue(1000)
    for ks in range(8):
        a("ds_read_b128 %s, v%d" % (vr(vQ + ks * 4, 4), vT[ks]))
        dq.issue("Q")
    L, WS = opt.L, opt.waitstep

    def frag_ops(p):
        return 1 if (p & 15) < 8 else 2

    def frag_read(t, p):
        if p >= 16:
            t, p = t + 1, p - 16
        fb = vF + (p & 7) * 4
        if p < 8:
            if not opt.x_nods:
                a("ds_read_b128 %s, v%d offset:%d" % (vr(fb, 4), vKA[p], KPOS[(t + 1) & 7] * 8192))
            dq.issue("F%d" % (p & 7), 1)
        else:
            u, db = (p - 8) >> 2, (p - 8) & 3
            for jj in range(2):
                if not opt.x_nods:
                    a("ds_read_b64_tr_b16 %s, v%d offset:%d" % (vr(fb + jj * 2, 2), vVA[db], ((t - 1) & 7) * 8192 + (16 * u + 8 * jj) * 256))
            dq.issue("F%d" % (p & 7), 2)

    def wait_frags(p):
        if p % WS:
            return
        n = dq.need({"F%d" % ((p + i) & 7) for i in range(WS)})
        if n is not None and not opt.x_nods:
            assert n <= 15
            a("s_waitcnt lgkmcnt(%d)" % n)

    def sm_ops(t):
        S, P = vS[t & 1], vP[t & 1]
        ops = []
        for k in range(8):
            e0, e1 = vE + (k & 1) * 2, vE + (k & 1) * 2 + 1
            ops.append(("v_exp_f32 v%d, v%d" % (e0, S + 2 * k), 8))
            ops.append(("v_exp_f32 v%d, v%d" % (e1, S + 2 * k + 1), 8))
            cvt = ("v_cvt_pk_bf16_f32 v%d, v%d, v%d" % (P + k, e0, e1), 4)
            if opt.sumop == "add":
                if k == 0:
                    ops.append(("v_mov_b32 v%d, v%d" % (vPSA, e0), 4))
                    ops.append(("v_mov_b32 v%d, v%d" % (vPSB, e1), 4))
                else:
                    ops.append(("v_add_f32 v%d, v%d, v%d" % (vPSA, vPSA, e0), 4))
                    ops.append(("v_add_f32 v%d, v%d, v%d" % (vPSB, vPSB, e1), 4))
                ops.append(cvt)
            elif opt.sumop == "pk":
                if k == 0:
                    ops.append(("v_mov_b32 v%d, v%d" % (vPSA, e0), 4))
                    ops.append(("v_mov_b32 v%d, v%d" % (vPSB, e1), 4))
                    ops.append(cvt)
                else:
                    ops.append(("s_nop 0", 4))
                    ops.append(("v_pk_add_f32 v[%d:%d], v[%d:%d], v[%d:%d]" % (vPSA, vPSB, vPSA, vPSB, e0, e1), 4))
                    ops.append(cvt)
            elif opt.sumop == "dot":
                if k == 0:
                    ops.append(("s_nop 0", 4))
                elif k == 1:
                    ops.append(("v_dot2_f32_bf16 v%d, v%d, v%d, 0" % (vPSA, P, vONE), 4))
                else:
                    ops.append(("v_dot2_f32_bf16 v%d, v%d, v%d, v%d" % (vPSA, P + k - 1, vONE, vPSA), 4))
                ops.append(cvt)
        if opt.sumop != "dot":
            ops.append(("v_add_f32 v%d, v%d, v%d" % (vPSA, vPSA, vPSB), 4))
        else:
            ops.append(("v_dot2_f32_bf16 v%d, v%d, v%d, v%d" % (vPSA, P + 7, vONE, vPSA), 4))
            ops.append(("s_nop 2", 4))
        ops.append(("v_cmp_nge_f32 vcc, s%d, v%d" % (sTHR, vPSA), 4))
        return ops

    def sm_schedule(ops, base):
        room = [max(opt.slotcap - base[p], 4) for p in range(15)]
        total = sum(c for _, c in ops)
        scale_ = total / float(sum(room))
        slots = [[] for _ in range(16)]
        i, cum_room, cum = 0, 0.0, 0
        for p in range(15):
            cum_room += room[p] * scale_
            while i < len(ops) and (cum + ops[i][1] / 2.0 <= cum_room or p == 14):
                slots[p].append(ops[i][0])
                cum += ops[i][1]
                i += 1
        return slots

    rare = []

    def period(t, tag, do_qk, do_sm, do_pv, c_zero=False, has_bar=True, next_qk=True):
        Sn, Pp = vS[(t + 1) & 1], vP[(t - 1) & 1]
        def want(pn):
            return (pn < 8 and do_qk) or (8 <= pn < 16 and do_pv) or (pn >= 16 and next_qk)
        base = []
        for p in range(16):
            c = 8 + (opt.dscost * frag_ops(p + L) if want(p + L) else 0) + (4 if p % WS == 0 else 0) + (4 if p == 16 - L else 0)
            base.append(c)
        sm = sm_schedule(sm_ops(t), base) if do_sm and not opt.x_nosm else [[] for _ in range(16)]
        for p in range(16):
            mf = None
            if p < 8 and do_qk:
                c = "0" if (p == 0 and c_zero) else (vr(vNM, 16) if p == 0 else vr(Sn, 16))
                mf = "v_mfma_f32_32x32x16_bf16 %s, %s, %s, %s" % (vr(Sn, 16), vr(vF + (p & 7) * 4, 4), vr(vQ + p * 4, 4), c)
            if p >= 8 and do_pv:
                u, db = (p - 8) >> 2, (p - 8) & 3
                mf = "v_mfma_f32_32x32x16_bf16 %s, %s, %s, %s" % (vr(vO + db * 16, 16), vr(vF + (p & 7) * 4, 4), vr(Pp + u * 4, 4), vr(vO + db * 16, 16))
            if p == 16 - L and has_bar:
                bar("C", "A%s" % tag, opt.x_nobar)
            if mf:
                wait_frags(p)
                if not opt.x_nomfma:
                    a(mf)
            if want(p + L):
                frag_read(t, p + L)
            for ins in sm[p]:
                a(ins)
        if do_sm:
            lab = "L_RARE_%s" % tag
            if not opt.x_norare and not opt.x_nosm:
                a("s_cbranch_vccnz %s" % lab)
                rare.append((lab, t, do_qk))
                a.label(lab + "_BACK")
            a("v_add_f32 v%d, v%d, v%d" % (vLACC, vLACC, vPSA))

    def row_max(S, dst):
        a("v_max3_f32 v%d, v%d, v%d, v%d" % (dst, S, S + 1, S + 2))
        for r in range(3, 15, 2):
            a("v_max3_f32 v%d, v%d, v%d, v%d" % (dst, dst, S + r, S + r + 1))
        a("v_max_f32 v%d, v%d, v%d" % (dst, dst, S + 15))
        a("v_mov_b32 v%d, v%d" % (vTMP, dst))
        a("s_nop 1")
        a("v_permlane32_swap_b32 v%d, v%d" % (dst, vTMP))
        a("s_nop 1")
        a("v_max_f32 v%d, v%d, v%d" % (dst, dst, vTMP))

    def emit_rare(lab, t, fix_next):
        S, Sn, P = vS[t & 1], vS[(t + 1) & 1], vP[t & 1]
        d, f = vE + 4, vE + 5
        a.label(lab)
        a("s_nop 15")
        row_max(S, d)
        a("v_max_f32 v%d, 0, v%d" % (d, d))
        a("v_exp_f32 v%d, -v%d" % (f, d))
        for r in range(16):
            a("v_sub_f32 v%d, v%d, v%d" % (vNM + r, vNM + r, d))
        for r in range(16):
            a("v_sub_f32 v%d, v%d, v%d" % (S + r, S + r, d))
        if fix_next:
            for r in range(16):
                a("v_sub_f32 v%d, v%d, v%d" % (Sn + r, Sn + r, d))
        for r in range(64):
            a("v_mul_f32 v%d, v%d, v%d" % (vO + r, vO + r, f))
        a("v_mul_f32 v%d, v%d, v%d" % (vLACC, vLACC, f))
        a("v_mov_b32 v%d, 0" % vPSA)
        for k in range(8):
            a("v_exp_f32 v%d, v%d" % (vE, S + 2 * k))
            a("v_exp_f32 v%d, v%d" % (vE + 1, S + 2 * k + 1))
            a("v_add_f32 v%d, v%d, v%d" % (vPSA, vPSA, vE))
            a("v_add_f32 v%d, v%d, v%d" % (vPSA, vPSA, vE + 1))
            a("v_cvt_pk_bf16_f32 v%d, v%d, v%d" % (P + k, vE, vE + 1))
        a("s_nop 1")
        a("s_branch %s_BACK" % lab)

    for p in range(L):
        frag_read(-1, p)
    for r in range(64):
        a("v_mov_b32 v%d, 0" % (vO + r))
    a("v_mov_b32 v%d, 0" % vLACC)
    a("s_waitcnt lgkmcnt(%d)" % dq.need({"Q"}))
    if opt.dump == "q":
        dump_regs(a, vQ, 32)
    period(-1, "m1", True, False, False, c_zero=True)
    a("s_nop 15")
    row_max(vS[0], vE + 4)
    for r in range(16):
        a("v_sub_f32 v%d, 0, v%d" % (vNM + r, vE + 4))
    for r in range(16):
        a("v_sub_f32 v%d, v%d, v%d" % (vS[0] + r, vS[0] + r, vE + 4))
    a("s_nop 1")
    period(0, "0", True, True, False)
    q_entry = list(dq.q)
    a("s_mov_b32 s%d, 0" % sPASS)
    a(".p2align 3")
    a.label("L_ATT_LOOP")
    n0 = len(bars["C"])
    for t in range(1, 9):
        period(t, "L%d" % t, True, True, True)
        if t == 6:
            q_exit = list(dq.q)
            a("s_cmp_eq_u32 s%d, 3" % sPASS)
            a("s_cbranch_scc1 L_ATT_EXIT")
    assert dq.q == q_entry, (dq.q, q_entry)
    a("s_add_u32 s%d, s%d, 1" % (sPASS, sPASS))
    a("s_branch L_ATT_LOOP")
    del bars["C"][n0:]
    bars["C"] += ["A%d" % t for t in range(1, 31)]
    a.label("L_ATT_EXIT")
    dq.q = list(q_exit)
    period(31, "31", False, True, True, next_qk=False)
    period(32, "32", False, False, True, has_bar=False, next_qk=False)
    stamp(a, 3)
    a("v_mov_b32 v%d, v%d" % (vTMP, vLACC))
    a("s_nop 1")
    a("v_permlane32_swap_b32 v%d, v%d" % (vLACC, vTMP))
    a("s_nop 1")
    a("v_add_f32 v%d, v%d, v%d" % (vLACC, vLACC, vTMP))
    a("v_rcp_f32 v%d, v%d" % (vLACC, vLACC))
    a("s_nop 7")
    for db in range(4):
        for rr in range(4):
            b = vO + db * 16 + rr * 4
            for e in range(4):
                a("v_mul_f32 v%d, v%d, v%d" % (b + e, b + e, vLACC))
            a("v_cvt_pk_bf16_f32 v%d, v%d, v%d" % (b, b, b + 1))
            a("v_cvt_pk_bf16_f32 v%d, v%d, v%d" % (b + 1, b + 2, b + 3))
            a("v_xor_b32 v%d, %d, v%d" % (vT[rr], (4 * db + rr) * 16, vOW))
            a("ds_write_b64 v%d, %s" % (vT[rr], vr(b, 2)))
    if opt.prio:
        a("s_setprio 0")
    a("s_waitcnt lgkmcnt(0)")
    a("s_branch L_E0")

    a.label("L_IDLE3")
    if not opt.x_nobar:
        a("s_mov_b32 s%d, 33" % sPASS)
        a.label("L_IDLE3_LOOP")
        a("s_barrier")
        a("s_sub_u32 s%d, s%d, 1" % (sPASS, sPASS))
        a("s_cmp_lg_u32 s%d, 0" % sPASS)
        a("s_cbranch_scc1 L_IDLE3_LOOP")
    bars["I"] += ["Am1"] + ["A%d" % t for t in range(0, 32)]

    a.label("L_E0")
    bar("CI", "E0")
    stamp(a, 4)

    def a3_list(p):
        out = ["v_add_u32 v%d, 0x%x, v%d" % (vWOT[0], RWO[p & 3], vWOA),
               "v_xor_b32 v%d, 32, v%d" % (vWOT[1], vWOT[0])]
        for ks in range(4 if not opt.x_o_nods else 0):
            for nb in range(2):
                for jj in range(2):
                    out.append("ds_read_b64_tr_b16 %s, v%d offset:%d" % (vr(vA3[p & 1] + (ks * 2 + nb) * 4 + jj * 2, 2), vWOT[nb], ks * 8192 + jj * 1024))
        return out
    def mf3_list(p):
        if opt.x_o_nomfma:
            return []
        out = []
        kh = p & 1
        for ks in range(4):
            for nb in range(2):
                for qb in range(3):
                    acc = vACC3[(p >> 1) & 1] + (qb * 2 + nb) * 4
                    c = "0" if (ks == 0 and kh == 0) else vr(acc, 4)
                    out.append("v_mfma_f32_16x16x32_bf16 %s, %s, %s, %s" % (vr(acc, 4), vr(vA3[p & 1] + (ks * 2 + nb) * 4, 4), vr(vB3 + ((kh * 4 + ks) * 3 + qb) * 4, 4), c))
        return out
    def st3_list(c):
        if opt.x_o_nost:
            return []
        out = ["s_add_u32 s%d, s%d, %d" % (sT0, sB, c),
               "s_and_b32 s%d, s%d, 3" % (sT0, sT0),
               "s_mul_i32 s%d, s%d, %d" % (sT0, sT0, 4 * 16 * 3072),
               "s_add_u32 s%d, s%d, s%d" % (sT0, sT0, sPOFF)]
        for qb in range(3):
            acc = vACC3[c & 1] + qb * 8
            for d in range(4):
                out.append("v_cvt_pk_bf16_f32 v%d, v%d, v%d" % (acc + d, acc + 2 * d, acc + 2 * d + 1))
            out.append("buffer_store_dwordx4 %s, v%d, s[%d:%d], s%d offen offset:%d %s" % (vr(acc, 4), vST, SRD_WS, SRD_WS + 3, sT0, qb * 1024, part_aux))
        return out
    for ins in a3_list(0):
        a(ins)
    for ks in range(8):
        for qb in range(3):
            a("ds_read_b128 %s, v%d offset:%d" % (vr(vB3 + (ks * 3 + qb) * 4, 4), vOR[ks & 3], (48 * (ks >> 2) + 16 * qb) * 256))
    a("s_waitcnt lgkmcnt(0)")
    if opt.dump == "o":
        dump_regs(a, vB3, 96)
    for p in range(1, 8):
        bar("CI", "P%d" % p)
        if p in (1, 4, 7):
            stamp(a, 14 + p // 3)
        fill = a3_list(p)
        if p >= 4 and p % 2 == 0 or p == 3 and False:
            pass
        if p >= 3 and p % 2 == 1:
            fill += st3_list((p - 3) // 2)
        interleave(a, mf3_list(p - 1), fill)
        a("s_waitcnt lgkmcnt(0)")
    interleave(a, mf3_list(7), [])
    a("s_nop 7")
    for ins in st3_list(3):
        a(ins)
    stamp(a, 5)
    a("s_waitcnt vmcnt(0)")
    stamp(a, 6)
    if opt.fused_tail:
        bar("CI", "F0")
        a("s_branch L_REDUCE")
    else:
        a("s_branch L_END")

    a.label("L_LOADER")
    qL = Queue(63)
    t1, t2, t3, t4 = vT[0:4]
    a("s_sub_u32 s%d, s%d, 4" % (sJ, sW))
    a("s_lshl_b32 s%d, s%d, 9" % (sT0, sHP))
    srd(a, SRD_WQ, P_WQ, 4194304 - 15 * 512, sT0)
    a("s_lshl_b32 s%d, s%d, 16" % (sJ64K, sJ))
    a("v_lshrrev_b32 v%d, 5, v%d" % (t1, vL))
    a("v_and_b32 v%d, 31, v%d" % (t2, vL))
    a("v_lshlrev_b32 v%d, 1, v%d" % (t3, t1))
    a("v_xor_b32 v%d, v%d, v%d" % (t2, t2, t3))
    a("v_lshlrev_b32 v%d, 4, v%d" % (t2, t2))
    a("s_and_b32 s%d, s%d, 1" % (sT1, sJ))
    a("s_lshl_b32 s%d, s%d, 7" % (sT1, sT1))
    a("v_xor_b32 v%d, s%d, v%d" % (t2, sT1, t2))
    a("v_lshl_add_u32 v%d, v%d, 13, v%d" % (t2, t1, t2))
    for aa in range(4):
        c = 2 * aa * 8192 - aa * 1024
        if aa & 1:
            a("v_xor_b32 v%d, 64, v%d" % (vLW[aa], t2))
            a("v_add_u32 v%d, 0x%x, v%d" % (vLW[aa], c, vLW[aa]))
        else:
            a("v_add_u32 v%d, 0x%x, v%d" % (vLW[aa], c, t2))
    a("s_lshl_b32 s%d, s%d, 1" % (sKS, sB))
    a("s_lshl_b32 s%d, s%d, 12" % (sT5, sJ))

    def dma_w(e):
        a("s_add_u32 s%d, s%d, %d" % (sT0, sKS, e))
        a("s_and_b32 s%d, s%d, 15" % (sT0, sT0))
        a("s_lshl_b32 s%d, s%d, 18" % (sT0, sT0))
        a("s_add_u32 m0, s%d, 0x%x" % (sT5, (e % NWS) * 16384))
        a("s_add_u32 s%d, s%d, s%d" % (sT0, sT0, sJ64K))
        if opt.x_q_nodma:
            return
        for aa in range(4):
            a("buffer_load_dwordx4 v%d, s[%d:%d], s%d offen offset:%d %s lds" % (vLW[aa], SRD_WQ, SRD_WQ + 3, sT0, aa * 1024, opt.w_aux))
        qL.issue("W%d" % e, 4)
    for e in range(NWS):
        dma_w(e)
    a("s_lshl_b32 s%d, s%d, 3" % (sT0, sB))
    a("s_add_u32 s%d, s%d, s%d" % (sT0, sT0, sKVH))
    a("s_lshl_b32 s%d, s%d, 18" % (sT0, sT0))
    srd(a, SRD_K, P_K, 262144, sT0)
    srd(a, SRD_V, P_V, 262144, sT0)
    a("s_lshl_b32 s%d, s%d, 18" % (sT0, sHP))
    srd(a, SRD_WO, P_WO, 262144, sT0)
    a("s_lshl_b32 s%d, s%d, 11" % (sJ2K, sJ))
    a("v_lshrrev_b32 v%d, 4, v%d" % (t1, vL))
    a("v_and_b32 v%d, 15, v%d" % (t2, vL))
    a("v_xor_b32 v%d, v%d, v%d" % (t3, t2, t1))
    a("s_and_b32 s%d, s%d, 1" % (sT1, sJ))
    a("s_lshl_b32 s%d, s%d, 3" % (sT1, sT1))
    a("v_xor_b32 v%d, s%d, v%d" % (t3, sT1, t3))
    a("v_lshlrev_b32 v%d, 4, v%d" % (t3, t3))
    a("v_lshl_add_u32 v%d, v%d, 8, v%d" % (vLK[0], t1, t3))
    a("v_xor_b32 v%d, 64, v%d" % (vLK[1], vLK[0]))
    a("v_lshlrev_b32 v%d, 2, v%d" % (t3, t1))
    a("v_xor_b32 v%d, v%d, v%d" % (t3, t2, t3))
    a("v_lshlrev_b32 v%d, 4, v%d" % (t3, t3))
    a("v_lshl_add_u32 v%d, v%d, 8, v%d" % (vLV, t1, t3))
    a("v_lshrrev_b32 v%d, 4, v%d" % (t1, vL))
    a("v_and_b32 v%d, 15, v%d" % (t2, vL))
    a("v_lshlrev_b32 v%d, 1, v%d" % (t3, t1))
    a("v_xor_b32 v%d, v%d, v%d" % (t2, t2, t3))
    a("v_lshlrev_b32 v%d, 4, v%d" % (t2, t2))
    a("v_lshl_add_u32 v%d, v%d, 10, v%d" % (t2, t1, t2))
    for aa in range(4):
        if aa >> 1:
            a("v_xor_b32 v%d, 128, v%d" % (vLWO[aa], t2))
            a("v_add_u32 v%d, %d, v%d" % (vLWO[aa], 3072 * aa, vLWO[aa]))
        else:
            a("v_add_u32 v%d, %d, v%d" % (vLWO[aa], 3072 * aa, t2))

    def dma_tile(kind, t):
        base = K_BASE + KPOS[t & 7] * 8192 if kind == "K" else V_BASE + (t & 7) * 8192
        s_, v_ = (SRD_K, vLK) if kind == "K" else (SRD_V, [vLV, vLV])
        a("s_add_u32 m0, s%d, 0x%x" % (sJ2K, base))
        a("s_add_u32 s%d, s%d, 0x%x" % (sOFF, sJ2K, t * 8192))
        for aa in range(2):
            a("buffer_load_dwordx4 v%d, s[%d:%d], s%d offen offset:%d %s lds" % (v_[aa], s_, s_ + 3, sOFF, aa * 1024, opt.kv_aux))
        qL.issue("%s%d" % (kind, t), 2)
    def dma_wo(p):
        if opt.x_o_nodma:
            return
        a("s_add_u32 s%d, s%d, %d" % (sT0, sB, p >> 1))
        a("s_and_b32 s%d, s%d, 3" % (sT0, sT0))
        a("s_lshl_b32 s%d, s%d, 8" % (sT0, sT0))
        a("s_lshl_b32 s%d, s%d, 3" % (sT1, sT5))
        a("s_add_u32 s%d, s%d, s%d" % (sT0, sT0, sT1))
        if p & 1:
            a("s_add_u32 s%d, s%d, 0x20000" % (sT0, sT0))
        a("s_lshl_b32 s%d, s%d, 1" % (sT1, sT5))
        for hf in range(2):
            a("s_add_u32 m0, s%d, 0x%x" % (sT1, RWO[p & 3] + hf * 4096))
            if hf:
                a("s_add_u32 s%d, s%d, 16384" % (sT0, sT0))
            else:
                a("s_nop 0")
            for aa in range(4):
                a("buffer_load_dwordx4 v%d, s[%d:%d], s%d offen offset:%d %s lds" % (vLWO[aa], SRD_WO, SRD_WO + 3, sT0, aa * 1024, opt.w_aux))
        qL.issue("WO%d" % p, 8)
    def lwait(tags):
        n = qL.need(set(tags))
        if n is not None:
            a("s_waitcnt vmcnt(%d)" % n)
    if opt.fill == 0:
        fill = {10: [("K", 0), ("K", 1)], 11: [("K", 2), ("K", 3)], 12: [("V", 0), ("V", 1)], 13: [("V", 2), ("V", 3)],
                14: [("V", 4), ("V", 5)], 15: [("K", 4), ("K", 5)], 16: [("K", 6), ("K", 7)]}
        nk, nv = 8, 6
    elif opt.fill == 1:
        fill = {10: [("K", 0)], 11: [("K", 1)], 12: [("V", 0)], 13: [("K", 2)], 14: [("V", 1)], 15: [("K", 3)], 16: [("V", 2)]}
        nk, nv = 4, 3
    elif opt.fill == 2:
        fill = {10: [("K", 0)], 12: [("K", 1)], 14: [("V", 0)], 16: [("K", 2)]}
        nk, nv = 3, 1
    for e in range(17):
        if e < 16:
            lwait(["W%d" % e])
        if opt.lstamps and e >= 10:
            stamp(a, 17 + e - 10)
        bar("L", "Q%d" % e)
        if e >= 1 and e + NWS - 1 <= 15:
            dma_w(e + NWS - 1)
        for kind, t in fill.get(e, []):
            dma_tile(kind, t)
        if opt.lstamps and e >= 10:
            stamp(a, 24 + e - 10)
    lwait(["K0"])
    bar("L", "Q17")
    stamp(a, 2)
    for _ in range(2):
        if nk < 8 and opt.fill:
            dma_tile("K", nk); nk += 1
        if nv < 6 and opt.fill:
            dma_tile("V", nv); nv += 1
    for t in range(-1, 32):
        lwait(["K%d" % (t + 2), "V%d" % t])
        bar("L", "A%s" % ("m1" if t < 0 else str(t)), opt.x_nobar)
        for _ in range(2):
            if nk <= 31 and nk <= t + opt.klead:
                dma_tile("K", nk); nk += 1
            if nv <= 31 and nv <= max(t + opt.vlead, 5):
                dma_tile("V", nv); nv += 1
        if t == 26:
            dma_wo(0)
        if t == 29:
            dma_wo(1)
        if t == 30:
            dma_wo(2)
    assert nk == 32 and nv == 32
    lwait(["WO0"])
    bar("L", "E0")
    stamp(a, 4)
    dma_wo(3)
    for p in range(1, 8):
        lwait(["WO%d" % p])
        bar("L", "P%d" % p)
        if p + 3 <= 7:
            dma_wo(p + 3)
    stamp(a, 6)
    if opt.fused_tail:
        srd(a, SRD_DBG, P_DBG, 256)
        a("s_lshl_b32 s%d, s%d, 4" % (sT0, sGRP))
        a("v_mov_b32 v2, s%d" % sT0)
        a("v_mov_b32 v3, 1")
        bar("L", "F0")
        a("s_cmp_lg_u32 s%d, 4" % sW)
        a("s_cbranch_scc1 L_REDUCE")
        a("s_mov_b64 s[%d:%d], exec" % (sT2, sT3))
        a("s_mov_b64 exec, 1")
        a("buffer_atomic_add v3, v2, s[%d:%d], 0 offen sc1" % (SRD_DBG, SRD_DBG + 3))
        a("s_mov_b32 s%d, 0" % sT4)
        a.label("L_POLL")
        a("buffer_load_dword v4, v2, s[%d:%d], 0 offen sc1" % (SRD_DBG, SRD_DBG + 3))
        a("s_add_u32 s%d, s%d, 1" % (sT4, sT4))
        a("s_waitcnt vmcnt(0)")
        a("v_readfirstlane_b32 s%d, v4" % sT1)
        a("s_cmp_ge_u32 s%d, 0x%x" % (sT4, opt.spin_limit))
        a("s_cbranch_scc1 L_POLL_DONE")
        a("s_cmp_lt_u32 s%d, 16" % sT1)
        a("s_cbranch_scc1 L_POLL")
        a.label("L_POLL_DONE")
        a("s_mov_b64 exec, s[%d:%d]" % (sT2, sT3))
        a.label("L_REDUCE")
        a("s_barrier")
        stamp(a, 7)
        a("s_cmp_ge_u32 s%d, 6" % sW)
        a("s_cbranch_scc1 L_RED_IDLE")
        srd(a, SRD_WS, P_WS, WS_PART_BYTES)
        srd(a, SRD_OUT, P_OUT, 8 * 48 * 1024 * 2)
        a("s_lshl_b32 s%d, s%d, 4" % (sKS, sGRP))
        a("s_add_u32 s%d, s%d, s%d" % (sKS, sKS, sHP))
        a("s_mul_i32 s%d, s%d, %d" % (sKS, sKS, 16 * 3072))
        reduce_body(a, sW, sKS, SRD_WS, SRD_OUT, sGRP, sHP, "sc1", 0)
        stamp(a, 8)
        a("s_branch L_END")
        a.label("L_RED_IDLE")
        a("s_barrier")

    a.label("L_END")
    a("s_endpgm")
    for lab, t, fix in rare:
        emit_rare(lab, t, fix)

    assert bars["C"] == bars["I"] == bars["L"], "barrier sequences differ:\n%s\n%s\n%s" % (bars["C"], bars["I"], bars["L"])


def gen_reduce(a):
    name = "attn_reduce_kernel"
    a(".p2align 8")
    a(".globl %s" % name)
    a(".type %s,@function" % name)
    a.label(name)
    a("s_cmp_ge_u32 s2, 256")
    a("s_cbranch_scc1 R_END")
    a("s_load_dwordx2 s[4:5], s[0:1], 80")
    a("s_load_dwordx2 s[6:7], s[0:1], 96")
    a("v_lshrrev_b32 v1, 6, v0")
    a("v_and_b32 v0, 63, v0")
    a("v_readfirstlane_b32 s3, v1")
    a("s_mul_i32 s16, s2, %d" % (16 * 3072))
    a("s_lshr_b32 s18, s2, 4")
    a("s_and_b32 s19, s2, 15")
    a("s_waitcnt lgkmcnt(0)")
    srd(a, 8, 6, WS_PART_BYTES)
    srd(a, 12, 4, 8 * 48 * 1024 * 2)
    reduce_body(a, 3, 16, 8, 12, 18, 19, "", 0)
    a.label("R_END")
    a("s_endpgm")
    return name


VOP3_ONLY = ("v_mfma", "v_cvt_pk_bf16_f32", "v_max3", "v_lshl_add_u32", "v_bfe_u32", "v_dot2_f32_bf16", "v_pk_", "v_mul_lo", "v_add3",
             "v_writelane", "v_readlane", "v_and_or", "v_perm_b32", "v_lshl_or")
MEM = ("ds_", "buffer_", "global_", "s_load", "s_memtime", "s_memrealtime")
INLINE_F = ("0.5", "-0.5", "1.0", "-1.0", "2.0", "-2.0", "4.0", "-4.0")


def has_literal(ops):
    for o in ops:
        o = o.strip()
        if re.fullmatch(r"-?(0x[0-9a-fA-F]+|\d+)", o):
            v = int(o, 0)
            if not -16 <= v <= 64:
                return True
    return False


def ins_size(ln):
    op, _, rest = ln.partition(" ")
    ops = rest.split(",")
    if op.startswith(MEM):
        return 8
    if op.startswith(("s_waitcnt", "s_barrier", "s_nop", "s_branch", "s_cbranch", "s_setprio", "s_endpgm", "s_sleep")):
        return 4
    if op.startswith("v_"):
        if op.startswith(VOP3_ONLY) or op.endswith("_e64") or re.search(r"[ ,]-v\d|abs\(", " " + rest):
            return 8
        return 8 if has_literal(ops) else 4
    return 8 if has_literal(ops) else 4


def widenable(ln):
    op, _, rest = ln.partition(" ")
    return op.startswith("v_") and ins_size(ln) == 4 and not op.startswith(("v_readfirstlane", "v_permlane", "v_nop")) and not op.endswith("_e32")


def align_pass(lines):
    out = list(lines)
    off, run = 0, []
    fixed = missed = 0
    for i, ln in enumerate(out):
        t = ln.strip()
        if not t or t[0] == ";":
            continue
        if t.endswith(":"):
            continue
        if t.startswith(".p2align"):
            n = 1 << int(t.split()[1].rstrip(","))
            off = (off + n - 1) // n * n
            run = []
            continue
        if t[0] == ".":
            continue
        sz = ins_size(t)
        if sz == 8:
            if off % 8 == 4:
                cand = [j for j in run if widenable(out[j].strip())]
                if cand:
                    j = cand[-1]
                    op, _, rest = out[j].strip().partition(" ")
                    out[j] = "    %s_e64 %s" % (op, rest)
                    off += 4
                    fixed += 1
                else:
                    missed += 1
            run = []
        else:
            run.append(i)
        off += sz
    return out, fixed, missed


def kd(name, vgpr, sgpr):
    acc = (vgpr + 3) // 4 * 4
    return """.p2align 6
.amdhsa_kernel %s
  .amdhsa_next_free_vgpr %d
  .amdhsa_next_free_sgpr %d
  .amdhsa_accum_offset %d
  .amdhsa_group_segment_fixed_size 0
  .amdhsa_kernarg_size 104
  .amdhsa_user_sgpr_count 2
  .amdhsa_user_sgpr_kernarg_segment_ptr 1
  .amdhsa_system_sgpr_workgroup_id_x 1
.end_amdhsa_kernel
""" % (name, vgpr, sgpr, acc)


def build():
    hdr = open("cdna_kernels/%s.s.ref" % NAME).read().split("\n")
    head = [ln for ln in hdr if ln.startswith(";") and "@launch" not in ln][:14]
    a = Prog()
    main = "attn_main_kernel" if multi() else NAME + "_kernel"
    if multi():
        head.append("; @launch kernel=attn_main_kernel grid=(256,1,1) block=(512,1,1) lds=%d" % LDS_BYTES)
        head.append("; @launch kernel=attn_reduce_kernel grid=(256,1,1) block=(384,1,1) lds=6144")
    else:
        head.append("; @launch grid=(256,1,1) block=(512,1,1) lds=%d" % LDS_BYTES)
    a('.amdgcn_target "amdgcn-amd-amdhsa--gfx950"')
    a(".text")
    a(".globl %s" % main)
    a(".p2align 8")
    a(".type %s,@function" % main)
    gen_main(a, main)
    kds = kd(main, NVGPR, NSGPR)
    if multi():
        kds += kd(gen_reduce(a), 48, 40)
    body = a.text()
    if opt.align:
        lines, fixed, missed = align_pass(body.split("\n"))
        body = "\n".join(lines)
        print("alignment pass: widened %d, unfixable %d" % (fixed, missed))
    return "\n".join(head) + "\n" + body + '.section .rodata,"a"\n' + kds


if __name__ == "__main__":
    out = sys.argv[1] if len(sys.argv) > 1 else "cdna_kernels/%s.s" % NAME
    for kv in sys.argv[2:]:
        k, v = kv.split("=", 1)
        cur = getattr(opt, k)
        if isinstance(cur, bool):
            v = v in ("1", "True", "true")
        elif isinstance(cur, int):
            v = int(v)
        elif v == "None":
            v = None
        setattr(opt, k, v)
    s = build()
    open(out, "w").write(s)
    print("wrote", out, len(s), "bytes,", s.count("\n"), "lines")
```

```python
import sys, math, struct, re

NAME = "concat_heads__gqa_block_cached__gqa_block_cached__near_ridge"


class Opt:
    fused_tail = False
    kv_aux = "nt"
    w_aux = ""
    dump = None
    L = 6
    waitstep = 4
    thr_log2 = 12
    stamps = False
    sumop = "add"
    prio = 0
    klead = 9
    vlead = 6
    spin_limit = 1 << 20
    tlbwarm = False
    lstamps = False
    codepf = False
    codepf_n = 3
    dscost = 4
    slotcap = 32
    fill = 0
    align = True
    x_nobar = False
    x_nosm = False
    x_nods = False
    x_norare = False
    x_nomfma = False
    x_q_nomfma = False
    x_q_nods = False
    x_q_nodma = False
    x_o_nodma = False
    x_o_nomfma = False
    x_o_nost = False
    x_o_nods = False


opt = Opt()

KB = 1024
K_BASE = 0
V_BASE = 64 * KB
M_BASE = 128 * KB
X_BASE = 112 * KB
NWS = 7
LDS_BYTES = 160 * KB
KPOS = [4, 5, 6, 7, 0, 1, 2, 3]
RWO = [32 * KB, 64 * KB, 0, 96 * KB]

WS_PART_BYTES = 16 * 16 * 16 * 3072
WS_DUMP = 16 << 20
WS_STAMP = 48 << 20
WS_BYTES = 268435456

sW = 3
sB, sHP, sBR, sKVH = 4, 5, 6, 7
SRD_X, SRD_WQ, SRD_K, SRD_V, SRD_WO, SRD_WS = 8, 12, 16, 20, 24, 28
sT0, sT1, sT2, sT3, sT4, sT5 = 32, 33, 34, 35, 36, 37
sGRP = 38
sOFF = 39
sPASS = 40
sTHR = 41
sKS = 42
sPOFF = 43
sSTAMP = 44
sDBG = 46
SRD_OUT = 48
SRD_ST = 52
P_X, P_K, P_V, P_WQ = 56, 58, 60, 62
KA = 64
P_OUT, P_DBG, P_WS = KA + 20, KA + 22, KA + 24
P_WO = 90
sSTOFF = 92
sJ, sJ64K, sJ2K = 93, 94, 95
SRD_DBG = 96
NSGPR = 100

vL = 0
vT = [1, 2, 3, 4, 5, 6, 7, 8, 9]
vKA = list(range(10, 18))
vVA = list(range(18, 22))
vWA = list(range(22, 26))
vXB, vXT = 26, 27
vPSA, vPSB, vLACC, vTMP = 28, 29, 30, 31
vQ = 32
vO = 64
vS = [128, 144]
vNM = 160
vP = [176, 184]
vF = 192
vE = 224
vWA2 = [232, 233, 234, 235]
vQW = 236
vOW = 237
vOR = [240, 241, 242, 243]
vWOA = 244
vWOT = [245, 246]
vST = 247
vONE = 248
vDUM = 249
vSTA, vSTB = 250, 251
NVGPR = 252
vACC1 = 64
vA1 = [128, 144]
vB1 = [160, 172]
vB3 = 32
vA3 = [128, 160]
vACC3 = [192, 216]
vLW = [10, 11, 12, 13]
vLK = [14, 15]
vLV = 16
vLWO = [18, 19, 20, 21]


def f32bits(x):
    return struct.unpack("<I", struct.pack("<f", x))[0]


class Prog:
    def __init__(self):
        self.lines = []
    def __call__(self, s):
        self.lines += s.split("\n")
    def label(self, s):
        self.lines.append(s + ":")
    def text(self):
        out = []
        for ln in self.lines:
            ln = ln.strip()
            if ln:
                out.append(ln if ln.endswith(":") or ln[0] in ".;" else "    " + ln)
        return "\n".join(out) + "\n"


def vr(b, n):
    return "v[%d:%d]" % (b, b + n - 1) if n > 1 else "v%d" % b


class Queue:
    def __init__(self, limit):
        self.q = []
        self.limit = limit
    def issue(self, tag, n=1):
        self.q += [tag] * n
        assert len(self.q) <= self.limit, (tag, len(self.q))
    def need(self, tags):
        last = -1
        for i, t in enumerate(self.q):
            if t in tags:
                last = i
        if last < 0:
            return None
        n = len(self.q) - 1 - last
        self.q = self.q[last + 1:]
        return n
    def drain(self):
        self.q = []


def srd(a, base, ptr, size, off_s=None):
    if off_s is None:
        a("s_mov_b32 s%d, s%d" % (base, ptr))
        a("s_mov_b32 s%d, s%d" % (base + 1, ptr + 1))
    else:
        a("s_add_u32 s%d, s%d, s%d" % (base, ptr, off_s))
        a("s_addc_u32 s%d, s%d, 0" % (base + 1, ptr + 1))
    a("s_mov_b32 s%d, 0x%x" % (base + 2, size))
    a("s_mov_b32 s%d, 0x20000" % (base + 3))


def stamp(a, idx):
    if not opt.stamps:
        return
    a("s_memrealtime s[%d:%d]" % (sSTAMP, sSTAMP + 1))
    a("s_memtime s[%d:%d]" % (sDBG, sDBG + 1))
    a("s_waitcnt lgkmcnt(0)")
    a("v_mov_b32 v%d, s%d" % (vSTA, sSTAMP))
    a("v_mov_b32 v%d, s%d" % (vSTB, sSTOFF))
    a("buffer_store_dword v%d, v%d, s[%d:%d], 0 offen offset:%d" % (vSTA, vSTB, SRD_ST, SRD_ST + 3, idx * 4))
    a("v_mov_b32 v%d, s%d" % (vSTA, sDBG))
    a("buffer_store_dword v%d, v%d, s[%d:%d], 0 offen offset:%d" % (vSTA, vSTB, SRD_ST, SRD_ST + 3, 128 + idx * 4))


def fill_cost(ins):
    op = ins.split()[0]
    return 8 if op.startswith(("ds_", "buffer_", "v_exp", "v_rcp")) else 4


def interleave(a, mfmas, fill, gap=8):
    total = sum(fill_cost(f) for f in fill)
    per = max(gap, -(-total // max(len(mfmas), 1))) if mfmas else 0
    i, credit = 0, 0
    for m in mfmas:
        a(m)
        credit += per
        while i < len(fill) and fill_cost(fill[i]) <= credit:
            credit -= fill_cost(fill[i])
            a(fill[i]); i += 1
    while i < len(fill):
        a(fill[i]); i += 1


def multi():
    return not opt.fused_tail


def dump_regs(a, base, n):
    a("s_lshl_b32 s%d, s2, 3" % sT0)
    a("s_add_u32 s%d, s%d, s%d" % (sT0, sT0, sW))
    a("s_mul_i32 s%d, s%d, %d" % (sT0, sT0, 96 * 256))
    a("s_add_u32 s%d, s%d, 0x%x" % (sT0, sT0, WS_DUMP))
    a("v_lshlrev_b32 v%d, 4, v%d" % (vT[8], vL))
    for g in range(n // 4):
        a("buffer_store_dwordx4 %s, v%d, s[%d:%d], s%d offen" % (vr(base + g * 4, 4), vT[8], SRD_WS, SRD_WS + 3, sT0))
        a("s_add_u32 s%d, s%d, 1024" % (sT0, sT0))
    a("s_waitcnt vmcnt(0)")


def reduce_body(a, s_w, s_wgoff, srd_ws, srd_out, s_grp, s_dest, aux, lds_base):
    t = [sT0, sT1, sT2, sT3, sT4, sT5]
    a("s_cmp_ge_u32 s%d, 3" % s_w)
    a("s_cselect_b32 s%d, 1, 0" % t[3])
    a("s_mul_i32 s%d, s%d, 3" % (t[4], t[3]))
    a("s_sub_u32 s%d, s%d, s%d" % (t[4], s_w, t[4]))
    a("v_lshlrev_b32 v2, 4, v0")
    a("s_lshl_b32 s%d, s%d, 10" % (t[0], t[4]))
    a("s_add_u32 s%d, s%d, s%d" % (t[0], t[0], s_wgoff))
    a("s_mul_i32 s%d, s%d, %d" % (t[1], t[3], 8 * 3072))
    a("s_add_u32 s%d, s%d, s%d" % (t[0], t[0], t[1]))
    for s in range(8):
        a("buffer_load_dwordx4 %s, v2, s[%d:%d], s%d offen %s" % (vr(12 + 4 * s, 4), srd_ws, srd_ws + 3, t[0], aux))
        if s < 7:
            a("s_add_u32 s%d, s%d, 3072" % (t[0], t[0]))
    a("s_lshl_b32 s%d, s%d, 11" % (t[0], t[4]))
    a("s_add_u32 s%d, s%d, %d" % (t[0], t[0], lds_base))
    a("v_lshlrev_b32 v1, 5, v0")
    a("v_add_u32 v1, s%d, v1" % t[0])
    a("s_and_b32 s%d, s%d, 7" % (t[1], s_grp))
    a("s_lshr_b32 s%d, s%d, 3" % (t[2], s_grp))
    a("s_mul_i32 s%d, s%d, 48" % (t[1], t[1]))
    a("s_lshl_b32 s%d, s%d, 4" % (t[4], t[4]))
    a("s_add_u32 s%d, s%d, s%d" % (t[1], t[1], t[4]))
    a("s_lshl_b32 s%d, s%d, 11" % (t[1], t[1]))
    a("s_lshl_b32 s%d, s%d, 10" % (t[2], t[2]))
    a("s_add_u32 s%d, s%d, s%d" % (t[1], t[1], t[2]))
    a("s_lshl_b32 s%d, s%d, 6" % (t[2], s_dest))
    a("s_add_u32 s%d, s%d, s%d" % (t[1], t[1], t[2]))
    a("v_and_b32 v3, 15, v0")
    a("v_lshrrev_b32 v4, 4, v0")
    a("v_lshlrev_b32 v3, 11, v3")
    a("v_lshl_add_u32 v3, v4, 3, v3")
    a("s_mov_b32 s%d, 0xffff0000" % t[5])
    for s in range(8):
        a("s_waitcnt vmcnt(%d)" % (7 - s))
        for d in range(4):
            x = 12 + 4 * s + d
            if s == 0:
                a("v_lshlrev_b32 v%d, 16, v%d" % (4 + 2 * d, x))
                a("v_and_b32 v%d, s%d, v%d" % (5 + 2 * d, t[5], x))
            else:
                a("v_lshlrev_b32 v44, 16, v%d" % x)
                a("v_and_b32 v45, s%d, v%d" % (t[5], x))
                a("v_add_f32 v%d, v%d, v44" % (4 + 2 * d, 4 + 2 * d))
                a("v_add_f32 v%d, v%d, v45" % (5 + 2 * d, 5 + 2 * d))
    a("s_cmp_eq_u32 s%d, 0" % t[3])
    a("s_cbranch_scc1 L_RED_LOW")
    a("ds_write_b128 v1, v[4:7]")
    a("ds_write_b128 v1, v[8:11] offset:16")
    a("s_waitcnt lgkmcnt(0)")
    a("s_barrier")
    a("s_branch L_RED_DONE")
    a.label("L_RED_LOW")
    a("s_barrier")
    a("ds_read_b128 v[12:15], v1")
    a("ds_read_b128 v[16:19], v1 offset:16")
    a("s_waitcnt lgkmcnt(0)")
    for d in range(8):
        a("v_add_f32 v%d, v%d, v%d" % (4 + d, 4 + d, 12 + d))
    for d in range(4):
        a("v_cvt_pk_bf16_f32 v%d, v%d, v%d" % (4 + d, 4 + 2 * d, 5 + 2 * d))
    a("buffer_store_dwordx2 v[4:5], v3, s[%d:%d], s%d offen" % (srd_out, srd_out + 3, t[1]))
    a("buffer_store_dwordx2 v[6:7], v3, s[%d:%d], s%d offen offset:32" % (srd_out, srd_out + 3, t[1]))
    a.label("L_RED_DONE")


def gen_main(a, name):
    bars = {"C": [], "I": [], "L": []}
    part_aux = "sc1" if opt.fused_tail else ""

    def bar(roles, nm, skip=False):
        if not skip:
            a("s_barrier")
        for r in roles:
            bars[r].append(nm)

    a.label(name)
    a("s_cmp_ge_u32 s2, 256")
    a("s_cbranch_scc1 L_END")
    a("s_load_dwordx16 s[%d:%d], s[0:1], 0" % (KA, KA + 15))
    a("s_load_dwordx8 s[%d:%d], s[0:1], 64" % (KA + 16, KA + 23))
    a("s_load_dwordx2 s[%d:%d], s[0:1], 96" % (KA + 24, KA + 25))
    a("s_and_b32 s%d, s2, 7" % sT0)
    a("s_lshr_b32 s%d, s2, 3" % sT1)
    a("s_lshr_b32 s%d, s%d, 4" % (sT2, sT1))
    a("s_lshl_b32 s%d, s%d, 1" % (sT0, sT0))
    a("s_add_u32 s%d, s%d, s%d" % (sT0, sT0, sT2))
    a("s_lshr_b32 s%d, s%d, 3" % (sBR, sT0))
    a("s_and_b32 s%d, s%d, 7" % (sKVH, sT0))
    a("s_bfe_u32 s%d, s%d, 0x30001" % (sB, sT1))
    a("s_and_b32 s%d, s%d, 1" % (sT2, sT1))
    a("s_lshl_b32 s%d, s%d, 1" % (sHP, sKVH))
    a("s_add_u32 s%d, s%d, s%d" % (sHP, sHP, sT2))
    a("v_lshrrev_b32 v1, 6, v0")
    a("v_and_b32 v0, 63, v0")
    a("v_readfirstlane_b32 s%d, v1" % sW)
    a("s_lshl_b32 s%d, s%d, 3" % (sGRP, sBR))
    a("s_add_u32 s%d, s%d, s%d" % (sGRP, sGRP, sB))
    if opt.codepf:
        a("s_cmp_lg_u32 s%d, 3" % sW)
        a("s_cbranch_scc1 L_NOPF")
        a("s_getpc_b64 s[%d:%d]" % (sT2, sT3))
        a.label("L_PC")
        a("v_lshlrev_b32 v2, 7, v0")
        a("v_mov_b32 v5, s%d" % sT3)
        a("v_add_co_u32 v4, vcc, s%d, v2" % sT2)
        a("s_nop 1")
        a("v_addc_co_u32 v5, vcc, 0, v5, vcc")
        a(".set PF_BYTES, L_END - L_PC")
        for i in range(opt.codepf_n):
            if i:
                a("v_add_co_u32 v4, vcc, 0x2000, v4")
                a("s_nop 1")
                a("v_addc_co_u32 v5, vcc, 0, v5, vcc")
            a("v_add_u32 v3, %d, v2" % (i * 8192))
            a("v_cmp_gt_u32 vcc, PF_BYTES, v3")
            a("s_and_saveexec_b64 s[%d:%d], vcc" % (sT0, sT1))
            a("s_cbranch_execz L_PF_SKIP%d" % i)
            a("global_load_dword v%d, v[4:5], off" % vDUM)
            a.label("L_PF_SKIP%d" % i)
            a("s_mov_b64 exec, s[%d:%d]" % (sT0, sT1))
        a.label("L_NOPF")
    a("s_waitcnt lgkmcnt(0)")
    a("s_cmp_eq_u32 s%d, 0" % sBR)
    for dst, pa, pb in ((P_WQ, KA + 6, KA + 16), (P_X, KA + 0, KA + 10), (P_K, KA + 2, KA + 12),
                        (P_V, KA + 4, KA + 14), (P_WO, KA + 8, KA + 18)):
        a("s_cselect_b32 s%d, s%d, s%d" % (dst, pa, pb))
        a("s_cselect_b32 s%d, s%d, s%d" % (dst + 1, pa + 1, pb + 1))
    if opt.stamps:
        srd(a, SRD_ST, P_WS, WS_BYTES)
        a("s_lshl_b32 s%d, s2, 3" % sSTOFF)
        a("s_add_u32 s%d, s%d, s%d" % (sSTOFF, sSTOFF, sW))
        a("s_lshl_b32 s%d, s%d, 8" % (sSTOFF, sSTOFF))
        a("s_add_u32 s%d, s%d, 0x%x" % (sSTOFF, sSTOFF, WS_STAMP))
        stamp(a, 0)
    a("s_cmp_ge_u32 s%d, 4" % sW)
    a("s_cbranch_scc1 L_LOADER")

    a("s_cmp_eq_u32 s%d, 3" % sW)
    a("s_cbranch_scc1 L_W3_START")
    a("s_mul_i32 s%d, s%d, 49152" % (sT0, sB))
    srd(a, SRD_X, P_X, 49152, sT0)
    a("v_lshlrev_b32 v2, 4, v0")
    a("s_lshl_b32 s%d, s%d, 14" % (sT1, sW))
    for i in range(16):
        if i % 4 == 0:
            a("s_add_u32 s%d, s%d, %d" % (sT2, sT1, (i // 4) * 4096))
            a("s_add_u32 m0, s%d, %d" % (sT2, X_BASE))
        a("v_xor_b32 v3, %d, v2" % (i * 16))
        a("buffer_load_dwordx4 v3, s[%d:%d], s%d offen offset:%d %s lds" % (SRD_X, SRD_X + 3, sT2, (i % 4) * 1024, opt.w_aux))

    a("s_branch L_WORK_SETUP")
    a.label("L_W3_START")
    if opt.tlbwarm:
        a("s_lshl_b32 s%d, s%d, 3" % (sT0, sB))
        a("s_add_u32 s%d, s%d, s%d" % (sT0, sT0, sKVH))
        a("s_lshl_b32 s%d, s%d, 18" % (sT0, sT0))
        srd(a, SRD_K, P_K, 262144, sT0)
        srd(a, SRD_V, P_V, 262144, sT0)
        a("s_lshl_b32 s%d, s%d, 18" % (sT0, sHP))
        srd(a, SRD_WO, P_WO, 262144, sT0)
        a("v_lshlrev_b32 v2, 12, v0")
        a("buffer_load_dword v%d, v2, s[%d:%d], 0 offen nt" % (vDUM, SRD_K, SRD_K + 3))
        a("buffer_load_dword v%d, v2, s[%d:%d], 0 offen nt" % (vDUM, SRD_V, SRD_V + 3))
        a("buffer_load_dword v%d, v2, s[%d:%d], 0 offen" % (vDUM, SRD_WO, SRD_WO + 3))
        srd(a, SRD_WS, P_WS, WS_PART_BYTES)
        a("s_mul_i32 s%d, s%d, %d" % (sT0, sGRP, 256 * 3072))
        a("v_mul_u32_u24 v2, 12288, v0")
        a("buffer_load_dword v%d, v2, s[%d:%d], s%d offen" % (vDUM, SRD_WS, SRD_WS + 3, sT0))

    a.label("L_WORK_SETUP")
    l = vL
    t1, t2, t3, t4, t5 = vT[0:5]
    G, rp, cp = vT[5], vT[6], vT[7]
    a("v_and_b32 v%d, 15, v%d" % (t3, l))
    a("v_lshrrev_b32 v%d, 4, v%d" % (G, l))
    a("v_bfe_u32 v%d, v%d, 2, 2" % (rp, l))
    a("v_and_b32 v%d, 3, v%d" % (cp, l))
    a("v_xor_b32 v%d, v%d, v%d" % (t4, G, t3))
    a("v_lshlrev_b32 v%d, 4, v%d" % (t4, t4))
    a("v_lshl_add_u32 v%d, v%d, 10, v%d" % (t5, t3, t4))
    a("v_add_u32 v%d, 0x%x, v%d" % (vXB, X_BASE, t5))
    a("v_lshl_add_u32 v%d, v%d, 8, v%d" % (t5, t3, t4))
    a("v_add_u32 v%d, 0x%x, v%d" % (vOR[0], M_BASE, t5))
    for k in range(1, 4):
        a("v_xor_b32 v%d, %d, v%d" % (vOR[k], k * 64, vOR[0]))
    a("v_and_b32 v%d, 1, v%d" % (t4, G))
    a("v_lshl_add_u32 v%d, v%d, 2, v%d" % (t4, t4, rp))
    a("s_lshl_b32 s%d, s%d, 2" % (sT0, sW))
    a("v_xor_b32 v%d, s%d, v%d" % (t5, sT0, t4))
    a("v_lshlrev_b32 v%d, 5, v%d" % (t5, t5))
    a("v_lshl_add_u32 v%d, v%d, 3, v%d" % (t1, G, rp))
    a("v_lshl_add_u32 v%d, v%d, 9, v%d" % (t5, t1, t5))
    a("v_lshl_add_u32 v%d, v%d, 3, v%d" % (vWA[0], cp, t5))
    for nb in range(1, 4):
        a("v_xor_b32 v%d, %d, v%d" % (vWA[nb], nb * 32, vWA[0]))
    for nb in range(4):
        a("v_add_u32 v%d, 0x10000, v%d" % (vWA2[nb], vWA[nb]))
    a("s_lshl_b32 s%d, s%d, 1" % (sT0, sW))
    a("v_xor_b32 v%d, s%d, v%d" % (t5, sT0, t4))
    a("v_lshlrev_b32 v%d, 5, v%d" % (t5, t5))
    a("v_lshl_add_u32 v%d, v%d, 8, v%d" % (t5, t1, t5))
    a("v_lshl_add_u32 v%d, v%d, 3, v%d" % (vWOA, cp, t5))
    a("s_and_b32 s%d, s%d, 1" % (sT0, sW))
    a("s_lshl_b32 s%d, s%d, 3" % (sT0, sT0))
    a("v_lshrrev_b32 v%d, 1, v%d" % (t4, G))
    a("v_add_u32 v%d, s%d, v%d" % (t4, sT0, t4))
    a("v_xor_b32 v%d, v%d, v%d" % (t4, t4, t3))
    a("v_lshlrev_b32 v%d, 4, v%d" % (t4, t4))
    a("v_lshl_add_u32 v%d, v%d, 8, v%d" % (t4, t3, t4))
    a("v_and_b32 v%d, 1, v%d" % (t5, G))
    a("v_lshl_add_u32 v%d, v%d, 3, v%d" % (t4, t5, t4))
    a("s_lshr_b32 s%d, s%d, 1" % (sT0, sW))
    a("s_mul_i32 s%d, s%d, %d" % (sT0, sT0, 48 * 256))
    a("s_add_u32 s%d, s%d, %d" % (sT0, sT0, M_BASE))
    a("v_add_u32 v%d, s%d, v%d" % (vQW, sT0, t4))
    a("v_and_b32 v%d, 31, v%d" % (t1, l))
    a("v_lshrrev_b32 v%d, 5, v%d" % (t2, l))
    a("v_xor_b32 v%d, v%d, v%d" % (t4, t2, t3))
    a("v_lshlrev_b32 v%d, 4, v%d" % (t4, t4))
    a("v_lshl_add_u32 v%d, v%d, 8, v%d" % (vKA[0], t1, t4))
    for ks in range(1, 8):
        a("v_xor_b32 v%d, %d, v%d" % (vKA[ks], ks * 32, vKA[0]))
    a("v_lshlrev_b32 v%d, 4, v%d" % (t4, t3))
    a("v_lshl_add_u32 v%d, v%d, 8, v%d" % (t4, t1, t4))
    a("v_lshl_add_u32 v%d, v%d, 3, v%d" % (t4, t2, t4))
    a("s_lshl_b32 s%d, s%d, 13" % (sT0, sW))
    a("s_add_u32 s%d, s%d, %d" % (sT0, sT0, M_BASE))
    a("v_add_u32 v%d, s%d, v%d" % (vOW, sT0, t4))
    a("v_lshl_add_u32 v%d, v%d, 2, v%d" % (t1, t2, rp))
    a("v_and_b32 v%d, 1, v%d" % (t4, G))
    a("v_lshlrev_b32 v%d, 1, v%d" % (t4, t4))
    a("v_lshrrev_b32 v%d, 1, v%d" % (t5, cp))
    a("v_add_u32 v%d, v%d, v%d" % (t4, t4, t5))
    a("v_lshlrev_b32 v%d, 2, v%d" % (t5, rp))
    a("v_xor_b32 v%d, v%d, v%d" % (t4, t4, t5))
    a("v_lshlrev_b32 v%d, 4, v%d" % (t4, t4))
    a("v_lshl_add_u32 v%d, v%d, 8, v%d" % (t4, t1, t4))
    a("v_and_b32 v%d, 1, v%d" % (t5, cp))
    a("v_lshl_add_u32 v%d, v%d, 3, v%d" % (t4, t5, t4))
    a("v_add_u32 v%d, 0x%x, v%d" % (vVA[0], V_BASE, t4))
    for db in range(1, 4):
        a("v_xor_b32 v%d, %d, v%d" % (vVA[db], db * 64, vVA[0]))
    a("v_lshlrev_b32 v%d, 4, v%d" % (vST, l))
    a("s_lshl_b32 s%d, s%d, 8" % (sT0, sGRP))
    a("s_add_u32 s%d, s%d, s%d" % (sT0, sT0, sHP))
    a("s_lshl_b32 s%d, s%d, 4" % (sT1, sW))
    a("s_add_u32 s%d, s%d, s%d" % (sT0, sT0, sT1))
    a("s_mul_i32 s%d, s%d, 3072" % (sPOFF, sT0))
    srd(a, SRD_WS, P_WS, WS_BYTES)
    a("s_mov_b32 s%d, 0x%08x" % (sTHR, f32bits(2.0 ** opt.thr_log2)))
    a("v_mov_b32 v%d, 0x3f803f80" % vONE)
    for r in range(48):
        a("v_mov_b32 v%d, 0" % (vACC1 + r))
    for r in range(16):
        a("v_mov_b32 v%d, 0" % (vA1[1] + r))
    for r in range(12):
        a("v_mov_b32 v%d, 0" % (vB1[1] + r))
    a("s_cmp_eq_u32 s%d, 3" % sW)
    a("s_cbranch_scc1 L_X_LANDED")
    a("s_waitcnt vmcnt(0)")
    a.label("L_X_LANDED")
    stamp(a, 1)

    def q_mfma_list(pb):
        if opt.x_q_nomfma:
            return []
        out = []
        for nb in range(4):
            for qb in range(3):
                acc = vACC1 + (nb * 3 + qb) * 4
                out.append("v_mfma_f32_16x16x32_bf16 %s, %s, %s, %s" % (vr(acc, 4), vr(vA1[pb] + nb * 4, 4), vr(vB1[pb] + qb * 4, 4), vr(acc, 4)))
        return out
    vXTT = [vXT, vT[8]]
    def x_addr(e):
        v = vXTT[e & 1]
        return ["s_lshl_b32 s%d, s%d, 1" % (sT0, sB),
                "s_add_u32 s%d, s%d, %d" % (sT0, sT0, e),
                "s_and_b32 s%d, s%d, 3" % (sT1, sT0),
                "s_lshl_b32 s%d, s%d, 6" % (sT1, sT1),
                "s_bfe_u32 s%d, s%d, 0x20002" % (sT2, sT0),
                "s_lshl_b32 s%d, s%d, 8" % (sT2, sT2),
                "v_xor_b32 v%d, s%d, v%d" % (v, sT1, vXB),
                "v_add_u32 v%d, s%d, v%d" % (v, sT2, v)]
    for ins in x_addr(0):
        a(ins)
    for e in range(16):
        bar("CI", "Q%d" % e)
        if e in (0, 4, 8, 12):
            stamp(a, 9 + e // 4)
        pb = e & 1
        slot = e % NWS
        wa, so = (vWA, slot * 16384) if slot < 4 else (vWA2, (slot - 4) * 16384)
        fill = []
        if not opt.x_q_nods:
            for nb in range(4):
                for jj in range(2):
                    fill.append("ds_read_b64_tr_b16 %s, v%d offset:%d" % (vr(vA1[pb] + nb * 4 + jj * 2, 2), wa[nb], so + jj * 2048))
                if nb == 0:
                    for qb in range(3):
                        fill.append("ds_read_b128 %s, v%d offset:%d" % (vr(vB1[pb] + qb * 4, 4), vXTT[e & 1], qb * 16384))
        if e < 15:
            fill += x_addr(e + 1)
        interleave(a, q_mfma_list(pb ^ 1), fill)
        a("s_waitcnt lgkmcnt(0)")
    bar("CI", "Q16")
    stamp(a, 13)
    for m in q_mfma_list(1):
        a(m)
    a("s_nop 7")
    scale = math.log2(math.e) / math.sqrt(128.0)
    a("s_mov_b32 s%d, 0x%08x" % (sT0, f32bits(scale)))
    for nb in range(4):
        a("v_xor_b32 v%d, %d, v%d" % (vT[0], nb * 32, vQW))
        for qb in range(3):
            acc = vACC1 + (nb * 3 + qb) * 4
            for r in range(4):
                a("v_mul_f32 v%d, s%d, v%d" % (acc + r, sT0, acc + r))
            a("v_cvt_pk_bf16_f32 v%d, v%d, v%d" % (acc, acc, acc + 1))
            a("v_cvt_pk_bf16_f32 v%d, v%d, v%d" % (acc + 1, acc + 2, acc + 3))
            a("ds_write_b64 v%d, %s offset:%d" % (vT[0], vr(acc, 2), qb * 4096))
    a("s_waitcnt lgkmcnt(0)")
    bar("CI", "Q17")
    stamp(a, 2)
    a("s_cmp_eq_u32 s%d, 3" % sW)
    a("s_cbranch_scc1 L_IDLE3")

    if opt.prio:
        a("s_setprio %d" % opt.prio)
    a("s_lshl_b32 s%d, s%d, 13" % (sT0, sW))
    a("s_add_u32 s%d, s%d, %d" % (sT0, sT0, M_BASE))
    for ks in range(8):
        a("v_add_u32 v%d, s%d, v%d" % (vT[ks], sT0, vKA[ks]))
    dq = Queue(1000)
    for ks in range(8):
        a("ds_read_b128 %s, v%d" % (vr(vQ + ks * 4, 4), vT[ks]))
        dq.issue("Q")
    L, WS = opt.L, opt.waitstep

    def frag_ops(p):
        return 1 if (p & 15) < 8 else 2

    def frag_read(t, p):
        if p >= 16:
            t, p = t + 1, p - 16
        fb = vF + (p & 7) * 4
        if p < 8:
            if not opt.x_nods:
                a("ds_read_b128 %s, v%d offset:%d" % (vr(fb, 4), vKA[p], KPOS[(t + 1) & 7] * 8192))
            dq.issue("F%d" % (p & 7), 1)
        else:
            u, db = (p - 8) >> 2, (p - 8) & 3
            for jj in range(2):
                if not opt.x_nods:
                    a("ds_read_b64_tr_b16 %s, v%d offset:%d" % (vr(fb + jj * 2, 2), vVA[db], ((t - 1) & 7) * 8192 + (16 * u + 8 * jj) * 256))
            dq.issue("F%d" % (p & 7), 2)

    def wait_frags(p):
        if p % WS:
            return
        n = dq.need({"F%d" % ((p + i) & 7) for i in range(WS)})
        if n is not None and not opt.x_nods:
            assert n <= 15
            a("s_waitcnt lgkmcnt(%d)" % n)

    def sm_ops(t):
        S, P = vS[t & 1], vP[t & 1]
        ops = []
        for k in range(8):
            e0, e1 = vE + (k & 1) * 2, vE + (k & 1) * 2 + 1
            ops.append(("v_exp_f32 v%d, v%d" % (e0, S + 2 * k), 8))
            ops.append(("v_exp_f32 v%d, v%d" % (e1, S + 2 * k + 1), 8))
            cvt = ("v_cvt_pk_bf16_f32 v%d, v%d, v%d" % (P + k, e0, e1), 4)
            if opt.sumop == "add":
                if k == 0:
                    ops.append(("v_mov_b32 v%d, v%d" % (vPSA, e0), 4))
                    ops.append(("v_mov_b32 v%d, v%d" % (vPSB, e1), 4))
                else:
                    ops.append(("v_add_f32 v%d, v%d, v%d" % (vPSA, vPSA, e0), 4))
                    ops.append(("v_add_f32 v%d, v%d, v%d" % (vPSB, vPSB, e1), 4))
                ops.append(cvt)
            elif opt.sumop == "pk":
                if k == 0:
                    ops.append(("v_mov_b32 v%d, v%d" % (vPSA, e0), 4))
                    ops.append(("v_mov_b32 v%d, v%d" % (vPSB, e1), 4))
                    ops.append(cvt)
                else:
                    ops.append(("s_nop 0", 4))
                    ops.append(("v_pk_add_f32 v[%d:%d], v[%d:%d], v[%d:%d]" % (vPSA, vPSB, vPSA, vPSB, e0, e1), 4))
                    ops.append(cvt)
            elif opt.sumop == "dot":
                if k == 0:
                    ops.append(("s_nop 0", 4))
                elif k == 1:
                    ops.append(("v_dot2_f32_bf16 v%d, v%d, v%d, 0" % (vPSA, P, vONE), 4))
                else:
                    ops.append(("v_dot2_f32_bf16 v%d, v%d, v%d, v%d" % (vPSA, P + k - 1, vONE, vPSA), 4))
                ops.append(cvt)
        if opt.sumop != "dot":
            ops.append(("v_add_f32 v%d, v%d, v%d" % (vPSA, vPSA, vPSB), 4))
        else:
            ops.append(("v_dot2_f32_bf16 v%d, v%d, v%d, v%d" % (vPSA, P + 7, vONE, vPSA), 4))
            ops.append(("s_nop 2", 4))
        ops.append(("v_cmp_nge_f32 vcc, s%d, v%d" % (sTHR, vPSA), 4))
        return ops

    def sm_schedule(ops, base):
        room = [max(opt.slotcap - base[p], 4) for p in range(15)]
        total = sum(c for _, c in ops)
        scale_ = total / float(sum(room))
        slots = [[] for _ in range(16)]
        i, cum_room, cum = 0, 0.0, 0
        for p in range(15):
            cum_room += room[p] * scale_
            while i < len(ops) and (cum + ops[i][1] / 2.0 <= cum_room or p == 14):
                slots[p].append(ops[i][0])
                cum += ops[i][1]
                i += 1
        return slots

    rare = []

    def period(t, tag, do_qk, do_sm, do_pv, c_zero=False, has_bar=True, next_qk=True):
        Sn, Pp = vS[(t + 1) & 1], vP[(t - 1) & 1]
        def want(pn):
            return (pn < 8 and do_qk) or (8 <= pn < 16 and do_pv) or (pn >= 16 and next_qk)
        base = []
        for p in range(16):
            c = 8 + (opt.dscost * frag_ops(p + L) if want(p + L) else 0) + (4 if p % WS == 0 else 0) + (4 if p == 16 - L else 0)
            base.append(c)
        sm = sm_schedule(sm_ops(t), base) if do_sm and not opt.x_nosm else [[] for _ in range(16)]
        for p in range(16):
            mf = None
            if p < 8 and do_qk:
                c = "0" if (p == 0 and c_zero) else (vr(vNM, 16) if p == 0 else vr(Sn, 16))
                mf = "v_mfma_f32_32x32x16_bf16 %s, %s, %s, %s" % (vr(Sn, 16), vr(vF + (p & 7) * 4, 4), vr(vQ + p * 4, 4), c)
            if p >= 8 and do_pv:
                u, db = (p - 8) >> 2, (p - 8) & 3
                mf = "v_mfma_f32_32x32x16_bf16 %s, %s, %s, %s" % (vr(vO + db * 16, 16), vr(vF + (p & 7) * 4, 4), vr(Pp + u * 4, 4), vr(vO + db * 16, 16))
            if p == 16 - L and has_bar:
                bar("C", "A%s" % tag, opt.x_nobar)
            if mf:
                wait_frags(p)
                if not opt.x_nomfma:
                    a(mf)
            if want(p + L):
                frag_read(t, p + L)
            for ins in sm[p]:
                a(ins)
        if do_sm:
            lab = "L_RARE_%s" % tag
            if not opt.x_norare and not opt.x_nosm:
                a("s_cbranch_vccnz %s" % lab)
                rare.append((lab, t, do_qk))
                a.label(lab + "_BACK")
            a("v_add_f32 v%d, v%d, v%d" % (vLACC, vLACC, vPSA))

    def row_max(S, dst):
        a("v_max3_f32 v%d, v%d, v%d, v%d" % (dst, S, S + 1, S + 2))
        for r in range(3, 15, 2):
            a("v_max3_f32 v%d, v%d, v%d, v%d" % (dst, dst, S + r, S + r + 1))
        a("v_max_f32 v%d, v%d, v%d" % (dst, dst, S + 15))
        a("v_mov_b32 v%d, v%d" % (vTMP, dst))
        a("s_nop 1")
        a("v_permlane32_swap_b32 v%d, v%d" % (dst, vTMP))
        a("s_nop 1")
        a("v_max_f32 v%d, v%d, v%d" % (dst, dst, vTMP))

    def emit_rare(lab, t, fix_next):
        S, Sn, P = vS[t & 1], vS[(t + 1) & 1], vP[t & 1]
        d, f = vE + 4, vE + 5
        a.label(lab)
        a("s_nop 15")
        row_max(S, d)
        a("v_max_f32 v%d, 0, v%d" % (d, d))
        a("v_exp_f32 v%d, -v%d" % (f, d))
        for r in range(16):
            a("v_sub_f32 v%d, v%d, v%d" % (vNM + r, vNM + r, d))
        for r in range(16):
            a("v_sub_f32 v%d, v%d, v%d" % (S + r, S + r, d))
        if fix_next:
            for r in range(16):
                a("v_sub_f32 v%d, v%d, v%d" % (Sn + r, Sn + r, d))
        for r in range(64):
            a("v_mul_f32 v%d, v%d, v%d" % (vO + r, vO + r, f))
        a("v_mul_f32 v%d, v%d, v%d" % (vLACC, vLACC, f))
        a("v_mov_b32 v%d, 0" % vPSA)
        for k in range(8):
            a("v_exp_f32 v%d, v%d" % (vE, S + 2 * k))
            a("v_exp_f32 v%d, v%d" % (vE + 1, S + 2 * k + 1))
            a("v_add_f32 v%d, v%d, v%d" % (vPSA, vPSA, vE))
            a("v_add_f32 v%d, v%d, v%d" % (vPSA, vPSA, vE + 1))
            a("v_cvt_pk_bf16_f32 v%d, v%d, v%d" % (P + k, vE, vE + 1))
        a("s_nop 1")
        a("s_branch %s_BACK" % lab)

    for p in range(L):
        frag_read(-1, p)
    for r in range(64):
        a("v_mov_b32 v%d, 0" % (vO + r))
    a("v_mov_b32 v%d, 0" % vLACC)
    a("s_waitcnt lgkmcnt(%d)" % dq.need({"Q"}))
    if opt.dump == "q":
        dump_regs(a, vQ, 32)
    period(-1, "m1", True, False, False, c_zero=True)
    a("s_nop 15")
    row_max(vS[0], vE + 4)
    for r in range(16):
        a("v_sub_f32 v%d, 0, v%d" % (vNM + r, vE + 4))
    for r in range(16):
        a("v_sub_f32 v%d, v%d, v%d" % (vS[0] + r, vS[0] + r, vE + 4))
    a("s_nop 1")
    period(0, "0", True, True, False)
    q_entry = list(dq.q)
    a("s_mov_b32 s%d, 0" % sPASS)
    a(".p2align 3")
    a.label("L_ATT_LOOP")
    n0 = len(bars["C"])
    for t in range(1, 9):
        period(t, "L%d" % t, True, True, True)
        if t == 6:
            q_exit = list(dq.q)
            a("s_cmp_eq_u32 s%d, 3" % sPASS)
            a("s_cbranch_scc1 L_ATT_EXIT")
    assert dq.q == q_entry, (dq.q, q_entry)
    a("s_add_u32 s%d, s%d, 1" % (sPASS, sPASS))
    a("s_branch L_ATT_LOOP")
    del bars["C"][n0:]
    bars["C"] += ["A%d" % t for t in range(1, 31)]
    a.label("L_ATT_EXIT")
    dq.q = list(q_exit)
    period(31, "31", False, True, True, next_qk=False)
    period(32, "32", False, False, True, has_bar=False, next_qk=False)
    stamp(a, 3)
    a("v_mov_b32 v%d, v%d" % (vTMP, vLACC))
    a("s_nop 1")
    a("v_permlane32_swap_b32 v%d, v%d" % (vLACC, vTMP))
    a("s_nop 1")
    a("v_add_f32 v%d, v%d, v%d" % (vLACC, vLACC, vTMP))
    a("v_rcp_f32 v%d, v%d" % (vLACC, vLACC))
    a("s_nop 7")
    for db in range(4):
        for rr in range(4):
            b = vO + db * 16 + rr * 4
            for e in range(4):
                a("v_mul_f32 v%d, v%d, v%d" % (b + e, b + e, vLACC))
            a("v_cvt_pk_bf16_f32 v%d, v%d, v%d" % (b, b, b + 1))
            a("v_cvt_pk_bf16_f32 v%d, v%d, v%d" % (b + 1, b + 2, b + 3))
            a("v_xor_b32 v%d, %d, v%d" % (vT[rr], (4 * db + rr) * 16, vOW))
            a("ds_write_b64 v%d, %s" % (vT[rr], vr(b, 2)))
    if opt.prio:
        a("s_setprio 0")
    a("s_waitcnt lgkmcnt(0)")
    a("s_branch L_E0")

    a.label("L_IDLE3")
    if not opt.x_nobar:
        a("s_mov_b32 s%d, 33" % sPASS)
        a.label("L_IDLE3_LOOP")
        a("s_barrier")
        a("s_sub_u32 s%d, s%d, 1" % (sPASS, sPASS))
        a("s_cmp_lg_u32 s%d, 0" % sPASS)
        a("s_cbranch_scc1 L_IDLE3_LOOP")
    bars["I"] += ["Am1"] + ["A%d" % t for t in range(0, 32)]

    a.label("L_E0")
    bar("CI", "E0")
    stamp(a, 4)

    def a3_list(p):
        out = ["v_add_u32 v%d, 0x%x, v%d" % (vWOT[0], RWO[p & 3], vWOA),
               "v_xor_b32 v%d, 32, v%d" % (vWOT[1], vWOT[0])]
        for ks in range(4 if not opt.x_o_nods else 0):
            for nb in range(2):
                for jj in range(2):
                    out.append("ds_read_b64_tr_b16 %s, v%d offset:%d" % (vr(vA3[p & 1] + (ks * 2 + nb) * 4 + jj * 2, 2), vWOT[nb], ks * 8192 + jj * 1024))
        return out
    def mf3_list(p):
        if opt.x_o_nomfma:
            return []
        out = []
        kh = p & 1
        for ks in range(4):
            for nb in range(2):
                for qb in range(3):
                    acc = vACC3[(p >> 1) & 1] + (qb * 2 + nb) * 4
                    c = "0" if (ks == 0 and kh == 0) else vr(acc, 4)
                    out.append("v_mfma_f32_16x16x32_bf16 %s, %s, %s, %s" % (vr(acc, 4), vr(vA3[p & 1] + (ks * 2 + nb) * 4, 4), vr(vB3 + ((kh * 4 + ks) * 3 + qb) * 4, 4), c))
        return out
    def st3_list(c):
        if opt.x_o_nost:
            return []
        out = ["s_add_u32 s%d, s%d, %d" % (sT0, sB, c),
               "s_and_b32 s%d, s%d, 3" % (sT0, sT0),
               "s_mul_i32 s%d, s%d, %d" % (sT0, sT0, 4 * 16 * 3072),
               "s_add_u32 s%d, s%d, s%d" % (sT0, sT0, sPOFF)]
        for qb in range(3):
            acc = vACC3[c & 1] + qb * 8
            for d in range(4):
                out.append("v_cvt_pk_bf16_f32 v%d, v%d, v%d" % (acc + d, acc + 2 * d, acc + 2 * d + 1))
            out.append("buffer_store_dwordx4 %s, v%d, s[%d:%d], s%d offen offset:%d %s" % (vr(acc, 4), vST, SRD_WS, SRD_WS + 3, sT0, qb * 1024, part_aux))
        return out
    for ins in a3_list(0):
        a(ins)
    for ks in range(8):
        for qb in range(3):
            a("ds_read_b128 %s, v%d offset:%d" % (vr(vB3 + (ks * 3 + qb) * 4, 4), vOR[ks & 3], (48 * (ks >> 2) + 16 * qb) * 256))
    a("s_waitcnt lgkmcnt(0)")
    if opt.dump == "o":
        dump_regs(a, vB3, 96)
    for p in range(1, 8):
        bar("CI", "P%d" % p)
        if p in (1, 4, 7):
            stamp(a, 14 + p // 3)
        fill = a3_list(p)
        if p >= 4 and p % 2 == 0 or p == 3 and False:
            pass
        if p >= 3 and p % 2 == 1:
            fill += st3_list((p - 3) // 2)
        interleave(a, mf3_list(p - 1), fill)
        a("s_waitcnt lgkmcnt(0)")
    interleave(a, mf3_list(7), [])
    a("s_nop 7")
    for ins in st3_list(3):
        a(ins)
    stamp(a, 5)
    a("s_waitcnt vmcnt(0)")
    stamp(a, 6)
    if opt.fused_tail:
        bar("CI", "F0")
        a("s_branch L_REDUCE")
    else:
        a("s_branch L_END")

    a.label("L_LOADER")
    qL = Queue(63)
    t1, t2, t3, t4 = vT[0:4]
    a("s_sub_u32 s%d, s%d, 4" % (sJ, sW))
    a("s_lshl_b32 s%d, s%d, 9" % (sT0, sHP))
    srd(a, SRD_WQ, P_WQ, 4194304 - 15 * 512, sT0)
    a("s_lshl_b32 s%d, s%d, 16" % (sJ64K, sJ))
    a("v_lshrrev_b32 v%d, 5, v%d" % (t1, vL))
    a("v_and_b32 v%d, 31, v%d" % (t2, vL))
    a("v_lshlrev_b32 v%d, 1, v%d" % (t3, t1))
    a("v_xor_b32 v%d, v%d, v%d" % (t2, t2, t3))
    a("v_lshlrev_b32 v%d, 4, v%d" % (t2, t2))
    a("s_and_b32 s%d, s%d, 1" % (sT1, sJ))
    a("s_lshl_b32 s%d, s%d, 7" % (sT1, sT1))
    a("v_xor_b32 v%d, s%d, v%d" % (t2, sT1, t2))
    a("v_lshl_add_u32 v%d, v%d, 13, v%d" % (t2, t1, t2))
    for aa in range(4):
        c = 2 * aa * 8192 - aa * 1024
        if aa & 1:
            a("v_xor_b32 v%d, 64, v%d" % (vLW[aa], t2))
            a("v_add_u32 v%d, 0x%x, v%d" % (vLW[aa], c, vLW[aa]))
        else:
            a("v_add_u32 v%d, 0x%x, v%d" % (vLW[aa], c, t2))
    a("s_lshl_b32 s%d, s%d, 1" % (sKS, sB))
    a("s_lshl_b32 s%d, s%d, 12" % (sT5, sJ))

    def dma_w(e):
        a("s_add_u32 s%d, s%d, %d" % (sT0, sKS, e))
        a("s_and_b32 s%d, s%d, 15" % (sT0, sT0))
        a("s_lshl_b32 s%d, s%d, 18" % (sT0, sT0))
        a("s_add_u32 m0, s%d, 0x%x" % (sT5, (e % NWS) * 16384))
        a("s_add_u32 s%d, s%d, s%d" % (sT0, sT0, sJ64K))
        if opt.x_q_nodma:
            return
        for aa in range(4):
            a("buffer_load_dwordx4 v%d, s[%d:%d], s%d offen offset:%d %s lds" % (vLW[aa], SRD_WQ, SRD_WQ + 3, sT0, aa * 1024, opt.w_aux))
        qL.issue("W%d" % e, 4)
    for e in range(NWS):
        dma_w(e)
    a("s_lshl_b32 s%d, s%d, 3" % (sT0, sB))
    a("s_add_u32 s%d, s%d, s%d" % (sT0, sT0, sKVH))
    a("s_lshl_b32 s%d, s%d, 18" % (sT0, sT0))
    srd(a, SRD_K, P_K, 262144, sT0)
    srd(a, SRD_V, P_V, 262144, sT0)
    a("s_lshl_b32 s%d, s%d, 18" % (sT0, sHP))
    srd(a, SRD_WO, P_WO, 262144, sT0)
    a("s_lshl_b32 s%d, s%d, 11" % (sJ2K, sJ))
    a("v_lshrrev_b32 v%d, 4, v%d" % (t1, vL))
    a("v_and_b32 v%d, 15, v%d" % (t2, vL))
    a("v_xor_b32 v%d, v%d, v%d" % (t3, t2, t1))
    a("s_and_b32 s%d, s%d, 1" % (sT1, sJ))
    a("s_lshl_b32 s%d, s%d, 3" % (sT1, sT1))
    a("v_xor_b32 v%d, s%d, v%d" % (t3, sT1, t3))
    a("v_lshlrev_b32 v%d, 4, v%d" % (t3, t3))
    a("v_lshl_add_u32 v%d, v%d, 8, v%d" % (vLK[0], t1, t3))
    a("v_xor_b32 v%d, 64, v%d" % (vLK[1], vLK[0]))
    a("v_lshlrev_b32 v%d, 2, v%d" % (t3, t1))
    a("v_xor_b32 v%d, v%d, v%d" % (t3, t2, t3))
    a("v_lshlrev_b32 v%d, 4, v%d" % (t3, t3))
    a("v_lshl_add_u32 v%d, v%d, 8, v%d" % (vLV, t1, t3))
    a("v_lshrrev_b32 v%d, 4, v%d" % (t1, vL))
    a("v_and_b32 v%d, 15, v%d" % (t2, vL))
    a("v_lshlrev_b32 v%d, 1, v%d" % (t3, t1))
    a("v_xor_b32 v%d, v%d, v%d" % (t2, t2, t3))
    a("v_lshlrev_b32 v%d, 4, v%d" % (t2, t2))
    a("v_lshl_add_u32 v%d, v%d, 10, v%d" % (t2, t1, t2))
    for aa in range(4):
        if aa >> 1:
            a("v_xor_b32 v%d, 128, v%d" % (vLWO[aa], t2))
            a("v_add_u32 v%d, %d, v%d" % (vLWO[aa], 3072 * aa, vLWO[aa]))
        else:
            a("v_add_u32 v%d, %d, v%d" % (vLWO[aa], 3072 * aa, t2))

    def dma_tile(kind, t):
        base = K_BASE + KPOS[t & 7] * 8192 if kind == "K" else V_BASE + (t & 7) * 8192
        s_, v_ = (SRD_K, vLK) if kind == "K" else (SRD_V, [vLV, vLV])
        a("s_add_u32 m0, s%d, 0x%x" % (sJ2K, base))
        a("s_add_u32 s%d, s%d, 0x%x" % (sOFF, sJ2K, t * 8192))
        for aa in range(2):
            a("buffer_load_dwordx4 v%d, s[%d:%d], s%d offen offset:%d %s lds" % (v_[aa], s_, s_ + 3, sOFF, aa * 1024, opt.kv_aux))
        qL.issue("%s%d" % (kind, t), 2)
    def dma_wo(p):
        if opt.x_o_nodma:
            return
        a("s_add_u32 s%d, s%d, %d" % (sT0, sB, p >> 1))
        a("s_and_b32 s%d, s%d, 3" % (sT0, sT0))
        a("s_lshl_b32 s%d, s%d, 8" % (sT0, sT0))
        a("s_lshl_b32 s%d, s%d, 3" % (sT1, sT5))
        a("s_add_u32 s%d, s%d, s%d" % (sT0, sT0, sT1))
        if p & 1:
            a("s_add_u32 s%d, s%d, 0x20000" % (sT0, sT0))
        a("s_lshl_b32 s%d, s%d, 1" % (sT1, sT5))
        for hf in range(2):
            a("s_add_u32 m0, s%d, 0x%x" % (sT1, RWO[p & 3] + hf * 4096))
            if hf:
                a("s_add_u32 s%d, s%d, 16384" % (sT0, sT0))
            else:
                a("s_nop 0")
            for aa in range(4):
                a("buffer_load_dwordx4 v%d, s[%d:%d], s%d offen offset:%d %s lds" % (vLWO[aa], SRD_WO, SRD_WO + 3, sT0, aa * 1024, opt.w_aux))
        qL.issue("WO%d" % p, 8)
    def lwait(tags):
        n = qL.need(set(tags))
        if n is not None:
            a("s_waitcnt vmcnt(%d)" % n)
    if opt.fill == 0:
        fill = {10: [("K", 0), ("K", 1)], 11: [("K", 2), ("K", 3)], 12: [("V", 0), ("V", 1)], 13: [("V", 2), ("V", 3)],
                14: [("V", 4), ("V", 5)], 15: [("K", 4), ("K", 5)], 16: [("K", 6), ("K", 7)]}
        nk, nv = 8, 6
    elif opt.fill == 1:
        fill = {10: [("K", 0)], 11: [("K", 1)], 12: [("V", 0)], 13: [("K", 2)], 14: [("V", 1)], 15: [("K", 3)], 16: [("V", 2)]}
        nk, nv = 4, 3
    elif opt.fill == 2:
        fill = {10: [("K", 0)], 12: [("K", 1)], 14: [("V", 0)], 16: [("K", 2)]}
        nk, nv = 3, 1
    for e in range(17):
        if e < 16:
            lwait(["W%d" % e])
        if opt.lstamps and e >= 10:
            stamp(a, 17 + e - 10)
        bar("L", "Q%d" % e)
        if e >= 1 and e + NWS - 1 <= 15:
            dma_w(e + NWS - 1)
        for kind, t in fill.get(e, []):
            dma_tile(kind, t)
        if opt.lstamps and e >= 10:
            stamp(a, 24 + e - 10)
    lwait(["K0"])
    bar("L", "Q17")
    stamp(a, 2)
    for _ in range(2):
        if nk < 8 and opt.fill:
            dma_tile("K", nk); nk += 1
        if nv < 6 and opt.fill:
            dma_tile("V", nv); nv += 1
    for t in range(-1, 32):
        lwait(["K%d" % (t + 2), "V%d" % t])
        bar("L", "A%s" % ("m1" if t < 0 else str(t)), opt.x_nobar)
        for _ in range(2):
            if nk <= 31 and nk <= t + opt.klead:
                dma_tile("K", nk); nk += 1
            if nv <= 31 and nv <= max(t + opt.vlead, 5):
                dma_tile("V", nv); nv += 1
        if t == 26:
            dma_wo(0)
        if t == 29:
            dma_wo(1)
        if t == 30:
            dma_wo(2)
    assert nk == 32 and nv == 32
    lwait(["WO0"])
    bar("L", "E0")
    stamp(a, 4)
    dma_wo(3)
    for p in range(1, 8):
        lwait(["WO%d" % p])
        bar("L", "P%d" % p)
        if p + 3 <= 7:
            dma_wo(p + 3)
    stamp(a, 6)
    if opt.fused_tail:
        srd(a, SRD_DBG, P_DBG, 256)
        a("s_lshl_b32 s%d, s%d, 4" % (sT0, sGRP))
        a("v_mov_b32 v2, s%d" % sT0)
        a("v_mov_b32 v3, 1")
        bar("L", "F0")
        a("s_cmp_lg_u32 s%d, 4" % sW)
        a("s_cbranch_scc1 L_REDUCE")
        a("s_mov_b64 s[%d:%d], exec" % (sT2, sT3))
        a("s_mov_b64 exec, 1")
        a("buffer_atomic_add v3, v2, s[%d:%d], 0 offen sc1" % (SRD_DBG, SRD_DBG + 3))
        a("s_mov_b32 s%d, 0" % sT4)
        a.label("L_POLL")
        a("buffer_load_dword v4, v2, s[%d:%d], 0 offen sc1" % (SRD_DBG, SRD_DBG + 3))
        a("s_add_u32 s%d, s%d, 1" % (sT4, sT4))
        a("s_waitcnt vmcnt(0)")
        a("v_readfirstlane_b32 s%d, v4" % sT1)
        a("s_cmp_ge_u32 s%d, 0x%x" % (sT4, opt.spin_limit))
        a("s_cbranch_scc1 L_POLL_DONE")
        a("s_cmp_lt_u32 s%d, 16" % sT1)
        a("s_cbranch_scc1 L_POLL")
        a.label("L_POLL_DONE")
        a("s_mov_b64 exec, s[%d:%d]" % (sT2, sT3))
        a.label("L_REDUCE")
        a("s_barrier")
        stamp(a, 7)
        a("s_cmp_ge_u32 s%d, 6" % sW)
        a("s_cbranch_scc1 L_RED_IDLE")
        srd(a, SRD_WS, P_WS, WS_PART_BYTES)
        srd(a, SRD_OUT, P_OUT, 8 * 48 * 1024 * 2)
        a("s_lshl_b32 s%d, s%d, 4" % (sKS, sGRP))
        a("s_add_u32 s%d, s%d, s%d" % (sKS, sKS, sHP))
        a("s_mul_i32 s%d, s%d, %d" % (sKS, sKS, 16 * 3072))
        reduce_body(a, sW, sKS, SRD_WS, SRD_OUT, sGRP, sHP, "sc1", 0)
        stamp(a, 8)
        a("s_branch L_END")
        a.label("L_RED_IDLE")
        a("s_barrier")

    a.label("L_END")
    a("s_endpgm")
    for lab, t, fix in rare:
        emit_rare(lab, t, fix)

    assert bars["C"] == bars["I"] == bars["L"], "barrier sequences differ:\n%s\n%s\n%s" % (bars["C"], bars["I"], bars["L"])


def gen_reduce(a):
    name = "attn_reduce_kernel"
    a(".p2align 8")
    a(".globl %s" % name)
    a(".type %s,@function" % name)
    a.label(name)
    a("s_cmp_ge_u32 s2, 256")
    a("s_cbranch_scc1 R_END")
    a("s_load_dwordx2 s[4:5], s[0:1], 80")
    a("s_load_dwordx2 s[6:7], s[0:1], 96")
    a("v_lshrrev_b32 v1, 6, v0")
    a("v_and_b32 v0, 63, v0")
    a("v_readfirstlane_b32 s3, v1")
    a("s_mul_i32 s16, s2, %d" % (16 * 3072))
    a("s_lshr_b32 s18, s2, 4")
    a("s_and_b32 s19, s2, 15")
    a("s_waitcnt lgkmcnt(0)")
    srd(a, 8, 6, WS_PART_BYTES)
    srd(a, 12, 4, 8 * 48 * 1024 * 2)
    reduce_body(a, 3, 16, 8, 12, 18, 19, "", 0)
    a.label("R_END")
    a("s_endpgm")
    return name


VOP3_ONLY = ("v_mfma", "v_cvt_pk_bf16_f32", "v_max3", "v_lshl_add_u32", "v_bfe_u32", "v_dot2_f32_bf16", "v_pk_", "v_mul_lo", "v_add3",
             "v_writelane", "v_readlane", "v_and_or", "v_perm_b32", "v_lshl_or")
MEM = ("ds_", "buffer_", "global_", "s_load", "s_memtime", "s_memrealtime")
INLINE_F = ("0.5", "-0.5", "1.0", "-1.0", "2.0", "-2.0", "4.0", "-4.0")


def has_literal(ops):
    for o in ops:
        o = o.strip()
        if re.fullmatch(r"[A-Z][A-Z_]+", o):
            return True
        if re.fullmatch(r"-?(0x[0-9a-fA-F]+|\d+)", o):
            v = int(o, 0)
            if not -16 <= v <= 64:
                return True
    return False


def ins_size(ln):
    op, _, rest = ln.partition(" ")
    ops = rest.split(",")
    if op.startswith(MEM):
        return 8
    if op.startswith(("s_waitcnt", "s_barrier", "s_nop", "s_branch", "s_cbranch", "s_setprio", "s_endpgm", "s_sleep")):
        return 4
    if op.startswith("v_"):
        if op.startswith(VOP3_ONLY) or op.endswith("_e64") or re.search(r"[ ,]-v\d|abs\(", " " + rest):
            return 8
        return 8 if has_literal(ops) else 4
    return 8 if has_literal(ops) else 4


def widenable(ln):
    op, _, rest = ln.partition(" ")
    return op.startswith("v_") and ins_size(ln) == 4 and not op.startswith(("v_readfirstlane", "v_permlane", "v_nop")) and not op.endswith("_e32")


def align_pass(lines):
    out = list(lines)
    off, run = 0, []
    fixed = missed = 0
    for i, ln in enumerate(out):
        t = ln.strip()
        if not t or t[0] == ";":
            continue
        if t.endswith(":"):
            continue
        if t.startswith(".p2align"):
            n = 1 << int(t.split()[1].rstrip(","))
            off = (off + n - 1) // n * n
            run = []
            continue
        if t[0] == ".":
            continue
        sz = ins_size(t)
        if sz == 8:
            if off % 8 == 4:
                cand = [j for j in run if widenable(out[j].strip())]
                if cand:
                    j = cand[-1]
                    op, _, rest = out[j].strip().partition(" ")
                    out[j] = "    %s_e64 %s" % (op, rest)
                    off += 4
                    fixed += 1
                else:
                    missed += 1
            run = []
        else:
            run.append(i)
        off += sz
    return out, fixed, missed


def kd(name, vgpr, sgpr):
    acc = (vgpr + 3) // 4 * 4
    return """.p2align 6
.amdhsa_kernel %s
  .amdhsa_next_free_vgpr %d
  .amdhsa_next_free_sgpr %d
  .amdhsa_accum_offset %d
  .amdhsa_group_segment_fixed_size 0
  .amdhsa_kernarg_size 104
  .amdhsa_user_sgpr_count 2
  .amdhsa_user_sgpr_kernarg_segment_ptr 1
  .amdhsa_system_sgpr_workgroup_id_x 1
.end_amdhsa_kernel
""" % (name, vgpr, sgpr, acc)


def build():
    hdr = open("cdna_kernels/%s.s.ref" % NAME).read().split("\n")
    head = [ln for ln in hdr if ln.startswith(";") and "@launch" not in ln][:14]
    a = Prog()
    main = "attn_main_kernel" if multi() else NAME + "_kernel"
    if multi():
        head.append("; @launch kernel=attn_main_kernel grid=(256,1,1) block=(512,1,1) lds=%d" % LDS_BYTES)
        head.append("; @launch kernel=attn_reduce_kernel grid=(256,1,1) block=(384,1,1) lds=6144")
    else:
        head.append("; @launch grid=(256,1,1) block=(512,1,1) lds=%d" % LDS_BYTES)
    a('.amdgcn_target "amdgcn-amd-amdhsa--gfx950"')
    a(".text")
    a(".globl %s" % main)
    a(".p2align 8")
    a(".type %s,@function" % main)
    gen_main(a, main)
    kds = kd(main, NVGPR, NSGPR)
    if multi():
        kds += kd(gen_reduce(a), 48, 40)
    body = a.text()
    if opt.align:
        lines, fixed, missed = align_pass(body.split("\n"))
        body = "\n".join(lines)
        print("alignment pass: widened %d, unfixable %d" % (fixed, missed))
    return "\n".join(head) + "\n" + body + '.section .rodata,"a"\n' + kds


if __name__ == "__main__":
    out = sys.argv[1] if len(sys.argv) > 1 else "cdna_kernels/%s.s" % NAME
    for kv in sys.argv[2:]:
        k, v = kv.split("=", 1)
        cur = getattr(opt, k)
        if isinstance(cur, bool):
            v = v in ("1", "True", "true")
        elif isinstance(cur, int):
            v = int(v)
        elif v == "None":
            v = None
        setattr(opt, k, v)
    s = build()
    open(out, "w").write(s)
    print("wrote", out, len(s), "bytes,", s.count("\n"), "lines")
```

```python
import sys, math, struct, re

NAME = "concat_heads__gqa_block_cached__gqa_block_cached__near_ridge"


class Opt:
    fused_tail = False
    kv_aux = "nt"
    w_aux = ""
    dump = None
    L = 6
    waitstep = 4
    thr_log2 = 12
    stamps = False
    sumop = "add"
    prio = 0
    klead = 9
    vlead = 6
    spin_limit = 1 << 20
    tlbwarm = False
    lstamps = False
    x_stretch = 0
    x_mark = 'end'
    codepf = False
    codepf_n = 3
    dscost = 4
    slotcap = 32
    fill = 0
    align = True
    x_nobar = False
    x_nosm = False
    x_nods = False
    x_norare = False
    x_nomfma = False
    x_q_nomfma = False
    x_q_nods = False
    x_q_nodma = False
    x_o_nodma = False
    x_o_nomfma = False
    x_o_nost = False
    x_o_nods = False


opt = Opt()

KB = 1024
K_BASE = 0
V_BASE = 64 * KB
M_BASE = 128 * KB
X_BASE = 112 * KB
NWS = 7
LDS_BYTES = 160 * KB
KPOS = [4, 5, 6, 7, 0, 1, 2, 3]
RWO = [32 * KB, 64 * KB, 0, 96 * KB]

WS_PART_BYTES = 16 * 16 * 16 * 3072
WS_DUMP = 16 << 20
WS_STAMP = 48 << 20
WS_BYTES = 268435456

sW = 3
sB, sHP, sBR, sKVH = 4, 5, 6, 7
SRD_X, SRD_WQ, SRD_K, SRD_V, SRD_WO, SRD_WS = 8, 12, 16, 20, 24, 28
sT0, sT1, sT2, sT3, sT4, sT5 = 32, 33, 34, 35, 36, 37
sGRP = 38
sOFF = 39
sPASS = 40
sTHR = 41
sKS = 42
sPOFF = 43
sSTAMP = 44
sDBG = 46
SRD_OUT = 48
SRD_ST = 52
P_X, P_K, P_V, P_WQ = 56, 58, 60, 62
KA = 64
P_OUT, P_DBG, P_WS = KA + 20, KA + 22, KA + 24
P_WO = 90
sSTOFF = 92
sJ, sJ64K, sJ2K = 93, 94, 95
SRD_DBG = 96
NSGPR = 102

vL = 0
vT = [1, 2, 3, 4, 5, 6, 7, 8, 9]
vKA = list(range(10, 18))
vVA = list(range(18, 22))
vWA = list(range(22, 26))
vXB, vXT = 26, 27
vPSA, vPSB, vLACC, vTMP = 28, 29, 30, 31
vQ = 32
vO = 64
vS = [128, 144]
vNM = 160
vP = [176, 184]
vF = 192
vE = 224
vWA2 = [232, 233, 234, 235]
vQW = 236
vOW = 237
vOR = [240, 241, 242, 243]
vWOA = 244
vWOT = [245, 246]
vST = 247
vONE = 248
vDUM = 249
vSTA, vSTB = 250, 251
NVGPR = 252
vACC1 = 64
vA1 = [128, 144]
vB1 = [160, 172]
vB3 = 32
vA3 = [128, 160]
vACC3 = [192, 216]
vLW = [10, 11, 12, 13]
vLK = [14, 15]
vLV = 16
vLWO = [18, 19, 20, 21]


def f32bits(x):
    return struct.unpack("<I", struct.pack("<f", x))[0]


class Prog:
    def __init__(self):
        self.lines = []
    def __call__(self, s):
        self.lines += s.split("\n")
    def label(self, s):
        self.lines.append(s + ":")
    def text(self):
        out = []
        for ln in self.lines:
            ln = ln.strip()
            if ln:
                out.append(ln if ln.endswith(":") or ln[0] in ".;" else "    " + ln)
        return "\n".join(out) + "\n"


def vr(b, n):
    return "v[%d:%d]" % (b, b + n - 1) if n > 1 else "v%d" % b


class Queue:
    def __init__(self, limit):
        self.q = []
        self.limit = limit
    def issue(self, tag, n=1):
        self.q += [tag] * n
        assert len(self.q) <= self.limit, (tag, len(self.q))
    def need(self, tags):
        last = -1
        for i, t in enumerate(self.q):
            if t in tags:
                last = i
        if last < 0:
            return None
        n = len(self.q) - 1 - last
        self.q = self.q[last + 1:]
        return n
    def drain(self):
        self.q = []


def srd(a, base, ptr, size, off_s=None):
    if off_s is None:
        a("s_mov_b32 s%d, s%d" % (base, ptr))
        a("s_mov_b32 s%d, s%d" % (base + 1, ptr + 1))
    else:
        a("s_add_u32 s%d, s%d, s%d" % (base, ptr, off_s))
        a("s_addc_u32 s%d, s%d, 0" % (base + 1, ptr + 1))
    a("s_mov_b32 s%d, 0x%x" % (base + 2, size))
    a("s_mov_b32 s%d, 0x20000" % (base + 3))


MARKS = {1: "x", 2: "q", 3: "att", 5: "gemm", 6: "drain", 7: "sync", 8: "end"}


def stamp(a, idx):
    if opt.x_stretch and MARKS.get(idx) == opt.x_mark:
        a("s_memrealtime s[%d:%d]" % (sSTAMP, sSTAMP + 1))
        a("s_waitcnt lgkmcnt(0)")
        a("s_sub_u32 s%d, s%d, s100" % (sDBG, sSTAMP))
    if not opt.stamps:
        return
    a("s_memrealtime s[%d:%d]" % (sSTAMP, sSTAMP + 1))
    a("s_memtime s[%d:%d]" % (sDBG, sDBG + 1))
    a("s_waitcnt lgkmcnt(0)")
    a("v_mov_b32 v%d, s%d" % (vSTA, sSTAMP))
    a("v_mov_b32 v%d, s%d" % (vSTB, sSTOFF))
    a("buffer_store_dword v%d, v%d, s[%d:%d], 0 offen offset:%d" % (vSTA, vSTB, SRD_ST, SRD_ST + 3, idx * 4))
    a("v_mov_b32 v%d, s%d" % (vSTA, sDBG))
    a("buffer_store_dword v%d, v%d, s[%d:%d], 0 offen offset:%d" % (vSTA, vSTB, SRD_ST, SRD_ST + 3, 128 + idx * 4))


def fill_cost(ins):
    op = ins.split()[0]
    return 8 if op.startswith(("ds_", "buffer_", "v_exp", "v_rcp")) else 4


def interleave(a, mfmas, fill, gap=8):
    total = sum(fill_cost(f) for f in fill)
    per = max(gap, -(-total // max(len(mfmas), 1))) if mfmas else 0
    i, credit = 0, 0
    for m in mfmas:
        a(m)
        credit += per
        while i < len(fill) and fill_cost(fill[i]) <= credit:
            credit -= fill_cost(fill[i])
            a(fill[i]); i += 1
    while i < len(fill):
        a(fill[i]); i += 1


def multi():
    return not opt.fused_tail


def dump_regs(a, base, n):
    a("s_lshl_b32 s%d, s2, 3" % sT0)
    a("s_add_u32 s%d, s%d, s%d" % (sT0, sT0, sW))
    a("s_mul_i32 s%d, s%d, %d" % (sT0, sT0, 96 * 256))
    a("s_add_u32 s%d, s%d, 0x%x" % (sT0, sT0, WS_DUMP))
    a("v_lshlrev_b32 v%d, 4, v%d" % (vT[8], vL))
    for g in range(n // 4):
        a("buffer_store_dwordx4 %s, v%d, s[%d:%d], s%d offen" % (vr(base + g * 4, 4), vT[8], SRD_WS, SRD_WS + 3, sT0))
        a("s_add_u32 s%d, s%d, 1024" % (sT0, sT0))
    a("s_waitcnt vmcnt(0)")


def reduce_body(a, s_w, s_wgoff, srd_ws, srd_out, s_grp, s_dest, aux, lds_base):
    t = [sT0, sT1, sT2, sT3, sT4, sT5]
    a("s_cmp_ge_u32 s%d, 3" % s_w)
    a("s_cselect_b32 s%d, 1, 0" % t[3])
    a("s_mul_i32 s%d, s%d, 3" % (t[4], t[3]))
    a("s_sub_u32 s%d, s%d, s%d" % (t[4], s_w, t[4]))
    a("v_lshlrev_b32 v2, 4, v0")
    a("s_lshl_b32 s%d, s%d, 10" % (t[0], t[4]))
    a("s_add_u32 s%d, s%d, s%d" % (t[0], t[0], s_wgoff))
    a("s_mul_i32 s%d, s%d, %d" % (t[1], t[3], 8 * 3072))
    a("s_add_u32 s%d, s%d, s%d" % (t[0], t[0], t[1]))
    for s in range(8):
        a("buffer_load_dwordx4 %s, v2, s[%d:%d], s%d offen %s" % (vr(12 + 4 * s, 4), srd_ws, srd_ws + 3, t[0], aux))
        if s < 7:
            a("s_add_u32 s%d, s%d, 3072" % (t[0], t[0]))
    a("s_lshl_b32 s%d, s%d, 11" % (t[0], t[4]))
    a("s_add_u32 s%d, s%d, %d" % (t[0], t[0], lds_base))
    a("v_lshlrev_b32 v1, 5, v0")
    a("v_add_u32 v1, s%d, v1" % t[0])
    a("s_and_b32 s%d, s%d, 7" % (t[1], s_grp))
    a("s_lshr_b32 s%d, s%d, 3" % (t[2], s_grp))
    a("s_mul_i32 s%d, s%d, 48" % (t[1], t[1]))
    a("s_lshl_b32 s%d, s%d, 4" % (t[4], t[4]))
    a("s_add_u32 s%d, s%d, s%d" % (t[1], t[1], t[4]))
    a("s_lshl_b32 s%d, s%d, 11" % (t[1], t[1]))
    a("s_lshl_b32 s%d, s%d, 10" % (t[2], t[2]))
    a("s_add_u32 s%d, s%d, s%d" % (t[1], t[1], t[2]))
    a("s_lshl_b32 s%d, s%d, 6" % (t[2], s_dest))
    a("s_add_u32 s%d, s%d, s%d" % (t[1], t[1], t[2]))
    a("v_and_b32 v3, 15, v0")
    a("v_lshrrev_b32 v4, 4, v0")
    a("v_lshlrev_b32 v3, 11, v3")
    a("v_lshl_add_u32 v3, v4, 3, v3")
    a("s_mov_b32 s%d, 0xffff0000" % t[5])
    for s in range(8):
        a("s_waitcnt vmcnt(%d)" % (7 - s))
        for d in range(4):
            x = 12 + 4 * s + d
            if s == 0:
                a("v_lshlrev_b32 v%d, 16, v%d" % (4 + 2 * d, x))
                a("v_and_b32 v%d, s%d, v%d" % (5 + 2 * d, t[5], x))
            else:
                a("v_lshlrev_b32 v44, 16, v%d" % x)
                a("v_and_b32 v45, s%d, v%d" % (t[5], x))
                a("v_add_f32 v%d, v%d, v44" % (4 + 2 * d, 4 + 2 * d))
                a("v_add_f32 v%d, v%d, v45" % (5 + 2 * d, 5 + 2 * d))
    a("s_cmp_eq_u32 s%d, 0" % t[3])
    a("s_cbranch_scc1 L_RED_LOW")
    a("ds_write_b128 v1, v[4:7]")
    a("ds_write_b128 v1, v[8:11] offset:16")
    a("s_waitcnt lgkmcnt(0)")
    a("s_barrier")
    a("s_branch L_RED_DONE")
    a.label("L_RED_LOW")
    a("s_barrier")
    a("ds_read_b128 v[12:15], v1")
    a("ds_read_b128 v[16:19], v1 offset:16")
    a("s_waitcnt lgkmcnt(0)")
    for d in range(8):
        a("v_add_f32 v%d, v%d, v%d" % (4 + d, 4 + d, 12 + d))
    for d in range(4):
        a("v_cvt_pk_bf16_f32 v%d, v%d, v%d" % (4 + d, 4 + 2 * d, 5 + 2 * d))
    a("buffer_store_dwordx2 v[4:5], v3, s[%d:%d], s%d offen" % (srd_out, srd_out + 3, t[1]))
    a("buffer_store_dwordx2 v[6:7], v3, s[%d:%d], s%d offen offset:32" % (srd_out, srd_out + 3, t[1]))
    a.label("L_RED_DONE")


def gen_main(a, name):
    bars = {"C": [], "I": [], "L": []}
    part_aux = "sc1" if opt.fused_tail else ""

    def bar(roles, nm, skip=False):
        if not skip:
            a("s_barrier")
        for r in roles:
            bars[r].append(nm)

    a.label(name)
    a("s_cmp_ge_u32 s2, 256")
    a("s_cbranch_scc1 L_END")
    a("s_load_dwordx16 s[%d:%d], s[0:1], 0" % (KA, KA + 15))
    a("s_load_dwordx8 s[%d:%d], s[0:1], 64" % (KA + 16, KA + 23))
    a("s_load_dwordx2 s[%d:%d], s[0:1], 96" % (KA + 24, KA + 25))
    if opt.x_stretch:
        a("s_memrealtime s[100:101]")
    a("s_and_b32 s%d, s2, 7" % sT0)
    a("s_lshr_b32 s%d, s2, 3" % sT1)
    a("s_lshr_b32 s%d, s%d, 4" % (sT2, sT1))
    a("s_lshl_b32 s%d, s%d, 1" % (sT0, sT0))
    a("s_add_u32 s%d, s%d, s%d" % (sT0, sT0, sT2))
    a("s_lshr_b32 s%d, s%d, 3" % (sBR, sT0))
    a("s_and_b32 s%d, s%d, 7" % (sKVH, sT0))
    a("s_bfe_u32 s%d, s%d, 0x30001" % (sB, sT1))
    a("s_and_b32 s%d, s%d, 1" % (sT2, sT1))
    a("s_lshl_b32 s%d, s%d, 1" % (sHP, sKVH))
    a("s_add_u32 s%d, s%d, s%d" % (sHP, sHP, sT2))
    a("v_lshrrev_b32 v1, 6, v0")
    a("v_and_b32 v0, 63, v0")
    a("v_readfirstlane_b32 s%d, v1" % sW)
    a("s_lshl_b32 s%d, s%d, 3" % (sGRP, sBR))
    a("s_add_u32 s%d, s%d, s%d" % (sGRP, sGRP, sB))
    if opt.codepf:
        a("s_cmp_lg_u32 s%d, 3" % sW)
        a("s_cbranch_scc1 L_NOPF")
        a("s_getpc_b64 s[%d:%d]" % (sT2, sT3))
        a.label("L_PC")
        a("v_lshlrev_b32 v2, 7, v0")
        a("v_mov_b32 v5, s%d" % sT3)
        a("v_add_co_u32 v4, vcc, s%d, v2" % sT2)
        a("s_nop 1")
        a("v_addc_co_u32 v5, vcc, 0, v5, vcc")
        a(".set PF_BYTES, L_END - L_PC")
        for i in range(opt.codepf_n):
            if i:
                a("v_add_co_u32 v4, vcc, 0x2000, v4")
                a("s_nop 1")
                a("v_addc_co_u32 v5, vcc, 0, v5, vcc")
            a("v_add_u32 v3, %d, v2" % (i * 8192))
            a("v_cmp_gt_u32 vcc, PF_BYTES, v3")
            a("s_and_saveexec_b64 s[%d:%d], vcc" % (sT0, sT1))
            a("s_cbranch_execz L_PF_SKIP%d" % i)
            a("global_load_dword v%d, v[4:5], off" % vDUM)
            a.label("L_PF_SKIP%d" % i)
            a("s_mov_b64 exec, s[%d:%d]" % (sT0, sT1))
        a.label("L_NOPF")
    a("s_waitcnt lgkmcnt(0)")
    a("s_cmp_eq_u32 s%d, 0" % sBR)
    for dst, pa, pb in ((P_WQ, KA + 6, KA + 16), (P_X, KA + 0, KA + 10), (P_K, KA + 2, KA + 12),
                        (P_V, KA + 4, KA + 14), (P_WO, KA + 8, KA + 18)):
        a("s_cselect_b32 s%d, s%d, s%d" % (dst, pa, pb))
        a("s_cselect_b32 s%d, s%d, s%d" % (dst + 1, pa + 1, pb + 1))
    if opt.stamps:
        srd(a, SRD_ST, P_WS, WS_BYTES)
        a("s_lshl_b32 s%d, s2, 3" % sSTOFF)
        a("s_add_u32 s%d, s%d, s%d" % (sSTOFF, sSTOFF, sW))
        a("s_lshl_b32 s%d, s%d, 8" % (sSTOFF, sSTOFF))
        a("s_add_u32 s%d, s%d, 0x%x" % (sSTOFF, sSTOFF, WS_STAMP))
        stamp(a, 0)
    a("s_cmp_ge_u32 s%d, 4" % sW)
    a("s_cbranch_scc1 L_LOADER")

    a("s_cmp_eq_u32 s%d, 3" % sW)
    a("s_cbranch_scc1 L_W3_START")
    a("s_mul_i32 s%d, s%d, 49152" % (sT0, sB))
    srd(a, SRD_X, P_X, 49152, sT0)
    a("v_lshlrev_b32 v2, 4, v0")
    a("s_lshl_b32 s%d, s%d, 14" % (sT1, sW))
    for i in range(16):
        if i % 4 == 0:
            a("s_add_u32 s%d, s%d, %d" % (sT2, sT1, (i // 4) * 4096))
            a("s_add_u32 m0, s%d, %d" % (sT2, X_BASE))
        a("v_xor_b32 v3, %d, v2" % (i * 16))
        a("buffer_load_dwordx4 v3, s[%d:%d], s%d offen offset:%d %s lds" % (SRD_X, SRD_X + 3, sT2, (i % 4) * 1024, opt.w_aux))

    a("s_branch L_WORK_SETUP")
    a.label("L_W3_START")
    if opt.tlbwarm:
        a("s_lshl_b32 s%d, s%d, 3" % (sT0, sB))
        a("s_add_u32 s%d, s%d, s%d" % (sT0, sT0, sKVH))
        a("s_lshl_b32 s%d, s%d, 18" % (sT0, sT0))
        srd(a, SRD_K, P_K, 262144, sT0)
        srd(a, SRD_V, P_V, 262144, sT0)
        a("s_lshl_b32 s%d, s%d, 18" % (sT0, sHP))
        srd(a, SRD_WO, P_WO, 262144, sT0)
        a("v_lshlrev_b32 v2, 12, v0")
        a("buffer_load_dword v%d, v2, s[%d:%d], 0 offen nt" % (vDUM, SRD_K, SRD_K + 3))
        a("buffer_load_dword v%d, v2, s[%d:%d], 0 offen nt" % (vDUM, SRD_V, SRD_V + 3))
        a("buffer_load_dword v%d, v2, s[%d:%d], 0 offen" % (vDUM, SRD_WO, SRD_WO + 3))
        srd(a, SRD_WS, P_WS, WS_PART_BYTES)
        a("s_mul_i32 s%d, s%d, %d" % (sT0, sGRP, 256 * 3072))
        a("v_mul_u32_u24 v2, 12288, v0")
        a("buffer_load_dword v%d, v2, s[%d:%d], s%d offen" % (vDUM, SRD_WS, SRD_WS + 3, sT0))

    a.label("L_WORK_SETUP")
    l = vL
    t1, t2, t3, t4, t5 = vT[0:5]
    G, rp, cp = vT[5], vT[6], vT[7]
    a("v_and_b32 v%d, 15, v%d" % (t3, l))
    a("v_lshrrev_b32 v%d, 4, v%d" % (G, l))
    a("v_bfe_u32 v%d, v%d, 2, 2" % (rp, l))
    a("v_and_b32 v%d, 3, v%d" % (cp, l))
    a("v_xor_b32 v%d, v%d, v%d" % (t4, G, t3))
    a("v_lshlrev_b32 v%d, 4, v%d" % (t4, t4))
    a("v_lshl_add_u32 v%d, v%d, 10, v%d" % (t5, t3, t4))
    a("v_add_u32 v%d, 0x%x, v%d" % (vXB, X_BASE, t5))
    a("v_lshl_add_u32 v%d, v%d, 8, v%d" % (t5, t3, t4))
    a("v_add_u32 v%d, 0x%x, v%d" % (vOR[0], M_BASE, t5))
    for k in range(1, 4):
        a("v_xor_b32 v%d, %d, v%d" % (vOR[k], k * 64, vOR[0]))
    a("v_and_b32 v%d, 1, v%d" % (t4, G))
    a("v_lshl_add_u32 v%d, v%d, 2, v%d" % (t4, t4, rp))
    a("s_lshl_b32 s%d, s%d, 2" % (sT0, sW))
    a("v_xor_b32 v%d, s%d, v%d" % (t5, sT0, t4))
    a("v_lshlrev_b32 v%d, 5, v%d" % (t5, t5))
    a("v_lshl_add_u32 v%d, v%d, 3, v%d" % (t1, G, rp))
    a("v_lshl_add_u32 v%d, v%d, 9, v%d" % (t5, t1, t5))
    a("v_lshl_add_u32 v%d, v%d, 3, v%d" % (vWA[0], cp, t5))
    for nb in range(1, 4):
        a("v_xor_b32 v%d, %d, v%d" % (vWA[nb], nb * 32, vWA[0]))
    for nb in range(4):
        a("v_add_u32 v%d, 0x10000, v%d" % (vWA2[nb], vWA[nb]))
    a("s_lshl_b32 s%d, s%d, 1" % (sT0, sW))
    a("v_xor_b32 v%d, s%d, v%d" % (t5, sT0, t4))
    a("v_lshlrev_b32 v%d, 5, v%d" % (t5, t5))
    a("v_lshl_add_u32 v%d, v%d, 8, v%d" % (t5, t1, t5))
    a("v_lshl_add_u32 v%d, v%d, 3, v%d" % (vWOA, cp, t5))
    a("s_and_b32 s%d, s%d, 1" % (sT0, sW))
    a("s_lshl_b32 s%d, s%d, 3" % (sT0, sT0))
    a("v_lshrrev_b32 v%d, 1, v%d" % (t4, G))
    a("v_add_u32 v%d, s%d, v%d" % (t4, sT0, t4))
    a("v_xor_b32 v%d, v%d, v%d" % (t4, t4, t3))
    a("v_lshlrev_b32 v%d, 4, v%d" % (t4, t4))
    a("v_lshl_add_u32 v%d, v%d, 8, v%d" % (t4, t3, t4))
    a("v_and_b32 v%d, 1, v%d" % (t5, G))
    a("v_lshl_add_u32 v%d, v%d, 3, v%d" % (t4, t5, t4))
    a("s_lshr_b32 s%d, s%d, 1" % (sT0, sW))
    a("s_mul_i32 s%d, s%d, %d" % (sT0, sT0, 48 * 256))
    a("s_add_u32 s%d, s%d, %d" % (sT0, sT0, M_BASE))
    a("v_add_u32 v%d, s%d, v%d" % (vQW, sT0, t4))
    a("v_and_b32 v%d, 31, v%d" % (t1, l))
    a("v_lshrrev_b32 v%d, 5, v%d" % (t2, l))
    a("v_xor_b32 v%d, v%d, v%d" % (t4, t2, t3))
    a("v_lshlrev_b32 v%d, 4, v%d" % (t4, t4))
    a("v_lshl_add_u32 v%d, v%d, 8, v%d" % (vKA[0], t1, t4))
    for ks in range(1, 8):
        a("v_xor_b32 v%d, %d, v%d" % (vKA[ks], ks * 32, vKA[0]))
    a("v_lshlrev_b32 v%d, 4, v%d" % (t4, t3))
    a("v_lshl_add_u32 v%d, v%d, 8, v%d" % (t4, t1, t4))
    a("v_lshl_add_u32 v%d, v%d, 3, v%d" % (t4, t2, t4))
    a("s_lshl_b32 s%d, s%d, 13" % (sT0, sW))
    a("s_add_u32 s%d, s%d, %d" % (sT0, sT0, M_BASE))
    a("v_add_u32 v%d, s%d, v%d" % (vOW, sT0, t4))
    a("v_lshl_add_u32 v%d, v%d, 2, v%d" % (t1, t2, rp))
    a("v_and_b32 v%d, 1, v%d" % (t4, G))
    a("v_lshlrev_b32 v%d, 1, v%d" % (t4, t4))
    a("v_lshrrev_b32 v%d, 1, v%d" % (t5, cp))
    a("v_add_u32 v%d, v%d, v%d" % (t4, t4, t5))
    a("v_lshlrev_b32 v%d, 2, v%d" % (t5, rp))
    a("v_xor_b32 v%d, v%d, v%d" % (t4, t4, t5))
    a("v_lshlrev_b32 v%d, 4, v%d" % (t4, t4))
    a("v_lshl_add_u32 v%d, v%d, 8, v%d" % (t4, t1, t4))
    a("v_and_b32 v%d, 1, v%d" % (t5, cp))
    a("v_lshl_add_u32 v%d, v%d, 3, v%d" % (t4, t5, t4))
    a("v_add_u32 v%d, 0x%x, v%d" % (vVA[0], V_BASE, t4))
    for db in range(1, 4):
        a("v_xor_b32 v%d, %d, v%d" % (vVA[db], db * 64, vVA[0]))
    a("v_lshlrev_b32 v%d, 4, v%d" % (vST, l))
    a("s_lshl_b32 s%d, s%d, 8" % (sT0, sGRP))
    a("s_add_u32 s%d, s%d, s%d" % (sT0, sT0, sHP))
    a("s_lshl_b32 s%d, s%d, 4" % (sT1, sW))
    a("s_add_u32 s%d, s%d, s%d" % (sT0, sT0, sT1))
    a("s_mul_i32 s%d, s%d, 3072" % (sPOFF, sT0))
    srd(a, SRD_WS, P_WS, WS_BYTES)
    a("s_mov_b32 s%d, 0x%08x" % (sTHR, f32bits(2.0 ** opt.thr_log2)))
    a("v_mov_b32 v%d, 0x3f803f80" % vONE)
    for r in range(48):
        a("v_mov_b32 v%d, 0" % (vACC1 + r))
    for r in range(16):
        a("v_mov_b32 v%d, 0" % (vA1[1] + r))
    for r in range(12):
        a("v_mov_b32 v%d, 0" % (vB1[1] + r))
    a("s_cmp_eq_u32 s%d, 3" % sW)
    a("s_cbranch_scc1 L_X_LANDED")
    a("s_waitcnt vmcnt(0)")
    a.label("L_X_LANDED")
    stamp(a, 1)

    def q_mfma_list(pb):
        if opt.x_q_nomfma:
            return []
        out = []
        for nb in range(4):
            for qb in range(3):
                acc = vACC1 + (nb * 3 + qb) * 4
                out.append("v_mfma_f32_16x16x32_bf16 %s, %s, %s, %s" % (vr(acc, 4), vr(vA1[pb] + nb * 4, 4), vr(vB1[pb] + qb * 4, 4), vr(acc, 4)))
        return out
    vXTT = [vXT, vT[8]]
    def x_addr(e):
        v = vXTT[e & 1]
        return ["s_lshl_b32 s%d, s%d, 1" % (sT0, sB),
                "s_add_u32 s%d, s%d, %d" % (sT0, sT0, e),
                "s_and_b32 s%d, s%d, 3" % (sT1, sT0),
                "s_lshl_b32 s%d, s%d, 6" % (sT1, sT1),
                "s_bfe_u32 s%d, s%d, 0x20002" % (sT2, sT0),
                "s_lshl_b32 s%d, s%d, 8" % (sT2, sT2),
                "v_xor_b32 v%d, s%d, v%d" % (v, sT1, vXB),
                "v_add_u32 v%d, s%d, v%d" % (v, sT2, v)]
    for ins in x_addr(0):
        a(ins)
    for e in range(16):
        bar("CI", "Q%d" % e)
        if e in (0, 4, 8, 12):
            stamp(a, 9 + e // 4)
        pb = e & 1
        slot = e % NWS
        wa, so = (vWA, slot * 16384) if slot < 4 else (vWA2, (slot - 4) * 16384)
        fill = []
        if not opt.x_q_nods:
            for nb in range(4):
                for jj in range(2):
                    fill.append("ds_read_b64_tr_b16 %s, v%d offset:%d" % (vr(vA1[pb] + nb * 4 + jj * 2, 2), wa[nb], so + jj * 2048))
                if nb == 0:
                    for qb in range(3):
                        fill.append("ds_read_b128 %s, v%d offset:%d" % (vr(vB1[pb] + qb * 4, 4), vXTT[e & 1], qb * 16384))
        if e < 15:
            fill += x_addr(e + 1)
        interleave(a, q_mfma_list(pb ^ 1), fill)
        a("s_waitcnt lgkmcnt(0)")
    bar("CI", "Q16")
    stamp(a, 13)
    for m in q_mfma_list(1):
        a(m)
    a("s_nop 7")
    scale = math.log2(math.e) / math.sqrt(128.0)
    a("s_mov_b32 s%d, 0x%08x" % (sT0, f32bits(scale)))
    for nb in range(4):
        a("v_xor_b32 v%d, %d, v%d" % (vT[0], nb * 32, vQW))
        for qb in range(3):
            acc = vACC1 + (nb * 3 + qb) * 4
            for r in range(4):
                a("v_mul_f32 v%d, s%d, v%d" % (acc + r, sT0, acc + r))
            a("v_cvt_pk_bf16_f32 v%d, v%d, v%d" % (acc, acc, acc + 1))
            a("v_cvt_pk_bf16_f32 v%d, v%d, v%d" % (acc + 1, acc + 2, acc + 3))
            a("ds_write_b64 v%d, %s offset:%d" % (vT[0], vr(acc, 2), qb * 4096))
    a("s_waitcnt lgkmcnt(0)")
    bar("CI", "Q17")
    stamp(a, 2)
    a("s_cmp_eq_u32 s%d, 3" % sW)
    a("s_cbranch_scc1 L_IDLE3")

    if opt.prio:
        a("s_setprio %d" % opt.prio)
    a("s_lshl_b32 s%d, s%d, 13" % (sT0, sW))
    a("s_add_u32 s%d, s%d, %d" % (sT0, sT0, M_BASE))
    for ks in range(8):
        a("v_add_u32 v%d, s%d, v%d" % (vT[ks], sT0, vKA[ks]))
    dq = Queue(1000)
    for ks in range(8):
        a("ds_read_b128 %s, v%d" % (vr(vQ + ks * 4, 4), vT[ks]))
        dq.issue("Q")
    L, WS = opt.L, opt.waitstep

    def frag_ops(p):
        return 1 if (p & 15) < 8 else 2

    def frag_read(t, p):
        if p >= 16:
            t, p = t + 1, p - 16
        fb = vF + (p & 7) * 4
        if p < 8:
            if not opt.x_nods:
                a("ds_read_b128 %s, v%d offset:%d" % (vr(fb, 4), vKA[p], KPOS[(t + 1) & 7] * 8192))
            dq.issue("F%d" % (p & 7), 1)
        else:
            u, db = (p - 8) >> 2, (p - 8) & 3
            for jj in range(2):
                if not opt.x_nods:
                    a("ds_read_b64_tr_b16 %s, v%d offset:%d" % (vr(fb + jj * 2, 2), vVA[db], ((t - 1) & 7) * 8192 + (16 * u + 8 * jj) * 256))
            dq.issue("F%d" % (p & 7), 2)

    def wait_frags(p):
        if p % WS:
            return
        n = dq.need({"F%d" % ((p + i) & 7) for i in range(WS)})
        if n is not None and not opt.x_nods:
            assert n <= 15
            a("s_waitcnt lgkmcnt(%d)" % n)

    def sm_ops(t):
        S, P = vS[t & 1], vP[t & 1]
        ops = []
        for k in range(8):
            e0, e1 = vE + (k & 1) * 2, vE + (k & 1) * 2 + 1
            ops.append(("v_exp_f32 v%d, v%d" % (e0, S + 2 * k), 8))
            ops.append(("v_exp_f32 v%d, v%d" % (e1, S + 2 * k + 1), 8))
            cvt = ("v_cvt_pk_bf16_f32 v%d, v%d, v%d" % (P + k, e0, e1), 4)
            if opt.sumop == "add":
                if k == 0:
                    ops.append(("v_mov_b32 v%d, v%d" % (vPSA, e0), 4))
                    ops.append(("v_mov_b32 v%d, v%d" % (vPSB, e1), 4))
                else:
                    ops.append(("v_add_f32 v%d, v%d, v%d" % (vPSA, vPSA, e0), 4))
                    ops.append(("v_add_f32 v%d, v%d, v%d" % (vPSB, vPSB, e1), 4))
                ops.append(cvt)
            elif opt.sumop == "pk":
                if k == 0:
                    ops.append(("v_mov_b32 v%d, v%d" % (vPSA, e0), 4))
                    ops.append(("v_mov_b32 v%d, v%d" % (vPSB, e1), 4))
                    ops.append(cvt)
                else:
                    ops.append(("s_nop 0", 4))
                    ops.append(("v_pk_add_f32 v[%d:%d], v[%d:%d], v[%d:%d]" % (vPSA, vPSB, vPSA, vPSB, e0, e1), 4))
                    ops.append(cvt)
            elif opt.sumop == "dot":
                if k == 0:
                    ops.append(("s_nop 0", 4))
                elif k == 1:
                    ops.append(("v_dot2_f32_bf16 v%d, v%d, v%d, 0" % (vPSA, P, vONE), 4))
                else:
                    ops.append(("v_dot2_f32_bf16 v%d, v%d, v%d, v%d" % (vPSA, P + k - 1, vONE, vPSA), 4))
                ops.append(cvt)
        if opt.sumop != "dot":
            ops.append(("v_add_f32 v%d, v%d, v%d" % (vPSA, vPSA, vPSB), 4))
        else:
            ops.append(("v_dot2_f32_bf16 v%d, v%d, v%d, v%d" % (vPSA, P + 7, vONE, vPSA), 4))
            ops.append(("s_nop 2", 4))
        ops.append(("v_cmp_nge_f32 vcc, s%d, v%d" % (sTHR, vPSA), 4))
        return ops

    def sm_schedule(ops, base):
        room = [max(opt.slotcap - base[p], 4) for p in range(15)]
        total = sum(c for _, c in ops)
        scale_ = total / float(sum(room))
        slots = [[] for _ in range(16)]
        i, cum_room, cum = 0, 0.0, 0
        for p in range(15):
            cum_room += room[p] * scale_
            while i < len(ops) and (cum + ops[i][1] / 2.0 <= cum_room or p == 14):
                slots[p].append(ops[i][0])
                cum += ops[i][1]
                i += 1
        return slots

    rare = []

    def period(t, tag, do_qk, do_sm, do_pv, c_zero=False, has_bar=True, next_qk=True):
        Sn, Pp = vS[(t + 1) & 1], vP[(t - 1) & 1]
        def want(pn):
            return (pn < 8 and do_qk) or (8 <= pn < 16 and do_pv) or (pn >= 16 and next_qk)
        base = []
        for p in range(16):
            c = 8 + (opt.dscost * frag_ops(p + L) if want(p + L) else 0) + (4 if p % WS == 0 else 0) + (4 if p == 16 - L else 0)
            base.append(c)
        sm = sm_schedule(sm_ops(t), base) if do_sm and not opt.x_nosm else [[] for _ in range(16)]
        for p in range(16):
            mf = None
            if p < 8 and do_qk:
                c = "0" if (p == 0 and c_zero) else (vr(vNM, 16) if p == 0 else vr(Sn, 16))
                mf = "v_mfma_f32_32x32x16_bf16 %s, %s, %s, %s" % (vr(Sn, 16), vr(vF + (p & 7) * 4, 4), vr(vQ + p * 4, 4), c)
            if p >= 8 and do_pv:
                u, db = (p - 8) >> 2, (p - 8) & 3
                mf = "v_mfma_f32_32x32x16_bf16 %s, %s, %s, %s" % (vr(vO + db * 16, 16), vr(vF + (p & 7) * 4, 4), vr(Pp + u * 4, 4), vr(vO + db * 16, 16))
            if p == 16 - L and has_bar:
                bar("C", "A%s" % tag, opt.x_nobar)
            if mf:
                wait_frags(p)
                if not opt.x_nomfma:
                    a(mf)
            if want(p + L):
                frag_read(t, p + L)
            for ins in sm[p]:
                a(ins)
        if do_sm:
            lab = "L_RARE_%s" % tag
            if not opt.x_norare and not opt.x_nosm:
                a("s_cbranch_vccnz %s" % lab)
                rare.append((lab, t, do_qk))
                a.label(lab + "_BACK")
            a("v_add_f32 v%d, v%d, v%d" % (vLACC, vLACC, vPSA))

    def row_max(S, dst):
        a("v_max3_f32 v%d, v%d, v%d, v%d" % (dst, S, S + 1, S + 2))
        for r in range(3, 15, 2):
            a("v_max3_f32 v%d, v%d, v%d, v%d" % (dst, dst, S + r, S + r + 1))
        a("v_max_f32 v%d, v%d, v%d" % (dst, dst, S + 15))
        a("v_mov_b32 v%d, v%d" % (vTMP, dst))
        a("s_nop 1")
        a("v_permlane32_swap_b32 v%d, v%d" % (dst, vTMP))
        a("s_nop 1")
        a("v_max_f32 v%d, v%d, v%d" % (dst, dst, vTMP))

    def emit_rare(lab, t, fix_next):
        S, Sn, P = vS[t & 1], vS[(t + 1) & 1], vP[t & 1]
        d, f = vE + 4, vE + 5
        a.label(lab)
        a("s_nop 15")
        row_max(S, d)
        a("v_max_f32 v%d, 0, v%d" % (d, d))
        a("v_exp_f32 v%d, -v%d" % (f, d))
        for r in range(16):
            a("v_sub_f32 v%d, v%d, v%d" % (vNM + r, vNM + r, d))
        for r in range(16):
            a("v_sub_f32 v%d, v%d, v%d" % (S + r, S + r, d))
        if fix_next:
            for r in range(16):
                a("v_sub_f32 v%d, v%d, v%d" % (Sn + r, Sn + r, d))
        for r in range(64):
            a("v_mul_f32 v%d, v%d, v%d" % (vO + r, vO + r, f))
        a("v_mul_f32 v%d, v%d, v%d" % (vLACC, vLACC, f))
        a("v_mov_b32 v%d, 0" % vPSA)
        for k in range(8):
            a("v_exp_f32 v%d, v%d" % (vE, S + 2 * k))
            a("v_exp_f32 v%d, v%d" % (vE + 1, S + 2 * k + 1))
            a("v_add_f32 v%d, v%d, v%d" % (vPSA, vPSA, vE))
            a("v_add_f32 v%d, v%d, v%d" % (vPSA, vPSA, vE + 1))
            a("v_cvt_pk_bf16_f32 v%d, v%d, v%d" % (P + k, vE, vE + 1))
        a("s_nop 1")
        a("s_branch %s_BACK" % lab)

    for p in range(L):
        frag_read(-1, p)
    for r in range(64):
        a("v_mov_b32 v%d, 0" % (vO + r))
    a("v_mov_b32 v%d, 0" % vLACC)
    a("s_waitcnt lgkmcnt(%d)" % dq.need({"Q"}))
    if opt.dump == "q":
        dump_regs(a, vQ, 32)
    period(-1, "m1", True, False, False, c_zero=True)
    a("s_nop 15")
    row_max(vS[0], vE + 4)
    for r in range(16):
        a("v_sub_f32 v%d, 0, v%d" % (vNM + r, vE + 4))
    for r in range(16):
        a("v_sub_f32 v%d, v%d, v%d" % (vS[0] + r, vS[0] + r, vE + 4))
    a("s_nop 1")
    period(0, "0", True, True, False)
    q_entry = list(dq.q)
    a("s_mov_b32 s%d, 0" % sPASS)
    a(".p2align 3")
    a.label("L_ATT_LOOP")
    n0 = len(bars["C"])
    for t in range(1, 9):
        period(t, "L%d" % t, True, True, True)
        if t == 6:
            q_exit = list(dq.q)
            a("s_cmp_eq_u32 s%d, 3" % sPASS)
            a("s_cbranch_scc1 L_ATT_EXIT")
    assert dq.q == q_entry, (dq.q, q_entry)
    a("s_add_u32 s%d, s%d, 1" % (sPASS, sPASS))
    a("s_branch L_ATT_LOOP")
    del bars["C"][n0:]
    bars["C"] += ["A%d" % t for t in range(1, 31)]
    a.label("L_ATT_EXIT")
    dq.q = list(q_exit)
    period(31, "31", False, True, True, next_qk=False)
    period(32, "32", False, False, True, has_bar=False, next_qk=False)
    stamp(a, 3)
    a("v_mov_b32 v%d, v%d" % (vTMP, vLACC))
    a("s_nop 1")
    a("v_permlane32_swap_b32 v%d, v%d" % (vLACC, vTMP))
    a("s_nop 1")
    a("v_add_f32 v%d, v%d, v%d" % (vLACC, vLACC, vTMP))
    a("v_rcp_f32 v%d, v%d" % (vLACC, vLACC))
    a("s_nop 7")
    for db in range(4):
        for rr in range(4):
            b = vO + db * 16 + rr * 4
            for e in range(4):
                a("v_mul_f32 v%d, v%d, v%d" % (b + e, b + e, vLACC))
            a("v_cvt_pk_bf16_f32 v%d, v%d, v%d" % (b, b, b + 1))
            a("v_cvt_pk_bf16_f32 v%d, v%d, v%d" % (b + 1, b + 2, b + 3))
            a("v_xor_b32 v%d, %d, v%d" % (vT[rr], (4 * db + rr) * 16, vOW))
            a("ds_write_b64 v%d, %s" % (vT[rr], vr(b, 2)))
    if opt.prio:
        a("s_setprio 0")
    a("s_waitcnt lgkmcnt(0)")
    a("s_branch L_E0")

    a.label("L_IDLE3")
    if not opt.x_nobar:
        a("s_mov_b32 s%d, 33" % sPASS)
        a.label("L_IDLE3_LOOP")
        a("s_barrier")
        a("s_sub_u32 s%d, s%d, 1" % (sPASS, sPASS))
        a("s_cmp_lg_u32 s%d, 0" % sPASS)
        a("s_cbranch_scc1 L_IDLE3_LOOP")
    bars["I"] += ["Am1"] + ["A%d" % t for t in range(0, 32)]

    a.label("L_E0")
    bar("CI", "E0")
    stamp(a, 4)

    def a3_list(p):
        out = ["v_add_u32 v%d, 0x%x, v%d" % (vWOT[0], RWO[p & 3], vWOA),
               "v_xor_b32 v%d, 32, v%d" % (vWOT[1], vWOT[0])]
        for ks in range(4 if not opt.x_o_nods else 0):
            for nb in range(2):
                for jj in range(2):
                    out.append("ds_read_b64_tr_b16 %s, v%d offset:%d" % (vr(vA3[p & 1] + (ks * 2 + nb) * 4 + jj * 2, 2), vWOT[nb], ks * 8192 + jj * 1024))
        return out
    def mf3_list(p):
        if opt.x_o_nomfma:
            return []
        out = []
        kh = p & 1
        for ks in range(4):
            for nb in range(2):
                for qb in range(3):
                    acc = vACC3[(p >> 1) & 1] + (qb * 2 + nb) * 4
                    c = "0" if (ks == 0 and kh == 0) else vr(acc, 4)
                    out.append("v_mfma_f32_16x16x32_bf16 %s, %s, %s, %s" % (vr(acc, 4), vr(vA3[p & 1] + (ks * 2 + nb) * 4, 4), vr(vB3 + ((kh * 4 + ks) * 3 + qb) * 4, 4), c))
        return out
    def st3_list(c):
        if opt.x_o_nost:
            return []
        out = ["s_add_u32 s%d, s%d, %d" % (sT0, sB, c),
               "s_and_b32 s%d, s%d, 3" % (sT0, sT0),
               "s_mul_i32 s%d, s%d, %d" % (sT0, sT0, 4 * 16 * 3072),
               "s_add_u32 s%d, s%d, s%d" % (sT0, sT0, sPOFF)]
        for qb in range(3):
            acc = vACC3[c & 1] + qb * 8
            for d in range(4):
                out.append("v_cvt_pk_bf16_f32 v%d, v%d, v%d" % (acc + d, acc + 2 * d, acc + 2 * d + 1))
            out.append("buffer_store_dwordx4 %s, v%d, s[%d:%d], s%d offen offset:%d %s" % (vr(acc, 4), vST, SRD_WS, SRD_WS + 3, sT0, qb * 1024, part_aux))
        return out
    for ins in a3_list(0):
        a(ins)
    for ks in range(8):
        for qb in range(3):
            a("ds_read_b128 %s, v%d offset:%d" % (vr(vB3 + (ks * 3 + qb) * 4, 4), vOR[ks & 3], (48 * (ks >> 2) + 16 * qb) * 256))
    a("s_waitcnt lgkmcnt(0)")
    if opt.dump == "o":
        dump_regs(a, vB3, 96)
    for p in range(1, 8):
        bar("CI", "P%d" % p)
        if p in (1, 4, 7):
            stamp(a, 14 + p // 3)
        fill = a3_list(p)
        if p >= 4 and p % 2 == 0 or p == 3 and False:
            pass
        if p >= 3 and p % 2 == 1:
            fill += st3_list((p - 3) // 2)
        interleave(a, mf3_list(p - 1), fill)
        a("s_waitcnt lgkmcnt(0)")
    interleave(a, mf3_list(7), [])
    a("s_nop 7")
    for ins in st3_list(3):
        a(ins)
    stamp(a, 5)
    a("s_waitcnt vmcnt(0)")
    stamp(a, 6)
    if opt.fused_tail:
        bar("CI", "F0")
        a("s_branch L_REDUCE")
    else:
        a("s_branch L_END")

    a.label("L_LOADER")
    qL = Queue(63)
    t1, t2, t3, t4 = vT[0:4]
    a("s_sub_u32 s%d, s%d, 4" % (sJ, sW))
    a("s_lshl_b32 s%d, s%d, 9" % (sT0, sHP))
    srd(a, SRD_WQ, P_WQ, 4194304 - 15 * 512, sT0)
    a("s_lshl_b32 s%d, s%d, 16" % (sJ64K, sJ))
    a("v_lshrrev_b32 v%d, 5, v%d" % (t1, vL))
    a("v_and_b32 v%d, 31, v%d" % (t2, vL))
    a("v_lshlrev_b32 v%d, 1, v%d" % (t3, t1))
    a("v_xor_b32 v%d, v%d, v%d" % (t2, t2, t3))
    a("v_lshlrev_b32 v%d, 4, v%d" % (t2, t2))
    a("s_and_b32 s%d, s%d, 1" % (sT1, sJ))
    a("s_lshl_b32 s%d, s%d, 7" % (sT1, sT1))
    a("v_xor_b32 v%d, s%d, v%d" % (t2, sT1, t2))
    a("v_lshl_add_u32 v%d, v%d, 13, v%d" % (t2, t1, t2))
    for aa in range(4):
        c = 2 * aa * 8192 - aa * 1024
        if aa & 1:
            a("v_xor_b32 v%d, 64, v%d" % (vLW[aa], t2))
            a("v_add_u32 v%d, 0x%x, v%d" % (vLW[aa], c, vLW[aa]))
        else:
            a("v_add_u32 v%d, 0x%x, v%d" % (vLW[aa], c, t2))
    a("s_lshl_b32 s%d, s%d, 1" % (sKS, sB))
    a("s_lshl_b32 s%d, s%d, 12" % (sT5, sJ))

    def dma_w(e):
        a("s_add_u32 s%d, s%d, %d" % (sT0, sKS, e))
        a("s_and_b32 s%d, s%d, 15" % (sT0, sT0))
        a("s_lshl_b32 s%d, s%d, 18" % (sT0, sT0))
        a("s_add_u32 m0, s%d, 0x%x" % (sT5, (e % NWS) * 16384))
        a("s_add_u32 s%d, s%d, s%d" % (sT0, sT0, sJ64K))
        if opt.x_q_nodma:
            return
        for aa in range(4):
            a("buffer_load_dwordx4 v%d, s[%d:%d], s%d offen offset:%d %s lds" % (vLW[aa], SRD_WQ, SRD_WQ + 3, sT0, aa * 1024, opt.w_aux))
        qL.issue("W%d" % e, 4)
    for e in range(NWS):
        dma_w(e)
    a("s_lshl_b32 s%d, s%d, 3" % (sT0, sB))
    a("s_add_u32 s%d, s%d, s%d" % (sT0, sT0, sKVH))
    a("s_lshl_b32 s%d, s%d, 18" % (sT0, sT0))
    srd(a, SRD_K, P_K, 262144, sT0)
    srd(a, SRD_V, P_V, 262144, sT0)
    a("s_lshl_b32 s%d, s%d, 18" % (sT0, sHP))
    srd(a, SRD_WO, P_WO, 262144, sT0)
    a("s_lshl_b32 s%d, s%d, 11" % (sJ2K, sJ))
    a("v_lshrrev_b32 v%d, 4, v%d" % (t1, vL))
    a("v_and_b32 v%d, 15, v%d" % (t2, vL))
    a("v_xor_b32 v%d, v%d, v%d" % (t3, t2, t1))
    a("s_and_b32 s%d, s%d, 1" % (sT1, sJ))
    a("s_lshl_b32 s%d, s%d, 3" % (sT1, sT1))
    a("v_xor_b32 v%d, s%d, v%d" % (t3, sT1, t3))
    a("v_lshlrev_b32 v%d, 4, v%d" % (t3, t3))
    a("v_lshl_add_u32 v%d, v%d, 8, v%d" % (vLK[0], t1, t3))
    a("v_xor_b32 v%d, 64, v%d" % (vLK[1], vLK[0]))
    a("v_lshlrev_b32 v%d, 2, v%d" % (t3, t1))
    a("v_xor_b32 v%d, v%d, v%d" % (t3, t2, t3))
    a("v_lshlrev_b32 v%d, 4, v%d" % (t3, t3))
    a("v_lshl_add_u32 v%d, v%d, 8, v%d" % (vLV, t1, t3))
    a("v_lshrrev_b32 v%d, 4, v%d" % (t1, vL))
    a("v_and_b32 v%d, 15, v%d" % (t2, vL))
    a("v_lshlrev_b32 v%d, 1, v%d" % (t3, t1))
    a("v_xor_b32 v%d, v%d, v%d" % (t2, t2, t3))
    a("v_lshlrev_b32 v%d, 4, v%d" % (t2, t2))
    a("v_lshl_add_u32 v%d, v%d, 10, v%d" % (t2, t1, t2))
    for aa in range(4):
        if aa >> 1:
            a("v_xor_b32 v%d, 128, v%d" % (vLWO[aa], t2))
            a("v_add_u32 v%d, %d, v%d" % (vLWO[aa], 3072 * aa, vLWO[aa]))
        else:
            a("v_add_u32 v%d, %d, v%d" % (vLWO[aa], 3072 * aa, t2))

    def dma_tile(kind, t):
        base = K_BASE + KPOS[t & 7] * 8192 if kind == "K" else V_BASE + (t & 7) * 8192
        s_, v_ = (SRD_K, vLK) if kind == "K" else (SRD_V, [vLV, vLV])
        a("s_add_u32 m0, s%d, 0x%x" % (sJ2K, base))
        a("s_add_u32 s%d, s%d, 0x%x" % (sOFF, sJ2K, t * 8192))
        for aa in range(2):
            a("buffer_load_dwordx4 v%d, s[%d:%d], s%d offen offset:%d %s lds" % (v_[aa], s_, s_ + 3, sOFF, aa * 1024, opt.kv_aux))
        qL.issue("%s%d" % (kind, t), 2)
    def dma_wo(p):
        if opt.x_o_nodma:
            return
        a("s_add_u32 s%d, s%d, %d" % (sT0, sB, p >> 1))
        a("s_and_b32 s%d, s%d, 3" % (sT0, sT0))
        a("s_lshl_b32 s%d, s%d, 8" % (sT0, sT0))
        a("s_lshl_b32 s%d, s%d, 3" % (sT1, sT5))
        a("s_add_u32 s%d, s%d, s%d" % (sT0, sT0, sT1))
        if p & 1:
            a("s_add_u32 s%d, s%d, 0x20000" % (sT0, sT0))
        a("s_lshl_b32 s%d, s%d, 1" % (sT1, sT5))
        for hf in range(2):
            a("s_add_u32 m0, s%d, 0x%x" % (sT1, RWO[p & 3] + hf * 4096))
            if hf:
                a("s_add_u32 s%d, s%d, 16384" % (sT0, sT0))
            else:
                a("s_nop 0")
            for aa in range(4):
                a("buffer_load_dwordx4 v%d, s[%d:%d], s%d offen offset:%d %s lds" % (vLWO[aa], SRD_WO, SRD_WO + 3, sT0, aa * 1024, opt.w_aux))
        qL.issue("WO%d" % p, 8)
    def lwait(tags):
        n = qL.need(set(tags))
        if n is not None:
            a("s_waitcnt vmcnt(%d)" % n)
    if opt.fill == 0:
        fill = {10: [("K", 0), ("K", 1)], 11: [("K", 2), ("K", 3)], 12: [("V", 0), ("V", 1)], 13: [("V", 2), ("V", 3)],
                14: [("V", 4), ("V", 5)], 15: [("K", 4), ("K", 5)], 16: [("K", 6), ("K", 7)]}
        nk, nv = 8, 6
    elif opt.fill == 1:
        fill = {10: [("K", 0)], 11: [("K", 1)], 12: [("V", 0)], 13: [("K", 2)], 14: [("V", 1)], 15: [("K", 3)], 16: [("V", 2)]}
        nk, nv = 4, 3
    elif opt.fill == 2:
        fill = {10: [("K", 0)], 12: [("K", 1)], 14: [("V", 0)], 16: [("K", 2)]}
        nk, nv = 3, 1
    for e in range(17):
        if e < 16:
            lwait(["W%d" % e])
        if opt.lstamps and e >= 10:
            stamp(a, 17 + e - 10)
        bar("L", "Q%d" % e)
        if e >= 1 and e + NWS - 1 <= 15:
            dma_w(e + NWS - 1)
        for kind, t in fill.get(e, []):
            dma_tile(kind, t)
        if opt.lstamps and e >= 10:
            stamp(a, 24 + e - 10)
    lwait(["K0"])
    bar("L", "Q17")
    stamp(a, 2)
    for _ in range(2):
        if nk < 8 and opt.fill:
            dma_tile("K", nk); nk += 1
        if nv < 6 and opt.fill:
            dma_tile("V", nv); nv += 1
    for t in range(-1, 32):
        lwait(["K%d" % (t + 2), "V%d" % t])
        bar("L", "A%s" % ("m1" if t < 0 else str(t)), opt.x_nobar)
        for _ in range(2):
            if nk <= 31 and nk <= t + opt.klead:
                dma_tile("K", nk); nk += 1
            if nv <= 31 and nv <= max(t + opt.vlead, 5):
                dma_tile("V", nv); nv += 1
        if t == 26:
            dma_wo(0)
        if t == 29:
            dma_wo(1)
        if t == 30:
            dma_wo(2)
    assert nk == 32 and nv == 32
    lwait(["WO0"])
    bar("L", "E0")
    stamp(a, 4)
    dma_wo(3)
    for p in range(1, 8):
        lwait(["WO%d" % p])
        bar("L", "P%d" % p)
        if p + 3 <= 7:
            dma_wo(p + 3)
    stamp(a, 6)
    if opt.fused_tail:
        srd(a, SRD_DBG, P_DBG, 256)
        a("s_lshl_b32 s%d, s%d, 4" % (sT0, sGRP))
        a("v_mov_b32 v2, s%d" % sT0)
        a("v_mov_b32 v3, 1")
        bar("L", "F0")
        a("s_cmp_lg_u32 s%d, 4" % sW)
        a("s_cbranch_scc1 L_REDUCE")
        a("s_mov_b64 s[%d:%d], exec" % (sT2, sT3))
        a("s_mov_b64 exec, 1")
        a("buffer_atomic_add v3, v2, s[%d:%d], 0 offen sc1" % (SRD_DBG, SRD_DBG + 3))
        a("s_mov_b32 s%d, 0" % sT4)
        a.label("L_POLL")
        a("buffer_load_dword v4, v2, s[%d:%d], 0 offen sc1" % (SRD_DBG, SRD_DBG + 3))
        a("s_add_u32 s%d, s%d, 1" % (sT4, sT4))
        a("s_waitcnt vmcnt(0)")
        a("v_readfirstlane_b32 s%d, v4" % sT1)
        a("s_cmp_ge_u32 s%d, 0x%x" % (sT4, opt.spin_limit))
        a("s_cbranch_scc1 L_POLL_DONE")
        a("s_cmp_lt_u32 s%d, 16" % sT1)
        a("s_cbranch_scc1 L_POLL")
        a.label("L_POLL_DONE")
        a("s_mov_b64 exec, s[%d:%d]" % (sT2, sT3))
        a.label("L_REDUCE")
        a("s_barrier")
        stamp(a, 7)
        a("s_cmp_ge_u32 s%d, 6" % sW)
        a("s_cbranch_scc1 L_RED_IDLE")
        srd(a, SRD_WS, P_WS, WS_PART_BYTES)
        srd(a, SRD_OUT, P_OUT, 8 * 48 * 1024 * 2)
        a("s_lshl_b32 s%d, s%d, 4" % (sKS, sGRP))
        a("s_add_u32 s%d, s%d, s%d" % (sKS, sKS, sHP))
        a("s_mul_i32 s%d, s%d, %d" % (sKS, sKS, 16 * 3072))
        reduce_body(a, sW, sKS, SRD_WS, SRD_OUT, sGRP, sHP, "sc1", 0)
        stamp(a, 8)
        if opt.x_stretch:
            a("s_cmp_lg_u32 s%d, 0" % sW)
            a("s_cbranch_scc1 L_END")
            a("s_mul_i32 s%d, s%d, %d" % (sDBG, sDBG, opt.x_stretch))
            a.label("L_STRETCH")
            a("s_memrealtime s[%d:%d]" % (sSTAMP, sSTAMP + 1))
            a("s_waitcnt lgkmcnt(0)")
            a("s_sub_u32 s%d, s%d, s100" % (sSTAMP, sSTAMP))
            a("s_cmp_lt_u32 s%d, s%d" % (sSTAMP, sDBG))
            a("s_cbranch_scc1 L_STRETCH")
        a("s_branch L_END")
        a.label("L_RED_IDLE")
        a("s_barrier")

    a.label("L_END")
    a("s_endpgm")
    for lab, t, fix in rare:
        emit_rare(lab, t, fix)

    assert bars["C"] == bars["I"] == bars["L"], "barrier sequences differ:\n%s\n%s\n%s" % (bars["C"], bars["I"], bars["L"])


def gen_reduce(a):
    name = "attn_reduce_kernel"
    a(".p2align 8")
    a(".globl %s" % name)
    a(".type %s,@function" % name)
    a.label(name)
    a("s_cmp_ge_u32 s2, 256")
    a("s_cbranch_scc1 R_END")
    a("s_load_dwordx2 s[4:5], s[0:1], 80")
    a("s_load_dwordx2 s[6:7], s[0:1], 96")
    a("v_lshrrev_b32 v1, 6, v0")
    a("v_and_b32 v0, 63, v0")
    a("v_readfirstlane_b32 s3, v1")
    a("s_mul_i32 s16, s2, %d" % (16 * 3072))
    a("s_lshr_b32 s18, s2, 4")
    a("s_and_b32 s19, s2, 15")
    a("s_waitcnt lgkmcnt(0)")
    srd(a, 8, 6, WS_PART_BYTES)
    srd(a, 12, 4, 8 * 48 * 1024 * 2)
    reduce_body(a, 3, 16, 8, 12, 18, 19, "", 0)
    a.label("R_END")
    a("s_endpgm")
    return name


VOP3_ONLY = ("v_mfma", "v_cvt_pk_bf16_f32", "v_max3", "v_lshl_add_u32", "v_bfe_u32", "v_dot2_f32_bf16", "v_pk_", "v_mul_lo", "v_add3",
             "v_writelane", "v_readlane", "v_and_or", "v_perm_b32", "v_lshl_or")
MEM = ("ds_", "buffer_", "global_", "s_load", "s_memtime", "s_memrealtime")
INLINE_F = ("0.5", "-0.5", "1.0", "-1.0", "2.0", "-2.0", "4.0", "-4.0")


def has_literal(ops):
    for o in ops:
        o = o.strip()
        if re.fullmatch(r"[A-Z][A-Z_]+", o):
            return True
        if re.fullmatch(r"-?(0x[0-9a-fA-F]+|\d+)", o):
            v = int(o, 0)
            if not -16 <= v <= 64:
                return True
    return False


def ins_size(ln):
    op, _, rest = ln.partition(" ")
    ops = rest.split(",")
    if op.startswith(MEM):
        return 8
    if op.startswith(("s_waitcnt", "s_barrier", "s_nop", "s_branch", "s_cbranch", "s_setprio", "s_endpgm", "s_sleep")):
        return 4
    if op.startswith("v_"):
        if op.startswith(VOP3_ONLY) or op.endswith("_e64") or re.search(r"[ ,]-v\d|abs\(", " " + rest):
            return 8
        return 8 if has_literal(ops) else 4
    return 8 if has_literal(ops) else 4


def widenable(ln):
    op, _, rest = ln.partition(" ")
    return op.startswith("v_") and ins_size(ln) == 4 and not op.startswith(("v_readfirstlane", "v_permlane", "v_nop")) and not op.endswith("_e32")


def align_pass(lines):
    out = list(lines)
    off, run = 0, []
    fixed = missed = 0
    for i, ln in enumerate(out):
        t = ln.strip()
        if not t or t[0] == ";":
            continue
        if t.endswith(":"):
            continue
        if t.startswith(".p2align"):
            n = 1 << int(t.split()[1].rstrip(","))
            off = (off + n - 1) // n * n
            run = []
            continue
        if t[0] == ".":
            continue
        sz = ins_size(t)
        if sz == 8:
            if off % 8 == 4:
                cand = [j for j in run if widenable(out[j].strip())]
                if cand:
                    j = cand[-1]
                    op, _, rest = out[j].strip().partition(" ")
                    out[j] = "    %s_e64 %s" % (op, rest)
                    off += 4
                    fixed += 1
                else:
                    missed += 1
            run = []
        else:
            run.append(i)
        off += sz
    return out, fixed, missed


def kd(name, vgpr, sgpr):
    acc = (vgpr + 3) // 4 * 4
    return """.p2align 6
.amdhsa_kernel %s
  .amdhsa_next_free_vgpr %d
  .amdhsa_next_free_sgpr %d
  .amdhsa_accum_offset %d
  .amdhsa_group_segment_fixed_size 0
  .amdhsa_kernarg_size 104
  .amdhsa_user_sgpr_count 2
  .amdhsa_user_sgpr_kernarg_segment_ptr 1
  .amdhsa_system_sgpr_workgroup_id_x 1
.end_amdhsa_kernel
""" % (name, vgpr, sgpr, acc)


def build():
    hdr = open("cdna_kernels/%s.s.ref" % NAME).read().split("\n")
    head = [ln for ln in hdr if ln.startswith(";") and "@launch" not in ln][:14]
    a = Prog()
    main = "attn_main_kernel" if multi() else NAME + "_kernel"
    if multi():
        head.append("; @launch kernel=attn_main_kernel grid=(256,1,1) block=(512,1,1) lds=%d" % LDS_BYTES)
        head.append("; @launch kernel=attn_reduce_kernel grid=(256,1,1) block=(384,1,1) lds=6144")
    else:
        head.append("; @launch grid=(256,1,1) block=(512,1,1) lds=%d" % LDS_BYTES)
    a('.amdgcn_target "amdgcn-amd-amdhsa--gfx950"')
    a(".text")
    a(".globl %s" % main)
    a(".p2align 8")
    a(".type %s,@function" % main)
    gen_main(a, main)
    kds = kd(main, NVGPR, NSGPR)
    if multi():
        kds += kd(gen_reduce(a), 48, 40)
    body = a.text()
    if opt.align:
        lines, fixed, missed = align_pass(body.split("\n"))
        body = "\n".join(lines)
        print("alignment pass: widened %d, unfixable %d" % (fixed, missed))
    return "\n".join(head) + "\n" + body + '.section .rodata,"a"\n' + kds


if __name__ == "__main__":
    out = sys.argv[1] if len(sys.argv) > 1 else "cdna_kernels/%s.s" % NAME
    for kv in sys.argv[2:]:
        k, v = kv.split("=", 1)
        cur = getattr(opt, k)
        if isinstance(cur, bool):
            v = v in ("1", "True", "true")
        elif isinstance(cur, int):
            v = int(v)
        elif v == "None":
            v = None
        setattr(opt, k, v)
    s = build()
    open(out, "w").write(s)
    print("wrote", out, len(s), "bytes,", s.count("\n"), "lines")
```

```python
import sys, math, struct, re

NAME = "concat_heads__gqa_block_cached__gqa_block_cached__near_ridge"


class Opt:
    fused_tail = False
    kv_aux = "nt"
    w_aux = ""
    dump = None
    L = 6
    waitstep = 4
    thr_log2 = 12
    stamps = False
    sumop = "add"
    prio = 0
    klead = 9
    vlead = 6
    spin_limit = 1 << 20
    tlbwarm = False
    lstamps = False
    x_stretch = 0
    x_mark = 'end'
    codepf = False
    codepf_n = 3
    dscost = 4
    slotcap = 32
    fill = 0
    align = True
    x_nobar = False
    x_nosm = False
    x_nods = False
    x_norare = False
    x_nomfma = False
    x_q_nomfma = False
    x_q_nods = False
    x_q_nodma = False
    x_o_nodma = False
    x_o_nomfma = False
    x_o_nost = False
    x_o_nods = False


opt = Opt()

KB = 1024
K_BASE = 0
V_BASE = 64 * KB
M_BASE = 128 * KB
X_BASE = 112 * KB
NWS = 7
LDS_BYTES = 160 * KB
KPOS = [4, 5, 6, 7, 0, 1, 2, 3]
RWO = [32 * KB, 64 * KB, 0, 96 * KB]

WS_PART_BYTES = 16 * 16 * 16 * 3072
WS_DUMP = 16 << 20
WS_STAMP = 48 << 20
WS_BYTES = 268435456

sW = 3
sB, sHP, sBR, sKVH = 4, 5, 6, 7
SRD_X, SRD_WQ, SRD_K, SRD_V, SRD_WO, SRD_WS = 8, 12, 16, 20, 24, 28
sT0, sT1, sT2, sT3, sT4, sT5 = 32, 33, 34, 35, 36, 37
sGRP = 38
sOFF = 39
sPASS = 40
sTHR = 41
sKS = 42
sPOFF = 43
sSTAMP = 44
sDBG = 46
SRD_OUT = 48
SRD_ST = 52
P_X, P_K, P_V, P_WQ = 56, 58, 60, 62
KA = 64
P_OUT, P_DBG, P_WS = KA + 20, KA + 22, KA + 24
P_WO = 90
sSTOFF = 92
sJ, sJ64K, sJ2K = 93, 94, 95
SRD_DBG = 96
NSGPR = 102

vL = 0
vT = [1, 2, 3, 4, 5, 6, 7, 8, 9]
vKA = list(range(10, 18))
vVA = list(range(18, 22))
vWA = list(range(22, 26))
vXB, vXT = 26, 27
vPSA, vPSB, vLACC, vTMP = 28, 29, 30, 31
vQ = 32
vO = 64
vS = [128, 144]
vNM = 160
vP = [176, 184]
vF = 192
vE = 224
vWA2 = [232, 233, 234, 235]
vQW = 236
vOW = 237
vOR = [240, 241, 242, 243]
vWOA = 244
vWOT = [245, 246]
vST = 247
vONE = 248
vDUM = 249
vSTA, vSTB = 250, 251
NVGPR = 252
vACC1 = 64
vA1 = [128, 144]
vB1 = [160, 172]
vB3 = 32
vA3 = [128, 160]
vACC3 = [192, 216]
vLW = [10, 11, 12, 13]
vLK = [14, 15]
vLV = 16
vLWO = [18, 19, 20, 21]


def f32bits(x):
    return struct.unpack("<I", struct.pack("<f", x))[0]


class Prog:
    def __init__(self):
        self.lines = []
    def __call__(self, s):
        self.lines += s.split("\n")
    def label(self, s):
        self.lines.append(s + ":")
    def text(self):
        out = []
        for ln in self.lines:
            ln = ln.strip()
            if ln:
                out.append(ln if ln.endswith(":") or ln[0] in ".;" else "    " + ln)
        return "\n".join(out) + "\n"


def vr(b, n):
    return "v[%d:%d]" % (b, b + n - 1) if n > 1 else "v%d" % b


class Queue:
    def __init__(self, limit):
        self.q = []
        self.limit = limit
    def issue(self, tag, n=1):
        self.q += [tag] * n
        assert len(self.q) <= self.limit, (tag, len(self.q))
    def need(self, tags):
        last = -1
        for i, t in enumerate(self.q):
            if t in tags:
                last = i
        if last < 0:
            return None
        n = len(self.q) - 1 - last
        self.q = self.q[last + 1:]
        return n
    def drain(self):
        self.q = []


def srd(a, base, ptr, size, off_s=None):
    if off_s is None:
        a("s_mov_b32 s%d, s%d" % (base, ptr))
        a("s_mov_b32 s%d, s%d" % (base + 1, ptr + 1))
    else:
        a("s_add_u32 s%d, s%d, s%d" % (base, ptr, off_s))
        a("s_addc_u32 s%d, s%d, 0" % (base + 1, ptr + 1))
    a("s_mov_b32 s%d, 0x%x" % (base + 2, size))
    a("s_mov_b32 s%d, 0x20000" % (base + 3))


MARKS = {1: "x", 2: "q", 3: "att", 5: "gemm", 6: "drain", 7: "sync", 8: "end"}


def stamp(a, idx):
    if opt.x_stretch and MARKS.get(idx) == opt.x_mark:
        a("s_memrealtime s[%d:%d]" % (sSTAMP, sSTAMP + 1))
        a("s_waitcnt lgkmcnt(0)")
        a("s_sub_u32 s%d, s%d, s100" % (sDBG, sSTAMP))
    if not opt.stamps:
        return
    a("s_memrealtime s[%d:%d]" % (sSTAMP, sSTAMP + 1))
    a("s_memtime s[%d:%d]" % (sDBG, sDBG + 1))
    a("s_waitcnt lgkmcnt(0)")
    a("v_mov_b32 v%d, s%d" % (vSTA, sSTAMP))
    a("v_mov_b32 v%d, s%d" % (vSTB, sSTOFF))
    a("buffer_store_dword v%d, v%d, s[%d:%d], 0 offen offset:%d" % (vSTA, vSTB, SRD_ST, SRD_ST + 3, idx * 4))
    a("v_mov_b32 v%d, s%d" % (vSTA, sDBG))
    a("buffer_store_dword v%d, v%d, s[%d:%d], 0 offen offset:%d" % (vSTA, vSTB, SRD_ST, SRD_ST + 3, 128 + idx * 4))


def fill_cost(ins):
    op = ins.split()[0]
    return 8 if op.startswith(("ds_", "buffer_", "v_exp", "v_rcp")) else 4


def interleave(a, mfmas, fill, gap=8):
    total = sum(fill_cost(f) for f in fill)
    per = max(gap, -(-total // max(len(mfmas), 1))) if mfmas else 0
    i, credit = 0, 0
    for m in mfmas:
        a(m)
        credit += per
        while i < len(fill) and fill_cost(fill[i]) <= credit:
            credit -= fill_cost(fill[i])
            a(fill[i]); i += 1
    while i < len(fill):
        a(fill[i]); i += 1


def multi():
    return not opt.fused_tail


def dump_regs(a, base, n):
    a("s_lshl_b32 s%d, s2, 3" % sT0)
    a("s_add_u32 s%d, s%d, s%d" % (sT0, sT0, sW))
    a("s_mul_i32 s%d, s%d, %d" % (sT0, sT0, 96 * 256))
    a("s_add_u32 s%d, s%d, 0x%x" % (sT0, sT0, WS_DUMP))
    a("v_lshlrev_b32 v%d, 4, v%d" % (vT[8], vL))
    for g in range(n // 4):
        a("buffer_store_dwordx4 %s, v%d, s[%d:%d], s%d offen" % (vr(base + g * 4, 4), vT[8], SRD_WS, SRD_WS + 3, sT0))
        a("s_add_u32 s%d, s%d, 1024" % (sT0, sT0))
    a("s_waitcnt vmcnt(0)")


def reduce_body(a, s_w, s_wgoff, srd_ws, srd_out, s_grp, s_dest, aux, lds_base):
    t = [sT0, sT1, sT2, sT3, sT4, sT5]
    a("s_cmp_ge_u32 s%d, 3" % s_w)
    a("s_cselect_b32 s%d, 1, 0" % t[3])
    a("s_mul_i32 s%d, s%d, 3" % (t[4], t[3]))
    a("s_sub_u32 s%d, s%d, s%d" % (t[4], s_w, t[4]))
    a("v_lshlrev_b32 v2, 4, v0")
    a("s_lshl_b32 s%d, s%d, 10" % (t[0], t[4]))
    a("s_add_u32 s%d, s%d, s%d" % (t[0], t[0], s_wgoff))
    a("s_mul_i32 s%d, s%d, %d" % (t[1], t[3], 8 * 3072))
    a("s_add_u32 s%d, s%d, s%d" % (t[0], t[0], t[1]))
    for s in range(8):
        a("buffer_load_dwordx4 %s, v2, s[%d:%d], s%d offen %s" % (vr(12 + 4 * s, 4), srd_ws, srd_ws + 3, t[0], aux))
        if s < 7:
            a("s_add_u32 s%d, s%d, 3072" % (t[0], t[0]))
    a("s_lshl_b32 s%d, s%d, 11" % (t[0], t[4]))
    a("s_add_u32 s%d, s%d, %d" % (t[0], t[0], lds_base))
    a("v_lshlrev_b32 v1, 5, v0")
    a("v_add_u32 v1, s%d, v1" % t[0])
    a("s_and_b32 s%d, s%d, 7" % (t[1], s_grp))
    a("s_lshr_b32 s%d, s%d, 3" % (t[2], s_grp))
    a("s_mul_i32 s%d, s%d, 48" % (t[1], t[1]))
    a("s_lshl_b32 s%d, s%d, 4" % (t[4], t[4]))
    a("s_add_u32 s%d, s%d, s%d" % (t[1], t[1], t[4]))
    a("s_lshl_b32 s%d, s%d, 11" % (t[1], t[1]))
    a("s_lshl_b32 s%d, s%d, 10" % (t[2], t[2]))
    a("s_add_u32 s%d, s%d, s%d" % (t[1], t[1], t[2]))
    a("s_lshl_b32 s%d, s%d, 6" % (t[2], s_dest))
    a("s_add_u32 s%d, s%d, s%d" % (t[1], t[1], t[2]))
    a("v_and_b32 v3, 15, v0")
    a("v_lshrrev_b32 v4, 4, v0")
    a("v_lshlrev_b32 v3, 11, v3")
    a("v_lshl_add_u32 v3, v4, 3, v3")
    a("s_mov_b32 s%d, 0xffff0000" % t[5])
    for s in range(8):
        a("s_waitcnt vmcnt(%d)" % (7 - s))
        for d in range(4):
            x = 12 + 4 * s + d
            if s == 0:
                a("v_lshlrev_b32 v%d, 16, v%d" % (4 + 2 * d, x))
                a("v_and_b32 v%d, s%d, v%d" % (5 + 2 * d, t[5], x))
            else:
                a("v_lshlrev_b32 v44, 16, v%d" % x)
                a("v_and_b32 v45, s%d, v%d" % (t[5], x))
                a("v_add_f32 v%d, v%d, v44" % (4 + 2 * d, 4 + 2 * d))
                a("v_add_f32 v%d, v%d, v45" % (5 + 2 * d, 5 + 2 * d))
    a("s_cmp_eq_u32 s%d, 0" % t[3])
    a("s_cbranch_scc1 L_RED_LOW")
    a("ds_write_b128 v1, v[4:7]")
    a("ds_write_b128 v1, v[8:11] offset:16")
    a("s_waitcnt lgkmcnt(0)")
    a("s_barrier")
    a("s_branch L_RED_DONE")
    a.label("L_RED_LOW")
    a("s_barrier")
    a("ds_read_b128 v[12:15], v1")
    a("ds_read_b128 v[16:19], v1 offset:16")
    a("s_waitcnt lgkmcnt(0)")
    for d in range(8):
        a("v_add_f32 v%d, v%d, v%d" % (4 + d, 4 + d, 12 + d))
    for d in range(4):
        a("v_cvt_pk_bf16_f32 v%d, v%d, v%d" % (4 + d, 4 + 2 * d, 5 + 2 * d))
    a("buffer_store_dwordx2 v[4:5], v3, s[%d:%d], s%d offen" % (srd_out, srd_out + 3, t[1]))
    a("buffer_store_dwordx2 v[6:7], v3, s[%d:%d], s%d offen offset:32" % (srd_out, srd_out + 3, t[1]))
    a.label("L_RED_DONE")


def gen_main(a, name):
    bars = {"C": [], "I": [], "L": []}
    part_aux = "sc1" if opt.fused_tail else ""

    def bar(roles, nm, skip=False):
        if not skip:
            a("s_barrier")
        for r in roles:
            bars[r].append(nm)

    a.label(name)
    a("s_cmp_ge_u32 s2, 256")
    a("s_cbranch_scc1 L_END")
    a("s_load_dwordx16 s[%d:%d], s[0:1], 0" % (KA, KA + 15))
    a("s_load_dwordx8 s[%d:%d], s[0:1], 64" % (KA + 16, KA + 23))
    a("s_load_dwordx2 s[%d:%d], s[0:1], 96" % (KA + 24, KA + 25))
    if opt.x_stretch:
        a("s_memrealtime s[100:101]")
    a("s_and_b32 s%d, s2, 7" % sT0)
    a("s_lshr_b32 s%d, s2, 3" % sT1)
    a("s_lshr_b32 s%d, s%d, 4" % (sT2, sT1))
    a("s_lshl_b32 s%d, s%d, 1" % (sT0, sT0))
    a("s_add_u32 s%d, s%d, s%d" % (sT0, sT0, sT2))
    a("s_lshr_b32 s%d, s%d, 3" % (sBR, sT0))
    a("s_and_b32 s%d, s%d, 7" % (sKVH, sT0))
    a("s_bfe_u32 s%d, s%d, 0x30001" % (sB, sT1))
    a("s_and_b32 s%d, s%d, 1" % (sT2, sT1))
    a("s_lshl_b32 s%d, s%d, 1" % (sHP, sKVH))
    a("s_add_u32 s%d, s%d, s%d" % (sHP, sHP, sT2))
    a("v_lshrrev_b32 v1, 6, v0")
    a("v_and_b32 v0, 63, v0")
    a("v_readfirstlane_b32 s%d, v1" % sW)
    a("s_lshl_b32 s%d, s%d, 3" % (sGRP, sBR))
    a("s_add_u32 s%d, s%d, s%d" % (sGRP, sGRP, sB))
    if opt.codepf:
        a("s_cmp_lg_u32 s%d, 3" % sW)
        a("s_cbranch_scc1 L_NOPF")
        a("s_getpc_b64 s[%d:%d]" % (sT2, sT3))
        a.label("L_PC")
        a("v_lshlrev_b32 v2, 7, v0")
        a("v_mov_b32 v5, s%d" % sT3)
        a("v_add_co_u32 v4, vcc, s%d, v2" % sT2)
        a("s_nop 1")
        a("v_addc_co_u32 v5, vcc, 0, v5, vcc")
        a(".set PF_BYTES, L_END - L_PC")
        for i in range(opt.codepf_n):
            if i:
                a("v_add_co_u32 v4, vcc, 0x2000, v4")
                a("s_nop 1")
                a("v_addc_co_u32 v5, vcc, 0, v5, vcc")
            a("v_add_u32 v3, %d, v2" % (i * 8192))
            a("v_cmp_gt_u32 vcc, PF_BYTES, v3")
            a("s_and_saveexec_b64 s[%d:%d], vcc" % (sT0, sT1))
            a("s_cbranch_execz L_PF_SKIP%d" % i)
            a("global_load_dword v%d, v[4:5], off" % vDUM)
            a.label("L_PF_SKIP%d" % i)
            a("s_mov_b64 exec, s[%d:%d]" % (sT0, sT1))
        a.label("L_NOPF")
    a("s_waitcnt lgkmcnt(0)")
    a("s_cmp_eq_u32 s%d, 0" % sBR)
    for dst, pa, pb in ((P_WQ, KA + 6, KA + 16), (P_X, KA + 0, KA + 10), (P_K, KA + 2, KA + 12),
                        (P_V, KA + 4, KA + 14), (P_WO, KA + 8, KA + 18)):
        a("s_cselect_b32 s%d, s%d, s%d" % (dst, pa, pb))
        a("s_cselect_b32 s%d, s%d, s%d" % (dst + 1, pa + 1, pb + 1))
    if opt.stamps:
        srd(a, SRD_ST, P_WS, WS_BYTES)
        a("s_lshl_b32 s%d, s2, 3" % sSTOFF)
        a("s_add_u32 s%d, s%d, s%d" % (sSTOFF, sSTOFF, sW))
        a("s_lshl_b32 s%d, s%d, 8" % (sSTOFF, sSTOFF))
        a("s_add_u32 s%d, s%d, 0x%x" % (sSTOFF, sSTOFF, WS_STAMP))
        stamp(a, 0)
    a("s_cmp_ge_u32 s%d, 4" % sW)
    a("s_cbranch_scc1 L_LOADER")

    a("s_cmp_eq_u32 s%d, 3" % sW)
    a("s_cbranch_scc1 L_W3_START")
    a("s_mul_i32 s%d, s%d, 49152" % (sT0, sB))
    srd(a, SRD_X, P_X, 49152, sT0)
    a("v_lshlrev_b32 v2, 4, v0")
    a("s_lshl_b32 s%d, s%d, 14" % (sT1, sW))
    for i in range(16):
        if i % 4 == 0:
            a("s_add_u32 s%d, s%d, %d" % (sT2, sT1, (i // 4) * 4096))
            a("s_add_u32 m0, s%d, %d" % (sT2, X_BASE))
        a("v_xor_b32 v3, %d, v2" % (i * 16))
        a("buffer_load_dwordx4 v3, s[%d:%d], s%d offen offset:%d %s lds" % (SRD_X, SRD_X + 3, sT2, (i % 4) * 1024, opt.w_aux))

    a("s_branch L_WORK_SETUP")
    a.label("L_W3_START")
    if opt.tlbwarm:
        a("s_lshl_b32 s%d, s%d, 3" % (sT0, sB))
        a("s_add_u32 s%d, s%d, s%d" % (sT0, sT0, sKVH))
        a("s_lshl_b32 s%d, s%d, 18" % (sT0, sT0))
        srd(a, SRD_K, P_K, 262144, sT0)
        srd(a, SRD_V, P_V, 262144, sT0)
        a("s_lshl_b32 s%d, s%d, 18" % (sT0, sHP))
        srd(a, SRD_WO, P_WO, 262144, sT0)
        a("v_lshlrev_b32 v2, 12, v0")
        a("buffer_load_dword v%d, v2, s[%d:%d], 0 offen nt" % (vDUM, SRD_K, SRD_K + 3))
        a("buffer_load_dword v%d, v2, s[%d:%d], 0 offen nt" % (vDUM, SRD_V, SRD_V + 3))
        a("buffer_load_dword v%d, v2, s[%d:%d], 0 offen" % (vDUM, SRD_WO, SRD_WO + 3))
        srd(a, SRD_WS, P_WS, WS_PART_BYTES)
        a("s_mul_i32 s%d, s%d, %d" % (sT0, sGRP, 256 * 3072))
        a("v_mul_u32_u24 v2, 12288, v0")
        a("buffer_load_dword v%d, v2, s[%d:%d], s%d offen" % (vDUM, SRD_WS, SRD_WS + 3, sT0))

    a.label("L_WORK_SETUP")
    l = vL
    t1, t2, t3, t4, t5 = vT[0:5]
    G, rp, cp = vT[5], vT[6], vT[7]
    a("v_and_b32 v%d, 15, v%d" % (t3, l))
    a("v_lshrrev_b32 v%d, 4, v%d" % (G, l))
    a("v_bfe_u32 v%d, v%d, 2, 2" % (rp, l))
    a("v_and_b32 v%d, 3, v%d" % (cp, l))
    a("v_xor_b32 v%d, v%d, v%d" % (t4, G, t3))
    a("v_lshlrev_b32 v%d, 4, v%d" % (t4, t4))
    a("v_lshl_add_u32 v%d, v%d, 10, v%d" % (t5, t3, t4))
    a("v_add_u32 v%d, 0x%x, v%d" % (vXB, X_BASE, t5))
    a("v_lshl_add_u32 v%d, v%d, 8, v%d" % (t5, t3, t4))
    a("v_add_u32 v%d, 0x%x, v%d" % (vOR[0], M_BASE, t5))
    for k in range(1, 4):
        a("v_xor_b32 v%d, %d, v%d" % (vOR[k], k * 64, vOR[0]))
    a("v_and_b32 v%d, 1, v%d" % (t4, G))
    a("v_lshl_add_u32 v%d, v%d, 2, v%d" % (t4, t4, rp))
    a("s_lshl_b32 s%d, s%d, 2" % (sT0, sW))
    a("v_xor_b32 v%d, s%d, v%d" % (t5, sT0, t4))
    a("v_lshlrev_b32 v%d, 5, v%d" % (t5, t5))
    a("v_lshl_add_u32 v%d, v%d, 3, v%d" % (t1, G, rp))
    a("v_lshl_add_u32 v%d, v%d, 9, v%d" % (t5, t1, t5))
    a("v_lshl_add_u32 v%d, v%d, 3, v%d" % (vWA[0], cp, t5))
    for nb in range(1, 4):
        a("v_xor_b32 v%d, %d, v%d" % (vWA[nb], nb * 32, vWA[0]))
    for nb in range(4):
        a("v_add_u32 v%d, 0x10000, v%d" % (vWA2[nb], vWA[nb]))
    a("s_lshl_b32 s%d, s%d, 1" % (sT0, sW))
    a("v_xor_b32 v%d, s%d, v%d" % (t5, sT0, t4))
    a("v_lshlrev_b32 v%d, 5, v%d" % (t5, t5))
    a("v_lshl_add_u32 v%d, v%d, 8, v%d" % (t5, t1, t5))
    a("v_lshl_add_u32 v%d, v%d, 3, v%d" % (vWOA, cp, t5))
    a("s_and_b32 s%d, s%d, 1" % (sT0, sW))
    a("s_lshl_b32 s%d, s%d, 3" % (sT0, sT0))
    a("v_lshrrev_b32 v%d, 1, v%d" % (t4, G))
    a("v_add_u32 v%d, s%d, v%d" % (t4, sT0, t4))
    a("v_xor_b32 v%d, v%d, v%d" % (t4, t4, t3))
    a("v_lshlrev_b32 v%d, 4, v%d" % (t4, t4))
    a("v_lshl_add_u32 v%d, v%d, 8, v%d" % (t4, t3, t4))
    a("v_and_b32 v%d, 1, v%d" % (t5, G))
    a("v_lshl_add_u32 v%d, v%d, 3, v%d" % (t4, t5, t4))
    a("s_lshr_b32 s%d, s%d, 1" % (sT0, sW))
    a("s_mul_i32 s%d, s%d, %d" % (sT0, sT0, 48 * 256))
    a("s_add_u32 s%d, s%d, %d" % (sT0, sT0, M_BASE))
    a("v_add_u32 v%d, s%d, v%d" % (vQW, sT0, t4))
    a("v_and_b32 v%d, 31, v%d" % (t1, l))
    a("v_lshrrev_b32 v%d, 5, v%d" % (t2, l))
    a("v_xor_b32 v%d, v%d, v%d" % (t4, t2, t3))
    a("v_lshlrev_b32 v%d, 4, v%d" % (t4, t4))
    a("v_lshl_add_u32 v%d, v%d, 8, v%d" % (vKA[0], t1, t4))
    for ks in range(1, 8):
        a("v_xor_b32 v%d, %d, v%d" % (vKA[ks], ks * 32, vKA[0]))
    a("v_lshlrev_b32 v%d, 4, v%d" % (t4, t3))
    a("v_lshl_add_u32 v%d, v%d, 8, v%d" % (t4, t1, t4))
    a("v_lshl_add_u32 v%d, v%d, 3, v%d" % (t4, t2, t4))
    a("s_lshl_b32 s%d, s%d, 13" % (sT0, sW))
    a("s_add_u32 s%d, s%d, %d" % (sT0, sT0, M_BASE))
    a("v_add_u32 v%d, s%d, v%d" % (vOW, sT0, t4))
    a("v_lshl_add_u32 v%d, v%d, 2, v%d" % (t1, t2, rp))
    a("v_and_b32 v%d, 1, v%d" % (t4, G))
    a("v_lshlrev_b32 v%d, 1, v%d" % (t4, t4))
    a("v_lshrrev_b32 v%d, 1, v%d" % (t5, cp))
    a("v_add_u32 v%d, v%d, v%d" % (t4, t4, t5))
    a("v_lshlrev_b32 v%d, 2, v%d" % (t5, rp))
    a("v_xor_b32 v%d, v%d, v%d" % (t4, t4, t5))
    a("v_lshlrev_b32 v%d, 4, v%d" % (t4, t4))
    a("v_lshl_add_u32 v%d, v%d, 8, v%d" % (t4, t1, t4))
    a("v_and_b32 v%d, 1, v%d" % (t5, cp))
    a("v_lshl_add_u32 v%d, v%d, 3, v%d" % (t4, t5, t4))
    a("v_add_u32 v%d, 0x%x, v%d" % (vVA[0], V_BASE, t4))
    for db in range(1, 4):
        a("v_xor_b32 v%d, %d, v%d" % (vVA[db], db * 64, vVA[0]))
    a("v_lshlrev_b32 v%d, 4, v%d" % (vST, l))
    a("s_lshl_b32 s%d, s%d, 8" % (sT0, sGRP))
    a("s_add_u32 s%d, s%d, s%d" % (sT0, sT0, sHP))
    a("s_lshl_b32 s%d, s%d, 4" % (sT1, sW))
    a("s_add_u32 s%d, s%d, s%d" % (sT0, sT0, sT1))
    a("s_mul_i32 s%d, s%d, 3072" % (sPOFF, sT0))
    srd(a, SRD_WS, P_WS, WS_BYTES)
    a("s_mov_b32 s%d, 0x%08x" % (sTHR, f32bits(2.0 ** opt.thr_log2)))
    a("v_mov_b32 v%d, 0x3f803f80" % vONE)
    for r in range(48):
        a("v_mov_b32 v%d, 0" % (vACC1 + r))
    for r in range(16):
        a("v_mov_b32 v%d, 0" % (vA1[1] + r))
    for r in range(12):
        a("v_mov_b32 v%d, 0" % (vB1[1] + r))
    a("s_cmp_eq_u32 s%d, 3" % sW)
    a("s_cbranch_scc1 L_X_LANDED")
    a("s_waitcnt vmcnt(0)")
    a.label("L_X_LANDED")
    stamp(a, 1)

    def q_mfma_list(pb):
        if opt.x_q_nomfma:
            return []
        out = []
        for nb in range(4):
            for qb in range(3):
                acc = vACC1 + (nb * 3 + qb) * 4
                out.append("v_mfma_f32_16x16x32_bf16 %s, %s, %s, %s" % (vr(acc, 4), vr(vA1[pb] + nb * 4, 4), vr(vB1[pb] + qb * 4, 4), vr(acc, 4)))
        return out
    vXTT = [vXT, vT[8]]
    def x_addr(e):
        v = vXTT[e & 1]
        return ["s_lshl_b32 s%d, s%d, 1" % (sT0, sB),
                "s_add_u32 s%d, s%d, %d" % (sT0, sT0, e),
                "s_and_b32 s%d, s%d, 3" % (sT1, sT0),
                "s_lshl_b32 s%d, s%d, 6" % (sT1, sT1),
                "s_bfe_u32 s%d, s%d, 0x20002" % (sT2, sT0),
                "s_lshl_b32 s%d, s%d, 8" % (sT2, sT2),
                "v_xor_b32 v%d, s%d, v%d" % (v, sT1, vXB),
                "v_add_u32 v%d, s%d, v%d" % (v, sT2, v)]
    for ins in x_addr(0):
        a(ins)
    for e in range(16):
        bar("CI", "Q%d" % e)
        if e in (0, 4, 8, 12):
            stamp(a, 9 + e // 4)
        pb = e & 1
        slot = e % NWS
        wa, so = (vWA, slot * 16384) if slot < 4 else (vWA2, (slot - 4) * 16384)
        fill = []
        if not opt.x_q_nods:
            for nb in range(4):
                for jj in range(2):
                    fill.append("ds_read_b64_tr_b16 %s, v%d offset:%d" % (vr(vA1[pb] + nb * 4 + jj * 2, 2), wa[nb], so + jj * 2048))
                if nb == 0:
                    for qb in range(3):
                        fill.append("ds_read_b128 %s, v%d offset:%d" % (vr(vB1[pb] + qb * 4, 4), vXTT[e & 1], qb * 16384))
        if e < 15:
            fill += x_addr(e + 1)
        interleave(a, q_mfma_list(pb ^ 1), fill)
        a("s_waitcnt lgkmcnt(0)")
    bar("CI", "Q16")
    stamp(a, 13)
    for m in q_mfma_list(1):
        a(m)
    a("s_nop 7")
    scale = math.log2(math.e) / math.sqrt(128.0)
    a("s_mov_b32 s%d, 0x%08x" % (sT0, f32bits(scale)))
    for nb in range(4):
        a("v_xor_b32 v%d, %d, v%d" % (vT[0], nb * 32, vQW))
        for qb in range(3):
            acc = vACC1 + (nb * 3 + qb) * 4
            for r in range(4):
                a("v_mul_f32 v%d, s%d, v%d" % (acc + r, sT0, acc + r))
            a("v_cvt_pk_bf16_f32 v%d, v%d, v%d" % (acc, acc, acc + 1))
            a("v_cvt_pk_bf16_f32 v%d, v%d, v%d" % (acc + 1, acc + 2, acc + 3))
            a("ds_write_b64 v%d, %s offset:%d" % (vT[0], vr(acc, 2), qb * 4096))
    a("s_waitcnt lgkmcnt(0)")
    bar("CI", "Q17")
    stamp(a, 2)
    a("s_cmp_eq_u32 s%d, 3" % sW)
    a("s_cbranch_scc1 L_IDLE3")

    if opt.prio:
        a("s_setprio %d" % opt.prio)
    a("s_lshl_b32 s%d, s%d, 13" % (sT0, sW))
    a("s_add_u32 s%d, s%d, %d" % (sT0, sT0, M_BASE))
    for ks in range(8):
        a("v_add_u32 v%d, s%d, v%d" % (vT[ks], sT0, vKA[ks]))
    dq = Queue(1000)
    for ks in range(8):
        a("ds_read_b128 %s, v%d" % (vr(vQ + ks * 4, 4), vT[ks]))
        dq.issue("Q")
    L, WS = opt.L, opt.waitstep

    def frag_ops(p):
        return 1 if (p & 15) < 8 else 2

    def frag_read(t, p):
        if p >= 16:
            t, p = t + 1, p - 16
        fb = vF + (p & 7) * 4
        if p < 8:
            if not opt.x_nods:
                a("ds_read_b128 %s, v%d offset:%d" % (vr(fb, 4), vKA[p], KPOS[(t + 1) & 7] * 8192))
            dq.issue("F%d" % (p & 7), 1)
        else:
            u, db = (p - 8) >> 2, (p - 8) & 3
            for jj in range(2):
                if not opt.x_nods:
                    a("ds_read_b64_tr_b16 %s, v%d offset:%d" % (vr(fb + jj * 2, 2), vVA[db], ((t - 1) & 7) * 8192 + (16 * u + 8 * jj) * 256))
            dq.issue("F%d" % (p & 7), 2)

    def wait_frags(p):
        if p % WS:
            return
        n = dq.need({"F%d" % ((p + i) & 7) for i in range(WS)})
        if n is not None and not opt.x_nods:
            assert n <= 15
            a("s_waitcnt lgkmcnt(%d)" % n)

    def sm_ops(t):
        S, P = vS[t & 1], vP[t & 1]
        ops = []
        for k in range(8):
            e0, e1 = vE + (k & 1) * 2, vE + (k & 1) * 2 + 1
            ops.append(("v_exp_f32 v%d, v%d" % (e0, S + 2 * k), 8))
            ops.append(("v_exp_f32 v%d, v%d" % (e1, S + 2 * k + 1), 8))
            cvt = ("v_cvt_pk_bf16_f32 v%d, v%d, v%d" % (P + k, e0, e1), 4)
            if opt.sumop == "add":
                if k == 0:
                    ops.append(("v_mov_b32 v%d, v%d" % (vPSA, e0), 4))
                    ops.append(("v_mov_b32 v%d, v%d" % (vPSB, e1), 4))
                else:
                    ops.append(("v_add_f32 v%d, v%d, v%d" % (vPSA, vPSA, e0), 4))
                    ops.append(("v_add_f32 v%d, v%d, v%d" % (vPSB, vPSB, e1), 4))
                ops.append(cvt)
            elif opt.sumop == "pk":
                if k == 0:
                    ops.append(("v_mov_b32 v%d, v%d" % (vPSA, e0), 4))
                    ops.append(("v_mov_b32 v%d, v%d" % (vPSB, e1), 4))
                    ops.append(cvt)
                else:
                    ops.append(("s_nop 0", 4))
                    ops.append(("v_pk_add_f32 v[%d:%d], v[%d:%d], v[%d:%d]" % (vPSA, vPSB, vPSA, vPSB, e0, e1), 4))
                    ops.append(cvt)
            elif opt.sumop == "dot":
                if k == 0:
                    ops.append(("s_nop 0", 4))
                elif k == 1:
                    ops.append(("v_dot2_f32_bf16 v%d, v%d, v%d, 0" % (vPSA, P, vONE), 4))
                else:
                    ops.append(("v_dot2_f32_bf16 v%d, v%d, v%d, v%d" % (vPSA, P + k - 1, vONE, vPSA), 4))
                ops.append(cvt)
        if opt.sumop != "dot":
            ops.append(("v_add_f32 v%d, v%d, v%d" % (vPSA, vPSA, vPSB), 4))
        else:
            ops.append(("v_dot2_f32_bf16 v%d, v%d, v%d, v%d" % (vPSA, P + 7, vONE, vPSA), 4))
            ops.append(("s_nop 2", 4))
        ops.append(("v_cmp_nge_f32 vcc, s%d, v%d" % (sTHR, vPSA), 4))
        return ops

    def sm_schedule(ops, base):
        room = [max(opt.slotcap - base[p], 4) for p in range(15)]
        total = sum(c for _, c in ops)
        scale_ = total / float(sum(room))
        slots = [[] for _ in range(16)]
        i, cum_room, cum = 0, 0.0, 0
        for p in range(15):
            cum_room += room[p] * scale_
            while i < len(ops) and (cum + ops[i][1] / 2.0 <= cum_room or p == 14):
                slots[p].append(ops[i][0])
                cum += ops[i][1]
                i += 1
        return slots

    rare = []

    def period(t, tag, do_qk, do_sm, do_pv, c_zero=False, has_bar=True, next_qk=True):
        Sn, Pp = vS[(t + 1) & 1], vP[(t - 1) & 1]
        def want(pn):
            return (pn < 8 and do_qk) or (8 <= pn < 16 and do_pv) or (pn >= 16 and next_qk)
        base = []
        for p in range(16):
            c = 8 + (opt.dscost * frag_ops(p + L) if want(p + L) else 0) + (4 if p % WS == 0 else 0) + (4 if p == 16 - L else 0)
            base.append(c)
        sm = sm_schedule(sm_ops(t), base) if do_sm and not opt.x_nosm else [[] for _ in range(16)]
        for p in range(16):
            mf = None
            if p < 8 and do_qk:
                c = "0" if (p == 0 and c_zero) else (vr(vNM, 16) if p == 0 else vr(Sn, 16))
                mf = "v_mfma_f32_32x32x16_bf16 %s, %s, %s, %s" % (vr(Sn, 16), vr(vF + (p & 7) * 4, 4), vr(vQ + p * 4, 4), c)
            if p >= 8 and do_pv:
                u, db = (p - 8) >> 2, (p - 8) & 3
                mf = "v_mfma_f32_32x32x16_bf16 %s, %s, %s, %s" % (vr(vO + db * 16, 16), vr(vF + (p & 7) * 4, 4), vr(Pp + u * 4, 4), vr(vO + db * 16, 16))
            if p == 16 - L and has_bar:
                bar("C", "A%s" % tag, opt.x_nobar)
            if mf:
                wait_frags(p)
                if not opt.x_nomfma:
                    a(mf)
            if want(p + L):
                frag_read(t, p + L)
            for ins in sm[p]:
                a(ins)
        if do_sm:
            lab = "L_RARE_%s" % tag
            if not opt.x_norare and not opt.x_nosm:
                a("s_cbranch_vccnz %s" % lab)
                rare.append((lab, t, do_qk))
                a.label(lab + "_BACK")
            a("v_add_f32 v%d, v%d, v%d" % (vLACC, vLACC, vPSA))

    def row_max(S, dst):
        a("v_max3_f32 v%d, v%d, v%d, v%d" % (dst, S, S + 1, S + 2))
        for r in range(3, 15, 2):
            a("v_max3_f32 v%d, v%d, v%d, v%d" % (dst, dst, S + r, S + r + 1))
        a("v_max_f32 v%d, v%d, v%d" % (dst, dst, S + 15))
        a("v_mov_b32 v%d, v%d" % (vTMP, dst))
        a("s_nop 1")
        a("v_permlane32_swap_b32 v%d, v%d" % (dst, vTMP))
        a("s_nop 1")
        a("v_max_f32 v%d, v%d, v%d" % (dst, dst, vTMP))

    def emit_rare(lab, t, fix_next):
        S, Sn, P = vS[t & 1], vS[(t + 1) & 1], vP[t & 1]
        d, f = vE + 4, vE + 5
        a.label(lab)
        a("s_nop 15")
        row_max(S, d)
        a("v_max_f32 v%d, 0, v%d" % (d, d))
        a("v_exp_f32 v%d, -v%d" % (f, d))
        for r in range(16):
            a("v_sub_f32 v%d, v%d, v%d" % (vNM + r, vNM + r, d))
        for r in range(16):
            a("v_sub_f32 v%d, v%d, v%d" % (S + r, S + r, d))
        if fix_next:
            for r in range(16):
                a("v_sub_f32 v%d, v%d, v%d" % (Sn + r, Sn + r, d))
        for r in range(64):
            a("v_mul_f32 v%d, v%d, v%d" % (vO + r, vO + r, f))
        a("v_mul_f32 v%d, v%d, v%d" % (vLACC, vLACC, f))
        a("v_mov_b32 v%d, 0" % vPSA)
        for k in range(8):
            a("v_exp_f32 v%d, v%d" % (vE, S + 2 * k))
            a("v_exp_f32 v%d, v%d" % (vE + 1, S + 2 * k + 1))
            a("v_add_f32 v%d, v%d, v%d" % (vPSA, vPSA, vE))
            a("v_add_f32 v%d, v%d, v%d" % (vPSA, vPSA, vE + 1))
            a("v_cvt_pk_bf16_f32 v%d, v%d, v%d" % (P + k, vE, vE + 1))
        a("s_nop 1")
        a("s_branch %s_BACK" % lab)

    for p in range(L):
        frag_read(-1, p)
    for r in range(64):
        a("v_mov_b32 v%d, 0" % (vO + r))
    a("v_mov_b32 v%d, 0" % vLACC)
    a("s_waitcnt lgkmcnt(%d)" % dq.need({"Q"}))
    if opt.dump == "q":
        dump_regs(a, vQ, 32)
    period(-1, "m1", True, False, False, c_zero=True)
    a("s_nop 15")
    row_max(vS[0], vE + 4)
    for r in range(16):
        a("v_sub_f32 v%d, 0, v%d" % (vNM + r, vE + 4))
    for r in range(16):
        a("v_sub_f32 v%d, v%d, v%d" % (vS[0] + r, vS[0] + r, vE + 4))
    a("s_nop 1")
    period(0, "0", True, True, False)
    q_entry = list(dq.q)
    a("s_mov_b32 s%d, 0" % sPASS)
    a(".p2align 3")
    a.label("L_ATT_LOOP")
    n0 = len(bars["C"])
    for t in range(1, 9):
        period(t, "L%d" % t, True, True, True)
        if t == 6:
            q_exit = list(dq.q)
            a("s_cmp_eq_u32 s%d, 3" % sPASS)
            a("s_cbranch_scc1 L_ATT_EXIT")
    assert dq.q == q_entry, (dq.q, q_entry)
    a("s_add_u32 s%d, s%d, 1" % (sPASS, sPASS))
    a("s_branch L_ATT_LOOP")
    del bars["C"][n0:]
    bars["C"] += ["A%d" % t for t in range(1, 31)]
    a.label("L_ATT_EXIT")
    dq.q = list(q_exit)
    period(31, "31", False, True, True, next_qk=False)
    period(32, "32", False, False, True, has_bar=False, next_qk=False)
    stamp(a, 3)
    a("v_mov_b32 v%d, v%d" % (vTMP, vLACC))
    a("s_nop 1")
    a("v_permlane32_swap_b32 v%d, v%d" % (vLACC, vTMP))
    a("s_nop 1")
    a("v_add_f32 v%d, v%d, v%d" % (vLACC, vLACC, vTMP))
    a("v_rcp_f32 v%d, v%d" % (vLACC, vLACC))
    a("s_nop 7")
    for db in range(4):
        for rr in range(4):
            b = vO + db * 16 + rr * 4
            for e in range(4):
                a("v_mul_f32 v%d, v%d, v%d" % (b + e, b + e, vLACC))
            a("v_cvt_pk_bf16_f32 v%d, v%d, v%d" % (b, b, b + 1))
            a("v_cvt_pk_bf16_f32 v%d, v%d, v%d" % (b + 1, b + 2, b + 3))
            a("v_xor_b32 v%d, %d, v%d" % (vT[rr], (4 * db + rr) * 16, vOW))
            a("ds_write_b64 v%d, %s" % (vT[rr], vr(b, 2)))
    if opt.prio:
        a("s_setprio 0")
    a("s_waitcnt lgkmcnt(0)")
    a("s_branch L_E0")

    a.label("L_IDLE3")
    if not opt.x_nobar:
        a("s_mov_b32 s%d, 33" % sPASS)
        a.label("L_IDLE3_LOOP")
        a("s_barrier")
        a("s_sub_u32 s%d, s%d, 1" % (sPASS, sPASS))
        a("s_cmp_lg_u32 s%d, 0" % sPASS)
        a("s_cbranch_scc1 L_IDLE3_LOOP")
    bars["I"] += ["Am1"] + ["A%d" % t for t in range(0, 32)]

    a.label("L_E0")
    bar("CI", "E0")
    stamp(a, 4)

    def a3_list(p):
        out = ["v_add_u32 v%d, 0x%x, v%d" % (vWOT[0], RWO[p & 3], vWOA),
               "v_xor_b32 v%d, 32, v%d" % (vWOT[1], vWOT[0])]
        for ks in range(4 if not opt.x_o_nods else 0):
            for nb in range(2):
                for jj in range(2):
                    out.append("ds_read_b64_tr_b16 %s, v%d offset:%d" % (vr(vA3[p & 1] + (ks * 2 + nb) * 4 + jj * 2, 2), vWOT[nb], ks * 8192 + jj * 1024))
        return out
    def mf3_list(p):
        if opt.x_o_nomfma:
            return []
        out = []
        kh = p & 1
        for ks in range(4):
            for nb in range(2):
                for qb in range(3):
                    acc = vACC3[(p >> 1) & 1] + (qb * 2 + nb) * 4
                    c = "0" if (ks == 0 and kh == 0) else vr(acc, 4)
                    out.append("v_mfma_f32_16x16x32_bf16 %s, %s, %s, %s" % (vr(acc, 4), vr(vA3[p & 1] + (ks * 2 + nb) * 4, 4), vr(vB3 + ((kh * 4 + ks) * 3 + qb) * 4, 4), c))
        return out
    def st3_list(c):
        if opt.x_o_nost:
            return []
        out = ["s_add_u32 s%d, s%d, %d" % (sT0, sB, c),
               "s_and_b32 s%d, s%d, 3" % (sT0, sT0),
               "s_mul_i32 s%d, s%d, %d" % (sT0, sT0, 4 * 16 * 3072),
               "s_add_u32 s%d, s%d, s%d" % (sT0, sT0, sPOFF)]
        for qb in range(3):
            acc = vACC3[c & 1] + qb * 8
            for d in range(4):
                out.append("v_cvt_pk_bf16_f32 v%d, v%d, v%d" % (acc + d, acc + 2 * d, acc + 2 * d + 1))
            out.append("buffer_store_dwordx4 %s, v%d, s[%d:%d], s%d offen offset:%d %s" % (vr(acc, 4), vST, SRD_WS, SRD_WS + 3, sT0, qb * 1024, part_aux))
        return out
    for ins in a3_list(0):
        a(ins)
    for ks in range(8):
        for qb in range(3):
            a("ds_read_b128 %s, v%d offset:%d" % (vr(vB3 + (ks * 3 + qb) * 4, 4), vOR[ks & 3], (48 * (ks >> 2) + 16 * qb) * 256))
    a("s_waitcnt lgkmcnt(0)")
    if opt.dump == "o":
        dump_regs(a, vB3, 96)
    for p in range(1, 8):
        bar("CI", "P%d" % p)
        if p in (1, 4, 7):
            stamp(a, 14 + p // 3)
        fill = a3_list(p)
        if p >= 4 and p % 2 == 0 or p == 3 and False:
            pass
        if p >= 3 and p % 2 == 1:
            fill += st3_list((p - 3) // 2)
        interleave(a, mf3_list(p - 1), fill)
        a("s_waitcnt lgkmcnt(0)")
    interleave(a, mf3_list(7), [])
    a("s_nop 7")
    for ins in st3_list(3):
        a(ins)
    stamp(a, 5)
    a("s_waitcnt vmcnt(0)")
    stamp(a, 6)
    if opt.fused_tail:
        bar("CI", "F0")
        a("s_branch L_REDUCE")
    else:
        if opt.x_stretch:
            a("s_cmp_lg_u32 s%d, 0" % sW)
            a("s_cbranch_scc1 L_END")
            a("s_mul_i32 s%d, s%d, %d" % (sDBG, sDBG, opt.x_stretch))
            a.label("L_STRETCH")
            a("s_memrealtime s[%d:%d]" % (sSTAMP, sSTAMP + 1))
            a("s_waitcnt lgkmcnt(0)")
            a("s_sub_u32 s%d, s%d, s100" % (sSTAMP, sSTAMP))
            a("s_cmp_lt_u32 s%d, s%d" % (sSTAMP, sDBG))
            a("s_cbranch_scc1 L_STRETCH")
        a("s_branch L_END")

    a.label("L_LOADER")
    qL = Queue(63)
    t1, t2, t3, t4 = vT[0:4]
    a("s_sub_u32 s%d, s%d, 4" % (sJ, sW))
    a("s_lshl_b32 s%d, s%d, 9" % (sT0, sHP))
    srd(a, SRD_WQ, P_WQ, 4194304 - 15 * 512, sT0)
    a("s_lshl_b32 s%d, s%d, 16" % (sJ64K, sJ))
    a("v_lshrrev_b32 v%d, 5, v%d" % (t1, vL))
    a("v_and_b32 v%d, 31, v%d" % (t2, vL))
    a("v_lshlrev_b32 v%d, 1, v%d" % (t3, t1))
    a("v_xor_b32 v%d, v%d, v%d" % (t2, t2, t3))
    a("v_lshlrev_b32 v%d, 4, v%d" % (t2, t2))
    a("s_and_b32 s%d, s%d, 1" % (sT1, sJ))
    a("s_lshl_b32 s%d, s%d, 7" % (sT1, sT1))
    a("v_xor_b32 v%d, s%d, v%d" % (t2, sT1, t2))
    a("v_lshl_add_u32 v%d, v%d, 13, v%d" % (t2, t1, t2))
    for aa in range(4):
        c = 2 * aa * 8192 - aa * 1024
        if aa & 1:
            a("v_xor_b32 v%d, 64, v%d" % (vLW[aa], t2))
            a("v_add_u32 v%d, 0x%x, v%d" % (vLW[aa], c, vLW[aa]))
        else:
            a("v_add_u32 v%d, 0x%x, v%d" % (vLW[aa], c, t2))
    a("s_lshl_b32 s%d, s%d, 1" % (sKS, sB))
    a("s_lshl_b32 s%d, s%d, 12" % (sT5, sJ))

    def dma_w(e):
        a("s_add_u32 s%d, s%d, %d" % (sT0, sKS, e))
        a("s_and_b32 s%d, s%d, 15" % (sT0, sT0))
        a("s_lshl_b32 s%d, s%d, 18" % (sT0, sT0))
        a("s_add_u32 m0, s%d, 0x%x" % (sT5, (e % NWS) * 16384))
        a("s_add_u32 s%d, s%d, s%d" % (sT0, sT0, sJ64K))
        if opt.x_q_nodma:
            return
        for aa in range(4):
            a("buffer_load_dwordx4 v%d, s[%d:%d], s%d offen offset:%d %s lds" % (vLW[aa], SRD_WQ, SRD_WQ + 3, sT0, aa * 1024, opt.w_aux))
        qL.issue("W%d" % e, 4)
    for e in range(NWS):
        dma_w(e)
    a("s_lshl_b32 s%d, s%d, 3" % (sT0, sB))
    a("s_add_u32 s%d, s%d, s%d" % (sT0, sT0, sKVH))
    a("s_lshl_b32 s%d, s%d, 18" % (sT0, sT0))
    srd(a, SRD_K, P_K, 262144, sT0)
    srd(a, SRD_V, P_V, 262144, sT0)
    a("s_lshl_b32 s%d, s%d, 18" % (sT0, sHP))
    srd(a, SRD_WO, P_WO, 262144, sT0)
    a("s_lshl_b32 s%d, s%d, 11" % (sJ2K, sJ))
    a("v_lshrrev_b32 v%d, 4, v%d" % (t1, vL))
    a("v_and_b32 v%d, 15, v%d" % (t2, vL))
    a("v_xor_b32 v%d, v%d, v%d" % (t3, t2, t1))
    a("s_and_b32 s%d, s%d, 1" % (sT1, sJ))
    a("s_lshl_b32 s%d, s%d, 3" % (sT1, sT1))
    a("v_xor_b32 v%d, s%d, v%d" % (t3, sT1, t3))
    a("v_lshlrev_b32 v%d, 4, v%d" % (t3, t3))
    a("v_lshl_add_u32 v%d, v%d, 8, v%d" % (vLK[0], t1, t3))
    a("v_xor_b32 v%d, 64, v%d" % (vLK[1], vLK[0]))
    a("v_lshlrev_b32 v%d, 2, v%d" % (t3, t1))
    a("v_xor_b32 v%d, v%d, v%d" % (t3, t2, t3))
    a("v_lshlrev_b32 v%d, 4, v%d" % (t3, t3))
    a("v_lshl_add_u32 v%d, v%d, 8, v%d" % (vLV, t1, t3))
    a("v_lshrrev_b32 v%d, 4, v%d" % (t1, vL))
    a("v_and_b32 v%d, 15, v%d" % (t2, vL))
    a("v_lshlrev_b32 v%d, 1, v%d" % (t3, t1))
    a("v_xor_b32 v%d, v%d, v%d" % (t2, t2, t3))
    a("v_lshlrev_b32 v%d, 4, v%d" % (t2, t2))
    a("v_lshl_add_u32 v%d, v%d, 10, v%d" % (t2, t1, t2))
    for aa in range(4):
        if aa >> 1:
            a("v_xor_b32 v%d, 128, v%d" % (vLWO[aa], t2))
            a("v_add_u32 v%d, %d, v%d" % (vLWO[aa], 3072 * aa, vLWO[aa]))
        else:
            a("v_add_u32 v%d, %d, v%d" % (vLWO[aa], 3072 * aa, t2))

    def dma_tile(kind, t):
        base = K_BASE + KPOS[t & 7] * 8192 if kind == "K" else V_BASE + (t & 7) * 8192
        s_, v_ = (SRD_K, vLK) if kind == "K" else (SRD_V, [vLV, vLV])
        a("s_add_u32 m0, s%d, 0x%x" % (sJ2K, base))
        a("s_add_u32 s%d, s%d, 0x%x" % (sOFF, sJ2K, t * 8192))
        for aa in range(2):
            a("buffer_load_dwordx4 v%d, s[%d:%d], s%d offen offset:%d %s lds" % (v_[aa], s_, s_ + 3, sOFF, aa * 1024, opt.kv_aux))
        qL.issue("%s%d" % (kind, t), 2)
    def dma_wo(p):
        if opt.x_o_nodma:
            return
        a("s_add_u32 s%d, s%d, %d" % (sT0, sB, p >> 1))
        a("s_and_b32 s%d, s%d, 3" % (sT0, sT0))
        a("s_lshl_b32 s%d, s%d, 8" % (sT0, sT0))
        a("s_lshl_b32 s%d, s%d, 3" % (sT1, sT5))
        a("s_add_u32 s%d, s%d, s%d" % (sT0, sT0, sT1))
        if p & 1:
            a("s_add_u32 s%d, s%d, 0x20000" % (sT0, sT0))
        a("s_lshl_b32 s%d, s%d, 1" % (sT1, sT5))
        for hf in range(2):
            a("s_add_u32 m0, s%d, 0x%x" % (sT1, RWO[p & 3] + hf * 4096))
            if hf:
                a("s_add_u32 s%d, s%d, 16384" % (sT0, sT0))
            else:
                a("s_nop 0")
            for aa in range(4):
                a("buffer_load_dwordx4 v%d, s[%d:%d], s%d offen offset:%d %s lds" % (vLWO[aa], SRD_WO, SRD_WO + 3, sT0, aa * 1024, opt.w_aux))
        qL.issue("WO%d" % p, 8)
    def lwait(tags):
        n = qL.need(set(tags))
        if n is not None:
            a("s_waitcnt vmcnt(%d)" % n)
    if opt.fill == 0:
        fill = {10: [("K", 0), ("K", 1)], 11: [("K", 2), ("K", 3)], 12: [("V", 0), ("V", 1)], 13: [("V", 2), ("V", 3)],
                14: [("V", 4), ("V", 5)], 15: [("K", 4), ("K", 5)], 16: [("K", 6), ("K", 7)]}
        nk, nv = 8, 6
    elif opt.fill == 1:
        fill = {10: [("K", 0)], 11: [("K", 1)], 12: [("V", 0)], 13: [("K", 2)], 14: [("V", 1)], 15: [("K", 3)], 16: [("V", 2)]}
        nk, nv = 4, 3
    elif opt.fill == 2:
        fill = {10: [("K", 0)], 12: [("K", 1)], 14: [("V", 0)], 16: [("K", 2)]}
        nk, nv = 3, 1
    for e in range(17):
        if e < 16:
            lwait(["W%d" % e])
        if opt.lstamps and e >= 10:
            stamp(a, 17 + e - 10)
        bar("L", "Q%d" % e)
        if e >= 1 and e + NWS - 1 <= 15:
            dma_w(e + NWS - 1)
        for kind, t in fill.get(e, []):
            dma_tile(kind, t)
        if opt.lstamps and e >= 10:
            stamp(a, 24 + e - 10)
    lwait(["K0"])
    bar("L", "Q17")
    stamp(a, 2)
    for _ in range(2):
        if nk < 8 and opt.fill:
            dma_tile("K", nk); nk += 1
        if nv < 6 and opt.fill:
            dma_tile("V", nv); nv += 1
    for t in range(-1, 32):
        lwait(["K%d" % (t + 2), "V%d" % t])
        bar("L", "A%s" % ("m1" if t < 0 else str(t)), opt.x_nobar)
        for _ in range(2):
            if nk <= 31 and nk <= t + opt.klead:
                dma_tile("K", nk); nk += 1
            if nv <= 31 and nv <= max(t + opt.vlead, 5):
                dma_tile("V", nv); nv += 1
        if t == 26:
            dma_wo(0)
        if t == 29:
            dma_wo(1)
        if t == 30:
            dma_wo(2)
    assert nk == 32 and nv == 32
    lwait(["WO0"])
    bar("L", "E0")
    stamp(a, 4)
    dma_wo(3)
    for p in range(1, 8):
        lwait(["WO%d" % p])
        bar("L", "P%d" % p)
        if p + 3 <= 7:
            dma_wo(p + 3)
    stamp(a, 6)
    if opt.fused_tail:
        srd(a, SRD_DBG, P_DBG, 256)
        a("s_lshl_b32 s%d, s%d, 4" % (sT0, sGRP))
        a("v_mov_b32 v2, s%d" % sT0)
        a("v_mov_b32 v3, 1")
        bar("L", "F0")
        a("s_cmp_lg_u32 s%d, 4" % sW)
        a("s_cbranch_scc1 L_REDUCE")
        a("s_mov_b64 s[%d:%d], exec" % (sT2, sT3))
        a("s_mov_b64 exec, 1")
        a("buffer_atomic_add v3, v2, s[%d:%d], 0 offen sc1" % (SRD_DBG, SRD_DBG + 3))
        a("s_mov_b32 s%d, 0" % sT4)
        a.label("L_POLL")
        a("buffer_load_dword v4, v2, s[%d:%d], 0 offen sc1" % (SRD_DBG, SRD_DBG + 3))
        a("s_add_u32 s%d, s%d, 1" % (sT4, sT4))
        a("s_waitcnt vmcnt(0)")
        a("v_readfirstlane_b32 s%d, v4" % sT1)
        a("s_cmp_ge_u32 s%d, 0x%x" % (sT4, opt.spin_limit))
        a("s_cbranch_scc1 L_POLL_DONE")
        a("s_cmp_lt_u32 s%d, 16" % sT1)
        a("s_cbranch_scc1 L_POLL")
        a.label("L_POLL_DONE")
        a("s_mov_b64 exec, s[%d:%d]" % (sT2, sT3))
        a.label("L_REDUCE")
        a("s_barrier")
        stamp(a, 7)
        a("s_cmp_ge_u32 s%d, 6" % sW)
        a("s_cbranch_scc1 L_RED_IDLE")
        srd(a, SRD_WS, P_WS, WS_PART_BYTES)
        srd(a, SRD_OUT, P_OUT, 8 * 48 * 1024 * 2)
        a("s_lshl_b32 s%d, s%d, 4" % (sKS, sGRP))
        a("s_add_u32 s%d, s%d, s%d" % (sKS, sKS, sHP))
        a("s_mul_i32 s%d, s%d, %d" % (sKS, sKS, 16 * 3072))
        reduce_body(a, sW, sKS, SRD_WS, SRD_OUT, sGRP, sHP, "sc1", 0)
        stamp(a, 8)
        if opt.x_stretch:
            a("s_cmp_lg_u32 s%d, 0" % sW)
            a("s_cbranch_scc1 L_END")
            a("s_mul_i32 s%d, s%d, %d" % (sDBG, sDBG, opt.x_stretch))
            a.label("L_STRETCH")
            a("s_memrealtime s[%d:%d]" % (sSTAMP, sSTAMP + 1))
            a("s_waitcnt lgkmcnt(0)")
            a("s_sub_u32 s%d, s%d, s100" % (sSTAMP, sSTAMP))
            a("s_cmp_lt_u32 s%d, s%d" % (sSTAMP, sDBG))
            a("s_cbranch_scc1 L_STRETCH")
        a("s_branch L_END")
        a.label("L_RED_IDLE")
        a("s_barrier")

    a.label("L_END")
    a("s_endpgm")
    for lab, t, fix in rare:
        emit_rare(lab, t, fix)

    assert bars["C"] == bars["I"] == bars["L"], "barrier sequences differ:\n%s\n%s\n%s" % (bars["C"], bars["I"], bars["L"])


def gen_reduce(a):
    name = "attn_reduce_kernel"
    a(".p2align 8")
    a(".globl %s" % name)
    a(".type %s,@function" % name)
    a.label(name)
    a("s_cmp_ge_u32 s2, 256")
    a("s_cbranch_scc1 R_END")
    a("s_load_dwordx2 s[4:5], s[0:1], 80")
    a("s_load_dwordx2 s[6:7], s[0:1], 96")
    a("v_lshrrev_b32 v1, 6, v0")
    a("v_and_b32 v0, 63, v0")
    a("v_readfirstlane_b32 s3, v1")
    a("s_mul_i32 s16, s2, %d" % (16 * 3072))
    a("s_lshr_b32 s18, s2, 4")
    a("s_and_b32 s19, s2, 15")
    a("s_waitcnt lgkmcnt(0)")
    srd(a, 8, 6, WS_PART_BYTES)
    srd(a, 12, 4, 8 * 48 * 1024 * 2)
    reduce_body(a, 3, 16, 8, 12, 18, 19, "", 0)
    a.label("R_END")
    a("s_endpgm")
    return name


VOP3_ONLY = ("v_mfma", "v_cvt_pk_bf16_f32", "v_max3", "v_lshl_add_u32", "v_bfe_u32", "v_dot2_f32_bf16", "v_pk_", "v_mul_lo", "v_add3",
             "v_writelane", "v_readlane", "v_and_or", "v_perm_b32", "v_lshl_or")
MEM = ("ds_", "buffer_", "global_", "s_load", "s_memtime", "s_memrealtime")
INLINE_F = ("0.5", "-0.5", "1.0", "-1.0", "2.0", "-2.0", "4.0", "-4.0")


def has_literal(ops):
    for o in ops:
        o = o.strip()
        if re.fullmatch(r"[A-Z][A-Z_]+", o):
            return True
        if re.fullmatch(r"-?(0x[0-9a-fA-F]+|\d+)", o):
            v = int(o, 0)
            if not -16 <= v <= 64:
                return True
    return False


def ins_size(ln):
    op, _, rest = ln.partition(" ")
    ops = rest.split(",")
    if op.startswith(MEM):
        return 8
    if op.startswith(("s_waitcnt", "s_barrier", "s_nop", "s_branch", "s_cbranch", "s_setprio", "s_endpgm", "s_sleep")):
        return 4
    if op.startswith("v_"):
        if op.startswith(VOP3_ONLY) or op.endswith("_e64") or re.search(r"[ ,]-v\d|abs\(", " " + rest):
            return 8
        return 8 if has_literal(ops) else 4
    return 8 if has_literal(ops) else 4


def widenable(ln):
    op, _, rest = ln.partition(" ")
    return op.startswith("v_") and ins_size(ln) == 4 and not op.startswith(("v_readfirstlane", "v_permlane", "v_nop")) and not op.endswith("_e32")


def align_pass(lines):
    out = list(lines)
    off, run = 0, []
    fixed = missed = 0
    for i, ln in enumerate(out):
        t = ln.strip()
        if not t or t[0] == ";":
            continue
        if t.endswith(":"):
            continue
        if t.startswith(".p2align"):
            n = 1 << int(t.split()[1].rstrip(","))
            off = (off + n - 1) // n * n
            run = []
            continue
        if t[0] == ".":
            continue
        sz = ins_size(t)
        if sz == 8:
            if off % 8 == 4:
                cand = [j for j in run if widenable(out[j].strip())]
                if cand:
                    j = cand[-1]
                    op, _, rest = out[j].strip().partition(" ")
                    out[j] = "    %s_e64 %s" % (op, rest)
                    off += 4
                    fixed += 1
                else:
                    missed += 1
            run = []
        else:
            run.append(i)
        off += sz
    return out, fixed, missed


def kd(name, vgpr, sgpr):
    acc = (vgpr + 3) // 4 * 4
    return """.p2align 6
.amdhsa_kernel %s
  .amdhsa_next_free_vgpr %d
  .amdhsa_next_free_sgpr %d
  .amdhsa_accum_offset %d
  .amdhsa_group_segment_fixed_size 0
  .amdhsa_kernarg_size 104
  .amdhsa_user_sgpr_count 2
  .amdhsa_user_sgpr_kernarg_segment_ptr 1
  .amdhsa_system_sgpr_workgroup_id_x 1
.end_amdhsa_kernel
""" % (name, vgpr, sgpr, acc)


def build():
    hdr = open("cdna_kernels/%s.s.ref" % NAME).read().split("\n")
    head = [ln for ln in hdr if ln.startswith(";") and "@launch" not in ln][:14]
    a = Prog()
    main = "attn_main_kernel" if multi() else NAME + "_kernel"
    if multi():
        head.append("; @launch kernel=attn_main_kernel grid=(256,1,1) block=(512,1,1) lds=%d" % LDS_BYTES)
        head.append("; @launch kernel=attn_reduce_kernel grid=(256,1,1) block=(384,1,1) lds=6144")
    else:
        head.append("; @launch grid=(256,1,1) block=(512,1,1) lds=%d" % LDS_BYTES)
    a('.amdgcn_target "amdgcn-amd-amdhsa--gfx950"')
    a(".text")
    a(".globl %s" % main)
    a(".p2align 8")
    a(".type %s,@function" % main)
    gen_main(a, main)
    kds = kd(main, NVGPR, NSGPR)
    if multi():
        kds += kd(gen_reduce(a), 48, 40)
    body = a.text()
    if opt.align:
        lines, fixed, missed = align_pass(body.split("\n"))
        body = "\n".join(lines)
        print("alignment pass: widened %d, unfixable %d" % (fixed, missed))
    return "\n".join(head) + "\n" + body + '.section .rodata,"a"\n' + kds


if __name__ == "__main__":
    out = sys.argv[1] if len(sys.argv) > 1 else "cdna_kernels/%s.s" % NAME
    for kv in sys.argv[2:]:
        k, v = kv.split("=", 1)
        cur = getattr(opt, k)
        if isinstance(cur, bool):
            v = v in ("1", "True", "true")
        elif isinstance(cur, int):
            v = int(v)
        elif v == "None":
            v = None
        setattr(opt, k, v)
    s = build()
    open(out, "w").write(s)
    print("wrote", out, len(s), "bytes,", s.count("\n"), "lines")
```

```python
import sys, math, struct, re

NAME = "concat_heads__gqa_block_cached__gqa_block_cached__near_ridge"


class Opt:
    fused_tail = True
    kv_aux = "nt"
    w_aux = ""
    dump = None
    L = 6
    waitstep = 4
    thr_log2 = 12
    stamps = False
    sumop = "add"
    prio = 0
    sleep = 2
    klead = 9
    vlead = 6
    spin_limit = 1 << 20
    lstamps = False
    x_stretch = 0
    x_mark = 'end'
    codepf = False
    codepf_n = 3
    dscost = 8
    slotcap = 40
    align = True
    x_nobar = False
    x_nosm = False
    x_nods = False
    x_norare = False
    x_nomfma = False
    x_q_nomfma = False
    x_q_nods = False
    x_q_nodma = False
    x_o_nodma = False
    x_o_nomfma = False
    x_o_nost = False
    x_o_nods = False
    x_t_nords = False
    x_t_nowr = False


opt = Opt()

KB = 1024
K_BASE = 0
V_BASE = 64 * KB
M_BASE = 128 * KB
MROW = 272
X_BASE = 112 * KB
NWS = 7
LDS_BYTES = 160 * KB
RWO = [32 * KB, 64 * KB, 0, 96 * KB]
def kslot(t):
    return (t + 4) % 8

WS_PART_BYTES = 16 * 16 * 16 * 3072
WS_CNT = 14 << 20
WS_DUMP = 16 << 20
WS_STAMP = 48 << 20
WS_BYTES = 268435456

sW = 3
sB, sHP, sBR, sKVH = 4, 5, 6, 7
SRD_X, SRD_WQ, SRD_K, SRD_V, SRD_WO, SRD_WS = 8, 12, 16, 20, 24, 28
sT0, sT1, sT2, sT3, sT4, sT5 = 32, 33, 34, 35, 36, 37
sGRP = 38
sOFF = 39
sPASS = 40
sTHR = 41
sKS = 42
sPOFF = 43
sSTAMP = 44
sDBG = 46
SRD_OUT = 48
SRD_ST = 52
P_X, P_K, P_V, P_WQ = 56, 58, 60, 62
KA = 64
P_OUT, P_DBG, P_WS = KA + 20, KA + 22, KA + 24
P_WO = 90
sSTOFF = 92
sJ, sJ64K, sJ2K = 93, 94, 95
SRD_DBG = 96
NSGPR = 102

vL = 0
vT = [1, 2, 3, 4, 5, 6, 7, 8, 9]
vKA = list(range(10, 18))
vVA = list(range(18, 22))
vWA = list(range(22, 26))
vXB, vXT = 26, 27
vPSA, vPSB, vLACC, vTMP = 28, 29, 30, 31
vQ = 32
vO = 64
vS = [128, 144]
vNM = 160
vP = [176, 184]
vF = 192
vE = 224
vWA2 = [232, 233, 234, 235]
vQW = 236
vOW = 237
vOR = 240
vQR = 241
vVP = 242
vFLAG = 243
vWOA = 244
vWOT = [245, 246]
vST = 247
vONE = 248
vDUM = 249
vSTA, vSTB = 250, 251
NVGPR = 252
vACC1 = 64
vA1 = [128, 144]
vB1 = [160, 172]
vB3 = 32
vA3 = [128, 160]
vACC3 = [192, 216]
vLW = [10, 11, 12, 13]
vLK = [14, 15]
vLV = 16
vLWO = [18, 19, 20, 21]


def f32bits(x):
    return struct.unpack("<I", struct.pack("<f", x))[0]


class Prog:
    def __init__(self):
        self.lines = []
    def __call__(self, s):
        self.lines += s.split("\n")
    def label(self, s):
        self.lines.append(s + ":")
    def text(self):
        out = []
        for ln in self.lines:
            ln = ln.strip()
            if ln:
                out.append(ln if ln.endswith(":") or ln[0] in ".;" else "    " + ln)
        return "\n".join(out) + "\n"


def vr(b, n):
    return "v[%d:%d]" % (b, b + n - 1) if n > 1 else "v%d" % b


class Queue:
    def __init__(self, limit):
        self.q = []
        self.limit = limit
    def issue(self, tag, n=1):
        self.q += [tag] * n
        assert len(self.q) <= self.limit, (tag, len(self.q))
    def need(self, tags):
        last = -1
        for i, t in enumerate(self.q):
            if t in tags:
                last = i
        if last < 0:
            return None
        n = len(self.q) - 1 - last
        self.q = self.q[last + 1:]
        return n
    def drain(self):
        self.q = []


def srd(a, base, ptr, size, off_s=None):
    if off_s is None:
        a("s_mov_b32 s%d, s%d" % (base, ptr))
        a("s_mov_b32 s%d, s%d" % (base + 1, ptr + 1))
    else:
        a("s_add_u32 s%d, s%d, s%d" % (base, ptr, off_s))
        a("s_addc_u32 s%d, s%d, 0" % (base + 1, ptr + 1))
    a("s_mov_b32 s%d, 0x%x" % (base + 2, size))
    a("s_mov_b32 s%d, 0x20000" % (base + 3))


MARKS = {1: "x", 2: "q", 3: "att", 5: "gemm", 6: "drain", 7: "sync", 8: "end"}


def stamp(a, idx):
    if opt.x_stretch and MARKS.get(idx) == opt.x_mark:
        a("s_memrealtime s[%d:%d]" % (sSTAMP, sSTAMP + 1))
        a("s_waitcnt lgkmcnt(0)")
        a("s_sub_u32 s%d, s%d, s100" % (sDBG, sSTAMP))
    if not opt.stamps:
        return
    a("s_memrealtime s[%d:%d]" % (sSTAMP, sSTAMP + 1))
    a("s_memtime s[%d:%d]" % (sDBG, sDBG + 1))
    a("s_waitcnt lgkmcnt(0)")
    a("v_mov_b32 v%d, s%d" % (vSTA, sSTAMP))
    a("v_mov_b32 v%d, s%d" % (vSTB, sSTOFF))
    a("buffer_store_dword v%d, v%d, s[%d:%d], 0 offen offset:%d" % (vSTA, vSTB, SRD_ST, SRD_ST + 3, idx * 4))
    a("v_mov_b32 v%d, s%d" % (vSTA, sDBG))
    a("buffer_store_dword v%d, v%d, s[%d:%d], 0 offen offset:%d" % (vSTA, vSTB, SRD_ST, SRD_ST + 3, 128 + idx * 4))


def fill_cost(ins):
    op = ins.split()[0]
    return 8 if op.startswith(("ds_", "buffer_", "v_exp", "v_rcp")) else 4


def interleave(a, mfmas, fill, gap=8):
    total = sum(fill_cost(f) for f in fill)
    per = max(gap, -(-total // max(len(mfmas), 1))) if mfmas else 0
    i, credit = 0, 0
    for m in mfmas:
        a(m)
        credit += per
        while i < len(fill) and fill_cost(fill[i]) <= credit:
            credit -= fill_cost(fill[i])
            a(fill[i]); i += 1
    while i < len(fill):
        a(fill[i]); i += 1


def multi():
    return not opt.fused_tail


def dump_regs(a, base, n):
    a("s_lshl_b32 s%d, s2, 3" % sT0)
    a("s_add_u32 s%d, s%d, s%d" % (sT0, sT0, sW))
    a("s_mul_i32 s%d, s%d, %d" % (sT0, sT0, 96 * 256))
    a("s_add_u32 s%d, s%d, 0x%x" % (sT0, sT0, WS_DUMP))
    a("v_lshlrev_b32 v%d, 4, v%d" % (vT[8], vL))
    for g in range(n // 4):
        a("buffer_store_dwordx4 %s, v%d, s[%d:%d], s%d offen" % (vr(base + g * 4, 4), vT[8], SRD_WS, SRD_WS + 3, sT0))
        a("s_add_u32 s%d, s%d, 1024" % (sT0, sT0))
    a("s_waitcnt vmcnt(0)")


def reduce_body(a, s_w, s_wgoff, srd_ws, srd_out, s_grp, s_dest, aux, lds_base):
    t = [sT0, sT1, sT2, sT3, sT4, sT5]
    a("s_cmp_ge_u32 s%d, 3" % s_w)
    a("s_cselect_b32 s%d, 1, 0" % t[3])
    a("s_mul_i32 s%d, s%d, 3" % (t[4], t[3]))
    a("s_sub_u32 s%d, s%d, s%d" % (t[4], s_w, t[4]))
    a("v_lshlrev_b32 v2, 4, v0")
    a("s_lshl_b32 s%d, s%d, 10" % (t[0], t[4]))
    a("s_add_u32 s%d, s%d, s%d" % (t[0], t[0], s_wgoff))
    a("s_mul_i32 s%d, s%d, %d" % (t[1], t[3], 8 * 3072))
    a("s_add_u32 s%d, s%d, s%d" % (t[0], t[0], t[1]))
    for s in range(8):
        a("buffer_load_dwordx4 %s, v2, s[%d:%d], s%d offen %s" % (vr(12 + 4 * s, 4), srd_ws, srd_ws + 3, t[0], aux))
        if s < 7:
            a("s_add_u32 s%d, s%d, 3072" % (t[0], t[0]))
    a("s_lshl_b32 s%d, s%d, 11" % (t[0], t[4]))
    a("s_add_u32 s%d, s%d, %d" % (t[0], t[0], lds_base))
    a("v_lshlrev_b32 v1, 5, v0")
    a("v_add_u32 v1, s%d, v1" % t[0])
    a("s_and_b32 s%d, s%d, 7" % (t[1], s_grp))
    a("s_lshr_b32 s%d, s%d, 3" % (t[2], s_grp))
    a("s_mul_i32 s%d, s%d, 48" % (t[1], t[1]))
    a("s_lshl_b32 s%d, s%d, 4" % (t[4], t[4]))
    a("s_add_u32 s%d, s%d, s%d" % (t[1], t[1], t[4]))
    a("s_lshl_b32 s%d, s%d, 11" % (t[1], t[1]))
    a("s_lshl_b32 s%d, s%d, 10" % (t[2], t[2]))
    a("s_add_u32 s%d, s%d, s%d" % (t[1], t[1], t[2]))
    a("s_lshl_b32 s%d, s%d, 6" % (t[2], s_dest))
    a("s_add_u32 s%d, s%d, s%d" % (t[1], t[1], t[2]))
    a("v_and_b32 v3, 15, v0")
    a("v_lshrrev_b32 v4, 4, v0")
    a("v_lshlrev_b32 v3, 11, v3")
    a("v_lshl_add_u32 v3, v4, 3, v3")
    a("s_mov_b32 s%d, 0xffff0000" % t[5])
    for s in range(8):
        a("s_waitcnt vmcnt(%d)" % (7 - s))
        for d in range(4):
            x = 12 + 4 * s + d
            if s == 0:
                a("v_lshlrev_b32 v%d, 16, v%d" % (4 + 2 * d, x))
                a("v_and_b32 v%d, s%d, v%d" % (5 + 2 * d, t[5], x))
            else:
                a("v_lshlrev_b32 v44, 16, v%d" % x)
                a("v_and_b32 v45, s%d, v%d" % (t[5], x))
                a("v_add_f32 v%d, v%d, v44" % (4 + 2 * d, 4 + 2 * d))
                a("v_add_f32 v%d, v%d, v45" % (5 + 2 * d, 5 + 2 * d))
    a("s_cmp_eq_u32 s%d, 0" % t[3])
    a("s_cbranch_scc1 L_RED_LOW")
    a("ds_write_b128 v1, v[4:7]")
    a("ds_write_b128 v1, v[8:11] offset:16")
    a("s_waitcnt lgkmcnt(0)")
    a("s_barrier")
    a("s_branch L_RED_DONE")
    a.label("L_RED_LOW")
    a("s_barrier")
    a("ds_read_b128 v[12:15], v1")
    a("ds_read_b128 v[16:19], v1 offset:16")
    a("s_waitcnt lgkmcnt(0)")
    for d in range(8):
        a("v_add_f32 v%d, v%d, v%d" % (4 + d, 4 + d, 12 + d))
    for d in range(4):
        a("v_cvt_pk_bf16_f32 v%d, v%d, v%d" % (4 + d, 4 + 2 * d, 5 + 2 * d))
    a("buffer_store_dwordx2 v[4:5], v3, s[%d:%d], s%d offen" % (srd_out, srd_out + 3, t[1]))
    a("buffer_store_dwordx2 v[6:7], v3, s[%d:%d], s%d offen offset:32" % (srd_out, srd_out + 3, t[1]))
    a.label("L_RED_DONE")


def gen_main(a, name):
    bars = {"C": [], "I": [], "L": []}
    part_aux = "sc1" if opt.fused_tail else ""

    def bar(roles, nm, skip=False):
        if not skip:
            a("s_barrier")
        for r in roles:
            bars[r].append(nm)

    a.label(name)
    a("s_cmp_ge_u32 s2, 256")
    a("s_cbranch_scc1 L_END")
    a("s_load_dwordx16 s[%d:%d], s[0:1], 0" % (KA, KA + 15))
    a("s_load_dwordx8 s[%d:%d], s[0:1], 64" % (KA + 16, KA + 23))
    a("s_load_dwordx2 s[%d:%d], s[0:1], 96" % (KA + 24, KA + 25))
    if opt.x_stretch:
        a("s_memrealtime s[100:101]")
    a("s_and_b32 s%d, s2, 7" % sT0)
    a("s_lshr_b32 s%d, s2, 3" % sT1)
    a("s_lshr_b32 s%d, s%d, 4" % (sT2, sT1))
    a("s_lshl_b32 s%d, s%d, 1" % (sT0, sT0))
    a("s_add_u32 s%d, s%d, s%d" % (sT0, sT0, sT2))
    a("s_lshr_b32 s%d, s%d, 3" % (sBR, sT0))
    a("s_and_b32 s%d, s%d, 7" % (sKVH, sT0))
    a("s_bfe_u32 s%d, s%d, 0x30001" % (sB, sT1))
    a("s_and_b32 s%d, s%d, 1" % (sT2, sT1))
    a("s_lshl_b32 s%d, s%d, 1" % (sHP, sKVH))
    a("s_add_u32 s%d, s%d, s%d" % (sHP, sHP, sT2))
    a("v_lshrrev_b32 v1, 6, v0")
    a("v_and_b32 v0, 63, v0")
    a("v_readfirstlane_b32 s%d, v1" % sW)
    a("s_lshl_b32 s%d, s%d, 3" % (sGRP, sBR))
    a("s_add_u32 s%d, s%d, s%d" % (sGRP, sGRP, sB))
    if opt.codepf:
        a("s_cmp_lg_u32 s%d, 3" % sW)
        a("s_cbranch_scc1 L_NOPF")
        a("s_getpc_b64 s[%d:%d]" % (sT2, sT3))
        a.label("L_PC")
        a("v_lshlrev_b32 v2, 7, v0")
        a("v_mov_b32 v5, s%d" % sT3)
        a("v_add_co_u32 v4, vcc, s%d, v2" % sT2)
        a("s_nop 1")
        a("v_addc_co_u32 v5, vcc, 0, v5, vcc")
        a(".set PF_BYTES, L_END - L_PC")
        for i in range(opt.codepf_n):
            if i:
                a("v_add_co_u32 v4, vcc, 0x2000, v4")
                a("s_nop 1")
                a("v_addc_co_u32 v5, vcc, 0, v5, vcc")
            a("v_add_u32 v3, %d, v2" % (i * 8192))
            a("v_cmp_gt_u32 vcc, PF_BYTES, v3")
            a("s_and_saveexec_b64 s[%d:%d], vcc" % (sT0, sT1))
            a("s_cbranch_execz L_PF_SKIP%d" % i)
            a("global_load_dword v%d, v[4:5], off" % vDUM)
            a.label("L_PF_SKIP%d" % i)
            a("s_mov_b64 exec, s[%d:%d]" % (sT0, sT1))
        a.label("L_NOPF")
    a("s_waitcnt lgkmcnt(0)")
    a("s_cmp_eq_u32 s%d, 0" % sBR)
    for dst, pa, pb in ((P_WQ, KA + 6, KA + 16), (P_X, KA + 0, KA + 10), (P_K, KA + 2, KA + 12),
                        (P_V, KA + 4, KA + 14), (P_WO, KA + 8, KA + 18)):
        a("s_cselect_b32 s%d, s%d, s%d" % (dst, pa, pb))
        a("s_cselect_b32 s%d, s%d, s%d" % (dst + 1, pa + 1, pb + 1))
    if opt.stamps:
        srd(a, SRD_ST, P_WS, WS_BYTES)
        a("s_lshl_b32 s%d, s2, 3" % sSTOFF)
        a("s_add_u32 s%d, s%d, s%d" % (sSTOFF, sSTOFF, sW))
        a("s_lshl_b32 s%d, s%d, 8" % (sSTOFF, sSTOFF))
        a("s_add_u32 s%d, s%d, 0x%x" % (sSTOFF, sSTOFF, WS_STAMP))
        stamp(a, 0)
    a("s_cmp_ge_u32 s%d, 4" % sW)
    a("s_cbranch_scc1 L_LOADER")

    a("s_cmp_eq_u32 s%d, 3" % sW)
    a("s_cbranch_scc1 L_W3_START")
    a("s_mul_i32 s%d, s%d, 49152" % (sT0, sB))
    srd(a, SRD_X, P_X, 49152, sT0)
    a("v_lshlrev_b32 v2, 4, v0")
    a("s_lshl_b32 s%d, s%d, 14" % (sT1, sW))
    for i in range(16):
        if i % 4 == 0:
            a("s_add_u32 s%d, s%d, %d" % (sT2, sT1, (i // 4) * 4096))
            a("s_add_u32 m0, s%d, %d" % (sT2, X_BASE))
        a("v_xor_b32 v3, %d, v2" % (i * 16))
        a("buffer_load_dwordx4 v3, s[%d:%d], s%d offen offset:%d %s lds" % (SRD_X, SRD_X + 3, sT2, (i % 4) * 1024, opt.w_aux))

    a("s_branch L_WORK_SETUP")
    a.label("L_W3_START")
    if opt.fused_tail:
        a("s_cmp_lg_u32 s%d, 0" % sHP)
        a("s_cbranch_scc1 L_WORK_SETUP")
        srd(a, SRD_WS, P_WS, WS_BYTES)
        srd(a, SRD_DBG, P_DBG, 256)
        a("s_lshl_b32 s%d, s%d, 8" % (sT0, sGRP))
        a("s_add_u32 s%d, s%d, 0x%x" % (sT0, sT0, WS_CNT))
        a("s_lshl_b32 s%d, s%d, 4" % (sT1, sGRP))
        a("s_mov_b64 s[%d:%d], exec" % (sT2, sT3))
        a("v_mov_b32 v2, 0")
        a("v_mov_b32 v3, 1")
        a("s_mov_b64 exec, 1")
        a("buffer_store_dword v2, v2, s[%d:%d], s%d offen sc1" % (SRD_WS, SRD_WS + 3, sT0))
        a("s_waitcnt vmcnt(0)")
        a("buffer_atomic_add v3, v2, s[%d:%d], s%d offen sc1" % (SRD_DBG, SRD_DBG + 3, sT1))
        a("s_mov_b64 exec, s[%d:%d]" % (sT2, sT3))

    a.label("L_WORK_SETUP")
    l = vL
    t1, t2, t3, t4, t5 = vT[0:5]
    G, rp, cp = vT[5], vT[6], vT[7]
    a("v_and_b32 v%d, 15, v%d" % (t3, l))
    a("v_lshrrev_b32 v%d, 4, v%d" % (G, l))
    a("v_bfe_u32 v%d, v%d, 2, 2" % (rp, l))
    a("v_and_b32 v%d, 3, v%d" % (cp, l))
    a("v_xor_b32 v%d, v%d, v%d" % (t4, G, t3))
    a("v_lshlrev_b32 v%d, 4, v%d" % (t4, t4))
    a("v_lshl_add_u32 v%d, v%d, 10, v%d" % (t5, t3, t4))
    a("v_add_u32 v%d, 0x%x, v%d" % (vXB, X_BASE, t5))
    a("v_mul_u32_u24 v%d, %d, v%d" % (t5, MROW, t3))
    a("v_lshl_add_u32 v%d, v%d, 4, v%d" % (t4, G, t5))
    a("v_add_u32 v%d, 0x%x, v%d" % (vOR, M_BASE, t4))
    a("v_lshl_add_u32 v%d, v%d, 3, v%d" % (t4, G, t5))
    a("s_lshr_b32 s%d, s%d, 1" % (sT0, sW))
    a("s_mul_i32 s%d, s%d, %d" % (sT0, sT0, 48 * MROW))
    a("s_and_b32 s%d, s%d, 1" % (sT1, sW))
    a("s_lshl_b32 s%d, s%d, 7" % (sT1, sT1))
    a("s_add_u32 s%d, s%d, s%d" % (sT0, sT0, sT1))
    a("s_add_u32 s%d, s%d, %d" % (sT0, sT0, M_BASE))
    a("v_add_u32 v%d, s%d, v%d" % (vQW, sT0, t4))
    a("v_and_b32 v%d, 1, v%d" % (t4, G))
    a("v_lshl_add_u32 v%d, v%d, 2, v%d" % (t4, t4, rp))
    a("s_lshl_b32 s%d, s%d, 2" % (sT0, sW))
    a("v_xor_b32 v%d, s%d, v%d" % (t5, sT0, t4))
    a("v_lshlrev_b32 v%d, 5, v%d" % (t5, t5))
    a("v_lshl_add_u32 v%d, v%d, 3, v%d" % (t1, G, rp))
    a("v_lshl_add_u32 v%d, v%d, 9, v%d" % (t5, t1, t5))
    a("v_lshl_add_u32 v%d, v%d, 3, v%d" % (vWA[0], cp, t5))
    for nb in range(1, 4):
        a("v_xor_b32 v%d, %d, v%d" % (vWA[nb], nb * 32, vWA[0]))
    for nb in range(4):
        a("v_add_u32 v%d, 0x10000, v%d" % (vWA2[nb], vWA[nb]))
    a("s_lshl_b32 s%d, s%d, 1" % (sT0, sW))
    a("v_xor_b32 v%d, s%d, v%d" % (t5, sT0, t4))
    a("v_lshlrev_b32 v%d, 5, v%d" % (t5, t5))
    a("v_lshl_add_u32 v%d, v%d, 8, v%d" % (t5, t1, t5))
    a("v_lshl_add_u32 v%d, v%d, 3, v%d" % (vWOA, cp, t5))
    a("v_and_b32 v%d, 31, v%d" % (t1, l))
    a("v_lshrrev_b32 v%d, 5, v%d" % (t2, l))
    a("v_xor_b32 v%d, v%d, v%d" % (t4, t2, t3))
    a("v_lshlrev_b32 v%d, 4, v%d" % (t4, t4))
    a("v_lshl_add_u32 v%d, v%d, 8, v%d" % (vKA[0], t1, t4))
    for ks in range(1, 8):
        a("v_xor_b32 v%d, %d, v%d" % (vKA[ks], ks * 32, vKA[0]))
    a("v_mul_u32_u24 v%d, %d, v%d" % (t4, MROW, t1))
    a("s_mul_i32 s%d, s%d, %d" % (sT0, sW, 32 * MROW))
    a("s_add_u32 s%d, s%d, %d" % (sT0, sT0, M_BASE))
    a("v_add_u32 v%d, s%d, v%d" % (t4, sT0, t4))
    a("v_lshl_add_u32 v%d, v%d, 3, v%d" % (vOW, t2, t4))
    a("v_lshl_add_u32 v%d, v%d, 4, v%d" % (vQR, t2, t4))
    a("v_lshl_add_u32 v%d, v%d, 2, v%d" % (t1, t2, rp))
    a("v_and_b32 v%d, 1, v%d" % (t4, G))
    a("v_lshlrev_b32 v%d, 1, v%d" % (t4, t4))
    a("v_lshrrev_b32 v%d, 1, v%d" % (t5, cp))
    a("v_add_u32 v%d, v%d, v%d" % (t4, t4, t5))
    a("v_lshlrev_b32 v%d, 2, v%d" % (t5, rp))
    a("v_xor_b32 v%d, v%d, v%d" % (t4, t4, t5))
    a("v_lshlrev_b32 v%d, 4, v%d" % (t4, t4))
    a("v_lshl_add_u32 v%d, v%d, 8, v%d" % (t4, t1, t4))
    a("v_and_b32 v%d, 1, v%d" % (t5, cp))
    a("v_lshl_add_u32 v%d, v%d, 3, v%d" % (t4, t5, t4))
    a("v_add_u32 v%d, 0x%x, v%d" % (vVA[0], V_BASE, t4))
    for db in range(1, 4):
        a("v_xor_b32 v%d, %d, v%d" % (vVA[db], db * 64, vVA[0]))
    a("v_lshlrev_b32 v%d, 4, v%d" % (vST, l))
    a("s_lshl_b32 s%d, s%d, 8" % (sT0, sGRP))
    a("s_add_u32 s%d, s%d, s%d" % (sT0, sT0, sHP))
    a("s_lshl_b32 s%d, s%d, 4" % (sT1, sW))
    a("s_add_u32 s%d, s%d, s%d" % (sT0, sT0, sT1))
    a("s_mul_i32 s%d, s%d, 3072" % (sPOFF, sT0))
    srd(a, SRD_WS, P_WS, WS_BYTES)
    a("s_mov_b32 s%d, 0x%08x" % (sTHR, f32bits(2.0 ** opt.thr_log2)))
    for r in range(48):
        a("v_mov_b32 v%d, 0" % (vACC1 + r))
    for r in range(16):
        a("v_mov_b32 v%d, 0" % (vA1[1] + r))
    for r in range(12):
        a("v_mov_b32 v%d, 0" % (vB1[1] + r))
    a("s_cmp_eq_u32 s%d, 3" % sW)
    a("s_cbranch_scc1 L_X_LANDED")
    a("s_waitcnt vmcnt(0)")
    a.label("L_X_LANDED")
    stamp(a, 1)

    def q_mfma_list(pb):
        if opt.x_q_nomfma:
            return []
        out = []
        for nb in range(4):
            for qb in range(3):
                acc = vACC1 + (nb * 3 + qb) * 4
                out.append("v_mfma_f32_16x16x32_bf16 %s, %s, %s, %s" % (vr(acc, 4), vr(vA1[pb] + nb * 4, 4), vr(vB1[pb] + qb * 4, 4), vr(acc, 4)))
        return out
    vXTT = [vXT, vT[8]]
    def x_addr(e):
        v = vXTT[e & 1]
        return ["s_lshl_b32 s%d, s%d, 1" % (sT0, sB),
                "s_add_u32 s%d, s%d, %d" % (sT0, sT0, e),
                "s_and_b32 s%d, s%d, 3" % (sT1, sT0),
                "s_lshl_b32 s%d, s%d, 6" % (sT1, sT1),
                "s_bfe_u32 s%d, s%d, 0x20002" % (sT2, sT0),
                "s_lshl_b32 s%d, s%d, 8" % (sT2, sT2),
                "v_xor_b32 v%d, s%d, v%d" % (v, sT1, vXB),
                "v_add_u32 v%d, s%d, v%d" % (v, sT2, v)]
    for ins in x_addr(0):
        a(ins)
    for e in range(16):
        bar("CI", "Q%d" % e)
        if e in (0, 4, 8, 12):
            stamp(a, 9 + e // 4)
        pb = e & 1
        slot = e % NWS
        wa, so = (vWA, slot * 16384) if slot < 4 else (vWA2, (slot - 4) * 16384)
        fill = []
        if not opt.x_q_nods:
            for nb in range(4):
                for jj in range(2):
                    fill.append("ds_read_b64_tr_b16 %s, v%d offset:%d" % (vr(vA1[pb] + nb * 4 + jj * 2, 2), wa[nb], so + jj * 2048))
                if nb == 0:
                    for qb in range(3):
                        fill.append("ds_read_b128 %s, v%d offset:%d" % (vr(vB1[pb] + qb * 4, 4), vXTT[e & 1], qb * 16384))
        if e < 15:
            fill += x_addr(e + 1)
        interleave(a, q_mfma_list(pb ^ 1), fill)
        a("s_waitcnt lgkmcnt(0)")
    bar("CI", "Q16")
    stamp(a, 13)
    for m in q_mfma_list(1):
        a(m)
    scale = math.log2(math.e) / math.sqrt(128.0)
    a("s_mov_b32 s%d, 0x%08x" % (sT2, f32bits(scale)))
    a("s_mov_b32 s%d, 0x%08x" % (sT3, f32bits(scale)))
    a("s_nop 5")
    for nb in range(4):
        for qb in range(3):
            acc = vACC1 + (nb * 3 + qb) * 4
            a("v_pk_mul_f32 %s, %s, s[%d:%d]" % (vr(acc, 2), vr(acc, 2), sT2, sT3))
            a("v_pk_mul_f32 %s, %s, s[%d:%d]" % (vr(acc + 2, 2), vr(acc + 2, 2), sT2, sT3))
            a("v_cvt_pk_bf16_f32 v%d, v%d, v%d" % (acc, acc, acc + 1))
            a("v_cvt_pk_bf16_f32 v%d, v%d, v%d" % (acc + 1, acc + 2, acc + 3))
            a("ds_write_b64 v%d, %s offset:%d" % (vQW, vr(acc, 2), qb * 16 * MROW + nb * 32))
    a("s_waitcnt lgkmcnt(0)")
    bar("CI", "Q17")
    stamp(a, 2)
    a("s_cmp_eq_u32 s%d, 3" % sW)
    a("s_cbranch_scc1 L_TRANS")

    if opt.prio:
        a("s_setprio %d" % opt.prio)
    dq = Queue(1000)
    for ks in range(8):
        a("ds_read_b128 %s, v%d offset:%d" % (vr(vQ + ks * 4, 4), vQR, ks * 32))
        dq.issue("Q")
    L, WS = opt.L, opt.waitstep

    def frag_ops(p):
        return 1 if (p & 15) < 8 else 2

    def frag_read(t, p):
        if p >= 16:
            t, p = t + 1, p - 16
        fb = vF + (p & 7) * 4
        if p < 8:
            if not opt.x_nods:
                a("ds_read_b128 %s, v%d offset:%d" % (vr(fb, 4), vKA[p], kslot(t + 1) * 8192))
            dq.issue("F%d" % (p & 7), 1)
        else:
            u, db = (p - 8) >> 2, (p - 8) & 3
            for jj in range(2):
                if not opt.x_nods:
                    a("ds_read_b64_tr_b16 %s, v%d offset:%d" % (vr(fb + jj * 2, 2), vVA[db], ((t - 1) % 8) * 8192 + (16 * u + 8 * jj) * 256))
            dq.issue("F%d" % (p & 7), 2)

    def wait_frags(p):
        if p % WS:
            return
        n = dq.need({"F%d" % ((p + i) & 7) for i in range(WS)})
        if n is not None and not opt.x_nods:
            assert n <= 15
            a("s_waitcnt lgkmcnt(%d)" % n)

    def sm_ops(t):
        S, P = vS[t & 1], vP[t & 1]
        def E(k, i):
            return ("v_exp_f32 v%d, v%d" % (vE + (k & 1) * 2 + i, S + 2 * k + i), 8)
        def adds(k):
            e0, e1 = vE + (k & 1) * 2, vE + (k & 1) * 2 + 1
            if k < 2:
                return [("v_add_f32 v%d, v%d, v%d" % ((vPSA, vPSB)[k], e0, e1), 4)]
            return [("v_add_f32 v%d, v%d, v%d" % (vPSA, vPSA, e0), 4), ("v_add_f32 v%d, v%d, v%d" % (vPSB, vPSB, e1), 4)]
        def C(k):
            return ("v_cvt_pk_bf16_f32 v%d, v%d, v%d" % (P + k, vE + (k & 1) * 2, vE + (k & 1) * 2 + 1), 4)
        ops = [E(0, 0), E(0, 1)]
        for k in range(1, 8):
            ops += [E(k, 0)] + adds(k - 1) + [E(k, 1), C(k - 1)]
        ops += adds(7) + [C(7)]
        ops.append(("v_add_f32 v%d, v%d, v%d" % (vPSA, vPSA, vPSB), 4))
        ops.append(("v_cmp_nge_f32 vcc, s%d, v%d" % (sTHR, vPSA), 4))
        return ops

    def sm_schedule(ops, base):
        room = [max(opt.slotcap - base[p], 4) for p in range(15)]
        total = sum(c for _, c in ops)
        scale_ = total / float(sum(room))
        slots = [[] for _ in range(16)]
        i, cum_room, cum = 0, 0.0, 0
        for p in range(15):
            cum_room += room[p] * scale_
            while i < len(ops) and (cum + ops[i][1] / 2.0 <= cum_room or p == 14):
                slots[p].append(ops[i][0])
                cum += ops[i][1]
                i += 1
        return slots

    rare = []

    def period(t, tag, do_qk, do_sm, do_pv, c_zero=False, has_bar=True, next_qk=True):
        Sn, Pp = vS[(t + 1) & 1], vP[(t - 1) & 1]
        def want(pn):
            return (pn < 8 and do_qk) or (8 <= pn < 16 and do_pv) or (pn >= 16 and next_qk)
        base = []
        for p in range(16):
            c = 8 + (opt.dscost * frag_ops(p + L) if want(p + L) else 0) + (4 if p % WS == 0 else 0) + (4 if p == 16 - L else 0)
            base.append(c)
        sm = sm_schedule(sm_ops(t), base) if do_sm and not opt.x_nosm else [[] for _ in range(16)]
        for p in range(16):
            mf = None
            if p < 8 and do_qk:
                c = "0" if (p == 0 and c_zero) else (vr(vNM, 16) if p == 0 else vr(Sn, 16))
                mf = "v_mfma_f32_32x32x16_bf16 %s, %s, %s, %s" % (vr(Sn, 16), vr(vF + (p & 7) * 4, 4), vr(vQ + p * 4, 4), c)
            if p >= 8 and do_pv:
                u, db = (p - 8) >> 2, (p - 8) & 3
                mf = "v_mfma_f32_32x32x16_bf16 %s, %s, %s, %s" % (vr(vO + db * 16, 16), vr(vF + (p & 7) * 4, 4), vr(Pp + u * 4, 4), vr(vO + db * 16, 16))
            if p == 16 - L and has_bar:
                bar("C", "A%s" % tag, opt.x_nobar)
            if mf:
                wait_frags(p)
                if not opt.x_nomfma:
                    a(mf)
            if want(p + L):
                frag_read(t, p + L)
            for ins in sm[p]:
                if ins == "v_exp_pad":
                    continue
                prev = next(x for x in reversed(a.lines) if x.strip() and not x.strip().endswith(":")).strip()
                if prev.startswith("v_exp_f32") and not ins.startswith("v_exp") and prev.split()[1].rstrip(",") in [o.strip() for o in ins.split(None, 1)[1].split(",")[1:]]:
                    a("s_nop 0")
                a(ins)
        if do_sm:
            lab = "L_RARE_%s" % tag
            if not opt.x_norare and not opt.x_nosm:
                a("s_cbranch_vccnz %s" % lab)
                rare.append((lab, t, do_qk))
                a.label(lab + "_BACK")
            a("v_add_f32 v%d, v%d, v%d" % (vLACC, vLACC, vPSA))

    def row_max(S, dst):
        a("v_max3_f32 v%d, v%d, v%d, v%d" % (dst, S, S + 1, S + 2))
        for r in range(3, 15, 2):
            a("v_max3_f32 v%d, v%d, v%d, v%d" % (dst, dst, S + r, S + r + 1))
        a("v_max_f32 v%d, v%d, v%d" % (dst, dst, S + 15))
        a("v_mov_b32 v%d, v%d" % (vTMP, dst))
        a("s_nop 1")
        a("v_permlane32_swap_b32 v%d, v%d" % (dst, vTMP))
        a("s_nop 1")
        a("v_max_f32 v%d, v%d, v%d" % (dst, dst, vTMP))

    def emit_rare(lab, t, fix_next):
        S, Sn, P = vS[t & 1], vS[(t + 1) & 1], vP[t & 1]
        d, f = vE + 4, vE + 5
        a.label(lab)
        a("s_nop 15")
        row_max(S, d)
        a("v_max_f32 v%d, 0, v%d" % (d, d))
        a("v_exp_f32 v%d, -v%d" % (f, d))
        for r in range(16):
            a("v_sub_f32 v%d, v%d, v%d" % (vNM + r, vNM + r, d))
        for r in range(16):
            a("v_sub_f32 v%d, v%d, v%d" % (S + r, S + r, d))
        if fix_next:
            for r in range(16):
                a("v_sub_f32 v%d, v%d, v%d" % (Sn + r, Sn + r, d))
        for r in range(64):
            a("v_mul_f32 v%d, v%d, v%d" % (vO + r, vO + r, f))
        a("v_mul_f32 v%d, v%d, v%d" % (vLACC, vLACC, f))
        a("v_mov_b32 v%d, 0" % vPSA)
        for k in range(8):
            a("v_exp_f32 v%d, v%d" % (vE, S + 2 * k))
            a("v_exp_f32 v%d, v%d" % (vE + 1, S + 2 * k + 1))
            a("v_add_f32 v%d, v%d, v%d" % (vPSA, vPSA, vE))
            a("v_add_f32 v%d, v%d, v%d" % (vPSA, vPSA, vE + 1))
            a("v_cvt_pk_bf16_f32 v%d, v%d, v%d" % (P + k, vE, vE + 1))
        a("s_nop 1")
        a("s_branch %s_BACK" % lab)

    for p in range(L):
        frag_read(-1, p)
    for r in range(64):
        a("v_mov_b32 v%d, 0" % (vO + r))
    a("v_mov_b32 v%d, 0" % vLACC)
    a("s_waitcnt lgkmcnt(%d)" % dq.need({"Q"}))
    if opt.dump == "q":
        dump_regs(a, vQ, 32)
    period(-1, "m1", True, False, False, c_zero=True)
    a("s_nop 15")
    row_max(vS[0], vE + 4)
    for r in range(16):
        a("v_sub_f32 v%d, 0, v%d" % (vNM + r, vE + 4))
    for r in range(16):
        a("v_sub_f32 v%d, v%d, v%d" % (vS[0] + r, vS[0] + r, vE + 4))
    a("s_nop 1")
    period(0, "0", True, True, False)
    q_entry = list(dq.q)
    a("s_mov_b32 s%d, 0" % sPASS)
    a(".p2align 3")
    a.label("L_ATT_LOOP")
    n0 = len(bars["C"])
    for t in range(1, 9):
        period(t, "L%d" % t, True, True, True)
        if t == 6:
            q_exit = list(dq.q)
            a("s_cmp_eq_u32 s%d, 3" % sPASS)
            a("s_cbranch_scc1 L_ATT_EXIT")
    assert dq.q == q_entry, (dq.q, q_entry)
    a("s_add_u32 s%d, s%d, 1" % (sPASS, sPASS))
    a("s_branch L_ATT_LOOP")
    del bars["C"][n0:]
    bars["C"] += ["A%d" % t for t in range(1, 31)]
    a.label("L_ATT_EXIT")
    dq.q = list(q_exit)
    period(31, "31", False, True, True, next_qk=False)
    period(32, "32", False, False, True, has_bar=False, next_qk=False)
    stamp(a, 3)
    a("v_mov_b32 v%d, v%d" % (vTMP, vLACC))
    a("s_nop 1")
    a("v_permlane32_swap_b32 v%d, v%d" % (vLACC, vTMP))
    a("s_nop 1")
    a("v_add_f32 v%d, v%d, v%d" % (vLACC, vLACC, vTMP))
    a("v_rcp_f32 v%d, v%d" % (vLACC, vLACC))
    a("s_nop 7")
    for db in range(4):
        for rr in range(4):
            b = vO + db * 16 + rr * 4
            a("v_pk_mul_f32 %s, %s, %s op_sel_hi:[1,0]" % (vr(b, 2), vr(b, 2), vr(vLACC, 2)))
            a("v_pk_mul_f32 %s, %s, %s op_sel_hi:[1,0]" % (vr(b + 2, 2), vr(b + 2, 2), vr(vLACC, 2)))
            a("v_cvt_pk_bf16_f32 v%d, v%d, v%d" % (b, b, b + 1))
            a("v_cvt_pk_bf16_f32 v%d, v%d, v%d" % (b + 1, b + 2, b + 3))
            a("ds_write_b64 v%d, %s offset:%d" % (vOW, vr(b, 2), db * 64 + rr * 16))
    if opt.prio:
        a("s_setprio 0")
    a("s_waitcnt lgkmcnt(0)")
    a("s_branch L_E0")

    a.label("L_TRANS")
    if not opt.x_nobar:
        a("s_mov_b32 s%d, 33" % sPASS)
        a.label("L_IDLE3_LOOP")
        a("s_barrier")
        a("s_sub_u32 s%d, s%d, 1" % (sPASS, sPASS))
        a("s_cmp_lg_u32 s%d, 0" % sPASS)
        a("s_cbranch_scc1 L_IDLE3_LOOP")
    bars["I"] += ["Am1"] + ["A%d" % t for t in range(0, 32)]

    a.label("L_E0")
    bar("CI", "E0")
    stamp(a, 4)

    def a3_list(p):
        out = ["v_add_u32 v%d, 0x%x, v%d" % (vWOT[0], RWO[p & 3], vWOA),
               "v_xor_b32 v%d, 32, v%d" % (vWOT[1], vWOT[0])]
        for ks in range(4 if not opt.x_o_nods else 0):
            for nb in range(2):
                for jj in range(2):
                    out.append("ds_read_b64_tr_b16 %s, v%d offset:%d" % (vr(vA3[p & 1] + (ks * 2 + nb) * 4 + jj * 2, 2), vWOT[nb], ks * 8192 + jj * 1024))
        return out
    def mf3_list(p):
        if opt.x_o_nomfma:
            return []
        out = []
        kh = p & 1
        for ks in range(4):
            for nb in range(2):
                for qb in range(3):
                    acc = vACC3[(p >> 1) & 1] + (qb * 2 + nb) * 4
                    c = "0" if (ks == 0 and kh == 0) else vr(acc, 4)
                    out.append("v_mfma_f32_16x16x32_bf16 %s, %s, %s, %s" % (vr(acc, 4), vr(vA3[p & 1] + (ks * 2 + nb) * 4, 4), vr(vB3 + ((kh * 4 + ks) * 3 + qb) * 4, 4), c))
        return out
    def st3_list(c):
        if opt.x_o_nost:
            return []
        out = ["s_add_u32 s%d, s%d, %d" % (sT0, sB, c),
               "s_and_b32 s%d, s%d, 3" % (sT0, sT0),
               "s_mul_i32 s%d, s%d, %d" % (sT0, sT0, 4 * 16 * 3072),
               "s_add_u32 s%d, s%d, s%d" % (sT0, sT0, sPOFF)]
        for qb in range(3):
            acc = vACC3[c & 1] + qb * 8
            for d in range(4):
                out.append("v_cvt_pk_bf16_f32 v%d, v%d, v%d" % (acc + d, acc + 2 * d, acc + 2 * d + 1))
            out.append("buffer_store_dwordx4 %s, v%d, s[%d:%d], s%d offen offset:%d %s" % (vr(acc, 4), vST, SRD_WS, SRD_WS + 3, sT0, qb * 1024, part_aux))
        return out
    def b3_list(kh):
        out = []
        for ks in range(4 * kh, 4 * kh + 4):
            for qb in range(3):
                out.append("ds_read_b128 %s, v%d offset:%d" % (vr(vB3 + (ks * 3 + qb) * 4, 4), vOR, (48 * kh + 16 * qb) * MROW + (ks & 3) * 64))
        return out
    for ins in a3_list(0) + b3_list(0):
        a(ins)
    a("s_waitcnt lgkmcnt(0)")
    for p in range(8):
        if p <= 6:
            bar("CI", "P%d" % (p + 1))
        if p in (0, 3, 6):
            stamp(a, 14 + p // 3)
        fill = []
        if p == 0:
            fill += b3_list(1)
        if p <= 6:
            fill += a3_list(p + 1)
        if p >= 2 and p % 2 == 0:
            fill += st3_list(p // 2 - 1)
        interleave(a, mf3_list(p), fill)
        if p <= 6:
            a("s_waitcnt lgkmcnt(0)")
        if p == 0 and opt.dump == "o":
            dump_regs(a, vB3, 96)
    a("s_nop 7")
    for ins in st3_list(3):
        a(ins)
    stamp(a, 5)
    a("s_waitcnt vmcnt(0)")
    stamp(a, 6)
    if opt.fused_tail:
        bar("CI", "F0")
        a("s_branch L_REDUCE")
    else:
        if opt.x_stretch:
            a("s_cmp_lg_u32 s%d, 0" % sW)
            a("s_cbranch_scc1 L_END")
            a("s_mul_i32 s%d, s%d, %d" % (sDBG, sDBG, opt.x_stretch))
            a.label("L_STRETCH")
            a("s_memrealtime s[%d:%d]" % (sSTAMP, sSTAMP + 1))
            a("s_waitcnt lgkmcnt(0)")
            a("s_sub_u32 s%d, s%d, s100" % (sSTAMP, sSTAMP))
            a("s_cmp_lt_u32 s%d, s%d" % (sSTAMP, sDBG))
            a("s_cbranch_scc1 L_STRETCH")
        a("s_branch L_END")

    a.label("L_LOADER")
    qL = Queue(63)
    t1, t2, t3, t4 = vT[0:4]
    a("s_sub_u32 s%d, s%d, 4" % (sJ, sW))
    a("s_lshl_b32 s%d, s%d, 9" % (sT0, sHP))
    srd(a, SRD_WQ, P_WQ, 4194304 - 15 * 512, sT0)
    a("s_lshl_b32 s%d, s%d, 16" % (sJ64K, sJ))
    a("v_lshrrev_b32 v%d, 5, v%d" % (t1, vL))
    a("v_and_b32 v%d, 31, v%d" % (t2, vL))
    a("v_lshlrev_b32 v%d, 1, v%d" % (t3, t1))
    a("v_xor_b32 v%d, v%d, v%d" % (t2, t2, t3))
    a("v_lshlrev_b32 v%d, 4, v%d" % (t2, t2))
    a("s_and_b32 s%d, s%d, 1" % (sT1, sJ))
    a("s_lshl_b32 s%d, s%d, 7" % (sT1, sT1))
    a("v_xor_b32 v%d, s%d, v%d" % (t2, sT1, t2))
    a("v_lshl_add_u32 v%d, v%d, 13, v%d" % (t2, t1, t2))
    for aa in range(4):
        c = 2 * aa * 8192 - aa * 1024
        if aa & 1:
            a("v_xor_b32 v%d, 64, v%d" % (vLW[aa], t2))
            a("v_add_u32 v%d, 0x%x, v%d" % (vLW[aa], c, vLW[aa]))
        else:
            a("v_add_u32 v%d, 0x%x, v%d" % (vLW[aa], c, t2))
    a("s_lshl_b32 s%d, s%d, 1" % (sKS, sB))
    a("s_lshl_b32 s%d, s%d, 12" % (sT5, sJ))

    def dma_w(e):
        a("s_add_u32 s%d, s%d, %d" % (sT0, sKS, e))
        a("s_and_b32 s%d, s%d, 15" % (sT0, sT0))
        a("s_lshl_b32 s%d, s%d, 18" % (sT0, sT0))
        a("s_add_u32 m0, s%d, 0x%x" % (sT5, (e % NWS) * 16384))
        a("s_add_u32 s%d, s%d, s%d" % (sT0, sT0, sJ64K))
        if opt.x_q_nodma:
            return
        for aa in range(4):
            a("buffer_load_dwordx4 v%d, s[%d:%d], s%d offen offset:%d %s lds" % (vLW[aa], SRD_WQ, SRD_WQ + 3, sT0, aa * 1024, opt.w_aux))
        qL.issue("W%d" % e, 4)
    for e in range(NWS):
        dma_w(e)
    a("s_lshl_b32 s%d, s%d, 3" % (sT0, sB))
    a("s_add_u32 s%d, s%d, s%d" % (sT0, sT0, sKVH))
    a("s_lshl_b32 s%d, s%d, 18" % (sT0, sT0))
    srd(a, SRD_K, P_K, 262144, sT0)
    srd(a, SRD_V, P_V, 262144, sT0)
    a("s_lshl_b32 s%d, s%d, 18" % (sT0, sHP))
    srd(a, SRD_WO, P_WO, 262144, sT0)
    a("s_lshl_b32 s%d, s%d, 11" % (sJ2K, sJ))
    a("v_lshrrev_b32 v%d, 4, v%d" % (t1, vL))
    a("v_and_b32 v%d, 15, v%d" % (t2, vL))
    a("v_xor_b32 v%d, v%d, v%d" % (t3, t2, t1))
    a("s_and_b32 s%d, s%d, 1" % (sT1, sJ))
    a("s_lshl_b32 s%d, s%d, 3" % (sT1, sT1))
    a("v_xor_b32 v%d, s%d, v%d" % (t3, sT1, t3))
    a("v_lshlrev_b32 v%d, 4, v%d" % (t3, t3))
    a("v_lshl_add_u32 v%d, v%d, 8, v%d" % (vLK[0], t1, t3))
    a("v_xor_b32 v%d, 64, v%d" % (vLK[1], vLK[0]))
    a("v_lshlrev_b32 v%d, 2, v%d" % (t3, t1))
    a("v_xor_b32 v%d, v%d, v%d" % (t3, t2, t3))
    a("v_lshlrev_b32 v%d, 4, v%d" % (t3, t3))
    a("v_lshl_add_u32 v%d, v%d, 8, v%d" % (vLV, t1, t3))
    a("v_lshrrev_b32 v%d, 4, v%d" % (t1, vL))
    a("v_and_b32 v%d, 15, v%d" % (t2, vL))
    a("v_lshlrev_b32 v%d, 1, v%d" % (t3, t1))
    a("v_xor_b32 v%d, v%d, v%d" % (t2, t2, t3))
    a("v_lshlrev_b32 v%d, 4, v%d" % (t2, t2))
    a("v_lshl_add_u32 v%d, v%d, 10, v%d" % (t2, t1, t2))
    for aa in range(4):
        if aa >> 1:
            a("v_xor_b32 v%d, 128, v%d" % (vLWO[aa], t2))
            a("v_add_u32 v%d, %d, v%d" % (vLWO[aa], 3072 * aa, vLWO[aa]))
        else:
            a("v_add_u32 v%d, %d, v%d" % (vLWO[aa], 3072 * aa, t2))

    def dma_tile(kind, t):
        base = K_BASE + kslot(t) * 8192 if kind == "K" else V_BASE + (t % 8) * 8192
        s_, v_ = (SRD_K, vLK) if kind == "K" else (SRD_V, [vLV, vLV])
        a("s_add_u32 m0, s%d, 0x%x" % (sJ2K, base))
        a("s_add_u32 s%d, s%d, 0x%x" % (sOFF, sJ2K, t * 8192))
        for aa in range(2):
            a("buffer_load_dwordx4 v%d, s[%d:%d], s%d offen offset:%d %s lds" % (v_[aa], s_, s_ + 3, sOFF, aa * 1024, opt.kv_aux))
        qL.issue("%s%d" % (kind, t), 2)
    def dma_wo(p):
        if opt.x_o_nodma:
            return
        a("s_add_u32 s%d, s%d, %d" % (sT0, sB, p >> 1))
        a("s_and_b32 s%d, s%d, 3" % (sT0, sT0))
        a("s_lshl_b32 s%d, s%d, 8" % (sT0, sT0))
        a("s_lshl_b32 s%d, s%d, 3" % (sT1, sT5))
        a("s_add_u32 s%d, s%d, s%d" % (sT0, sT0, sT1))
        if p & 1:
            a("s_add_u32 s%d, s%d, 0x20000" % (sT0, sT0))
        a("s_lshl_b32 s%d, s%d, 1" % (sT1, sT5))
        for hf in range(2):
            a("s_add_u32 m0, s%d, 0x%x" % (sT1, RWO[p & 3] + hf * 4096))
            if hf:
                a("s_add_u32 s%d, s%d, 16384" % (sT0, sT0))
            else:
                a("s_nop 0")
            for aa in range(4):
                a("buffer_load_dwordx4 v%d, s[%d:%d], s%d offen offset:%d %s lds" % (vLWO[aa], SRD_WO, SRD_WO + 3, sT0, aa * 1024, opt.w_aux))
        qL.issue("WO%d" % p, 8)
    def lwait(tags):
        n = qL.need(set(tags))
        if n is not None:
            a("s_waitcnt vmcnt(%d)" % n)
    fill = {10: [("K", 0)], 11: [("K", 1)], 12: [("V", 0)], 13: [("K", 2)], 14: [("V", 1)], 15: [("K", 3)], 16: [("V", 2)]}
    nk, nv = 4, 3
    for e in range(17):
        if e < 16:
            lwait(["W%d" % e])
        if opt.lstamps and e >= 10:
            stamp(a, 17 + e - 10)
        bar("L", "Q%d" % e)
        if e >= 1 and e + NWS - 1 <= 15:
            dma_w(e + NWS - 1)
        for kind, t in fill.get(e, []):
            dma_tile(kind, t)
        if opt.lstamps and e >= 10:
            stamp(a, 24 + e - 10)
    lwait(["K0"])
    bar("L", "Q17")
    stamp(a, 2)
    for _ in range(2):
        dma_tile("K", nk); nk += 1
        dma_tile("V", nv); nv += 1
    if opt.fused_tail:
        srd(a, SRD_WS, P_WS, WS_BYTES)
        srd(a, SRD_DBG, P_DBG, 256)
        a("s_lshl_b32 s%d, s%d, 4" % (sT0, sGRP))
        a("v_mov_b32 v2, s%d" % sT0)
    for t in range(-1, 32):
        lwait(["K%d" % (t + 2), "V%d" % t])
        bar("L", "A%s" % ("m1" if t < 0 else str(t)), opt.x_nobar)
        for _ in range(2):
            if nk <= 31 and nk <= t + opt.klead:
                dma_tile("K", nk); nk += 1
            if nv <= 31 and nv <= max(t + opt.vlead, 5):
                dma_tile("V", nv); nv += 1
        if opt.fused_tail and t == 2:
            a("buffer_load_dword v%d, v2, s[%d:%d], 0 offen sc1" % (vFLAG, SRD_DBG, SRD_DBG + 3))
            qL.issue("FLAG", 1)
        if opt.fused_tail and t == 14:
            lwait(["FLAG"])
            a("s_mov_b32 s%d, 0" % sT4)
            a.label("L_FLAG_CHECK")
            a("v_readfirstlane_b32 s%d, v%d" % (sT1, vFLAG))
            a("s_add_u32 s%d, s%d, 1" % (sT4, sT4))
            a("s_cmp_lg_u32 s%d, 0" % sT1)
            a("s_cbranch_scc1 L_FLAG_OK")
            a("s_cmp_ge_u32 s%d, 0x%x" % (sT4, opt.spin_limit))
            a("s_cbranch_scc1 L_FLAG_OK")
            a("s_sleep 8")
            a("buffer_load_dword v%d, v2, s[%d:%d], 0 offen sc1" % (vFLAG, SRD_DBG, SRD_DBG + 3))
            a("s_waitcnt vmcnt(0)")
            a("s_branch L_FLAG_CHECK")
            a.label("L_FLAG_OK")
        if t == 26:
            dma_wo(0)
        if t == 29:
            dma_wo(1)
        if t == 30:
            dma_wo(2)
    assert nk == 32 and nv == 32
    lwait(["WO0"])
    bar("L", "E0")
    stamp(a, 4)
    dma_wo(3)
    for p in range(1, 8):
        lwait(["WO%d" % p])
        bar("L", "P%d" % p)
        if p + 3 <= 7:
            dma_wo(p + 3)
    stamp(a, 6)
    if opt.fused_tail:
        a("s_lshl_b32 s%d, s%d, 8" % (sT0, sGRP))
        a("s_add_u32 s%d, s%d, 0x%x" % (sT0, sT0, WS_CNT))
        a("v_mov_b32 v2, s%d" % sT0)
        a("v_mov_b32 v3, 1")
        bar("L", "F0")
        a("s_cmp_lg_u32 s%d, 4" % sW)
        a("s_cbranch_scc1 L_REDUCE")
        a("s_mov_b64 s[%d:%d], exec" % (sT2, sT3))
        a("s_mov_b64 exec, 1")
        a("buffer_atomic_add v3, v2, s[%d:%d], 0 offen sc0 sc1" % (SRD_WS, SRD_WS + 3))
        a("s_mov_b32 s%d, 0" % sT4)
        a("s_waitcnt vmcnt(0)")
        a("v_readfirstlane_b32 s%d, v3" % sT1)
        a("s_cmp_ge_u32 s%d, 15" % sT1)
        a("s_cbranch_scc1 L_POLL_DONE")
        a.label("L_POLL")
        if opt.sleep:
            a("s_sleep %d" % opt.sleep)
        a("buffer_load_dword v4, v2, s[%d:%d], 0 offen sc1" % (SRD_WS, SRD_WS + 3))
        a("s_add_u32 s%d, s%d, 1" % (sT4, sT4))
        a("s_waitcnt vmcnt(0)")
        a("v_readfirstlane_b32 s%d, v4" % sT1)
        a("s_cmp_ge_u32 s%d, 0x%x" % (sT4, opt.spin_limit))
        a("s_cbranch_scc1 L_POLL_DONE")
        a("s_cmp_lt_u32 s%d, 16" % sT1)
        a("s_cbranch_scc1 L_POLL")
        a.label("L_POLL_DONE")
        a("s_mov_b64 exec, s[%d:%d]" % (sT2, sT3))
        a.label("L_REDUCE")
        a("s_barrier")
        stamp(a, 7)
        a("s_cmp_ge_u32 s%d, 6" % sW)
        a("s_cbranch_scc1 L_RED_IDLE")
        srd(a, SRD_WS, P_WS, WS_PART_BYTES)
        srd(a, SRD_OUT, P_OUT, 8 * 48 * 1024 * 2)
        a("s_lshl_b32 s%d, s%d, 4" % (sKS, sGRP))
        a("s_add_u32 s%d, s%d, s%d" % (sKS, sKS, sHP))
        a("s_mul_i32 s%d, s%d, %d" % (sKS, sKS, 16 * 3072))
        reduce_body(a, sW, sKS, SRD_WS, SRD_OUT, sGRP, sHP, "sc1", 0)
        stamp(a, 8)
        if opt.x_stretch:
            a("s_cmp_lg_u32 s%d, 0" % sW)
            a("s_cbranch_scc1 L_END")
            a("s_mul_i32 s%d, s%d, %d" % (sDBG, sDBG, opt.x_stretch))
            a.label("L_STRETCH")
            a("s_memrealtime s[%d:%d]" % (sSTAMP, sSTAMP + 1))
            a("s_waitcnt lgkmcnt(0)")
            a("s_sub_u32 s%d, s%d, s100" % (sSTAMP, sSTAMP))
            a("s_cmp_lt_u32 s%d, s%d" % (sSTAMP, sDBG))
            a("s_cbranch_scc1 L_STRETCH")
        a("s_branch L_END")
        a.label("L_RED_IDLE")
        a("s_barrier")

    a.label("L_END")
    a("s_endpgm")
    for lab, t, fix in rare:
        emit_rare(lab, t, fix)

    assert bars["C"] == bars["I"] == bars["L"], "barrier sequences differ:\n%s\n%s\n%s" % (bars["C"], bars["I"], bars["L"])


def gen_reduce(a):
    name = "attn_reduce_kernel"
    a(".p2align 8")
    a(".globl %s" % name)
    a(".type %s,@function" % name)
    a.label(name)
    a("s_cmp_ge_u32 s2, 256")
    a("s_cbranch_scc1 R_END")
    a("s_load_dwordx2 s[4:5], s[0:1], 80")
    a("s_load_dwordx2 s[6:7], s[0:1], 96")
    a("v_lshrrev_b32 v1, 6, v0")
    a("v_and_b32 v0, 63, v0")
    a("v_readfirstlane_b32 s3, v1")
    a("s_mul_i32 s16, s2, %d" % (16 * 3072))
    a("s_lshr_b32 s18, s2, 4")
    a("s_and_b32 s19, s2, 15")
    a("s_waitcnt lgkmcnt(0)")
    srd(a, 8, 6, WS_PART_BYTES)
    srd(a, 12, 4, 8 * 48 * 1024 * 2)
    reduce_body(a, 3, 16, 8, 12, 18, 19, "", 0)
    a.label("R_END")
    a("s_endpgm")
    return name


VOP3_ONLY = ("v_mfma", "v_cvt_pk_bf16_f32", "v_max3", "v_lshl_add_u32", "v_bfe_u32", "v_dot2_f32_bf16", "v_pk_", "v_mul_lo", "v_add3",
             "v_writelane", "v_readlane", "v_and_or", "v_perm_b32", "v_lshl_or")
MEM = ("ds_", "buffer_", "global_", "s_load", "s_memtime", "s_memrealtime")
INLINE_F = ("0.5", "-0.5", "1.0", "-1.0", "2.0", "-2.0", "4.0", "-4.0")


def has_literal(ops):
    for o in ops:
        o = o.strip()
        if re.fullmatch(r"[A-Z][A-Z_]+", o):
            return True
        if re.fullmatch(r"-?(0x[0-9a-fA-F]+|\d+)", o):
            v = int(o, 0)
            if not -16 <= v <= 64:
                return True
    return False


def ins_size(ln):
    op, _, rest = ln.partition(" ")
    ops = rest.split(",")
    if op.startswith(MEM):
        return 8
    if op.startswith(("s_waitcnt", "s_barrier", "s_nop", "s_branch", "s_cbranch", "s_setprio", "s_endpgm", "s_sleep")):
        return 4
    if op.startswith("v_"):
        if op.startswith(VOP3_ONLY) or op.endswith("_e64") or re.search(r"[ ,]-v\d|abs\(", " " + rest):
            return 8
        return 8 if has_literal(ops) else 4
    return 8 if has_literal(ops) else 4


def widenable(ln):
    op, _, rest = ln.partition(" ")
    return op.startswith("v_") and ins_size(ln) == 4 and not op.startswith(("v_readfirstlane", "v_permlane", "v_nop")) and not op.endswith("_e32")


def align_pass(lines):
    out = list(lines)
    off, run = 0, []
    fixed = missed = 0
    for i, ln in enumerate(out):
        t = ln.strip()
        if not t or t[0] == ";":
            continue
        if t.endswith(":"):
            continue
        if t.startswith(".p2align"):
            n = 1 << int(t.split()[1].rstrip(","))
            off = (off + n - 1) // n * n
            run = []
            continue
        if t[0] == ".":
            continue
        sz = ins_size(t)
        if sz == 8:
            if off % 8 == 4:
                cand = [j for j in run if widenable(out[j].strip())]
                if cand:
                    j = cand[-1]
                    op, _, rest = out[j].strip().partition(" ")
                    out[j] = "    %s_e64 %s" % (op, rest)
                    off += 4
                    fixed += 1
                else:
                    missed += 1
            run = []
        else:
            run.append(i)
        off += sz
    return out, fixed, missed


def kd(name, vgpr, sgpr):
    acc = (vgpr + 3) // 4 * 4
    return """.p2align 6
.amdhsa_kernel %s
  .amdhsa_next_free_vgpr %d
  .amdhsa_next_free_sgpr %d
  .amdhsa_accum_offset %d
  .amdhsa_group_segment_fixed_size 0
  .amdhsa_kernarg_size 104
  .amdhsa_user_sgpr_count 2
  .amdhsa_user_sgpr_kernarg_segment_ptr 1
  .amdhsa_system_sgpr_workgroup_id_x 1
.end_amdhsa_kernel
""" % (name, vgpr, sgpr, acc)


def build():
    hdr = open("cdna_kernels/%s.s.ref" % NAME).read().split("\n")
    head = [ln for ln in hdr if ln.startswith(";") and "@launch" not in ln][:14]
    a = Prog()
    main = "attn_main_kernel" if multi() else NAME + "_kernel"
    if multi():
        head.append("; @launch kernel=attn_main_kernel grid=(256,1,1) block=(512,1,1) lds=%d" % LDS_BYTES)
        head.append("; @launch kernel=attn_reduce_kernel grid=(256,1,1) block=(384,1,1) lds=6144")
    else:
        head.append("; @launch grid=(256,1,1) block=(512,1,1) lds=%d" % LDS_BYTES)
    a('.amdgcn_target "amdgcn-amd-amdhsa--gfx950"')
    a(".text")
    a(".globl %s" % main)
    a(".p2align 8")
    a(".type %s,@function" % main)
    gen_main(a, main)
    kds = kd(main, NVGPR, NSGPR)
    if multi():
        kds += kd(gen_reduce(a), 48, 40)
    body = a.text()
    if opt.align:
        lines, fixed, missed = align_pass(body.split("\n"))
        body = "\n".join(lines)
        print("alignment pass: widened %d, unfixable %d" % (fixed, missed))
    return "\n".join(head) + "\n" + body + '.section .rodata,"a"\n' + kds


if __name__ == "__main__":
    out = sys.argv[1] if len(sys.argv) > 1 else "cdna_kernels/%s.s" % NAME
    for kv in sys.argv[2:]:
        k, v = kv.split("=", 1)
        cur = getattr(opt, k)
        if isinstance(cur, bool):
            v = v in ("1", "True", "true")
        elif isinstance(cur, int):
            v = int(v)
        elif v == "None":
            v = None
        setattr(opt, k, v)
    s = build()
    open(out, "w").write(s)
    print("wrote", out, len(s), "bytes,", s.count("\n"), "lines")
```

```python
import sys, math, struct, re

NAME = "concat_heads__gqa_block_cached__gqa_block_cached__near_ridge"


class Opt:
    fused_tail = True
    kv_aux = "nt"
    w_aux = ""
    dump = None
    L = 6
    waitstep = 4
    thr_log2 = 12
    stamps = 0
    sumop = "add"
    prio = 0
    sleep = 2
    korder = 0
    dum = 0
    npoll = 3
    brpos = 0
    waitphase = 0
    x_fast = False
    oprio = 0
    osched = 0
    onl = 4
    wo_at = '26,29,30,31'
    wo_aux = ''
    pf_tiles = 0
    pf_first = 0
    pf_aux = ''
    wosched = 0
    wfirst = 2
    mtrick = True
    klead = 7
    vlead = 5
    spin_limit = 1 << 20
    lstamps = False
    x_stretch = 0
    x_mark = 'end'
    codepf = False
    codepf_n = 3
    dscost = 8
    slotcap = 40
    align = True
    x_nobar = False
    x_nosm = False
    x_nods = False
    x_norare = False
    x_nomfma = False
    x_q_nomfma = False
    x_q_nods = False
    x_q_nodma = False
    x_o_nodma = False
    x_o_nomfma = False
    x_o_nost = False
    x_o_nods = False
    x_t_nords = False
    x_t_nowr = False


opt = Opt()

KB = 1024
K_BASE = 0
V_BASE = 64 * KB
M_BASE = 128 * KB
MROW = 272
X_BASE = 112 * KB
NWS = 7
LDS_BYTES = 160 * KB
RWO = [32 * KB, 64 * KB, 0, 128 * KB, 32 * KB, 96 * KB, 64 * KB, 0]
RWO0 = [32 * KB, 64 * KB, 0, 128 * KB, 32 * KB, 64 * KB, 0, 128 * KB]
O_BASE = 96 * KB
def kslot(t):
    return (t + 4) % 8

WS_PART_BYTES = 16 * 16 * 16 * 3072
WS_CNT = 14 << 20
WS_DUMP = 16 << 20
WS_STAMP = 48 << 20
WS_BYTES = 268435456

sW = 3
sB, sHP, sBR, sKVH = 4, 5, 6, 7
SRD_X, SRD_WQ, SRD_K, SRD_V, SRD_WO, SRD_WS = 8, 12, 16, 20, 24, 28
sT0, sT1, sT2, sT3, sT4, sT5 = 32, 33, 34, 35, 36, 37
sGRP = 38
sOFF = 39
sPASS = 40
sTHR = 41
sKS = 42
sPOFF = 43
sSTAMP = 44
sDBG = 46
SRD_OUT = 48
SRD_ST = 52
P_X, P_K, P_V, P_WQ = 56, 58, 60, 62
KA = 64
P_OUT, P_DBG, P_WS = KA + 20, KA + 22, KA + 24
P_WO = 90
sSTOFF = 92
sJ, sJ64K, sJ2K = 93, 94, 95
SRD_DBG = 96
NSGPR = 102

vL = 0
vT = [1, 2, 3, 4, 5, 6, 7, 8, 9]
vKA = list(range(10, 18))
vVA = list(range(18, 22))
vWA = list(range(22, 26))
vXB, vXT = 26, 27
vXB1 = 248
vPSA, vPSB, vLACC, vTMP = 28, 29, 30, 31
vQ = 32
vO = 64
vS = [128, 144]
vNM = 160
vP = [176, 184]
vF = 192
vE = 224
vWA2 = [232, 233, 234, 235]
vQW = 236
vOW = 237
vOR = 240
vQR = 241
vVP = 242
vFLAG = 243
vWOA = 244
vWOT = [245, 246]
vST = 247
vDUM = 249
vSTA, vSTB = 250, 251
NVGPR = 252
vACC1 = 64
vA1 = [128, 144]
vB1 = [160, 172]
vB3 = 32
vA3 = [128, 160]
vACC3 = [192, 216]
vLW = [10, 11, 12, 13]
vLK = [14, 15]
vLV = 16
vLWO = [18, 19, 20, 21]


def f32bits(x):
    return struct.unpack("<I", struct.pack("<f", x))[0]


class Prog:
    def __init__(self):
        self.lines = []
    def __call__(self, s):
        self.lines += s.split("\n")
    def label(self, s):
        self.lines.append(s + ":")
    def text(self):
        out = []
        for ln in self.lines:
            ln = ln.strip()
            if ln:
                out.append(ln if ln.endswith(":") or ln[0] in ".;" else "    " + ln)
        return "\n".join(out) + "\n"


def vr(b, n):
    return "v[%d:%d]" % (b, b + n - 1) if n > 1 else "v%d" % b


class Queue:
    def __init__(self, limit):
        self.q = []
        self.limit = limit
    def issue(self, tag, n=1):
        self.q += [tag] * n
        assert len(self.q) <= self.limit, (tag, len(self.q))
    def need(self, tags):
        last = -1
        for i, t in enumerate(self.q):
            if t in tags:
                last = i
        if last < 0:
            return None
        n = len(self.q) - 1 - last
        self.q = self.q[last + 1:]
        return n
    def drain(self):
        self.q = []


def srd(a, base, ptr, size, off_s=None):
    if off_s is None:
        a("s_mov_b32 s%d, s%d" % (base, ptr))
        a("s_mov_b32 s%d, s%d" % (base + 1, ptr + 1))
    else:
        a("s_add_u32 s%d, s%d, s%d" % (base, ptr, off_s))
        a("s_addc_u32 s%d, s%d, 0" % (base + 1, ptr + 1))
    a("s_mov_b32 s%d, 0x%x" % (base + 2, size))
    a("s_mov_b32 s%d, 0x20000" % (base + 3))


MARKS = {1: "x", 2: "q", 3: "att", 5: "gemm", 6: "drain", 7: "sync", 8: "end"}


def stamp(a, idx):
    if opt.x_stretch and MARKS.get(idx) == opt.x_mark:
        a("s_memrealtime s[%d:%d]" % (sSTAMP, sSTAMP + 1))
        a("s_waitcnt lgkmcnt(0)")
        a("s_sub_u32 s%d, s%d, s100" % (sDBG, sSTAMP))
    if not opt.stamps or (opt.stamps == 2 and idx not in (0, 8)) or (opt.stamps >= 3 and idx not in (0, 2, 3, 4, 5, 6, 7, 8)):
        return
    a("s_memrealtime s[%d:%d]" % (sSTAMP, sSTAMP + 1))
    a("s_memtime s[%d:%d]" % (sDBG, sDBG + 1))
    a("s_waitcnt lgkmcnt(0)")
    a("v_mov_b32 v%d, s%d" % (vSTA, sSTAMP))
    a("v_mov_b32 v%d, s%d" % (vSTB, sSTOFF))
    a("buffer_store_dword v%d, v%d, s[%d:%d], 0 offen offset:%d" % (vSTA, vSTB, SRD_ST, SRD_ST + 3, idx * 4))
    a("v_mov_b32 v%d, s%d" % (vSTA, sDBG))
    a("buffer_store_dword v%d, v%d, s[%d:%d], 0 offen offset:%d" % (vSTA, vSTB, SRD_ST, SRD_ST + 3, 128 + idx * 4))


def fill_cost(ins):
    op = ins.split()[0]
    return 8 if op.startswith(("ds_", "buffer_", "v_exp", "v_rcp")) else 4


def interleave(a, mfmas, fill, gap=8):
    total = sum(fill_cost(f) for f in fill)
    per = max(gap, -(-total // max(len(mfmas), 1))) if mfmas else 0
    i, credit = 0, 0
    for m in mfmas:
        a(m)
        credit += per
        while i < len(fill) and fill_cost(fill[i]) <= credit:
            credit -= fill_cost(fill[i])
            a(fill[i]); i += 1
    while i < len(fill):
        a(fill[i]); i += 1


def multi():
    return not opt.fused_tail


def dump_regs(a, base, n):
    a("s_lshl_b32 s%d, s2, 3" % sT0)
    a("s_add_u32 s%d, s%d, s%d" % (sT0, sT0, sW))
    a("s_mul_i32 s%d, s%d, %d" % (sT0, sT0, 96 * 256))
    a("s_add_u32 s%d, s%d, 0x%x" % (sT0, sT0, WS_DUMP))
    a("v_lshlrev_b32 v%d, 4, v%d" % (vT[8], vL))
    for g in range(n // 4):
        a("buffer_store_dwordx4 %s, v%d, s[%d:%d], s%d offen" % (vr(base + g * 4, 4), vT[8], SRD_WS, SRD_WS + 3, sT0))
        a("s_add_u32 s%d, s%d, 1024" % (sT0, sT0))
    a("s_waitcnt vmcnt(0)")


RT = [64, 65, 66, 67, 68, 69]


def reduce_pre(a, s_w, s_wgoff, s_grp, s_dest, lds_base):
    t = RT
    a("s_cmp_ge_u32 s%d, 3" % s_w)
    a("s_cselect_b32 s%d, 1, 0" % t[3])
    a("s_mul_i32 s%d, s%d, 3" % (t[4], t[3]))
    a("s_sub_u32 s%d, s%d, s%d" % (t[4], s_w, t[4]))
    a("v_lshlrev_b32 v46, 4, v0")
    a("s_lshl_b32 s%d, s%d, 10" % (t[0], t[4]))
    a("s_add_u32 s%d, s%d, s%d" % (t[0], t[0], s_wgoff))
    a("s_mul_i32 s%d, s%d, %d" % (t[1], t[3], 8 * 3072))
    a("s_add_u32 s%d, s%d, s%d" % (t[0], t[0], t[1]))
    a("s_lshl_b32 s%d, s%d, 11" % (t[2], t[4]))
    a("s_add_u32 s%d, s%d, %d" % (t[2], t[2], lds_base))
    a("v_lshlrev_b32 v47, 5, v0")
    a("v_add_u32 v47, s%d, v47" % t[2])
    a("s_and_b32 s%d, s%d, 7" % (t[1], s_grp))
    a("s_lshr_b32 s%d, s%d, 3" % (t[2], s_grp))
    a("s_mul_i32 s%d, s%d, 48" % (t[1], t[1]))
    a("s_lshl_b32 s%d, s%d, 4" % (t[4], t[4]))
    a("s_add_u32 s%d, s%d, s%d" % (t[1], t[1], t[4]))
    a("s_lshl_b32 s%d, s%d, 11" % (t[1], t[1]))
    a("s_lshl_b32 s%d, s%d, 10" % (t[2], t[2]))
    a("s_add_u32 s%d, s%d, s%d" % (t[1], t[1], t[2]))
    a("s_lshl_b32 s%d, s%d, 6" % (t[2], s_dest))
    a("s_add_u32 s%d, s%d, s%d" % (t[1], t[1], t[2]))
    a("v_and_b32 v48, 15, v0")
    a("v_lshrrev_b32 v49, 4, v0")
    a("v_lshlrev_b32 v48, 11, v48")
    a("v_lshl_add_u32 v48, v49, 3, v48")
    a("s_mov_b32 s%d, 0xffff0000" % t[5])


def reduce_body(a, srd_ws, srd_out, aux):
    t = RT
    if opt.stamps == 4:
        a("s_memtime s[72:73]")
    for s in range(8):
        a("buffer_load_dwordx4 %s, v46, s[%d:%d], s%d offen %s" % (vr(12 + 4 * s, 4), srd_ws, srd_ws + 3, t[0], aux))
        if s < 7:
            a("s_add_u32 s%d, s%d, 3072" % (t[0], t[0]))
    for s in range(8):
        a("s_waitcnt vmcnt(%d)" % (7 - s))
        for d in range(4):
            x = 12 + 4 * s + d
            if s == 0:
                a("v_lshlrev_b32 v%d, 16, v%d" % (4 + 2 * d, x))
                a("v_and_b32 v%d, s%d, v%d" % (5 + 2 * d, t[5], x))
            else:
                a("v_lshlrev_b32 v44, 16, v%d" % x)
                a("v_and_b32 v45, s%d, v%d" % (t[5], x))
                a("v_add_f32 v%d, v%d, v44" % (4 + 2 * d, 4 + 2 * d))
                a("v_add_f32 v%d, v%d, v45" % (5 + 2 * d, 5 + 2 * d))
    a("s_cmp_eq_u32 s%d, 0" % t[3])
    a("s_cbranch_scc1 L_RED_LOW")
    a("ds_write_b128 v47, v[4:7]")
    a("ds_write_b128 v47, v[8:11] offset:16")
    a("s_waitcnt lgkmcnt(0)")
    a("s_barrier")
    a("s_branch L_RED_DONE")
    a.label("L_RED_LOW")
    a("s_barrier")
    a("ds_read_b128 v[12:15], v47")
    a("ds_read_b128 v[16:19], v47 offset:16")
    a("s_waitcnt lgkmcnt(0)")
    for d in range(8):
        a("v_add_f32 v%d, v%d, v%d" % (4 + d, 4 + d, 12 + d))
    for d in range(4):
        a("v_cvt_pk_bf16_f32 v%d, v%d, v%d" % (4 + d, 4 + 2 * d, 5 + 2 * d))
    a("buffer_store_dwordx2 v[4:5], v48, s[%d:%d], s%d offen" % (srd_out, srd_out + 3, t[1]))
    a("buffer_store_dwordx2 v[6:7], v48, s[%d:%d], s%d offen offset:32" % (srd_out, srd_out + 3, t[1]))
    a.label("L_RED_DONE")


def gen_main(a, name):
    bars = {"C": [], "I": [], "L": []}
    part_aux = "sc1" if opt.fused_tail else ""

    def bar(roles, nm, skip=False):
        if not skip:
            a("s_barrier")
        for r in roles:
            bars[r].append(nm)

    a.label(name)
    if opt.stamps:
        a("s_memrealtime s[100:101]")
    a("s_cmp_ge_u32 s2, 256")
    a("s_cbranch_scc1 L_END")
    a("s_load_dwordx16 s[%d:%d], s[0:1], 0" % (KA, KA + 15))
    a("s_load_dwordx8 s[%d:%d], s[0:1], 64" % (KA + 16, KA + 23))
    a("s_load_dwordx2 s[%d:%d], s[0:1], 96" % (KA + 24, KA + 25))
    if opt.x_stretch:
        a("s_memrealtime s[100:101]")
    a("s_and_b32 s%d, s2, 7" % sT0)
    a("s_lshr_b32 s%d, s2, 3" % sT1)
    a("s_lshr_b32 s%d, s%d, 4" % (sT2, sT1))
    a("s_lshl_b32 s%d, s%d, 1" % (sT0, sT0))
    a("s_add_u32 s%d, s%d, s%d" % (sT0, sT0, sT2))
    a("s_lshr_b32 s%d, s%d, 3" % (sBR, sT0))
    a("s_and_b32 s%d, s%d, 7" % (sKVH, sT0))
    a("s_bfe_u32 s%d, s%d, 0x30001" % (sB, sT1))
    a("s_and_b32 s%d, s%d, 1" % (sT2, sT1))
    a("s_lshl_b32 s%d, s%d, 1" % (sHP, sKVH))
    a("s_add_u32 s%d, s%d, s%d" % (sHP, sHP, sT2))
    a("v_lshrrev_b32 v1, 6, v0")
    a("v_and_b32 v0, 63, v0")
    a("v_readfirstlane_b32 s%d, v1" % sW)
    a("s_lshl_b32 s%d, s%d, 3" % (sGRP, sBR))
    a("s_add_u32 s%d, s%d, s%d" % (sGRP, sGRP, sB))
    if opt.codepf:
        a("s_cmp_lg_u32 s%d, 3" % sW)
        a("s_cbranch_scc1 L_NOPF")
        a("s_getpc_b64 s[%d:%d]" % (sT2, sT3))
        a.label("L_PC")
        a("v_lshlrev_b32 v2, 7, v0")
        a("v_mov_b32 v5, s%d" % sT3)
        a("v_add_co_u32 v4, vcc, s%d, v2" % sT2)
        a("s_nop 1")
        a("v_addc_co_u32 v5, vcc, 0, v5, vcc")
        a(".set PF_BYTES, L_END - L_PC")
        for i in range(opt.codepf_n):
            if i:
                a("v_add_co_u32 v4, vcc, 0x2000, v4")
                a("s_nop 1")
                a("v_addc_co_u32 v5, vcc, 0, v5, vcc")
            a("v_add_u32 v3, %d, v2" % (i * 8192))
            a("v_cmp_gt_u32 vcc, PF_BYTES, v3")
            a("s_and_saveexec_b64 s[%d:%d], vcc" % (sT0, sT1))
            a("s_cbranch_execz L_PF_SKIP%d" % i)
            a("global_load_dword v%d, v[4:5], off" % vDUM)
            a.label("L_PF_SKIP%d" % i)
            a("s_mov_b64 exec, s[%d:%d]" % (sT0, sT1))
        a.label("L_NOPF")
    a("s_waitcnt lgkmcnt(0)")
    a("s_cmp_eq_u32 s%d, 0" % sBR)
    for dst, pa, pb in ((P_WQ, KA + 6, KA + 16), (P_X, KA + 0, KA + 10), (P_K, KA + 2, KA + 12),
                        (P_V, KA + 4, KA + 14), (P_WO, KA + 8, KA + 18)):
        a("s_cselect_b32 s%d, s%d, s%d" % (dst, pa, pb))
        a("s_cselect_b32 s%d, s%d, s%d" % (dst + 1, pa + 1, pb + 1))
    if opt.stamps:
        srd(a, SRD_ST, P_WS, WS_BYTES)
        a("s_lshl_b32 s%d, s2, 3" % sSTOFF)
        a("s_add_u32 s%d, s%d, s%d" % (sSTOFF, sSTOFF, sW))
        a("s_lshl_b32 s%d, s%d, 8" % (sSTOFF, sSTOFF))
        a("s_add_u32 s%d, s%d, 0x%x" % (sSTOFF, sSTOFF, WS_STAMP))
        a("v_mov_b32 v%d, s100" % vSTA)
        a("v_mov_b32 v%d, s%d" % (vSTB, sSTOFF))
        a("buffer_store_dword v%d, v%d, s[%d:%d], 0 offen offset:%d" % (vSTA, vSTB, SRD_ST, SRD_ST + 3, 31 * 4))
        stamp(a, 0)
    a("s_cmp_ge_u32 s%d, 4" % sW)
    a("s_cbranch_scc1 L_LOADER")

    a("s_cmp_eq_u32 s%d, 3" % sW)
    a("s_cbranch_scc1 L_W3_START")
    a("s_mul_i32 s%d, s%d, 49152" % (sT0, sB))
    srd(a, SRD_X, P_X, 49152, sT0)
    a("v_lshrrev_b32 v2, 3, v0")
    a("v_and_b32 v3, 7, v0")
    a("v_lshrrev_b32 v4, 4, v0")
    a("v_xor_b32 v3, v3, v4")
    a("v_lshlrev_b32 v3, 4, v3")
    a("v_lshl_add_u32 v2, v2, 10, v3")
    a("v_xor_b32 v3, 64, v2")
    a("v_add_u32 v3, 7168, v3")
    a("s_lshl_b32 s%d, s%d, 14" % (sT1, sW))
    a("s_lshl_b32 s%d, s%d, 11" % (sT3, sW))
    a("s_add_u32 s%d, s%d, %d" % (sT3, sT3, X_BASE))
    for c in range(8):
        a("s_add_u32 s%d, s%d, %d" % (sT0, sB, c))
        a("s_and_b32 s%d, s%d, 7" % (sT0, sT0))
        a("s_mul_i32 s%d, s%d, 6144" % (sT4, sT0))
        a("s_lshl_b32 s%d, s%d, 7" % (sT2, sT0))
        a("s_add_u32 m0, s%d, s%d" % (sT4, sT3))
        a("s_add_u32 s%d, s%d, s%d" % (sT2, sT2, sT1))
        a("buffer_load_dwordx4 v2, s[%d:%d], s%d offen %s lds" % (SRD_X, SRD_X + 3, sT2, opt.w_aux))
        a("buffer_load_dwordx4 v3, s[%d:%d], s%d offen offset:1024 %s lds" % (SRD_X, SRD_X + 3, sT2, opt.w_aux))

    a("s_branch L_WORK_SETUP")
    a.label("L_W3_START")
    if opt.fused_tail:
        a("s_cmp_lg_u32 s%d, 0" % sHP)
        a("s_cbranch_scc1 L_WORK_SETUP")
        srd(a, SRD_WS, P_WS, WS_BYTES)
        srd(a, SRD_DBG, P_DBG, 256)
        a("s_lshl_b32 s%d, s%d, 8" % (sT0, sGRP))
        a("s_add_u32 s%d, s%d, 0x%x" % (sT0, sT0, WS_CNT))
        a("s_lshl_b32 s%d, s%d, 4" % (sT1, sGRP))
        a("s_mov_b64 s[%d:%d], exec" % (sT2, sT3))
        a("v_mov_b32 v2, 0")
        a("v_mov_b32 v3, 1")
        a("s_mov_b64 exec, 1")
        a("buffer_store_dword v2, v2, s[%d:%d], s%d offen sc1" % (SRD_WS, SRD_WS + 3, sT0))
        a("s_waitcnt vmcnt(0)")
        a("buffer_atomic_add v3, v2, s[%d:%d], s%d offen sc1" % (SRD_DBG, SRD_DBG + 3, sT1))
        a("s_mov_b64 exec, s[%d:%d]" % (sT2, sT3))

    a.label("L_WORK_SETUP")
    l = vL
    t1, t2, t3, t4, t5 = vT[0:5]
    G, rp, cp = vT[5], vT[6], vT[7]
    a("v_and_b32 v%d, 15, v%d" % (t3, l))
    a("v_lshrrev_b32 v%d, 4, v%d" % (G, l))
    a("v_bfe_u32 v%d, v%d, 2, 2" % (rp, l))
    a("v_and_b32 v%d, 3, v%d" % (cp, l))
    a("v_lshrrev_b32 v%d, 1, v%d" % (t4, t3))
    a("v_xor_b32 v%d, v%d, v%d" % (t4, G, t4))
    a("v_lshlrev_b32 v%d, 4, v%d" % (t4, t4))
    a("v_lshl_add_u32 v%d, v%d, 7, v%d" % (t5, t3, t4))
    a("v_add_u32 v%d, 0x%x, v%d" % (vXB, X_BASE, t5))
    a("v_xor_b32 v%d, 64, v%d" % (vXB1, vXB))
    a("v_mul_u32_u24 v%d, %d, v%d" % (t5, MROW, t3))
    a("v_lshl_add_u32 v%d, v%d, 4, v%d" % (t4, G, t5))
    a("v_add_u32 v%d, 0x%x, v%d" % (vOR, O_BASE, t4))
    a("v_lshl_add_u32 v%d, v%d, 3, v%d" % (t4, G, t5))
    a("s_lshr_b32 s%d, s%d, 1" % (sT0, sW))
    a("s_mul_i32 s%d, s%d, %d" % (sT0, sT0, 48 * MROW))
    a("s_and_b32 s%d, s%d, 1" % (sT1, sW))
    a("s_lshl_b32 s%d, s%d, 7" % (sT1, sT1))
    a("s_add_u32 s%d, s%d, s%d" % (sT0, sT0, sT1))
    a("s_add_u32 s%d, s%d, %d" % (sT0, sT0, M_BASE))
    a("v_add_u32 v%d, s%d, v%d" % (vQW, sT0, t4))
    a("v_and_b32 v%d, 1, v%d" % (t4, G))
    a("v_lshl_add_u32 v%d, v%d, 2, v%d" % (t4, t4, rp))
    a("s_lshl_b32 s%d, s%d, 2" % (sT0, sW))
    a("v_xor_b32 v%d, s%d, v%d" % (t5, sT0, t4))
    a("v_lshlrev_b32 v%d, 5, v%d" % (t5, t5))
    a("v_lshl_add_u32 v%d, v%d, 3, v%d" % (t1, G, rp))
    a("v_lshl_add_u32 v%d, v%d, 9, v%d" % (t5, t1, t5))
    a("v_lshl_add_u32 v%d, v%d, 3, v%d" % (vWA[0], cp, t5))
    for nb in range(1, 4):
        a("v_xor_b32 v%d, %d, v%d" % (vWA[nb], nb * 32, vWA[0]))
    for nb in range(4):
        a("v_add_u32 v%d, 0x10000, v%d" % (vWA2[nb], vWA[nb]))
    a("s_lshl_b32 s%d, s%d, 1" % (sT0, sW))
    a("v_xor_b32 v%d, s%d, v%d" % (t5, sT0, t4))
    a("v_lshlrev_b32 v%d, 5, v%d" % (t5, t5))
    a("v_lshl_add_u32 v%d, v%d, 8, v%d" % (t5, t1, t5))
    a("v_lshl_add_u32 v%d, v%d, 3, v%d" % (vWOA, cp, t5))
    a("v_and_b32 v%d, 31, v%d" % (t1, l))
    a("v_lshrrev_b32 v%d, 5, v%d" % (t2, l))
    a("v_xor_b32 v%d, v%d, v%d" % (t4, t2, t3))
    a("v_lshlrev_b32 v%d, 4, v%d" % (t4, t4))
    a("v_lshl_add_u32 v%d, v%d, 8, v%d" % (vKA[0], t1, t4))
    for ks in range(1, 8):
        a("v_xor_b32 v%d, %d, v%d" % (vKA[ks], ks * 32, vKA[0]))
    a("v_mul_u32_u24 v%d, %d, v%d" % (t4, MROW, t1))
    a("s_mul_i32 s%d, s%d, %d" % (sT0, sW, 32 * MROW))
    a("v_add_u32 v%d, s%d, v%d" % (t4, sT0, t4))
    a("v_lshl_add_u32 v%d, v%d, 3, v%d" % (t5, t2, t4))
    a("v_add_u32 v%d, 0x%x, v%d" % (vOW, O_BASE, t5))
    a("v_lshl_add_u32 v%d, v%d, 4, v%d" % (t5, t2, t4))
    a("v_add_u32 v%d, 0x%x, v%d" % (vQR, M_BASE, t5))
    a("v_lshl_add_u32 v%d, v%d, 2, v%d" % (t1, t2, rp))
    a("v_and_b32 v%d, 1, v%d" % (t4, G))
    a("v_lshlrev_b32 v%d, 1, v%d" % (t4, t4))
    a("v_lshrrev_b32 v%d, 1, v%d" % (t5, cp))
    a("v_add_u32 v%d, v%d, v%d" % (t4, t4, t5))
    a("v_lshlrev_b32 v%d, 2, v%d" % (t5, rp))
    a("v_xor_b32 v%d, v%d, v%d" % (t4, t4, t5))
    a("v_lshlrev_b32 v%d, 4, v%d" % (t4, t4))
    a("v_lshl_add_u32 v%d, v%d, 8, v%d" % (t4, t1, t4))
    a("v_and_b32 v%d, 1, v%d" % (t5, cp))
    a("v_lshl_add_u32 v%d, v%d, 3, v%d" % (t4, t5, t4))
    a("v_add_u32 v%d, 0x%x, v%d" % (vVA[0], V_BASE, t4))
    for db in range(1, 4):
        a("v_xor_b32 v%d, %d, v%d" % (vVA[db], db * 64, vVA[0]))
    a("v_lshlrev_b32 v%d, 4, v%d" % (vST, l))
    a("s_lshl_b32 s%d, s%d, 8" % (sT0, sGRP))
    a("s_add_u32 s%d, s%d, s%d" % (sT0, sT0, sHP))
    a("s_lshl_b32 s%d, s%d, 4" % (sT1, sW))
    a("s_add_u32 s%d, s%d, s%d" % (sT0, sT0, sT1))
    a("s_mul_i32 s%d, s%d, 3072" % (sPOFF, sT0))
    srd(a, SRD_WS, P_WS, WS_BYTES)
    a("s_mov_b32 s%d, 0x%08x" % (sTHR, f32bits(2.0 ** opt.thr_log2)))
    for r in range(48):
        a("v_mov_b32 v%d, 0" % (vACC1 + r))
    for r in range(16):
        a("v_mov_b32 v%d, 0" % (vA1[1] + r))
    for r in range(12):
        a("v_mov_b32 v%d, 0" % (vB1[1] + r))
    if opt.pf_tiles:
        a("s_cmp_lg_u32 s%d, 3" % sW)
        a("s_cbranch_scc1 L_X_LANDED")
        a("s_and_b32 s%d, s%d, 1" % (sT1, sHP))
        a("s_cmp_eq_u32 s%d, 0" % sT1)
        a("s_cselect_b32 s%d, s%d, s%d" % (sT2, P_K, P_V))
        a("s_cselect_b32 s%d, s%d, s%d" % (sT3, P_K + 1, P_V + 1))
        a("s_lshl_b32 s%d, s%d, 3" % (sT0, sB))
        a("s_add_u32 s%d, s%d, s%d" % (sT0, sT0, sKVH))
        a("s_lshl_b32 s%d, s%d, 18" % (sT0, sT0))
        srd(a, SRD_K, sT2, 262144, sT0)
        a("v_lshlrev_b32 v2, 7, v0")
        a("s_mov_b32 s%d, %d" % (sT0, opt.pf_first * 8192))
        for i in range(opt.pf_tiles):
            a("buffer_load_dword v%d, v2, s[%d:%d], s%d offen %s" % (vDUM, SRD_K, SRD_K + 3, sT0, opt.pf_aux))
            if i + 1 < opt.pf_tiles:
                a("s_add_u32 s%d, s%d, 8192" % (sT0, sT0))
    if opt.dum == 3:
        a("s_cmp_lg_u32 s%d, 3" % sW)
        a("s_cbranch_scc1 L_X_LANDED")
        a("s_lshl_b32 s%d, s%d, 9" % (sT0, sHP))
        srd(a, SRD_WQ, P_WQ, 4194304 - 15 * 512, sT0)
        a("v_lshrrev_b32 v2, 5, v0")
        a("v_and_b32 v3, 31, v0")
        a("v_lshlrev_b32 v3, 4, v3")
        a("v_lshl_add_u32 v2, v2, 13, v3")
        a("s_lshl_b32 s%d, s%d, 1" % (sT0, sB))
        a("s_add_u32 s%d, s%d, 1" % (sT0, sT0))
        a("s_lshl_b32 s%d, s%d, 18" % (sT0, sT0))
        for i in range(16):
            a("buffer_load_dwordx4 %s, v2, s[%d:%d], s%d offen" % (vr(vE, 4), SRD_WQ, SRD_WQ + 3, sT0))
            if i < 15:
                a("s_add_u32 s%d, s%d, 16384" % (sT0, sT0))
    a.label("L_X_LANDED")
    stamp(a, 1)

    def q_mfma_list(pb):
        if opt.x_q_nomfma:
            return []
        out = []
        for nb in range(4):
            for qb in range(3):
                acc = vACC1 + (nb * 3 + qb) * 4
                out.append("v_mfma_f32_16x16x32_bf16 %s, %s, %s, %s" % (vr(acc, 4), vr(vA1[pb] + nb * 4, 4), vr(vB1[pb] + qb * 4, 4), vr(acc, 4)))
        return out
    vXTT = [vXT, vT[8]]
    def x_addr(e):
        v = vXTT[e & 1]
        out = []
        if opt.korder:
            out += ["s_add_u32 s%d, s%d, %d" % (sT0, sB, e & 7),
                    "s_and_b32 s%d, s%d, 7" % (sT0, sT0),
                    "s_mul_i32 s%d, s%d, 6144" % (sKS, sT0)]
            return out + ["v_add_u32 v%d, s%d, v%d" % (v, sKS, (vXB, vXB1)[e >> 3])]
        if e % 2 == 0:
            out += ["s_add_u32 s%d, s%d, %d" % (sT0, sB, e >> 1),
                    "s_and_b32 s%d, s%d, 7" % (sT0, sT0),
                    "s_mul_i32 s%d, s%d, 6144" % (sKS, sT0)]
        return out + ["v_add_u32 v%d, s%d, v%d" % (v, sKS, (vXB, vXB1)[e & 1])]
    for ins in x_addr(0):
        a(ins)
    for e in range(16):
        if opt.korder and e < 8:
            if opt.dum == 3:
                a("s_cmp_eq_u32 s%d, 3" % sW)
                a("s_cbranch_scc1 L_NOXW%d" % e)
            a("s_waitcnt vmcnt(%d)" % (14 - 2 * e))
            if opt.dum == 3:
                a.label("L_NOXW%d" % e)
        if e % 2 == 0 and not opt.korder:
            if opt.pf_tiles:
                a("s_cmp_eq_u32 s%d, 3" % sW)
                a("s_cbranch_scc1 L_NOXW%d" % e)
            a("s_waitcnt vmcnt(%d)" % (14 - e))
            if opt.pf_tiles:
                a.label("L_NOXW%d" % e)
        bar("CI", "Q%d" % e)
        if e in (0, 4, 8, 12):
            stamp(a, 9 + e // 4)
        pb = e & 1
        slot = e % NWS
        wa, so = (vWA, slot * 16384) if slot < 4 else (vWA2, (slot - 4) * 16384)
        fill = []
        if not opt.x_q_nods:
            for nb in range(4):
                for jj in range(2):
                    fill.append("ds_read_b64_tr_b16 %s, v%d offset:%d" % (vr(vA1[pb] + nb * 4 + jj * 2, 2), wa[nb], so + jj * 2048))
                if nb == 0:
                    for qb in range(3):
                        fill.append("ds_read_b128 %s, v%d offset:%d" % (vr(vB1[pb] + qb * 4, 4), vXTT[e & 1], qb * 2048))
        if e < 15:
            fill += x_addr(e + 1)
        interleave(a, q_mfma_list(pb ^ 1), fill)
        a("s_waitcnt lgkmcnt(0)")
    bar("CI", "Q16")
    stamp(a, 13)
    for m in q_mfma_list(1):
        a(m)
    scale = math.log2(math.e) / math.sqrt(128.0)
    a("s_mov_b32 s%d, 0x%08x" % (sT2, f32bits(scale)))
    a("s_mov_b32 s%d, 0x%08x" % (sT3, f32bits(scale)))
    a("s_nop 5")
    for nb in range(4):
        for qb in range(3):
            acc = vACC1 + (nb * 3 + qb) * 4
            a("v_pk_mul_f32 %s, %s, s[%d:%d]" % (vr(acc, 2), vr(acc, 2), sT2, sT3))
            a("v_pk_mul_f32 %s, %s, s[%d:%d]" % (vr(acc + 2, 2), vr(acc + 2, 2), sT2, sT3))
            a("v_cvt_pk_bf16_f32 v%d, v%d, v%d" % (acc, acc, acc + 1))
            a("v_cvt_pk_bf16_f32 v%d, v%d, v%d" % (acc + 1, acc + 2, acc + 3))
            a("ds_write_b64 v%d, %s offset:%d" % (vQW, vr(acc, 2), qb * 16 * MROW + nb * 32))
    for r in list(range(48, 64)) + list(range(48)):
        a("v_mov_b32 v%d, 0" % (vO + r))
    a("v_mov_b32 v%d, 0" % vLACC)
    a("s_waitcnt lgkmcnt(0)")
    bar("CI", "Q17")
    stamp(a, 2)
    a("s_cmp_eq_u32 s%d, 3" % sW)
    a("s_cbranch_scc1 L_TRANS")

    if opt.prio:
        a("s_setprio %d" % opt.prio)
    dq = Queue(1000)
    for ks in range(8):
        a("ds_read_b128 %s, v%d offset:%d" % (vr(vQ + ks * 4, 4), vQR, ks * 32))
        dq.issue("Q")
    L, WS = opt.L, opt.waitstep

    def frag_ops(p):
        return 1 if (p & 15) < 8 else 2

    def frag_read(t, p):
        if p >= 16:
            t, p = t + 1, p - 16
        fb = vF + (p & 7) * 4
        if p < 8:
            if not opt.x_nods:
                a("ds_read_b128 %s, v%d offset:%d" % (vr(fb, 4), vKA[p], kslot(t + 1) * 8192))
            dq.issue("F%d" % (p & 7), 1)
        else:
            u, db = (p - 8) >> 2, (p - 8) & 3
            for jj in range(2):
                if not opt.x_nods:
                    a("ds_read_b64_tr_b16 %s, v%d offset:%d" % (vr(fb + jj * 2, 2), vVA[db], ((t - 1) % 8) * 8192 + (16 * u + 8 * jj) * 256))
            dq.issue("F%d" % (p & 7), 2)

    def wait_frags(p):
        if (p - opt.waitphase) % WS:
            return
        n = dq.need({"F%d" % ((p + i) & 7) for i in range(WS)})
        if n is not None and not opt.x_nods:
            assert n <= 15
            a("s_waitcnt lgkmcnt(%d)" % n)

    def sm_ops(t):
        S, P = vS[t & 1], vP[t & 1]
        def E(k, i):
            return ("v_exp_f32 v%d, v%d" % (vE + (k & 1) * 2 + i, S + 2 * k + i), 8)
        def adds(k):
            e0, e1 = vE + (k & 1) * 2, vE + (k & 1) * 2 + 1
            if k < 2:
                return [("v_add_f32 v%d, v%d, v%d" % ((vPSA, vPSB)[k], e0, e1), 4)]
            return [("v_add_f32 v%d, v%d, v%d" % (vPSA, vPSA, e0), 4), ("v_add_f32 v%d, v%d, v%d" % (vPSB, vPSB, e1), 4)]
        def C(k):
            return ("v_cvt_pk_bf16_f32 v%d, v%d, v%d" % (P + k, vE + (k & 1) * 2, vE + (k & 1) * 2 + 1), 4)
        if opt.x_fast:
            ops = [E(0, 0), E(0, 1)]
            for k in range(1, 8):
                ops += [E(k, 0), E(k, 1), C(k - 1)]
            return ops + [("s_nop 0", 4), C(7)]
        ops = [E(0, 0), E(0, 1)]
        for k in range(1, 8):
            ops += [E(k, 0)] + adds(k - 1) + [E(k, 1), C(k - 1)]
        ops += adds(7) + [C(7)]
        ops.append(("v_add_f32 v%d, v%d, v%d" % (vPSA, vPSA, vPSB), 4))
        ops.append(("v_cmp_nge_f32 vcc, s%d, v%d" % (sTHR, vPSA), 4))
        return ops

    def sm_schedule(ops, base):
        room = [max(opt.slotcap - base[p], 4) for p in range(15)]
        total = sum(c for _, c in ops)
        scale_ = total / float(sum(room))
        slots = [[] for _ in range(16)]
        i, cum_room, cum = 0, 0.0, 0
        for p in range(15):
            cum_room += room[p] * scale_
            while i < len(ops) and (cum + ops[i][1] / 2.0 <= cum_room or p == 14):
                slots[p].append(ops[i][0])
                cum += ops[i][1]
                i += 1
        return slots

    rare = []

    def period(t, tag, do_qk, do_sm, do_pv, c_zero=False, has_bar=True, next_qk=True):
        Sn, Pp = vS[(t + 1) & 1], vP[(t - 1) & 1]
        def want(pn):
            return (pn < 8 and do_qk) or (8 <= pn < 16 and do_pv) or (pn >= 16 and next_qk)
        base = []
        for p in range(16):
            c = 8 + (opt.dscost * frag_ops(p + L) if want(p + L) else 0) + (4 if p % WS == 0 else 0) + (4 if p == 16 - L else 0)
            base.append(c)
        sm = sm_schedule(sm_ops(t), base) if do_sm and not opt.x_nosm else [[] for _ in range(16)]
        lab = "L_RARE_%s" % tag
        check = do_sm and not opt.x_fast and not opt.x_norare and not opt.x_nosm
        last = []
        for p in range(16):
            mf = None
            if p < 8 and do_qk:
                c = "0" if (p == 0 and c_zero) else (vr(vNM, 16) if p == 0 else vr(Sn, 16))
                mf = "v_mfma_f32_32x32x16_bf16 %s, %s, %s, %s" % (vr(Sn, 16), vr(vF + (p & 7) * 4, 4), vr(vQ + p * 4, 4), c)
            if p >= 8 and do_pv:
                u, db = (p - 8) >> 2, (p - 8) & 3
                mf = "v_mfma_f32_32x32x16_bf16 %s, %s, %s, %s" % (vr(vO + db * 16, 16), vr(vF + (p & 7) * 4, 4), vr(Pp + u * 4, 4), vr(vO + db * 16, 16))
            if p == 16 - L and has_bar:
                bar("C", "A%s" % tag, opt.x_nobar)
            if p == 15 and check and opt.brpos == 1:
                a("s_cbranch_vccnz %s" % lab)
            n0 = len(a.lines)
            if mf:
                wait_frags(p)
                if not opt.x_nomfma:
                    a(mf)
            if opt.x_fast and do_pv and p in (11, 15):
                u = 0 if p == 11 else 1
                a("v_mfma_f32_16x16x32_bf16 v[228:231], v[24:27], %s, v[228:231]" % vr(Pp + u * 4, 4))
            if want(p + L):
                frag_read(t, p + L)
            if p == 15:
                last = list(a.lines[n0:])
            for ins in sm[p]:
                if ins == "v_exp_pad":
                    continue
                prev = next(x for x in reversed(a.lines) if x.strip() and not x.strip().endswith(":")).strip()
                if prev.startswith("v_exp_f32") and not ins.startswith("v_exp") and prev.split()[1].rstrip(",") in [o.strip() for o in ins.split(None, 1)[1].split(",")[1:]]:
                    a("s_nop 0")
                a(ins)
        if do_sm and not opt.x_fast:
            if check:
                if opt.brpos == 0:
                    a("s_cbranch_vccnz %s" % lab)
                rare.append((lab, t, do_qk, last if opt.brpos == 1 else []))
                a.label(lab + "_BACK")
            a("v_add_f32 v%d, v%d, v%d" % (vLACC, vLACC, vPSA))

    def row_max(S, dst):
        a("v_max3_f32 v%d, v%d, v%d, v%d" % (dst, S, S + 1, S + 2))
        for r in range(3, 15, 2):
            a("v_max3_f32 v%d, v%d, v%d, v%d" % (dst, dst, S + r, S + r + 1))
        a("v_max_f32 v%d, v%d, v%d" % (dst, dst, S + 15))
        a("v_mov_b32 v%d, v%d" % (vTMP, dst))
        a("s_nop 1")
        a("v_permlane32_swap_b32 v%d, v%d" % (dst, vTMP))
        a("s_nop 1")
        a("v_max_f32 v%d, v%d, v%d" % (dst, dst, vTMP))

    def emit_rare(lab, t, fix_next, first):
        S, Sn, P = vS[t & 1], vS[(t + 1) & 1], vP[t & 1]
        d, f = vE + 4, vE + 5
        a.label(lab)
        for ins in first:
            a(ins)
        a("s_nop 15")
        row_max(S, d)
        a("v_max_f32 v%d, 0, v%d" % (d, d))
        a("v_exp_f32 v%d, -v%d" % (f, d))
        for r in range(16):
            a("v_sub_f32 v%d, v%d, v%d" % (vNM + r, vNM + r, d))
        for r in range(16):
            a("v_sub_f32 v%d, v%d, v%d" % (S + r, S + r, d))
        if fix_next:
            for r in range(16):
                a("v_sub_f32 v%d, v%d, v%d" % (Sn + r, Sn + r, d))
        for r in range(64):
            a("v_mul_f32 v%d, v%d, v%d" % (vO + r, vO + r, f))
        a("v_mul_f32 v%d, v%d, v%d" % (vLACC, vLACC, f))
        a("v_mov_b32 v%d, 0" % vPSA)
        for k in range(8):
            a("v_exp_f32 v%d, v%d" % (vE, S + 2 * k))
            a("v_exp_f32 v%d, v%d" % (vE + 1, S + 2 * k + 1))
            a("v_add_f32 v%d, v%d, v%d" % (vPSA, vPSA, vE))
            a("v_add_f32 v%d, v%d, v%d" % (vPSA, vPSA, vE + 1))
            a("v_cvt_pk_bf16_f32 v%d, v%d, v%d" % (P + k, vE, vE + 1))
        a("s_nop 1")
        a("s_branch %s_BACK" % lab)

    def a3_list(p):
        out = ["v_add_u32 v%d, 0x%x, v%d" % (vWOT[0], (RWO if opt.osched else RWO0)[p], vWOA),
               "v_xor_b32 v%d, 32, v%d" % (vWOT[1], vWOT[0])]
        for ks in range(4 if not opt.x_o_nods else 0):
            for nb in range(2):
                for jj in range(2):
                    out.append("ds_read_b64_tr_b16 %s, v%d offset:%d" % (vr(vA3[p & 1] + (ks * 2 + nb) * 4 + jj * 2, 2), vWOT[nb], ks * 8192 + jj * 1024))
        return out

    for p in range(L):
        frag_read(-1, p)
    a("s_waitcnt lgkmcnt(%d)" % dq.need({"Q"}))
    if opt.dump == "q":
        dump_regs(a, vQ, 32)
    period(-1, "m1", True, False, False, c_zero=True)
    a("s_nop 15")
    row_max(vS[0], vE + 4)
    for r in range(16):
        a("v_sub_f32 v%d, 0, v%d" % (vNM + r, vE + 4))
    for r in range(16):
        a("v_sub_f32 v%d, v%d, v%d" % (vS[0] + r, vS[0] + r, vE + 4))
    a("s_nop 1")
    period(0, "0", True, True, False)
    q_entry = list(dq.q)
    a("s_mov_b32 s%d, 0" % sPASS)
    a(".p2align 3")
    a.label("L_ATT_LOOP")
    n0 = len(bars["C"])
    for t in range(1, 9):
        period(t, "L%d" % t, True, True, True)
        if t == 6:
            q_exit = list(dq.q)
            a("s_cmp_eq_u32 s%d, 3" % sPASS)
            a("s_cbranch_scc1 L_ATT_EXIT")
    assert dq.q == q_entry, (dq.q, q_entry)
    a("s_add_u32 s%d, s%d, 1" % (sPASS, sPASS))
    a("s_branch L_ATT_LOOP")
    del bars["C"][n0:]
    bars["C"] += ["A%d" % t for t in range(1, 31)]
    a.label("L_ATT_EXIT")
    dq.q = list(q_exit)
    period(31, "31", False, True, True, next_qk=False)
    period(32, "32", False, False, True, has_bar=False, next_qk=False)
    bar("C", "E00")
    stamp(a, 3)
    for ins in a3_list(0):
        a(ins)
    a("v_mov_b32 v%d, v%d" % (vTMP, vLACC))
    a("s_nop 1")
    a("v_permlane32_swap_b32 v%d, v%d" % (vLACC, vTMP))
    a("s_nop 1")
    a("v_add_f32 v%d, v%d, v%d" % (vLACC, vLACC, vTMP))
    a("v_rcp_f32 v%d, v%d" % (vLACC, vLACC))
    a("s_nop 7")
    for db in range(4):
        for rr in range(4):
            b = vO + db * 16 + rr * 4
            a("v_pk_mul_f32 %s, %s, %s op_sel_hi:[1,0]" % (vr(b, 2), vr(b, 2), vr(vLACC, 2)))
            a("v_pk_mul_f32 %s, %s, %s op_sel_hi:[1,0]" % (vr(b + 2, 2), vr(b + 2, 2), vr(vLACC, 2)))
            a("v_cvt_pk_bf16_f32 v%d, v%d, v%d" % (b, b, b + 1))
            a("v_cvt_pk_bf16_f32 v%d, v%d, v%d" % (b + 1, b + 2, b + 3))
            a("ds_write_b64 v%d, %s offset:%d" % (vOW, vr(b, 2), db * 64 + rr * 16))
    if opt.prio:
        a("s_setprio 0")
    a("s_waitcnt lgkmcnt(0)")
    a("s_branch L_E0")

    a.label("L_TRANS")
    if not opt.x_nobar:
        a("s_mov_b32 s%d, 33" % sPASS)
        a.label("L_IDLE3_LOOP")
        a("s_barrier")
        a("s_sub_u32 s%d, s%d, 1" % (sPASS, sPASS))
        a("s_cmp_lg_u32 s%d, 0" % sPASS)
        a("s_cbranch_scc1 L_IDLE3_LOOP")
    bars["I"] += ["Am1"] + ["A%d" % t for t in range(0, 32)]
    bar("I", "E00")
    for ins in a3_list(0):
        a(ins)
    a("s_waitcnt lgkmcnt(0)")

    a.label("L_E0")
    if opt.oprio:
        a("s_setprio %d" % opt.oprio)
    bar("CI", "E0")
    stamp(a, 4)

    def mf3_list(p):
        if opt.x_o_nomfma:
            return []
        out = []
        kh = p & 1
        for ks in range(4):
            for nb in range(2):
                for qb in range(3):
                    acc = vACC3[(p >> 1) & 1] + (qb * 2 + nb) * 4
                    c = "0" if (ks == 0 and kh == 0) else vr(acc, 4)
                    out.append("v_mfma_f32_16x16x32_bf16 %s, %s, %s, %s" % (vr(acc, 4), vr(vA3[p & 1] + (ks * 2 + nb) * 4, 4), vr(vB3 + ((kh * 4 + ks) * 3 + qb) * 4, 4), c))
        return out
    def cvt3_list(c):
        if opt.x_o_nost:
            return []
        out = []
        for qb in range(3):
            acc = vACC3[c & 1] + qb * 8
            for d in range(4):
                out.append("v_cvt_pk_bf16_f32 v%d, v%d, v%d" % (acc + d, acc + 2 * d, acc + 2 * d + 1))
        return out
    def st3_list(c):
        if opt.x_o_nost:
            return []
        out = ["s_add_u32 s%d, s%d, %d" % (sT0, sB, c),
               "s_and_b32 s%d, s%d, 3" % (sT0, sT0),
               "s_mul_i32 s%d, s%d, %d" % (sT0, sT0, 4 * 16 * 3072),
               "s_add_u32 s%d, s%d, s%d" % (sT0, sT0, sPOFF)]
        sts = ["buffer_store_dwordx4 %s, v%d, s[%d:%d], s%d offen offset:%d %s" % (vr(vACC3[c & 1] + qb * 8, 4), vST, SRD_WS, SRD_WS + 3, sT0, qb * 1024, part_aux) for qb in range(3)]
        return out, sts
    def b3_list(kh):
        out = []
        for ks in range(4 * kh, 4 * kh + 4):
            for qb in range(3):
                out.append("ds_read_b128 %s, v%d offset:%d" % (vr(vB3 + (ks * 3 + qb) * 4, 4), vOR, (48 * kh + 16 * qb) * MROW + (ks & 3) * 64))
        return out
    if opt.osched == 0:
        for ins in b3_list(0):
            a(ins)
        a("s_waitcnt lgkmcnt(0)")
        for p in range(8):
            if p <= 6:
                bar("CI", "P%d" % (p + 1))
            if p in (0, 3, 6):
                stamp(a, 14 + p // 3)
            fill = []
            if p == 0:
                fill += b3_list(1)
            if p <= 6:
                fill += a3_list(p + 1)
            if p >= 2 and p % 2 == 0 and not opt.x_o_nost:
                c = p // 2 - 1
                fill += cvt3_list(c) + st3_list(c)[0] + st3_list(c)[1]
            interleave(a, mf3_list(p), fill)
            if p <= 6:
                a("s_waitcnt lgkmcnt(0)")
        a("s_nop 7")
        if not opt.x_o_nost:
            for ins in cvt3_list(3) + st3_list(3)[0] + st3_list(3)[1]:
                a(ins)
    else:
        for ins in b3_list(0) + b3_list(1):
            a(ins)
        a("s_waitcnt lgkmcnt(0)")
        if opt.dump == "o":
            dump_regs(a, vB3, 96)
        pre_store = {3: 0, 5: 1}
        for p in range(8):
            if p in pre_store and not opt.x_o_nost:
                for ins in st3_list(pre_store[p])[0]:
                    a(ins)
            if p in (0, 3, 5, 6):
                bar("CI", "P%d" % (p + 1))
            if p in pre_store and not opt.x_o_nost:
                for ins in st3_list(pre_store[p])[1]:
                    a(ins)
            if p in (0, 3, 6):
                stamp(a, 14 + p // 3)
            fill = []
            if p <= 6:
                fill += a3_list(p + 1)
            if p in (2, 4):
                fill += cvt3_list(p // 2 - 1)
            if p == 6 and not opt.x_o_nost:
                fill += cvt3_list(2) + st3_list(2)[0] + st3_list(2)[1]
            interleave(a, mf3_list(p), fill)
            if p <= 6:
                a("s_waitcnt lgkmcnt(0)")
        a("s_nop 7")
        if not opt.x_o_nost:
            for ins in cvt3_list(3) + st3_list(3)[0] + st3_list(3)[1]:
                a(ins)
    stamp(a, 5)
    if opt.fused_tail:
        srd(a, SRD_OUT, P_OUT, 8 * 48 * 1024 * 2)
        a("s_lshl_b32 s%d, s%d, 4" % (sKS, sGRP))
        a("s_add_u32 s%d, s%d, s%d" % (sKS, sKS, sHP))
        a("s_mul_i32 s%d, s%d, %d" % (sKS, sKS, 16 * 3072))
        reduce_pre(a, sW, sKS, sGRP, sHP, 0)
    a("s_waitcnt vmcnt(0)")
    stamp(a, 6)
    if opt.fused_tail:
        bar("CI", "F0")
        a("s_branch L_REDUCE")
    else:
        if opt.x_stretch:
            a("s_cmp_lg_u32 s%d, 0" % sW)
            a("s_cbranch_scc1 L_END")
            a("s_mul_i32 s%d, s%d, %d" % (sDBG, sDBG, opt.x_stretch))
            a.label("L_STRETCH")
            a("s_memrealtime s[%d:%d]" % (sSTAMP, sSTAMP + 1))
            a("s_waitcnt lgkmcnt(0)")
            a("s_sub_u32 s%d, s%d, s100" % (sSTAMP, sSTAMP))
            a("s_cmp_lt_u32 s%d, s%d" % (sSTAMP, sDBG))
            a("s_cbranch_scc1 L_STRETCH")
        a("s_branch L_END")

    a.label("L_LOADER")
    qL = Queue(63)
    t1, t2, t3, t4 = vT[0:4]
    a("s_sub_u32 s%d, s%d, 4" % (sJ, sW))
    a("s_lshl_b32 s%d, s%d, 9" % (sT0, sHP))
    srd(a, SRD_WQ, P_WQ, 4194304 - 15 * 512, sT0)
    a("s_lshl_b32 s%d, s%d, 16" % (sJ64K, sJ))
    a("v_lshrrev_b32 v%d, 5, v%d" % (t1, vL))
    a("v_and_b32 v%d, 31, v%d" % (t2, vL))
    a("v_lshlrev_b32 v%d, 1, v%d" % (t3, t1))
    a("v_xor_b32 v%d, v%d, v%d" % (t2, t2, t3))
    a("v_lshlrev_b32 v%d, 4, v%d" % (t2, t2))
    a("s_and_b32 s%d, s%d, 1" % (sT1, sJ))
    a("s_lshl_b32 s%d, s%d, 7" % (sT1, sT1))
    a("v_xor_b32 v%d, s%d, v%d" % (t2, sT1, t2))
    a("v_lshl_add_u32 v%d, v%d, 13, v%d" % (t2, t1, t2))
    for aa in range(4):
        c = 2 * aa * 8192 - aa * 1024
        if aa & 1:
            a("v_xor_b32 v%d, 64, v%d" % (vLW[aa], t2))
            a("v_add_u32 v%d, 0x%x, v%d" % (vLW[aa], c, vLW[aa]))
        else:
            a("v_add_u32 v%d, 0x%x, v%d" % (vLW[aa], c, t2))
    a("s_lshl_b32 s%d, s%d, 1" % (sKS, sB))
    a("s_lshl_b32 s%d, s%d, 12" % (sT5, sJ))

    def dma_w(e, slot=None, tag=None):
        step = e if not opt.korder else (2 * e if e < 8 else 2 * (e - 8) + 1)
        a("s_add_u32 s%d, s%d, %d" % (sT0, sKS, step))
        a("s_and_b32 s%d, s%d, 15" % (sT0, sT0))
        a("s_lshl_b32 s%d, s%d, 18" % (sT0, sT0))
        a("s_add_u32 m0, s%d, 0x%x" % (sT5, (e % NWS if slot is None else slot) * 16384))
        a("s_add_u32 s%d, s%d, s%d" % (sT0, sT0, sJ64K))
        if opt.x_q_nodma:
            return
        for aa in range(4):
            a("buffer_load_dwordx4 v%d, s[%d:%d], s%d offen offset:%d %s lds" % (vLW[aa], SRD_WQ, SRD_WQ + 3, sT0, aa * 1024, opt.w_aux))
        qL.issue(tag or "W%d" % e, 4)
    for e in range(opt.wfirst):
        dma_w(e)
    if opt.dum == 1:
        dma_w(8, NWS - 1, "DUM")
    a("s_lshl_b32 s%d, s%d, 3" % (sT0, sB))
    a("s_add_u32 s%d, s%d, s%d" % (sT0, sT0, sKVH))
    a("s_lshl_b32 s%d, s%d, 18" % (sT0, sT0))
    srd(a, SRD_K, P_K, 262144, sT0)
    srd(a, SRD_V, P_V, 262144, sT0)
    a("s_lshl_b32 s%d, s%d, 18" % (sT0, sHP))
    srd(a, SRD_WO, P_WO, 262144, sT0)
    a("s_lshl_b32 s%d, s%d, 11" % (sJ2K, sJ))
    a("v_lshrrev_b32 v%d, 4, v%d" % (t1, vL))
    a("v_and_b32 v%d, 15, v%d" % (t2, vL))
    a("v_xor_b32 v%d, v%d, v%d" % (t3, t2, t1))
    a("s_and_b32 s%d, s%d, 1" % (sT1, sJ))
    a("s_lshl_b32 s%d, s%d, 3" % (sT1, sT1))
    a("v_xor_b32 v%d, s%d, v%d" % (t3, sT1, t3))
    a("v_lshlrev_b32 v%d, 4, v%d" % (t3, t3))
    a("v_lshl_add_u32 v%d, v%d, 8, v%d" % (vLK[0], t1, t3))
    a("v_xor_b32 v%d, 64, v%d" % (vLK[1], vLK[0]))
    a("v_lshlrev_b32 v%d, 2, v%d" % (t3, t1))
    a("v_xor_b32 v%d, v%d, v%d" % (t3, t2, t3))
    a("v_lshlrev_b32 v%d, 4, v%d" % (t3, t3))
    a("v_lshl_add_u32 v%d, v%d, 8, v%d" % (vLV, t1, t3))
    a("v_lshrrev_b32 v%d, 4, v%d" % (t1, vL))
    a("v_and_b32 v%d, 15, v%d" % (t2, vL))
    a("v_lshlrev_b32 v%d, 1, v%d" % (t3, t1))
    a("v_xor_b32 v%d, v%d, v%d" % (t2, t2, t3))
    a("v_lshlrev_b32 v%d, 4, v%d" % (t2, t2))
    a("v_lshl_add_u32 v%d, v%d, 10, v%d" % (t2, t1, t2))
    for aa in range(4):
        if aa >> 1:
            a("v_xor_b32 v%d, 128, v%d" % (vLWO[aa], t2))
            a("v_add_u32 v%d, %d, v%d" % (vLWO[aa], 3072 * aa, vLWO[aa]))
        else:
            a("v_add_u32 v%d, %d, v%d" % (vLWO[aa], 3072 * aa, t2))

    def lwait(tags):
        n = qL.need(set(tags))
        if n is not None:
            a("s_waitcnt vmcnt(%d)" % n)
    if opt.wfirst < NWS:
        lwait(["W0"])
        if opt.dum == 2:
            dma_w(8, NWS - 1, "DUM")
        for e in range(opt.wfirst, NWS):
            dma_w(e)

    def dma_tile(kind, t):
        base = K_BASE + kslot(t) * 8192 if kind == "K" else V_BASE + (t % 8) * 8192
        s_, v_ = (SRD_K, vLK) if kind == "K" else (SRD_V, [vLV, vLV])
        a("s_add_u32 m0, s%d, 0x%x" % (sJ2K, base))
        a("s_add_u32 s%d, s%d, 0x%x" % (sOFF, sJ2K, t * 8192))
        for aa in range(2):
            a("buffer_load_dwordx4 v%d, s[%d:%d], s%d offen offset:%d %s lds" % (v_[aa], s_, s_ + 3, sOFF, aa * 1024, opt.kv_aux))
        qL.issue("%s%d" % (kind, t), 2)
    def dma_wo(p, nl=4):
        if opt.x_o_nodma:
            return
        R = (RWO if opt.osched else RWO0)[p]
        if nl == 2:
            a("s_cmp_ge_u32 s%d, 2" % sJ)
            a("s_cbranch_scc1 L_WO_SKIP%d" % p)
        a("s_add_u32 s%d, s%d, %d" % (sT0, sB, p >> 1))
        a("s_and_b32 s%d, s%d, 3" % (sT0, sT0))
        a("s_lshl_b32 s%d, s%d, 8" % (sT0, sT0))
        a("s_lshl_b32 s%d, s%d, 3" % (sT1, sT5))
        a("s_add_u32 s%d, s%d, s%d" % (sT0, sT0, sT1))
        if p & 1:
            a("s_add_u32 s%d, s%d, 0x20000" % (sT0, sT0))
        a("s_lshl_b32 s%d, s%d, 1" % (sT1, sT5))
        for sh in range(4 // nl):
            for hf in range(2):
                a("s_add_u32 m0, s%d, 0x%x" % (sT1, R + sh * 16384 + hf * 4096))
                if hf:
                    a("s_add_u32 s%d, s%d, 16384" % (sT0, sT0))
                elif sh:
                    a("s_add_u32 s%d, s%d, %d" % (sT0, sT0, 65536 - 16384))
                else:
                    a("s_nop 0")
                for aa in range(4):
                    a("buffer_load_dwordx4 v%d, s[%d:%d], s%d offen offset:%d %s lds" % (vLWO[aa], SRD_WO, SRD_WO + 3, sT0, aa * 1024, opt.wo_aux))
        if nl == 2:
            a.label("L_WO_SKIP%d" % p)
        qL.issue("WO%d" % p, 8 * 4 // nl)
    fill = {10: [("K", 0)], 11: [("K", 1)], 12: [("V", 0)], 13: [("K", 2)], 14: [("V", 1)], 15: [("K", 3)], 16: [("V", 2)]}
    nk, nv = 4, 3
    for e in range(17):
        if e < 16:
            lwait(["W%d" % e])
        if opt.lstamps and e >= 10:
            stamp(a, 17 + e - 10)
        bar("L", "Q%d" % e)
        if e >= 1 and e + NWS - 1 <= 15:
            dma_w(e + NWS - 1)
        for kind, t in fill.get(e, []):
            dma_tile(kind, t)
        if opt.lstamps and e >= 10:
            stamp(a, 24 + e - 10)
    lwait(["K0"])
    bar("L", "Q17")
    stamp(a, 2)
    for _ in range(2):
        if nk <= opt.klead - 2:
            dma_tile("K", nk); nk += 1
        if nv <= opt.vlead - 2 or nv <= 0:
            dma_tile("V", nv); nv += 1
    if opt.fused_tail:
        srd(a, SRD_WS, P_WS, WS_BYTES)
        srd(a, SRD_DBG, P_DBG, 256)
        a("s_lshl_b32 s%d, s%d, 4" % (sT0, sGRP))
        a("v_mov_b32 v2, s%d" % sT0)
    wo_at = [int(x) for x in opt.wo_at.split(",")]
    assert wo_at[0] >= 26 and wo_at[1] >= 29 and wo_at[2] >= 30
    for t in range(-1, 32):
        lwait(["K%d" % (t + 2), "V%d" % t])
        bar("L", "A%s" % ("m1" if t < 0 else str(t)), opt.x_nobar)
        for _ in range(2):
            if nk <= 31 and nk <= t + opt.klead:
                dma_tile("K", nk); nk += 1
            if nv <= 31 and nv <= t + opt.vlead and (nv <= 5 or nv <= t + 6):
                dma_tile("V", nv); nv += 1
        if opt.fused_tail and t == 2:
            a("buffer_load_dword v%d, v2, s[%d:%d], 0 offen sc1" % (vFLAG, SRD_DBG, SRD_DBG + 3))
            qL.issue("FLAG", 1)
        if opt.fused_tail and t == 14:
            lwait(["FLAG"])
            a("s_mov_b32 s%d, 0" % sT4)
            a.label("L_FLAG_CHECK")
            a("v_readfirstlane_b32 s%d, v%d" % (sT1, vFLAG))
            a("s_add_u32 s%d, s%d, 1" % (sT4, sT4))
            a("s_cmp_lg_u32 s%d, 0" % sT1)
            a("s_cbranch_scc1 L_FLAG_OK")
            a("s_cmp_ge_u32 s%d, 0x%x" % (sT4, opt.spin_limit))
            a("s_cbranch_scc1 L_FLAG_OK")
            a("s_sleep 8")
            a("buffer_load_dword v%d, v2, s[%d:%d], 0 offen sc1" % (vFLAG, SRD_DBG, SRD_DBG + 3))
            a("s_waitcnt vmcnt(0)")
            a("s_branch L_FLAG_CHECK")
            a.label("L_FLAG_OK")
        for p_, t_ in enumerate(wo_at):
            if t == t_:
                dma_wo(p_)
    assert nk == 32 and nv == 32
    lwait(["WO0"])
    bar("L", "E00")
    for p_, t_ in enumerate(wo_at):
        if t_ == 32:
            dma_wo(p_)
    bar("L", "E0")
    stamp(a, 4)
    if opt.osched == 0:
        for p in range(1, 8):
            lwait(["WO%d" % p])
            bar("L", "P%d" % p)
            if p + 3 <= 7:
                dma_wo(p + 3, opt.onl)
    else:
        lwait(["WO1", "WO2", "WO3"])
        bar("L", "P1")
        dma_wo(4)
        dma_wo(5)
        lwait(["WO4", "WO5"])
        bar("L", "P4")
        dma_wo(6)
        dma_wo(7)
        lwait(["WO6"])
        bar("L", "P6")
        lwait(["WO7"])
        bar("L", "P7")
    stamp(a, 6)
    if opt.fused_tail:
        srd(a, SRD_OUT, P_OUT, 8 * 48 * 1024 * 2)
        a("s_lshl_b32 s%d, s%d, 4" % (sKS, sGRP))
        a("s_add_u32 s%d, s%d, s%d" % (sKS, sKS, sHP))
        a("s_mul_i32 s%d, s%d, %d" % (sKS, sKS, 16 * 3072))
        reduce_pre(a, sW, sKS, sGRP, sHP, 0)
        a("s_lshl_b32 s%d, s%d, 8" % (sT0, sGRP))
        a("s_add_u32 s%d, s%d, 0x%x" % (sT0, sT0, WS_CNT))
        a("v_mov_b32 v2, s%d" % sT0)
        a("v_mov_b32 v3, 1")
        bar("L", "F0")
        a("s_cmp_lg_u32 s%d, 4" % sW)
        a("s_cbranch_scc1 L_REDUCE")
        a("s_mov_b64 s[%d:%d], exec" % (sT2, sT3))
        a("s_mov_b64 exec, 1")
        a("buffer_atomic_add v3, v2, s[%d:%d], 0 offen sc0 sc1" % (SRD_WS, SRD_WS + 3))
        a("s_mov_b32 s%d, 0" % sT4)
        a("s_waitcnt vmcnt(0)")
        a("v_readfirstlane_b32 s%d, v3" % sT1)
        a("s_cmp_ge_u32 s%d, 15" % sT1)
        a("s_cbranch_scc1 L_POLL_DONE")
        for i in range(opt.npoll - 1):
            a("buffer_load_dword v%d, v2, s[%d:%d], 0 offen sc1" % (52 + i, SRD_WS, SRD_WS + 3))
            a("s_sleep %d" % opt.sleep)
        a.label("L_POLL")
        for i in range(opt.npoll):
            a("buffer_load_dword v%d, v2, s[%d:%d], 0 offen sc1" % (52 + (i + opt.npoll - 1) % opt.npoll, SRD_WS, SRD_WS + 3))
            a("s_add_u32 s%d, s%d, 1" % (sT4, sT4))
            a("s_waitcnt vmcnt(%d)" % (opt.npoll - 1))
            a("v_readfirstlane_b32 s%d, v%d" % (sT1, 52 + i))
            a("s_cmp_ge_u32 s%d, 16" % sT1)
            a("s_cbranch_scc1 L_POLL_DONE")
            if opt.sleep:
                a("s_sleep %d" % opt.sleep)
        a("s_cmp_lt_u32 s%d, 0x%x" % (sT4, opt.spin_limit))
        a("s_cbranch_scc1 L_POLL")
        a.label("L_POLL_DONE")
        a("s_mov_b64 exec, s[%d:%d]" % (sT2, sT3))
        a.label("L_REDUCE")
        a("s_barrier")
        stamp(a, 7)
        a("s_cmp_ge_u32 s%d, 6" % sW)
        a("s_cbranch_scc1 L_RED_IDLE")
        reduce_body(a, SRD_WS, SRD_OUT, "sc1")
        stamp(a, 8)
        if opt.x_stretch:
            a("s_cmp_lg_u32 s%d, 0" % sW)
            a("s_cbranch_scc1 L_END")
            a("s_mul_i32 s%d, s%d, %d" % (sDBG, sDBG, opt.x_stretch))
            a.label("L_STRETCH")
            a("s_memrealtime s[%d:%d]" % (sSTAMP, sSTAMP + 1))
            a("s_waitcnt lgkmcnt(0)")
            a("s_sub_u32 s%d, s%d, s100" % (sSTAMP, sSTAMP))
            a("s_cmp_lt_u32 s%d, s%d" % (sSTAMP, sDBG))
            a("s_cbranch_scc1 L_STRETCH")
        a("s_branch L_END")
        a.label("L_RED_IDLE")
        a("s_barrier")

    a.label("L_END")
    a("s_endpgm")
    for lab, t, fix, first in rare:
        emit_rare(lab, t, fix, first)

    assert bars["C"] == bars["I"] == bars["L"], "barrier sequences differ:\n%s\n%s\n%s" % (bars["C"], bars["I"], bars["L"])


def gen_reduce(a):
    name = "attn_reduce_kernel"
    a(".p2align 8")
    a(".globl %s" % name)
    a(".type %s,@function" % name)
    a.label(name)
    if opt.stamps:
        a("s_memrealtime s[100:101]")
    a("s_cmp_ge_u32 s2, 256")
    a("s_cbranch_scc1 R_END")
    a("s_load_dwordx2 s[4:5], s[0:1], 80")
    a("s_load_dwordx2 s[6:7], s[0:1], 96")
    a("v_lshrrev_b32 v1, 6, v0")
    a("v_and_b32 v0, 63, v0")
    a("v_readfirstlane_b32 s3, v1")
    a("s_mul_i32 s16, s2, %d" % (16 * 3072))
    a("s_lshr_b32 s18, s2, 4")
    a("s_and_b32 s19, s2, 15")
    a("s_waitcnt lgkmcnt(0)")
    srd(a, 8, 6, WS_PART_BYTES)
    srd(a, 12, 4, 8 * 48 * 1024 * 2)
    reduce_pre(a, 3, 16, 18, 19, 0)
    reduce_body(a, 8, 12, "")
    a.label("R_END")
    a("s_endpgm")
    return name


VOP3_ONLY = ("v_mfma", "v_cvt_pk_bf16_f32", "v_max3", "v_lshl_add_u32", "v_bfe_u32", "v_dot2_f32_bf16", "v_pk_", "v_mul_lo", "v_add3",
             "v_writelane", "v_readlane", "v_and_or", "v_perm_b32", "v_lshl_or")
MEM = ("ds_", "buffer_", "global_", "s_load", "s_memtime", "s_memrealtime")
INLINE_F = ("0.5", "-0.5", "1.0", "-1.0", "2.0", "-2.0", "4.0", "-4.0")


def has_literal(ops):
    for o in ops:
        o = o.strip()
        if re.fullmatch(r"[A-Z][A-Z_]+", o):
            return True
        if re.fullmatch(r"-?(0x[0-9a-fA-F]+|\d+)", o):
            v = int(o, 0)
            if not -16 <= v <= 64:
                return True
    return False


def ins_size(ln):
    op, _, rest = ln.partition(" ")
    ops = rest.split(",")
    if op.startswith(MEM):
        return 8
    if op.startswith(("s_waitcnt", "s_barrier", "s_nop", "s_branch", "s_cbranch", "s_setprio", "s_endpgm", "s_sleep")):
        return 4
    if op.startswith("v_"):
        if op.startswith(VOP3_ONLY) or op.endswith("_e64") or re.search(r"[ ,]-v\d|abs\(", " " + rest):
            return 8
        return 8 if has_literal(ops) else 4
    return 8 if has_literal(ops) else 4


def widenable(ln):
    op, _, rest = ln.partition(" ")
    return op.startswith("v_") and ins_size(ln) == 4 and not op.startswith(("v_readfirstlane", "v_permlane", "v_nop")) and not op.endswith("_e32")


def align_pass(lines):
    out = list(lines)
    off, run = 0, []
    fixed = missed = 0
    for i, ln in enumerate(out):
        t = ln.strip()
        if not t or t[0] == ";":
            continue
        if t.endswith(":"):
            continue
        if t.startswith(".p2align"):
            n = 1 << int(t.split()[1].rstrip(","))
            off = (off + n - 1) // n * n
            run = []
            continue
        if t[0] == ".":
            continue
        sz = ins_size(t)
        if sz == 8:
            if off % 8 == 4:
                cand = [j for j in run if widenable(out[j].strip())]
                if cand:
                    j = cand[-1]
                    op, _, rest = out[j].strip().partition(" ")
                    out[j] = "    %s_e64 %s" % (op, rest)
                    off += 4
                    fixed += 1
                else:
                    missed += 1
            run = []
        else:
            run.append(i)
        off += sz
    return out, fixed, missed


def kd(name, vgpr, sgpr):
    acc = (vgpr + 3) // 4 * 4
    return """.p2align 6
.amdhsa_kernel %s
  .amdhsa_next_free_vgpr %d
  .amdhsa_next_free_sgpr %d
  .amdhsa_accum_offset %d
  .amdhsa_group_segment_fixed_size 0
  .amdhsa_kernarg_size 104
  .amdhsa_user_sgpr_count 2
  .amdhsa_user_sgpr_kernarg_segment_ptr 1
  .amdhsa_system_sgpr_workgroup_id_x 1
.end_amdhsa_kernel
""" % (name, vgpr, sgpr, acc)


def build():
    hdr = open("cdna_kernels/%s.s.ref" % NAME).read().split("\n")
    head = [ln for ln in hdr if ln.startswith(";") and "@launch" not in ln][:14]
    a = Prog()
    main = "attn_main_kernel" if multi() else NAME + "_kernel"
    if multi():
        head.append("; @launch kernel=attn_main_kernel grid=(256,1,1) block=(512,1,1) lds=%d" % LDS_BYTES)
        head.append("; @launch kernel=attn_reduce_kernel grid=(256,1,1) block=(384,1,1) lds=6144")
    else:
        head.append("; @launch grid=(256,1,1) block=(512,1,1) lds=%d" % LDS_BYTES)
    a('.amdgcn_target "amdgcn-amd-amdhsa--gfx950"')
    a(".text")
    a(".globl %s" % main)
    a(".p2align 8")
    a(".type %s,@function" % main)
    gen_main(a, main)
    kds = kd(main, NVGPR, NSGPR)
    if multi():
        kds += kd(gen_reduce(a), 56, 80)
    body = a.text()
    if opt.align:
        lines, fixed, missed = align_pass(body.split("\n"))
        body = "\n".join(lines)
        print("alignment pass: widened %d, unfixable %d" % (fixed, missed))
    return "\n".join(head) + "\n" + body + '.section .rodata,"a"\n' + kds


if __name__ == "__main__":
    out = sys.argv[1] if len(sys.argv) > 1 else "cdna_kernels/%s.s" % NAME
    for kv in sys.argv[2:]:
        k, v = kv.split("=", 1)
        cur = getattr(opt, k)
        if isinstance(cur, bool):
            v = v in ("1", "True", "true")
        elif isinstance(cur, int):
            v = int(v)
        elif v == "None":
            v = None
        setattr(opt, k, v)
    s = build()
    open(out, "w").write(s)
    print("wrote", out, len(s), "bytes,", s.count("\n"), "lines")
```

```python
import sys, math, struct, re

NAME = "concat_heads__gqa_block_cached__gqa_block_cached__near_ridge"


class Opt:
    fused_tail = True
    kv_aux = "nt"
    w_aux = ""
    dump = None
    L = 6
    waitstep = 4
    thr_log2 = 12
    stamps = 0
    sumop = "add"
    prio = 0
    sleep = 2
    defer = True
    loop_align = 3
    loop_pad = 0
    wramp = 1
    latest = 0
    korder = 0
    dum = 0
    npoll = 1
    brpos = 0
    waitphase = 0
    x_fast = False
    oprio = 0
    osched = 0
    onl = 4
    wo_at = '26,29,30,31'
    wo_aux = ''
    pf_tiles = 0
    pf_first = 0
    pf_aux = ''
    wosched = 0
    wfirst = 3
    mtrick = True
    klead = 7
    vlead = 5
    spin_limit = 1 << 20
    lstamps = False
    x_stretch = 0
    x_mark = 'end'
    codepf = False
    codepf_n = 3
    dscost = 8
    slotcap = 40
    align = True
    x_nobar = False
    x_nosm = False
    x_nods = False
    x_norare = False
    x_nomfma = False
    x_kv_nodma = False
    x_q_nomfma = False
    x_q_nods = False
    x_q_nodma = False
    x_o_nodma = False
    x_o_nomfma = False
    x_o_nost = False
    x_o_nods = False
    x_t_nords = False
    x_t_nowr = False


opt = Opt()

KB = 1024
K_BASE = 0
V_BASE = 64 * KB
M_BASE = 128 * KB
MROW = 272
X_BASE = 112 * KB
NWS = 7
LDS_BYTES = 160 * KB
RWO = [32 * KB, 64 * KB, 0, 128 * KB, 32 * KB, 96 * KB, 64 * KB, 0]
RWO0 = [32 * KB, 64 * KB, 0, 128 * KB, 32 * KB, 64 * KB, 0, 128 * KB]
O_BASE = 96 * KB
def kslot(t):
    return (t + 4) % 8

WS_PART_BYTES = 16 * 16 * 16 * 3072
WS_CNT = 14 << 20
WS_DUMP = 16 << 20
WS_STAMP = 48 << 20
WS_BYTES = 268435456

sW = 3
sB, sHP, sBR, sKVH = 4, 5, 6, 7
SRD_X, SRD_WQ, SRD_K, SRD_V, SRD_WO, SRD_WS = 8, 12, 16, 20, 24, 28
sT0, sT1, sT2, sT3, sT4, sT5 = 32, 33, 34, 35, 36, 37
sGRP = 38
sOFF = 39
sPASS = 40
sTHR = 41
sKS = 42
sPOFF = 43
sSTAMP = 44
sDBG = 46
SRD_OUT = 48
SRD_ST = 52
P_X, P_K, P_V, P_WQ = 56, 58, 60, 62
KA = 64
P_OUT, P_DBG, P_WS = KA + 20, KA + 22, KA + 24
P_WO = 90
sSTOFF = 92
sJ, sJ64K, sJ2K = 93, 94, 95
SRD_DBG = 96
NSGPR = 102

vL = 0
vT = [1, 2, 3, 4, 5, 6, 7, 8, 9]
vKA = list(range(10, 18))
vVA = list(range(18, 22))
vWA = list(range(22, 26))
vXB, vXT = 26, 27
vXB1 = 248
vPSA, vPSB, vLACC, vTMP = 28, 29, 30, 31
vQ = 32
vO = 64
vS = [128, 144]
vNM = 160
vP = [176, 184]
vF = 192
vE = 224
vWA2 = [232, 233, 234, 235]
vQW = 236
vOW = 237
vOR = 240
vQR = 241
vVP = 242
vFLAG = 243
vWOA = 244
vWOT = [245, 246]
vST = 247
vDUM = 249
vSTA, vSTB = 250, 251
NVGPR = 252
def acc1(i):
    return vQ + 4 * i if i < 8 else vF + 4 * (i - 8)
vA1 = [128, 144]
vB1 = [160, 172]
vB3 = 32
vA3 = [128, 160]
vACC3 = [192, 216]
vLW = [10, 11, 12, 13]
vLK = [14, 15]
vLV = 16
vLWO = [18, 19, 20, 21]


def f32bits(x):
    return struct.unpack("<I", struct.pack("<f", x))[0]


class Prog:
    def __init__(self):
        self.lines = []
    def __call__(self, s):
        self.lines += s.split("\n")
    def label(self, s):
        self.lines.append(s + ":")
    def text(self):
        out = []
        for ln in self.lines:
            ln = ln.strip()
            if ln:
                out.append(ln if ln.endswith(":") or ln[0] in ".;" else "    " + ln)
        return "\n".join(out) + "\n"


def vr(b, n):
    return "v[%d:%d]" % (b, b + n - 1) if n > 1 else "v%d" % b


class Queue:
    def __init__(self, limit):
        self.q = []
        self.limit = limit
    def issue(self, tag, n=1):
        self.q += [tag] * n
        assert len(self.q) <= self.limit, (tag, len(self.q))
    def need(self, tags):
        last = -1
        for i, t in enumerate(self.q):
            if t in tags:
                last = i
        if last < 0:
            return None
        n = len(self.q) - 1 - last
        self.q = self.q[last + 1:]
        return n
    def drain(self):
        self.q = []


def srd(a, base, ptr, size, off_s=None):
    if off_s is None:
        a("s_mov_b32 s%d, s%d" % (base, ptr))
        a("s_mov_b32 s%d, s%d" % (base + 1, ptr + 1))
    else:
        a("s_add_u32 s%d, s%d, s%d" % (base, ptr, off_s))
        a("s_addc_u32 s%d, s%d, 0" % (base + 1, ptr + 1))
    a("s_mov_b32 s%d, 0x%x" % (base + 2, size))
    a("s_mov_b32 s%d, 0x20000" % (base + 3))


MARKS = {1: "x", 2: "q", 3: "att", 5: "gemm", 6: "drain", 7: "sync", 8: "end"}


def stamp(a, idx):
    if opt.x_stretch and MARKS.get(idx) == opt.x_mark:
        a("s_memrealtime s[%d:%d]" % (sSTAMP, sSTAMP + 1))
        a("s_waitcnt lgkmcnt(0)")
        a("s_sub_u32 s%d, s%d, s100" % (sDBG, sSTAMP))
    if not opt.stamps or (opt.stamps == 2 and idx not in (0, 8)) or (opt.stamps in (3, 4) and idx not in (0, 2, 3, 4, 5, 6, 7, 8)) or (opt.stamps == 5 and idx not in (0, 2, 8, 20, 21, 22, 23, 24, 25, 26, 27)):
        return
    a("s_memrealtime s[%d:%d]" % (sSTAMP, sSTAMP + 1))
    a("s_memtime s[%d:%d]" % (sDBG, sDBG + 1))
    a("s_waitcnt lgkmcnt(0)")
    a("v_mov_b32 v%d, s%d" % (vSTA, sSTAMP))
    a("v_mov_b32 v%d, s%d" % (vSTB, sSTOFF))
    a("buffer_store_dword v%d, v%d, s[%d:%d], 0 offen offset:%d" % (vSTA, vSTB, SRD_ST, SRD_ST + 3, idx * 4))
    a("v_mov_b32 v%d, s%d" % (vSTA, sDBG))
    a("buffer_store_dword v%d, v%d, s[%d:%d], 0 offen offset:%d" % (vSTA, vSTB, SRD_ST, SRD_ST + 3, 128 + idx * 4))


def fill_cost(ins):
    op = ins.split()[0]
    return 8 if op.startswith(("ds_", "buffer_", "v_exp", "v_rcp")) else 4


def interleave(a, mfmas, fill, gap=8):
    total = sum(fill_cost(f) for f in fill)
    per = max(gap, -(-total // max(len(mfmas), 1))) if mfmas else 0
    i, credit = 0, 0
    for m in mfmas:
        a(m)
        credit += per
        while i < len(fill) and fill_cost(fill[i]) <= credit:
            credit -= fill_cost(fill[i])
            a(fill[i]); i += 1
    while i < len(fill):
        a(fill[i]); i += 1


def multi():
    return not opt.fused_tail


def dump_regs(a, base, n):
    a("s_lshl_b32 s%d, s2, 3" % sT0)
    a("s_add_u32 s%d, s%d, s%d" % (sT0, sT0, sW))
    a("s_mul_i32 s%d, s%d, %d" % (sT0, sT0, 96 * 256))
    a("s_add_u32 s%d, s%d, 0x%x" % (sT0, sT0, WS_DUMP))
    a("v_lshlrev_b32 v%d, 4, v%d" % (vT[8], vL))
    for g in range(n // 4):
        a("buffer_store_dwordx4 %s, v%d, s[%d:%d], s%d offen" % (vr(base + g * 4, 4), vT[8], SRD_WS, SRD_WS + 3, sT0))
        a("s_add_u32 s%d, s%d, 1024" % (sT0, sT0))
    a("s_waitcnt vmcnt(0)")


RT = [64, 65, 66, 67, 68, 69]


def reduce_pre(a, s_w, s_wgoff, s_grp, s_dest, lds_base):
    t = RT
    a("s_cmp_ge_u32 s%d, 3" % s_w)
    a("s_cselect_b32 s%d, 1, 0" % t[3])
    a("s_mul_i32 s%d, s%d, 3" % (t[4], t[3]))
    a("s_sub_u32 s%d, s%d, s%d" % (t[4], s_w, t[4]))
    a("v_lshlrev_b32 v46, 4, v0")
    a("s_lshl_b32 s%d, s%d, 10" % (t[0], t[4]))
    a("s_add_u32 s%d, s%d, s%d" % (t[0], t[0], s_wgoff))
    a("s_mul_i32 s%d, s%d, %d" % (t[1], t[3], 8 * 3072))
    a("s_add_u32 s%d, s%d, s%d" % (t[0], t[0], t[1]))
    a("s_lshl_b32 s%d, s%d, 11" % (t[2], t[4]))
    a("s_add_u32 s%d, s%d, %d" % (t[2], t[2], lds_base))
    a("v_lshlrev_b32 v47, 5, v0")
    a("v_add_u32 v47, s%d, v47" % t[2])
    a("s_and_b32 s%d, s%d, 7" % (t[1], s_grp))
    a("s_lshr_b32 s%d, s%d, 3" % (t[2], s_grp))
    a("s_mul_i32 s%d, s%d, 48" % (t[1], t[1]))
    a("s_lshl_b32 s%d, s%d, 4" % (t[4], t[4]))
    a("s_add_u32 s%d, s%d, s%d" % (t[1], t[1], t[4]))
    a("s_lshl_b32 s%d, s%d, 11" % (t[1], t[1]))
    a("s_lshl_b32 s%d, s%d, 10" % (t[2], t[2]))
    a("s_add_u32 s%d, s%d, s%d" % (t[1], t[1], t[2]))
    a("s_lshl_b32 s%d, s%d, 6" % (t[2], s_dest))
    a("s_add_u32 s%d, s%d, s%d" % (t[1], t[1], t[2]))
    a("v_and_b32 v48, 15, v0")
    a("v_lshrrev_b32 v49, 4, v0")
    a("v_lshlrev_b32 v48, 11, v48")
    a("v_lshl_add_u32 v48, v49, 3, v48")
    a("s_mov_b32 s%d, 0xffff0000" % t[5])


def reduce_body(a, srd_ws, srd_out, aux):
    t = RT
    if opt.stamps == 4:
        a("s_memtime s[72:73]")
    for s in range(8):
        a("buffer_load_dwordx4 %s, v46, s[%d:%d], s%d offen %s" % (vr(12 + 4 * s, 4), srd_ws, srd_ws + 3, t[0], aux))
        if s < 7:
            a("s_add_u32 s%d, s%d, 3072" % (t[0], t[0]))
    for s in range(8):
        a("s_waitcnt vmcnt(%d)" % (7 - s))
        for d in range(4):
            x = 12 + 4 * s + d
            if s == 0:
                a("v_lshlrev_b32 v%d, 16, v%d" % (4 + 2 * d, x))
                a("v_and_b32 v%d, s%d, v%d" % (5 + 2 * d, t[5], x))
            else:
                a("v_lshlrev_b32 v44, 16, v%d" % x)
                a("v_and_b32 v45, s%d, v%d" % (t[5], x))
                a("v_add_f32 v%d, v%d, v44" % (4 + 2 * d, 4 + 2 * d))
                a("v_add_f32 v%d, v%d, v45" % (5 + 2 * d, 5 + 2 * d))
    a("s_cmp_eq_u32 s%d, 0" % t[3])
    a("s_cbranch_scc1 L_RED_LOW")
    a("ds_write_b128 v47, v[4:7]")
    a("ds_write_b128 v47, v[8:11] offset:16")
    a("s_waitcnt lgkmcnt(0)")
    a("s_barrier")
    a("s_branch L_RED_DONE")
    a.label("L_RED_LOW")
    a("s_barrier")
    a("ds_read_b128 v[12:15], v47")
    a("ds_read_b128 v[16:19], v47 offset:16")
    a("s_waitcnt lgkmcnt(0)")
    for d in range(8):
        a("v_add_f32 v%d, v%d, v%d" % (4 + d, 4 + d, 12 + d))
    for d in range(4):
        a("v_cvt_pk_bf16_f32 v%d, v%d, v%d" % (4 + d, 4 + 2 * d, 5 + 2 * d))
    a("buffer_store_dwordx2 v[4:5], v48, s[%d:%d], s%d offen" % (srd_out, srd_out + 3, t[1]))
    a("buffer_store_dwordx2 v[6:7], v48, s[%d:%d], s%d offen offset:32" % (srd_out, srd_out + 3, t[1]))
    a.label("L_RED_DONE")


def gen_main(a, name):
    bars = {"C": [], "I": [], "L": []}
    part_aux = "sc1" if opt.fused_tail else ""

    def bar(roles, nm, skip=False):
        if not skip:
            a("s_barrier")
        for r in roles:
            bars[r].append(nm)

    a.label(name)
    if opt.stamps:
        a("s_memrealtime s[100:101]")
    a("s_cmp_ge_u32 s2, 256")
    a("s_cbranch_scc1 L_END")
    a("s_load_dwordx16 s[%d:%d], s[0:1], 0" % (KA, KA + 15))
    a("s_load_dwordx8 s[%d:%d], s[0:1], 64" % (KA + 16, KA + 23))
    a("s_load_dwordx2 s[%d:%d], s[0:1], 96" % (KA + 24, KA + 25))
    if opt.x_stretch:
        a("s_memrealtime s[100:101]")
    a("s_and_b32 s%d, s2, 7" % sT0)
    a("s_lshr_b32 s%d, s2, 3" % sT1)
    a("s_lshr_b32 s%d, s%d, 4" % (sT2, sT1))
    a("s_lshl_b32 s%d, s%d, 1" % (sT0, sT0))
    a("s_add_u32 s%d, s%d, s%d" % (sT0, sT0, sT2))
    a("s_lshr_b32 s%d, s%d, 3" % (sBR, sT0))
    a("s_and_b32 s%d, s%d, 7" % (sKVH, sT0))
    a("s_bfe_u32 s%d, s%d, 0x30001" % (sB, sT1))
    a("s_and_b32 s%d, s%d, 1" % (sT2, sT1))
    a("s_lshl_b32 s%d, s%d, 1" % (sHP, sKVH))
    a("s_add_u32 s%d, s%d, s%d" % (sHP, sHP, sT2))
    a("v_lshrrev_b32 v1, 6, v0")
    a("v_and_b32 v0, 63, v0")
    a("v_readfirstlane_b32 s%d, v1" % sW)
    a("s_lshl_b32 s%d, s%d, 3" % (sGRP, sBR))
    a("s_add_u32 s%d, s%d, s%d" % (sGRP, sGRP, sB))
    if opt.codepf:
        a("s_cmp_lg_u32 s%d, 3" % sW)
        a("s_cbranch_scc1 L_NOPF")
        a("s_getpc_b64 s[%d:%d]" % (sT2, sT3))
        a.label("L_PC")
        a("v_lshlrev_b32 v2, 7, v0")
        a("v_mov_b32 v5, s%d" % sT3)
        a("v_add_co_u32 v4, vcc, s%d, v2" % sT2)
        a("s_nop 1")
        a("v_addc_co_u32 v5, vcc, 0, v5, vcc")
        a(".set PF_BYTES, L_END - L_PC")
        for i in range(opt.codepf_n):
            if i:
                a("v_add_co_u32 v4, vcc, 0x2000, v4")
                a("s_nop 1")
                a("v_addc_co_u32 v5, vcc, 0, v5, vcc")
            a("v_add_u32 v3, %d, v2" % (i * 8192))
            a("v_cmp_gt_u32 vcc, PF_BYTES, v3")
            a("s_and_saveexec_b64 s[%d:%d], vcc" % (sT0, sT1))
            a("s_cbranch_execz L_PF_SKIP%d" % i)
            a("global_load_dword v%d, v[4:5], off" % vDUM)
            a.label("L_PF_SKIP%d" % i)
            a("s_mov_b64 exec, s[%d:%d]" % (sT0, sT1))
        a.label("L_NOPF")
    a("s_waitcnt lgkmcnt(0)")
    a("s_cmp_eq_u32 s%d, 0" % sBR)
    for dst, pa, pb in ((P_WQ, KA + 6, KA + 16), (P_X, KA + 0, KA + 10), (P_K, KA + 2, KA + 12),
                        (P_V, KA + 4, KA + 14), (P_WO, KA + 8, KA + 18)):
        a("s_cselect_b32 s%d, s%d, s%d" % (dst, pa, pb))
        a("s_cselect_b32 s%d, s%d, s%d" % (dst + 1, pa + 1, pb + 1))
    if opt.stamps:
        srd(a, SRD_ST, P_WS, WS_BYTES)
        a("s_lshl_b32 s%d, s2, 3" % sSTOFF)
        a("s_add_u32 s%d, s%d, s%d" % (sSTOFF, sSTOFF, sW))
        a("s_lshl_b32 s%d, s%d, 8" % (sSTOFF, sSTOFF))
        a("s_add_u32 s%d, s%d, 0x%x" % (sSTOFF, sSTOFF, WS_STAMP))
        a("v_mov_b32 v%d, s100" % vSTA)
        a("v_mov_b32 v%d, s%d" % (vSTB, sSTOFF))
        a("buffer_store_dword v%d, v%d, s[%d:%d], 0 offen offset:%d" % (vSTA, vSTB, SRD_ST, SRD_ST + 3, 31 * 4))
        stamp(a, 0)
    a("s_cmp_ge_u32 s%d, 4" % sW)
    a("s_cbranch_scc1 L_LOADER")

    a("s_cmp_eq_u32 s%d, 3" % sW)
    a("s_cbranch_scc1 L_W3_START")
    a("s_mul_i32 s%d, s%d, 49152" % (sT0, sB))
    srd(a, SRD_X, P_X, 49152, sT0)
    a("v_lshrrev_b32 v2, 3, v0")
    a("v_and_b32 v3, 7, v0")
    a("v_lshrrev_b32 v4, 4, v0")
    a("v_xor_b32 v3, v3, v4")
    a("v_lshlrev_b32 v3, 4, v3")
    a("v_lshl_add_u32 v2, v2, 10, v3")
    a("v_xor_b32 v3, 64, v2")
    a("v_add_u32 v3, 7168, v3")
    a("s_lshl_b32 s%d, s%d, 14" % (sT1, sW))
    a("s_lshl_b32 s%d, s%d, 11" % (sT3, sW))
    a("s_add_u32 s%d, s%d, %d" % (sT3, sT3, X_BASE))
    for c in range(8):
        a("s_add_u32 s%d, s%d, %d" % (sT0, sB, c))
        a("s_and_b32 s%d, s%d, 7" % (sT0, sT0))
        a("s_mul_i32 s%d, s%d, 6144" % (sT4, sT0))
        a("s_lshl_b32 s%d, s%d, 7" % (sT2, sT0))
        a("s_add_u32 m0, s%d, s%d" % (sT4, sT3))
        a("s_add_u32 s%d, s%d, s%d" % (sT2, sT2, sT1))
        a("buffer_load_dwordx4 v2, s[%d:%d], s%d offen %s lds" % (SRD_X, SRD_X + 3, sT2, opt.w_aux))
        a("buffer_load_dwordx4 v3, s[%d:%d], s%d offen offset:1024 %s lds" % (SRD_X, SRD_X + 3, sT2, opt.w_aux))

    a("s_branch L_WORK_SETUP")
    a.label("L_W3_START")
    if opt.fused_tail:
        a("s_cmp_lg_u32 s%d, 0" % sHP)
        a("s_cbranch_scc1 L_WORK_SETUP")
        srd(a, SRD_WS, P_WS, WS_BYTES)
        srd(a, SRD_DBG, P_DBG, 256)
        a("s_lshl_b32 s%d, s%d, 8" % (sT0, sGRP))
        a("s_add_u32 s%d, s%d, 0x%x" % (sT0, sT0, WS_CNT))
        a("s_lshl_b32 s%d, s%d, 4" % (sT1, sGRP))
        a("s_mov_b64 s[%d:%d], exec" % (sT2, sT3))
        a("v_mov_b32 v2, 0")
        a("v_mov_b32 v3, 1")
        a("s_mov_b64 exec, 1")
        a("buffer_store_dword v2, v2, s[%d:%d], s%d offen sc1" % (SRD_WS, SRD_WS + 3, sT0))
        a("s_waitcnt vmcnt(0)")
        a("buffer_atomic_add v3, v2, s[%d:%d], s%d offen sc1" % (SRD_DBG, SRD_DBG + 3, sT1))
        a("s_mov_b64 exec, s[%d:%d]" % (sT2, sT3))

    a.label("L_WORK_SETUP")
    l = vL
    t1, t2, t3, t4, t5 = vT[0:5]
    G, rp, cp = vT[5], vT[6], vT[7]
    a("v_and_b32 v%d, 15, v%d" % (t3, l))
    a("v_lshrrev_b32 v%d, 4, v%d" % (G, l))
    a("v_bfe_u32 v%d, v%d, 2, 2" % (rp, l))
    a("v_and_b32 v%d, 3, v%d" % (cp, l))
    a("v_lshrrev_b32 v%d, 1, v%d" % (t4, t3))
    a("v_xor_b32 v%d, v%d, v%d" % (t4, G, t4))
    a("v_lshlrev_b32 v%d, 4, v%d" % (t4, t4))
    a("v_lshl_add_u32 v%d, v%d, 7, v%d" % (t5, t3, t4))
    a("v_add_u32 v%d, 0x%x, v%d" % (vXB, X_BASE, t5))
    a("v_xor_b32 v%d, 64, v%d" % (vXB1, vXB))
    a("v_and_b32 v%d, 1, v%d" % (t4, G))
    a("v_lshl_add_u32 v%d, v%d, 2, v%d" % (t4, t4, rp))
    a("s_lshl_b32 s%d, s%d, 2" % (sT0, sW))
    a("v_xor_b32 v%d, s%d, v%d" % (t5, sT0, t4))
    a("v_lshlrev_b32 v%d, 5, v%d" % (t5, t5))
    a("v_lshl_add_u32 v%d, v%d, 3, v%d" % (t1, G, rp))
    a("v_lshl_add_u32 v%d, v%d, 9, v%d" % (t5, t1, t5))
    a("v_lshl_add_u32 v%d, v%d, 3, v%d" % (vWA[0], cp, t5))
    for nb in range(1, 4):
        a("v_xor_b32 v%d, %d, v%d" % (vWA[nb], nb * 32, vWA[0]))
    later = []
    d = later.append
    sD0, sD1 = sT3, sT4
    for nb in range(4):
        d("v_add_u32 v%d, 0x10000, v%d" % (vWA2[nb], vWA[nb]))
    d("s_lshl_b32 s%d, s%d, 1" % (sD0, sW))
    d("v_xor_b32 v%d, s%d, v%d" % (t5, sD0, t4))
    d("v_lshlrev_b32 v%d, 5, v%d" % (t5, t5))
    d("v_lshl_add_u32 v%d, v%d, 8, v%d" % (t5, t1, t5))
    d("v_lshl_add_u32 v%d, v%d, 3, v%d" % (vWOA, cp, t5))
    d("v_mul_u32_u24 v%d, %d, v%d" % (t5, MROW, t3))
    d("v_lshl_add_u32 v%d, v%d, 4, v%d" % (t4, G, t5))
    d("v_add_u32 v%d, 0x%x, v%d" % (vOR, O_BASE, t4))
    d("v_lshl_add_u32 v%d, v%d, 3, v%d" % (t4, G, t5))
    d("s_lshr_b32 s%d, s%d, 1" % (sD0, sW))
    d("s_mul_i32 s%d, s%d, %d" % (sD0, sD0, 48 * MROW))
    d("s_and_b32 s%d, s%d, 1" % (sD1, sW))
    d("s_lshl_b32 s%d, s%d, 7" % (sD1, sD1))
    d("s_add_u32 s%d, s%d, s%d" % (sD0, sD0, sD1))
    d("s_add_u32 s%d, s%d, %d" % (sD0, sD0, M_BASE))
    d("v_add_u32 v%d, s%d, v%d" % (vQW, sD0, t4))
    d("v_and_b32 v%d, 31, v%d" % (t1, l))
    d("v_lshrrev_b32 v%d, 5, v%d" % (t2, l))
    d("v_xor_b32 v%d, v%d, v%d" % (t4, t2, t3))
    d("v_lshlrev_b32 v%d, 4, v%d" % (t4, t4))
    d("v_lshl_add_u32 v%d, v%d, 8, v%d" % (vKA[0], t1, t4))
    for ks in range(1, 8):
        d("v_xor_b32 v%d, %d, v%d" % (vKA[ks], ks * 32, vKA[0]))
    d("v_mul_u32_u24 v%d, %d, v%d" % (t4, MROW, t1))
    d("s_mul_i32 s%d, s%d, %d" % (sD0, sW, 32 * MROW))
    d("v_add_u32 v%d, s%d, v%d" % (t4, sD0, t4))
    d("v_lshl_add_u32 v%d, v%d, 3, v%d" % (t5, t2, t4))
    d("v_add_u32 v%d, 0x%x, v%d" % (vOW, O_BASE, t5))
    d("v_lshl_add_u32 v%d, v%d, 4, v%d" % (t5, t2, t4))
    d("v_add_u32 v%d, 0x%x, v%d" % (vQR, M_BASE, t5))
    d("v_lshl_add_u32 v%d, v%d, 2, v%d" % (t1, t2, rp))
    d("v_and_b32 v%d, 1, v%d" % (t4, G))
    d("v_lshlrev_b32 v%d, 1, v%d" % (t4, t4))
    d("v_lshrrev_b32 v%d, 1, v%d" % (t5, cp))
    d("v_add_u32 v%d, v%d, v%d" % (t4, t4, t5))
    d("v_lshlrev_b32 v%d, 2, v%d" % (t5, rp))
    d("v_xor_b32 v%d, v%d, v%d" % (t4, t4, t5))
    d("v_lshlrev_b32 v%d, 4, v%d" % (t4, t4))
    d("v_lshl_add_u32 v%d, v%d, 8, v%d" % (t4, t1, t4))
    d("v_and_b32 v%d, 1, v%d" % (t5, cp))
    d("v_lshl_add_u32 v%d, v%d, 3, v%d" % (t4, t5, t4))
    d("v_add_u32 v%d, 0x%x, v%d" % (vVA[0], V_BASE, t4))
    for db in range(1, 4):
        d("v_xor_b32 v%d, %d, v%d" % (vVA[db], db * 64, vVA[0]))
    d("v_lshlrev_b32 v%d, 4, v%d" % (vST, l))
    d("s_lshl_b32 s%d, s%d, 8" % (sD0, sGRP))
    d("s_add_u32 s%d, s%d, s%d" % (sD0, sD0, sHP))
    d("s_lshl_b32 s%d, s%d, 4" % (sD1, sW))
    d("s_add_u32 s%d, s%d, s%d" % (sD0, sD0, sD1))
    d("s_mul_i32 s%d, s%d, 3072" % (sPOFF, sD0))
    d("s_mov_b32 s%d, s%d" % (SRD_WS, P_WS))
    d("s_mov_b32 s%d, s%d" % (SRD_WS + 1, P_WS + 1))
    d("s_mov_b32 s%d, 0x%x" % (SRD_WS + 2, WS_BYTES))
    d("s_mov_b32 s%d, 0x20000" % (SRD_WS + 3))
    d("s_mov_b32 s%d, 0x%08x" % (sTHR, f32bits(2.0 ** opt.thr_log2)))
    for r in range(64):
        d("v_mov_b32 v%d, 0" % (vO + r))
    d("v_mov_b32 v%d, 0" % vLACC)
    if not opt.defer:
        for ins in later:
            a(ins)
        later = []
    if opt.pf_tiles:
        a("s_cmp_lg_u32 s%d, 3" % sW)
        a("s_cbranch_scc1 L_X_LANDED")
        a("s_and_b32 s%d, s%d, 1" % (sT1, sHP))
        a("s_cmp_eq_u32 s%d, 0" % sT1)
        a("s_cselect_b32 s%d, s%d, s%d" % (sT2, P_K, P_V))
        a("s_cselect_b32 s%d, s%d, s%d" % (sT3, P_K + 1, P_V + 1))
        a("s_lshl_b32 s%d, s%d, 3" % (sT0, sB))
        a("s_add_u32 s%d, s%d, s%d" % (sT0, sT0, sKVH))
        a("s_lshl_b32 s%d, s%d, 18" % (sT0, sT0))
        srd(a, SRD_K, sT2, 262144, sT0)
        a("v_lshlrev_b32 v2, 7, v0")
        a("s_mov_b32 s%d, %d" % (sT0, opt.pf_first * 8192))
        for i in range(opt.pf_tiles):
            a("buffer_load_dword v%d, v2, s[%d:%d], s%d offen %s" % (vDUM, SRD_K, SRD_K + 3, sT0, opt.pf_aux))
            if i + 1 < opt.pf_tiles:
                a("s_add_u32 s%d, s%d, 8192" % (sT0, sT0))
    if opt.dum == 3:
        a("s_cmp_lg_u32 s%d, 3" % sW)
        a("s_cbranch_scc1 L_X_LANDED")
        a("s_lshl_b32 s%d, s%d, 9" % (sT0, sHP))
        srd(a, SRD_WQ, P_WQ, 4194304 - 15 * 512, sT0)
        a("v_lshrrev_b32 v2, 5, v0")
        a("v_and_b32 v3, 31, v0")
        a("v_lshlrev_b32 v3, 4, v3")
        a("v_lshl_add_u32 v2, v2, 13, v3")
        a("s_lshl_b32 s%d, s%d, 1" % (sT0, sB))
        a("s_add_u32 s%d, s%d, 1" % (sT0, sT0))
        a("s_lshl_b32 s%d, s%d, 18" % (sT0, sT0))
        for i in range(16):
            a("buffer_load_dwordx4 %s, v2, s[%d:%d], s%d offen" % (vr(vE, 4), SRD_WQ, SRD_WQ + 3, sT0))
            if i < 15:
                a("s_add_u32 s%d, s%d, 16384" % (sT0, sT0))
    a.label("L_X_LANDED")
    stamp(a, 1)

    def q_mfma_list(pb, first=False):
        if opt.x_q_nomfma:
            return []
        out = []
        for nb in range(4):
            for qb in range(3):
                acc = acc1(nb * 3 + qb)
                out.append("v_mfma_f32_16x16x32_bf16 %s, %s, %s, %s" % (vr(acc, 4), vr(vA1[pb] + nb * 4, 4), vr(vB1[pb] + qb * 4, 4), "0" if first else vr(acc, 4)))
        return out
    vXTT = [vXT, vT[8]]
    def x_addr(e):
        v = vXTT[e & 1]
        out = []
        if opt.korder:
            out += ["s_add_u32 s%d, s%d, %d" % (sT0, sB, e & 7),
                    "s_and_b32 s%d, s%d, 7" % (sT0, sT0),
                    "s_mul_i32 s%d, s%d, 6144" % (sKS, sT0)]
            return out + ["v_add_u32 v%d, s%d, v%d" % (v, sKS, (vXB, vXB1)[e >> 3])]
        if e % 2 == 0:
            out += ["s_add_u32 s%d, s%d, %d" % (sT0, sB, e >> 1),
                    "s_and_b32 s%d, s%d, 7" % (sT0, sT0),
                    "s_mul_i32 s%d, s%d, 6144" % (sKS, sT0)]
        return out + ["v_add_u32 v%d, s%d, v%d" % (v, sKS, (vXB, vXB1)[e & 1])]
    for ins in x_addr(0):
        a(ins)
    for e in range(16):
        if opt.korder and e < 8:
            if opt.dum == 3:
                a("s_cmp_eq_u32 s%d, 3" % sW)
                a("s_cbranch_scc1 L_NOXW%d" % e)
            a("s_waitcnt vmcnt(%d)" % (14 - 2 * e))
            if opt.dum == 3:
                a.label("L_NOXW%d" % e)
        if e % 2 == 0 and not opt.korder:
            if opt.pf_tiles:
                a("s_cmp_eq_u32 s%d, 3" % sW)
                a("s_cbranch_scc1 L_NOXW%d" % e)
            a("s_waitcnt vmcnt(%d)" % (14 - e))
            if opt.pf_tiles:
                a.label("L_NOXW%d" % e)
        if opt.stamps == 5 and e == 0:
            stamp(a, 22)
        bar("CI", "Q%d" % e)
        if opt.stamps == 5 and e in (0, 1, 2, 4, 8):
            stamp(a, {0: 23, 1: 24, 2: 25, 4: 26, 8: 27}[e])
        if e in (0, 4, 8, 12):
            stamp(a, 9 + e // 4)
        pb = e & 1
        slot = e % NWS
        wa, so = (vWA, slot * 16384) if slot < 4 else (vWA2, (slot - 4) * 16384)
        fill = []
        if not opt.x_q_nods:
            for nb in range(4):
                for jj in range(2):
                    fill.append("ds_read_b64_tr_b16 %s, v%d offset:%d" % (vr(vA1[pb] + nb * 4 + jj * 2, 2), wa[nb], so + jj * 2048))
                if nb == 0:
                    for qb in range(3):
                        fill.append("ds_read_b128 %s, v%d offset:%d" % (vr(vB1[pb] + qb * 4, 4), vXTT[e & 1], qb * 2048))
        if e < 15:
            fill += x_addr(e + 1)
        n_def = 4 if e == 0 else (-(-len(later) // (15 - e)) if e < 15 else len(later))
        fill += later[:n_def]
        later = later[n_def:]
        interleave(a, q_mfma_list(pb ^ 1, first=(e == 1)) if e > 0 else [], fill)
        a("s_waitcnt lgkmcnt(0)")
    assert not later
    bar("CI", "Q16")
    stamp(a, 13)
    for m in q_mfma_list(1):
        a(m)
    scale = math.log2(math.e) / math.sqrt(128.0)
    a("s_mov_b32 s%d, 0x%08x" % (sT2, f32bits(scale)))
    a("s_mov_b32 s%d, 0x%08x" % (sT3, f32bits(scale)))
    a("s_nop 5")
    for nb in range(4):
        for qb in range(3):
            acc = acc1(nb * 3 + qb)
            a("v_pk_mul_f32 %s, %s, s[%d:%d]" % (vr(acc, 2), vr(acc, 2), sT2, sT3))
            a("v_pk_mul_f32 %s, %s, s[%d:%d]" % (vr(acc + 2, 2), vr(acc + 2, 2), sT2, sT3))
            a("v_cvt_pk_bf16_f32 v%d, v%d, v%d" % (acc, acc, acc + 1))
            a("v_cvt_pk_bf16_f32 v%d, v%d, v%d" % (acc + 1, acc + 2, acc + 3))
            a("ds_write_b64 v%d, %s offset:%d" % (vQW, vr(acc, 2), qb * 16 * MROW + nb * 32))
    a("s_waitcnt lgkmcnt(0)")
    bar("CI", "Q17")
    stamp(a, 2)
    a("s_cmp_eq_u32 s%d, 3" % sW)
    a("s_cbranch_scc1 L_TRANS")

    if opt.prio:
        a("s_setprio %d" % opt.prio)
    dq = Queue(1000)
    for ks in range(8):
        a("ds_read_b128 %s, v%d offset:%d" % (vr(vQ + ks * 4, 4), vQR, ks * 32))
        dq.issue("Q")
    L, WS = opt.L, opt.waitstep

    def frag_ops(p):
        return 1 if (p & 15) < 8 else 2

    def frag_read(t, p):
        if p >= 16:
            t, p = t + 1, p - 16
        fb = vF + (p & 7) * 4
        if p < 8:
            if not opt.x_nods:
                a("ds_read_b128 %s, v%d offset:%d" % (vr(fb, 4), vKA[p], kslot(t + 1) * 8192))
            dq.issue("F%d" % (p & 7), 1)
        else:
            u, db = (p - 8) >> 2, (p - 8) & 3
            for jj in range(2):
                if not opt.x_nods:
                    a("ds_read_b64_tr_b16 %s, v%d offset:%d" % (vr(fb + jj * 2, 2), vVA[db], ((t - 1) % 8) * 8192 + (16 * u + 8 * jj) * 256))
            dq.issue("F%d" % (p & 7), 2)

    def wait_frags(p):
        if (p - opt.waitphase) % WS:
            return
        n = dq.need({"F%d" % ((p + i) & 7) for i in range(WS)})
        if n is not None and not opt.x_nods:
            assert n <= 15
            a("s_waitcnt lgkmcnt(%d)" % n)

    def sm_ops(t):
        S, P = vS[t & 1], vP[t & 1]
        def E(k, i):
            return ("v_exp_f32 v%d, v%d" % (vE + (k & 1) * 2 + i, S + 2 * k + i), 8)
        def adds(k):
            e0, e1 = vE + (k & 1) * 2, vE + (k & 1) * 2 + 1
            if k < 2:
                return [("v_add_f32 v%d, v%d, v%d" % ((vPSA, vPSB)[k], e0, e1), 4)]
            return [("v_add_f32 v%d, v%d, v%d" % (vPSA, vPSA, e0), 4), ("v_add_f32 v%d, v%d, v%d" % (vPSB, vPSB, e1), 4)]
        def C(k):
            return ("v_cvt_pk_bf16_f32 v%d, v%d, v%d" % (P + k, vE + (k & 1) * 2, vE + (k & 1) * 2 + 1), 4)
        if opt.x_fast:
            ops = [E(0, 0), E(0, 1)]
            for k in range(1, 8):
                ops += [E(k, 0), E(k, 1), C(k - 1)]
            return ops + [("s_nop 0", 4), C(7)]
        ops = [E(0, 0), E(0, 1)]
        for k in range(1, 8):
            ops += [E(k, 0)] + adds(k - 1) + [E(k, 1), C(k - 1)]
        ops += adds(7) + [C(7)]
        ops.append(("v_add_f32 v%d, v%d, v%d" % (vPSA, vPSA, vPSB), 4))
        ops.append(("v_cmp_nge_f32 vcc, s%d, v%d" % (sTHR, vPSA), 4))
        return ops

    def sm_schedule(ops, base):
        room = [max(opt.slotcap - base[p], 4) for p in range(15)]
        total = sum(c for _, c in ops)
        scale_ = total / float(sum(room))
        slots = [[] for _ in range(16)]
        i, cum_room, cum = 0, 0.0, 0
        for p in range(15):
            cum_room += room[p] * scale_
            while i < len(ops) and (cum + ops[i][1] / 2.0 <= cum_room or p == 14):
                slots[p].append(ops[i][0])
                cum += ops[i][1]
                i += 1
        return slots

    rare = []

    def period(t, tag, do_qk, do_sm, do_pv, c_zero=False, has_bar=True, next_qk=True):
        Sn, Pp = vS[(t + 1) & 1], vP[(t - 1) & 1]
        def want(pn):
            return (pn < 8 and do_qk) or (8 <= pn < 16 and do_pv) or (pn >= 16 and next_qk)
        base = []
        for p in range(16):
            c = 8 + (opt.dscost * frag_ops(p + L) if want(p + L) else 0) + (4 if p % WS == 0 else 0) + (4 if p == 16 - L else 0)
            base.append(c)
        sm = sm_schedule(sm_ops(t), base) if do_sm and not opt.x_nosm else [[] for _ in range(16)]
        lab = "L_RARE_%s" % tag
        check = do_sm and not opt.x_fast and not opt.x_norare and not opt.x_nosm
        last = []
        for p in range(16):
            mf = None
            if p < 8 and do_qk:
                c = "0" if (p == 0 and c_zero) else (vr(vNM, 16) if p == 0 else vr(Sn, 16))
                mf = "v_mfma_f32_32x32x16_bf16 %s, %s, %s, %s" % (vr(Sn, 16), vr(vF + (p & 7) * 4, 4), vr(vQ + p * 4, 4), c)
            if p >= 8 and do_pv:
                u, db = (p - 8) >> 2, (p - 8) & 3
                mf = "v_mfma_f32_32x32x16_bf16 %s, %s, %s, %s" % (vr(vO + db * 16, 16), vr(vF + (p & 7) * 4, 4), vr(Pp + u * 4, 4), vr(vO + db * 16, 16))
            if p == 16 - L and has_bar:
                bar("C", "A%s" % tag, opt.x_nobar)
            if p == 15 and check and opt.brpos == 1:
                a("s_cbranch_vccnz %s" % lab)
            n0 = len(a.lines)
            if mf:
                wait_frags(p)
                if not opt.x_nomfma:
                    a(mf)
            if opt.x_fast and do_pv and p in (11, 15):
                u = 0 if p == 11 else 1
                a("v_mfma_f32_16x16x32_bf16 v[228:231], v[24:27], %s, v[228:231]" % vr(Pp + u * 4, 4))
            if want(p + L):
                frag_read(t, p + L)
            if p == 15:
                last = list(a.lines[n0:])
            for ins in sm[p]:
                if ins == "v_exp_pad":
                    continue
                prev = next(x for x in reversed(a.lines) if x.strip() and not x.strip().endswith(":")).strip()
                if prev.startswith("v_exp_f32") and not ins.startswith("v_exp") and prev.split()[1].rstrip(",") in [o.strip() for o in ins.split(None, 1)[1].split(",")[1:]]:
                    a("s_nop 0")
                a(ins)
        if do_sm and not opt.x_fast:
            if check:
                if opt.brpos == 0:
                    a("s_cbranch_vccnz %s" % lab)
                rare.append((lab, t, do_qk, last if opt.brpos == 1 else []))
                a.label(lab + "_BACK")
            a("v_add_f32 v%d, v%d, v%d" % (vLACC, vLACC, vPSA))

    def row_max(S, dst):
        a("v_max3_f32 v%d, v%d, v%d, v%d" % (dst, S, S + 1, S + 2))
        for r in range(3, 15, 2):
            a("v_max3_f32 v%d, v%d, v%d, v%d" % (dst, dst, S + r, S + r + 1))
        a("v_max_f32 v%d, v%d, v%d" % (dst, dst, S + 15))
        a("v_mov_b32 v%d, v%d" % (vTMP, dst))
        a("s_nop 1")
        a("v_permlane32_swap_b32 v%d, v%d" % (dst, vTMP))
        a("s_nop 1")
        a("v_max_f32 v%d, v%d, v%d" % (dst, dst, vTMP))

    def emit_rare(lab, t, fix_next, first):
        S, Sn, P = vS[t & 1], vS[(t + 1) & 1], vP[t & 1]
        d, f = vE + 4, vE + 5
        a.label(lab)
        for ins in first:
            a(ins)
        a("s_nop 15")
        row_max(S, d)
        a("v_max_f32 v%d, 0, v%d" % (d, d))
        a("v_exp_f32 v%d, -v%d" % (f, d))
        for r in range(16):
            a("v_sub_f32 v%d, v%d, v%d" % (vNM + r, vNM + r, d))
        for r in range(16):
            a("v_sub_f32 v%d, v%d, v%d" % (S + r, S + r, d))
        if fix_next:
            for r in range(16):
                a("v_sub_f32 v%d, v%d, v%d" % (Sn + r, Sn + r, d))
        for r in range(64):
            a("v_mul_f32 v%d, v%d, v%d" % (vO + r, vO + r, f))
        a("v_mul_f32 v%d, v%d, v%d" % (vLACC, vLACC, f))
        a("v_mov_b32 v%d, 0" % vPSA)
        for k in range(8):
            a("v_exp_f32 v%d, v%d" % (vE, S + 2 * k))
            a("v_exp_f32 v%d, v%d" % (vE + 1, S + 2 * k + 1))
            a("v_add_f32 v%d, v%d, v%d" % (vPSA, vPSA, vE))
            a("v_add_f32 v%d, v%d, v%d" % (vPSA, vPSA, vE + 1))
            a("v_cvt_pk_bf16_f32 v%d, v%d, v%d" % (P + k, vE, vE + 1))
        a("s_nop 1")
        a("s_branch %s_BACK" % lab)

    def a3_list(p):
        out = ["v_add_u32 v%d, 0x%x, v%d" % (vWOT[0], (RWO if opt.osched else RWO0)[p], vWOA),
               "v_xor_b32 v%d, 32, v%d" % (vWOT[1], vWOT[0])]
        for ks in range(4 if not opt.x_o_nods else 0):
            for nb in range(2):
                for jj in range(2):
                    out.append("ds_read_b64_tr_b16 %s, v%d offset:%d" % (vr(vA3[p & 1] + (ks * 2 + nb) * 4 + jj * 2, 2), vWOT[nb], ks * 8192 + jj * 1024))
        return out

    for p in range(L):
        frag_read(-1, p)
    a("s_waitcnt lgkmcnt(%d)" % dq.need({"Q"}))
    if opt.dump == "q":
        dump_regs(a, vQ, 32)
    period(-1, "m1", True, False, False, c_zero=True)
    a("s_nop 15")
    row_max(vS[0], vE + 4)
    for r in range(16):
        a("v_sub_f32 v%d, 0, v%d" % (vNM + r, vE + 4))
    for r in range(16):
        a("v_sub_f32 v%d, v%d, v%d" % (vS[0] + r, vS[0] + r, vE + 4))
    a("s_nop 1")
    period(0, "0", True, True, False)
    q_entry = list(dq.q)
    a("s_mov_b32 s%d, 0" % sPASS)
    a(".p2align %d" % opt.loop_align)
    for _ in range(opt.loop_pad):
        a("s_nop 0")
    a.label("L_ATT_LOOP")
    n0 = len(bars["C"])
    for t in range(1, 9):
        period(t, "L%d" % t, True, True, True)
        if t == 6:
            q_exit = list(dq.q)
            a("s_cmp_eq_u32 s%d, 3" % sPASS)
            a("s_cbranch_scc1 L_ATT_EXIT")
    assert dq.q == q_entry, (dq.q, q_entry)
    a("s_add_u32 s%d, s%d, 1" % (sPASS, sPASS))
    a("s_branch L_ATT_LOOP")
    del bars["C"][n0:]
    bars["C"] += ["A%d" % t for t in range(1, 31)]
    a.label("L_ATT_EXIT")
    dq.q = list(q_exit)
    period(31, "31", False, True, True, next_qk=False)
    period(32, "32", False, False, True, has_bar=False, next_qk=False)
    bar("C", "E00")
    stamp(a, 3)
    for ins in a3_list(0):
        a(ins)
    a("v_mov_b32 v%d, v%d" % (vTMP, vLACC))
    a("s_nop 1")
    a("v_permlane32_swap_b32 v%d, v%d" % (vLACC, vTMP))
    a("s_nop 1")
    a("v_add_f32 v%d, v%d, v%d" % (vLACC, vLACC, vTMP))
    a("v_rcp_f32 v%d, v%d" % (vLACC, vLACC))
    a("s_nop 7")
    for db in range(4):
        for rr in range(4):
            b = vO + db * 16 + rr * 4
            a("v_pk_mul_f32 %s, %s, %s op_sel_hi:[1,0]" % (vr(b, 2), vr(b, 2), vr(vLACC, 2)))
            a("v_pk_mul_f32 %s, %s, %s op_sel_hi:[1,0]" % (vr(b + 2, 2), vr(b + 2, 2), vr(vLACC, 2)))
            a("v_cvt_pk_bf16_f32 v%d, v%d, v%d" % (b, b, b + 1))
            a("v_cvt_pk_bf16_f32 v%d, v%d, v%d" % (b + 1, b + 2, b + 3))
            a("ds_write_b64 v%d, %s offset:%d" % (vOW, vr(b, 2), db * 64 + rr * 16))
    if opt.prio:
        a("s_setprio 0")
    a("s_waitcnt lgkmcnt(0)")
    a("s_branch L_E0")

    a.label("L_TRANS")
    if not opt.x_nobar:
        a("s_mov_b32 s%d, 33" % sPASS)
        a.label("L_IDLE3_LOOP")
        a("s_barrier")
        a("s_sub_u32 s%d, s%d, 1" % (sPASS, sPASS))
        a("s_cmp_lg_u32 s%d, 0" % sPASS)
        a("s_cbranch_scc1 L_IDLE3_LOOP")
    bars["I"] += ["Am1"] + ["A%d" % t for t in range(0, 32)]
    bar("I", "E00")
    for ins in a3_list(0):
        a(ins)
    a("s_waitcnt lgkmcnt(0)")

    a.label("L_E0")
    if opt.oprio:
        a("s_setprio %d" % opt.oprio)
    bar("CI", "E0")
    stamp(a, 4)

    def mf3_list(p):
        if opt.x_o_nomfma:
            return []
        out = []
        kh = p & 1
        for ks in range(4):
            for nb in range(2):
                for qb in range(3):
                    acc = vACC3[(p >> 1) & 1] + (qb * 2 + nb) * 4
                    c = "0" if (ks == 0 and kh == 0) else vr(acc, 4)
                    out.append("v_mfma_f32_16x16x32_bf16 %s, %s, %s, %s" % (vr(acc, 4), vr(vA3[p & 1] + (ks * 2 + nb) * 4, 4), vr(vB3 + ((kh * 4 + ks) * 3 + qb) * 4, 4), c))
        return out
    def pk_base(c, qb):
        if c < min(opt.latest, 2):
            return 8 + c * 12 + qb * 4
        return vACC3[c & 1] + qb * 8
    def cvt3_list(c):
        if opt.x_o_nost:
            return []
        out = []
        for qb in range(3):
            acc = vACC3[c & 1] + qb * 8
            for d in range(4):
                out.append("v_cvt_pk_bf16_f32 v%d, v%d, v%d" % (pk_base(c, qb) + d, acc + 2 * d, acc + 2 * d + 1))
        return out
    def st3_list(c):
        if opt.x_o_nost:
            return []
        out = ["s_add_u32 s%d, s%d, %d" % (sT0, sB, c),
               "s_and_b32 s%d, s%d, 3" % (sT0, sT0),
               "s_mul_i32 s%d, s%d, %d" % (sT0, sT0, 4 * 16 * 3072),
               "s_add_u32 s%d, s%d, s%d" % (sT0, sT0, sPOFF)]
        sts = ["buffer_store_dwordx4 %s, v%d, s[%d:%d], s%d offen offset:%d %s" % (vr(pk_base(c, qb), 4), vST, SRD_WS, SRD_WS + 3, sT0, qb * 1024, part_aux) for qb in range(3)]
        return out, sts
    def b3_list(kh):
        out = []
        for ks in range(4 * kh, 4 * kh + 4):
            for qb in range(3):
                out.append("ds_read_b128 %s, v%d offset:%d" % (vr(vB3 + (ks * 3 + qb) * 4, 4), vOR, (48 * kh + 16 * qb) * MROW + (ks & 3) * 64))
        return out
    if opt.osched == 0:
        for ins in b3_list(0):
            a(ins)
        a("s_waitcnt lgkmcnt(0)")
        for p in range(8):
            if p <= 6:
                bar("CI", "P%d" % (p + 1))
            if p in (0, 3, 6):
                stamp(a, 14 + p // 3)
            fill = []
            if p == 0:
                fill += b3_list(1)
            if p <= 6:
                fill += a3_list(p + 1)
            if p >= 2 and p % 2 == 0 and not opt.x_o_nost:
                c = p // 2 - 1
                fill += cvt3_list(c)
                if c >= opt.latest:
                    fill += st3_list(c)[0] + st3_list(c)[1]
            if p == 7 and not opt.x_o_nost:
                for c in range(min(opt.latest, 3)):
                    fill += st3_list(c)[0] + st3_list(c)[1]
            interleave(a, mf3_list(p), fill)
            if p <= 6:
                a("s_waitcnt lgkmcnt(0)")
        a("s_nop 7")
        if not opt.x_o_nost:
            for ins in cvt3_list(3) + st3_list(3)[0] + st3_list(3)[1]:
                a(ins)
    else:
        for ins in b3_list(0) + b3_list(1):
            a(ins)
        a("s_waitcnt lgkmcnt(0)")
        if opt.dump == "o":
            dump_regs(a, vB3, 96)
        pre_store = {3: 0, 5: 1}
        for p in range(8):
            if p in pre_store and not opt.x_o_nost:
                for ins in st3_list(pre_store[p])[0]:
                    a(ins)
            if p in (0, 3, 5, 6):
                bar("CI", "P%d" % (p + 1))
            if p in pre_store and not opt.x_o_nost:
                for ins in st3_list(pre_store[p])[1]:
                    a(ins)
            if p in (0, 3, 6):
                stamp(a, 14 + p // 3)
            fill = []
            if p <= 6:
                fill += a3_list(p + 1)
            if p in (2, 4):
                fill += cvt3_list(p // 2 - 1)
            if p == 6 and not opt.x_o_nost:
                fill += cvt3_list(2) + st3_list(2)[0] + st3_list(2)[1]
            interleave(a, mf3_list(p), fill)
            if p <= 6:
                a("s_waitcnt lgkmcnt(0)")
        a("s_nop 7")
        if not opt.x_o_nost:
            for ins in cvt3_list(3) + st3_list(3)[0] + st3_list(3)[1]:
                a(ins)
    stamp(a, 5)
    if opt.fused_tail:
        srd(a, SRD_OUT, P_OUT, 8 * 48 * 1024 * 2)
        a("s_lshl_b32 s%d, s%d, 4" % (sKS, sGRP))
        a("s_add_u32 s%d, s%d, s%d" % (sKS, sKS, sHP))
        a("s_mul_i32 s%d, s%d, %d" % (sKS, sKS, 16 * 3072))
        reduce_pre(a, sW, sKS, sGRP, sHP, 0)
    a("s_waitcnt vmcnt(0)")
    stamp(a, 6)
    if opt.fused_tail:
        bar("CI", "F0")
        a("s_branch L_REDUCE")
    else:
        if opt.x_stretch:
            a("s_cmp_lg_u32 s%d, 0" % sW)
            a("s_cbranch_scc1 L_END")
            a("s_mul_i32 s%d, s%d, %d" % (sDBG, sDBG, opt.x_stretch))
            a.label("L_STRETCH")
            a("s_memrealtime s[%d:%d]" % (sSTAMP, sSTAMP + 1))
            a("s_waitcnt lgkmcnt(0)")
            a("s_sub_u32 s%d, s%d, s100" % (sSTAMP, sSTAMP))
            a("s_cmp_lt_u32 s%d, s%d" % (sSTAMP, sDBG))
            a("s_cbranch_scc1 L_STRETCH")
        a("s_branch L_END")

    a.label("L_LOADER")
    qL = Queue(63)
    t1, t2, t3, t4 = vT[0:4]
    a("s_sub_u32 s%d, s%d, 4" % (sJ, sW))
    a("s_lshl_b32 s%d, s%d, 9" % (sT0, sHP))
    srd(a, SRD_WQ, P_WQ, 4194304 - 15 * 512, sT0)
    a("s_lshl_b32 s%d, s%d, 16" % (sJ64K, sJ))
    a("v_lshrrev_b32 v%d, 5, v%d" % (t1, vL))
    a("v_and_b32 v%d, 31, v%d" % (t2, vL))
    a("v_lshlrev_b32 v%d, 1, v%d" % (t3, t1))
    a("v_xor_b32 v%d, v%d, v%d" % (t2, t2, t3))
    a("v_lshlrev_b32 v%d, 4, v%d" % (t2, t2))
    a("s_and_b32 s%d, s%d, 1" % (sT1, sJ))
    a("s_lshl_b32 s%d, s%d, 7" % (sT1, sT1))
    a("v_xor_b32 v%d, s%d, v%d" % (t2, sT1, t2))
    a("v_lshl_add_u32 v%d, v%d, 13, v%d" % (t2, t1, t2))
    for aa in range(4):
        c = 2 * aa * 8192 - aa * 1024
        if aa & 1:
            a("v_xor_b32 v%d, 64, v%d" % (vLW[aa], t2))
            a("v_add_u32 v%d, 0x%x, v%d" % (vLW[aa], c, vLW[aa]))
        else:
            a("v_add_u32 v%d, 0x%x, v%d" % (vLW[aa], c, t2))
    a("s_lshl_b32 s%d, s%d, 1" % (sKS, sB))
    a("s_lshl_b32 s%d, s%d, 12" % (sT5, sJ))

    def dma_w(e, slot=None, tag=None):
        step = e if not opt.korder else (2 * e if e < 8 else 2 * (e - 8) + 1)
        a("s_add_u32 s%d, s%d, %d" % (sT0, sKS, step))
        a("s_and_b32 s%d, s%d, 15" % (sT0, sT0))
        a("s_lshl_b32 s%d, s%d, 18" % (sT0, sT0))
        a("s_add_u32 m0, s%d, 0x%x" % (sT5, (e % NWS if slot is None else slot) * 16384))
        a("s_add_u32 s%d, s%d, s%d" % (sT0, sT0, sJ64K))
        if opt.x_q_nodma:
            return
        for aa in range(4):
            a("buffer_load_dwordx4 v%d, s[%d:%d], s%d offen offset:%d %s lds" % (vLW[aa], SRD_WQ, SRD_WQ + 3, sT0, aa * 1024, opt.w_aux))
        qL.issue(tag or "W%d" % e, 4)
    for e in range(opt.wfirst):
        dma_w(e)
    if opt.dum == 1:
        dma_w(8, NWS - 1, "DUM")
    def later_setup():
        a("s_lshl_b32 s%d, s%d, 3" % (sT0, sB))
        a("s_add_u32 s%d, s%d, s%d" % (sT0, sT0, sKVH))
        a("s_lshl_b32 s%d, s%d, 18" % (sT0, sT0))
        srd(a, SRD_K, P_K, 262144, sT0)
        srd(a, SRD_V, P_V, 262144, sT0)
        a("s_lshl_b32 s%d, s%d, 18" % (sT0, sHP))
        srd(a, SRD_WO, P_WO, 262144, sT0)
        a("s_lshl_b32 s%d, s%d, 11" % (sJ2K, sJ))
        a("v_lshrrev_b32 v%d, 4, v%d" % (t1, vL))
        a("v_and_b32 v%d, 15, v%d" % (t2, vL))
        a("v_xor_b32 v%d, v%d, v%d" % (t3, t2, t1))
        a("s_and_b32 s%d, s%d, 1" % (sT1, sJ))
        a("s_lshl_b32 s%d, s%d, 3" % (sT1, sT1))
        a("v_xor_b32 v%d, s%d, v%d" % (t3, sT1, t3))
        a("v_lshlrev_b32 v%d, 4, v%d" % (t3, t3))
        a("v_lshl_add_u32 v%d, v%d, 8, v%d" % (vLK[0], t1, t3))
        a("v_xor_b32 v%d, 64, v%d" % (vLK[1], vLK[0]))
        a("v_lshlrev_b32 v%d, 2, v%d" % (t3, t1))
        a("v_xor_b32 v%d, v%d, v%d" % (t3, t2, t3))
        a("v_lshlrev_b32 v%d, 4, v%d" % (t3, t3))
        a("v_lshl_add_u32 v%d, v%d, 8, v%d" % (vLV, t1, t3))
        a("v_lshrrev_b32 v%d, 4, v%d" % (t1, vL))
        a("v_and_b32 v%d, 15, v%d" % (t2, vL))
        a("v_lshlrev_b32 v%d, 1, v%d" % (t3, t1))
        a("v_xor_b32 v%d, v%d, v%d" % (t2, t2, t3))
        a("v_lshlrev_b32 v%d, 4, v%d" % (t2, t2))
        a("v_lshl_add_u32 v%d, v%d, 10, v%d" % (t2, t1, t2))
        for aa in range(4):
            if aa >> 1:
                a("v_xor_b32 v%d, 128, v%d" % (vLWO[aa], t2))
                a("v_add_u32 v%d, %d, v%d" % (vLWO[aa], 3072 * aa, vLWO[aa]))
            else:
                a("v_add_u32 v%d, %d, v%d" % (vLWO[aa], 3072 * aa, t2))


    if not opt.defer:
        later_setup()

    def lwait(tags):
        n = qL.need(set(tags))
        if n is not None:
            a("s_waitcnt vmcnt(%d)" % n)
    if opt.wfirst < NWS and not opt.wramp:
        if opt.stamps == 5:
            stamp(a, 20)
        lwait(["W0"])
        if opt.stamps == 5:
            stamp(a, 21)
        if opt.dum == 2:
            dma_w(8, NWS - 1, "DUM")
        for e in range(opt.wfirst, NWS):
            dma_w(e)

    def dma_tile(kind, t):
        if opt.x_kv_nodma:
            return
        base = K_BASE + kslot(t) * 8192 if kind == "K" else V_BASE + (t % 8) * 8192
        s_, v_ = (SRD_K, vLK) if kind == "K" else (SRD_V, [vLV, vLV])
        a("s_add_u32 m0, s%d, 0x%x" % (sJ2K, base))
        a("s_add_u32 s%d, s%d, 0x%x" % (sOFF, sJ2K, t * 8192))
        for aa in range(2):
            a("buffer_load_dwordx4 v%d, s[%d:%d], s%d offen offset:%d %s lds" % (v_[aa], s_, s_ + 3, sOFF, aa * 1024, opt.kv_aux))
        qL.issue("%s%d" % (kind, t), 2)
    def dma_wo(p, nl=4):
        if opt.x_o_nodma:
            return
        R = (RWO if opt.osched else RWO0)[p]
        if nl == 2:
            a("s_cmp_ge_u32 s%d, 2" % sJ)
            a("s_cbranch_scc1 L_WO_SKIP%d" % p)
        a("s_add_u32 s%d, s%d, %d" % (sT0, sB, p >> 1))
        a("s_and_b32 s%d, s%d, 3" % (sT0, sT0))
        a("s_lshl_b32 s%d, s%d, 8" % (sT0, sT0))
        a("s_lshl_b32 s%d, s%d, 3" % (sT1, sT5))
        a("s_add_u32 s%d, s%d, s%d" % (sT0, sT0, sT1))
        if p & 1:
            a("s_add_u32 s%d, s%d, 0x20000" % (sT0, sT0))
        a("s_lshl_b32 s%d, s%d, 1" % (sT1, sT5))
        for sh in range(4 // nl):
            for hf in range(2):
                a("s_add_u32 m0, s%d, 0x%x" % (sT1, R + sh * 16384 + hf * 4096))
                if hf:
                    a("s_add_u32 s%d, s%d, 16384" % (sT0, sT0))
                elif sh:
                    a("s_add_u32 s%d, s%d, %d" % (sT0, sT0, 65536 - 16384))
                else:
                    a("s_nop 0")
                for aa in range(4):
                    a("buffer_load_dwordx4 v%d, s[%d:%d], s%d offen offset:%d %s lds" % (vLWO[aa], SRD_WO, SRD_WO + 3, sT0, aa * 1024, opt.wo_aux))
        if nl == 2:
            a.label("L_WO_SKIP%d" % p)
        qL.issue("WO%d" % p, 8 * 4 // nl)
    fill = {10: [("K", 0)], 11: [("K", 1)], 12: [("V", 0)], 13: [("K", 2)], 14: [("V", 1)], 15: [("K", 3)], 16: [("V", 2)]}
    nk, nv = 4, 3
    nw = opt.wfirst
    for e in range(17):
        if e < 16:
            lwait(["W%d" % e])
        if opt.lstamps and e >= 10:
            stamp(a, 17 + e - 10)
        bar("L", "Q%d" % e)
        if opt.wramp:
            for _ in range(2):
                if nw <= 15 and nw <= (e + NWS - 1 if e >= 1 else NWS - 1):
                    dma_w(nw); nw += 1
        elif e >= 1 and e + NWS - 1 <= 15:
            dma_w(e + NWS - 1)
        if e == 2 and opt.defer:
            later_setup()
        for kind, t in fill.get(e, []):
            dma_tile(kind, t)
        if opt.lstamps and e >= 10:
            stamp(a, 24 + e - 10)
    lwait(["K0"])
    bar("L", "Q17")
    stamp(a, 2)
    for _ in range(2):
        if nk <= opt.klead - 2:
            dma_tile("K", nk); nk += 1
        if nv <= opt.vlead - 2 or nv <= 0:
            dma_tile("V", nv); nv += 1
    if opt.fused_tail:
        srd(a, SRD_WS, P_WS, WS_BYTES)
        srd(a, SRD_DBG, P_DBG, 256)
        a("s_lshl_b32 s%d, s%d, 4" % (sT0, sGRP))
        a("v_mov_b32 v2, s%d" % sT0)
    wo_at = [int(x) for x in opt.wo_at.split(",")]
    assert wo_at[0] >= 26 and wo_at[1] >= 29 and wo_at[2] >= 30
    for t in range(-1, 32):
        lwait(["K%d" % (t + 2), "V%d" % t])
        bar("L", "A%s" % ("m1" if t < 0 else str(t)), opt.x_nobar)
        for _ in range(2):
            if nk <= 31 and nk <= t + opt.klead:
                dma_tile("K", nk); nk += 1
            if nv <= 31 and nv <= t + opt.vlead and (nv <= 5 or nv <= t + 6):
                dma_tile("V", nv); nv += 1
        if opt.fused_tail and t == 2:
            a("buffer_load_dword v%d, v2, s[%d:%d], 0 offen sc1" % (vFLAG, SRD_DBG, SRD_DBG + 3))
            qL.issue("FLAG", 1)
        if opt.fused_tail and t == 14:
            lwait(["FLAG"])
            a("s_mov_b32 s%d, 0" % sT4)
            a.label("L_FLAG_CHECK")
            a("v_readfirstlane_b32 s%d, v%d" % (sT1, vFLAG))
            a("s_add_u32 s%d, s%d, 1" % (sT4, sT4))
            a("s_cmp_lg_u32 s%d, 0" % sT1)
            a("s_cbranch_scc1 L_FLAG_OK")
            a("s_cmp_ge_u32 s%d, 0x%x" % (sT4, opt.spin_limit))
            a("s_cbranch_scc1 L_FLAG_OK")
            a("s_sleep 8")
            a("buffer_load_dword v%d, v2, s[%d:%d], 0 offen sc1" % (vFLAG, SRD_DBG, SRD_DBG + 3))
            a("s_waitcnt vmcnt(0)")
            a("s_branch L_FLAG_CHECK")
            a.label("L_FLAG_OK")
        for p_, t_ in enumerate(wo_at):
            if t == t_:
                dma_wo(p_)
    assert nk == 32 and nv == 32
    lwait(["WO0"])
    bar("L", "E00")
    for p_, t_ in enumerate(wo_at):
        if t_ == 32:
            dma_wo(p_)
    bar("L", "E0")
    stamp(a, 4)
    if opt.osched == 0:
        for p in range(1, 8):
            lwait(["WO%d" % p])
            bar("L", "P%d" % p)
            if p + 3 <= 7:
                dma_wo(p + 3, opt.onl)
    else:
        lwait(["WO1", "WO2", "WO3"])
        bar("L", "P1")
        dma_wo(4)
        dma_wo(5)
        lwait(["WO4", "WO5"])
        bar("L", "P4")
        dma_wo(6)
        dma_wo(7)
        lwait(["WO6"])
        bar("L", "P6")
        lwait(["WO7"])
        bar("L", "P7")
    stamp(a, 6)
    if opt.fused_tail:
        srd(a, SRD_OUT, P_OUT, 8 * 48 * 1024 * 2)
        a("s_lshl_b32 s%d, s%d, 4" % (sKS, sGRP))
        a("s_add_u32 s%d, s%d, s%d" % (sKS, sKS, sHP))
        a("s_mul_i32 s%d, s%d, %d" % (sKS, sKS, 16 * 3072))
        reduce_pre(a, sW, sKS, sGRP, sHP, 0)
        a("s_lshl_b32 s%d, s%d, 8" % (sT0, sGRP))
        a("s_add_u32 s%d, s%d, 0x%x" % (sT0, sT0, WS_CNT))
        a("v_mov_b32 v2, s%d" % sT0)
        a("v_mov_b32 v3, 1")
        bar("L", "F0")
        a("s_cmp_lg_u32 s%d, 4" % sW)
        a("s_cbranch_scc1 L_REDUCE")
        a("s_mov_b64 s[%d:%d], exec" % (sT2, sT3))
        a("s_mov_b64 exec, 1")
        a("buffer_atomic_add v3, v2, s[%d:%d], 0 offen sc0 sc1" % (SRD_WS, SRD_WS + 3))
        a("s_mov_b32 s%d, 0" % sT4)
        a("s_waitcnt vmcnt(0)")
        a("v_readfirstlane_b32 s%d, v3" % sT1)
        a("s_cmp_ge_u32 s%d, 15" % sT1)
        a("s_cbranch_scc1 L_POLL_DONE")
        for i in range(opt.npoll - 1):
            a("buffer_load_dword v%d, v2, s[%d:%d], 0 offen sc1" % (52 + i, SRD_WS, SRD_WS + 3))
            a("s_sleep %d" % opt.sleep)
        a.label("L_POLL")
        for i in range(opt.npoll):
            a("buffer_load_dword v%d, v2, s[%d:%d], 0 offen sc1" % (52 + (i + opt.npoll - 1) % opt.npoll, SRD_WS, SRD_WS + 3))
            a("s_add_u32 s%d, s%d, 1" % (sT4, sT4))
            a("s_waitcnt vmcnt(%d)" % (opt.npoll - 1))
            a("v_readfirstlane_b32 s%d, v%d" % (sT1, 52 + i))
            a("s_cmp_ge_u32 s%d, 16" % sT1)
            a("s_cbranch_scc1 L_POLL_DONE")
            if opt.sleep:
                a("s_sleep %d" % opt.sleep)
        a("s_cmp_lt_u32 s%d, 0x%x" % (sT4, opt.spin_limit))
        a("s_cbranch_scc1 L_POLL")
        a.label("L_POLL_DONE")
        a("s_mov_b64 exec, s[%d:%d]" % (sT2, sT3))
        a.label("L_REDUCE")
        a("s_barrier")
        stamp(a, 7)
        a("s_cmp_ge_u32 s%d, 6" % sW)
        a("s_cbranch_scc1 L_RED_IDLE")
        reduce_body(a, SRD_WS, SRD_OUT, "sc1")
        stamp(a, 8)
        if opt.x_stretch:
            a("s_cmp_lg_u32 s%d, 0" % sW)
            a("s_cbranch_scc1 L_END")
            a("s_mul_i32 s%d, s%d, %d" % (sDBG, sDBG, opt.x_stretch))
            a.label("L_STRETCH")
            a("s_memrealtime s[%d:%d]" % (sSTAMP, sSTAMP + 1))
            a("s_waitcnt lgkmcnt(0)")
            a("s_sub_u32 s%d, s%d, s100" % (sSTAMP, sSTAMP))
            a("s_cmp_lt_u32 s%d, s%d" % (sSTAMP, sDBG))
            a("s_cbranch_scc1 L_STRETCH")
        a("s_branch L_END")
        a.label("L_RED_IDLE")
        a("s_barrier")

    a.label("L_END")
    a("s_endpgm")
    for lab, t, fix, first in rare:
        emit_rare(lab, t, fix, first)

    assert bars["C"] == bars["I"] == bars["L"], "barrier sequences differ:\n%s\n%s\n%s" % (bars["C"], bars["I"], bars["L"])


def gen_reduce(a):
    name = "attn_reduce_kernel"
    a(".p2align 8")
    a(".globl %s" % name)
    a(".type %s,@function" % name)
    a.label(name)
    if opt.stamps:
        a("s_memrealtime s[100:101]")
    a("s_cmp_ge_u32 s2, 256")
    a("s_cbranch_scc1 R_END")
    a("s_load_dwordx2 s[4:5], s[0:1], 80")
    a("s_load_dwordx2 s[6:7], s[0:1], 96")
    a("v_lshrrev_b32 v1, 6, v0")
    a("v_and_b32 v0, 63, v0")
    a("v_readfirstlane_b32 s3, v1")
    a("s_mul_i32 s16, s2, %d" % (16 * 3072))
    a("s_lshr_b32 s18, s2, 4")
    a("s_and_b32 s19, s2, 15")
    a("s_waitcnt lgkmcnt(0)")
    srd(a, 8, 6, WS_PART_BYTES)
    srd(a, 12, 4, 8 * 48 * 1024 * 2)
    reduce_pre(a, 3, 16, 18, 19, 0)
    reduce_body(a, 8, 12, "")
    a.label("R_END")
    a("s_endpgm")
    return name


VOP3_ONLY = ("v_mfma", "v_cvt_pk_bf16_f32", "v_max3", "v_lshl_add_u32", "v_bfe_u32", "v_dot2_f32_bf16", "v_pk_", "v_mul_lo", "v_add3",
             "v_writelane", "v_readlane", "v_and_or", "v_perm_b32", "v_lshl_or")
MEM = ("ds_", "buffer_", "global_", "s_load", "s_memtime", "s_memrealtime")
INLINE_F = ("0.5", "-0.5", "1.0", "-1.0", "2.0", "-2.0", "4.0", "-4.0")


def has_literal(ops):
    for o in ops:
        o = o.strip()
        if re.fullmatch(r"[A-Z][A-Z_]+", o):
            return True
        if re.fullmatch(r"-?(0x[0-9a-fA-F]+|\d+)", o):
            v = int(o, 0)
            if not -16 <= v <= 64:
                return True
    return False


def ins_size(ln):
    op, _, rest = ln.partition(" ")
    ops = rest.split(",")
    if op.startswith(MEM):
        return 8
    if op.startswith(("s_waitcnt", "s_barrier", "s_nop", "s_branch", "s_cbranch", "s_setprio", "s_endpgm", "s_sleep")):
        return 4
    if op.startswith("v_"):
        if op.startswith(VOP3_ONLY) or op.endswith("_e64") or re.search(r"[ ,]-v\d|abs\(", " " + rest):
            return 8
        return 8 if has_literal(ops) else 4
    return 8 if has_literal(ops) else 4


def widenable(ln):
    op, _, rest = ln.partition(" ")
    return op.startswith("v_") and ins_size(ln) == 4 and not op.startswith(("v_readfirstlane", "v_permlane", "v_nop")) and not op.endswith("_e32")


def align_pass(lines):
    out = list(lines)
    off, run = 0, []
    fixed = missed = 0
    for i, ln in enumerate(out):
        t = ln.strip()
        if not t or t[0] == ";":
            continue
        if t.endswith(":"):
            continue
        if t.startswith(".p2align"):
            n = 1 << int(t.split()[1].rstrip(","))
            off = (off + n - 1) // n * n
            run = []
            continue
        if t[0] == ".":
            continue
        sz = ins_size(t)
        if sz == 8:
            if off % 8 == 4:
                cand = [j for j in run if widenable(out[j].strip())]
                if cand:
                    j = cand[-1]
                    op, _, rest = out[j].strip().partition(" ")
                    out[j] = "    %s_e64 %s" % (op, rest)
                    off += 4
                    fixed += 1
                else:
                    missed += 1
            run = []
        else:
            run.append(i)
        off += sz
    return out, fixed, missed


def kd(name, vgpr, sgpr):
    acc = (vgpr + 3) // 4 * 4
    return """.p2align 6
.amdhsa_kernel %s
  .amdhsa_next_free_vgpr %d
  .amdhsa_next_free_sgpr %d
  .amdhsa_accum_offset %d
  .amdhsa_group_segment_fixed_size 0
  .amdhsa_kernarg_size 104
  .amdhsa_user_sgpr_count 2
  .amdhsa_user_sgpr_kernarg_segment_ptr 1
  .amdhsa_system_sgpr_workgroup_id_x 1
.end_amdhsa_kernel
""" % (name, vgpr, sgpr, acc)


def build():
    hdr = open("cdna_kernels/%s.s.ref" % NAME).read().split("\n")
    head = [ln for ln in hdr if ln.startswith(";") and "@launch" not in ln][:14]
    a = Prog()
    main = "attn_main_kernel" if multi() else NAME + "_kernel"
    if multi():
        head.append("; @launch kernel=attn_main_kernel grid=(256,1,1) block=(512,1,1) lds=%d" % LDS_BYTES)
        head.append("; @launch kernel=attn_reduce_kernel grid=(256,1,1) block=(384,1,1) lds=6144")
    else:
        head.append("; @launch grid=(256,1,1) block=(512,1,1) lds=%d" % LDS_BYTES)
    a('.amdgcn_target "amdgcn-amd-amdhsa--gfx950"')
    a(".text")
    a(".globl %s" % main)
    a(".p2align 8")
    a(".type %s,@function" % main)
    gen_main(a, main)
    kds = kd(main, NVGPR, NSGPR)
    if multi():
        kds += kd(gen_reduce(a), 56, 80)
    body = a.text()
    if opt.align:
        lines, fixed, missed = align_pass(body.split("\n"))
        body = "\n".join(lines)
        print("alignment pass: widened %d, unfixable %d" % (fixed, missed))
    return "\n".join(head) + "\n" + body + '.section .rodata,"a"\n' + kds


if __name__ == "__main__":
    out = sys.argv[1] if len(sys.argv) > 1 else "cdna_kernels/%s.s" % NAME
    for kv in sys.argv[2:]:
        k, v = kv.split("=", 1)
        cur = getattr(opt, k)
        if isinstance(cur, bool):
            v = v in ("1", "True", "true")
        elif isinstance(cur, int):
            v = int(v)
        elif v == "None":
            v = None
        setattr(opt, k, v)
    s = build()
    open(out, "w").write(s)
    print("wrote", out, len(s), "bytes,", s.count("\n"), "lines")
```

```python
import sys, math, struct, re

NAME = "concat_heads__gqa_block_cached__gqa_block_cached__near_ridge"


class Opt:
    fused_tail = True
    kv_aux = "nt"
    w_aux = ""
    dump = None
    L = 6
    waitstep = 4
    thr_log2 = 12
    stamps = 0
    sumop = "add"
    prio = 0
    sleep = 2
    k_aux = 'same'
    v_aux = ''
    accmode = 1
    defer = True
    loop_align = 3
    loop_pad = 0
    wramp = 1
    latest = 0
    korder = 0
    dum = 0
    npoll = 1
    brpos = 0
    waitphase = 0
    x_fast = False
    oprio = 0
    osched = 0
    onl = 4
    wo_at = '26,29,30,31'
    wo_aux = ''
    pf_tiles = 0
    pf_first = 0
    pf_aux = ''
    wosched = 0
    wfirst = 3
    mtrick = True
    klead = 7
    vlead = 5
    spin_limit = 1 << 20
    lstamps = False
    x_stretch = 0
    x_mark = 'end'
    codepf = False
    codepf_n = 3
    dscost = 8
    slotcap = 40
    align = True
    x_nobar = False
    x_nosm = False
    x_nods = False
    x_norare = False
    x_nomfma = False
    x_kv_nodma = False
    x_q_nomfma = False
    x_q_nods = False
    x_q_nodma = False
    x_o_nodma = False
    x_o_nomfma = False
    x_o_nost = False
    x_o_nods = False
    x_t_nords = False
    x_t_nowr = False


opt = Opt()

KB = 1024
K_BASE = 0
V_BASE = 64 * KB
M_BASE = 128 * KB
MROW = 272
X_BASE = 112 * KB
NWS = 7
LDS_BYTES = 160 * KB
RWO = [32 * KB, 64 * KB, 0, 128 * KB, 32 * KB, 96 * KB, 64 * KB, 0]
RWO0 = [32 * KB, 64 * KB, 0, 128 * KB, 32 * KB, 64 * KB, 0, 128 * KB]
O_BASE = 96 * KB
def kslot(t):
    return (t + 4) % 8

WS_PART_BYTES = 16 * 16 * 16 * 3072
WS_CNT = 14 << 20
WS_DUMP = 16 << 20
WS_STAMP = 48 << 20
WS_BYTES = 268435456

sW = 3
sB, sHP, sBR, sKVH = 4, 5, 6, 7
SRD_X, SRD_WQ, SRD_K, SRD_V, SRD_WO, SRD_WS = 8, 12, 16, 20, 24, 28
sT0, sT1, sT2, sT3, sT4, sT5 = 32, 33, 34, 35, 36, 37
sGRP = 38
sOFF = 39
sPASS = 40
sTHR = 41
sKS = 42
sPOFF = 43
sSTAMP = 44
sDBG = 46
SRD_OUT = 48
SRD_ST = 52
P_X, P_K, P_V, P_WQ = 56, 58, 60, 62
KA = 64
P_OUT, P_DBG, P_WS = KA + 20, KA + 22, KA + 24
P_WO = 90
sSTOFF = 92
sJ, sJ64K, sJ2K = 93, 94, 95
SRD_DBG = 96
NSGPR = 102

vL = 0
vT = [1, 2, 3, 4, 5, 6, 7, 8, 9]
vKA = list(range(10, 18))
vVA = list(range(18, 22))
vWA = list(range(22, 26))
vXB, vXT = 26, 27
vXB1 = 248
vPSA, vPSB, vLACC, vTMP = 28, 29, 30, 31
vQ = 32
vO = 64
vS = [128, 144]
vNM = 160
vP = [176, 184]
vF = 192
vE = 224
vWA2 = [232, 233, 234, 235]
vQW = 236
vOW = 237
vOR = 240
vQR = 241
vVP = 242
vFLAG = 243
vWOA = 244
vWOT = [245, 246]
vST = 247
vDUM = 249
vSTA, vSTB = 250, 251
NVGPR = 252
def acc1(i):
    if opt.accmode == 0:
        return vO + 4 * i
    return vQ + 4 * i if i < 8 else vF + 4 * (i - 8)
vA1 = [128, 144]
vB1 = [160, 172]
vB3 = 32
vA3 = [128, 160]
vACC3 = [192, 216]
vLW = [10, 11, 12, 13]
vLK = [14, 15]
vLV = 16
vLWO = [18, 19, 20, 21]


def f32bits(x):
    return struct.unpack("<I", struct.pack("<f", x))[0]


class Prog:
    def __init__(self):
        self.lines = []
    def __call__(self, s):
        self.lines += s.split("\n")
    def label(self, s):
        self.lines.append(s + ":")
    def text(self):
        out = []
        for ln in self.lines:
            ln = ln.strip()
            if ln:
                out.append(ln if ln.endswith(":") or ln[0] in ".;" else "    " + ln)
        return "\n".join(out) + "\n"


def vr(b, n):
    return "v[%d:%d]" % (b, b + n - 1) if n > 1 else "v%d" % b


class Queue:
    def __init__(self, limit):
        self.q = []
        self.limit = limit
    def issue(self, tag, n=1):
        self.q += [tag] * n
        assert len(self.q) <= self.limit, (tag, len(self.q))
    def need(self, tags):
        last = -1
        for i, t in enumerate(self.q):
            if t in tags:
                last = i
        if last < 0:
            return None
        n = len(self.q) - 1 - last
        self.q = self.q[last + 1:]
        return n
    def drain(self):
        self.q = []


def srd(a, base, ptr, size, off_s=None):
    if off_s is None:
        a("s_mov_b32 s%d, s%d" % (base, ptr))
        a("s_mov_b32 s%d, s%d" % (base + 1, ptr + 1))
    else:
        a("s_add_u32 s%d, s%d, s%d" % (base, ptr, off_s))
        a("s_addc_u32 s%d, s%d, 0" % (base + 1, ptr + 1))
    a("s_mov_b32 s%d, 0x%x" % (base + 2, size))
    a("s_mov_b32 s%d, 0x20000" % (base + 3))


MARKS = {1: "x", 2: "q", 3: "att", 5: "gemm", 6: "drain", 7: "sync", 8: "end"}


def stamp(a, idx):
    if opt.x_stretch and MARKS.get(idx) == opt.x_mark:
        a("s_memrealtime s[%d:%d]" % (sSTAMP, sSTAMP + 1))
        a("s_waitcnt lgkmcnt(0)")
        a("s_sub_u32 s%d, s%d, s100" % (sDBG, sSTAMP))
    if not opt.stamps or (opt.stamps == 2 and idx not in (0, 8)) or (opt.stamps in (3, 4) and idx not in (0, 2, 3, 4, 5, 6, 7, 8)) or (opt.stamps == 5 and idx not in (0, 2, 8, 20, 21, 22, 23, 24, 25, 26, 27)):
        return
    a("s_memrealtime s[%d:%d]" % (sSTAMP, sSTAMP + 1))
    a("s_memtime s[%d:%d]" % (sDBG, sDBG + 1))
    a("s_waitcnt lgkmcnt(0)")
    a("v_mov_b32 v%d, s%d" % (vSTA, sSTAMP))
    a("v_mov_b32 v%d, s%d" % (vSTB, sSTOFF))
    a("buffer_store_dword v%d, v%d, s[%d:%d], 0 offen offset:%d" % (vSTA, vSTB, SRD_ST, SRD_ST + 3, idx * 4))
    a("v_mov_b32 v%d, s%d" % (vSTA, sDBG))
    a("buffer_store_dword v%d, v%d, s[%d:%d], 0 offen offset:%d" % (vSTA, vSTB, SRD_ST, SRD_ST + 3, 128 + idx * 4))


def fill_cost(ins):
    op = ins.split()[0]
    return 8 if op.startswith(("ds_", "buffer_", "v_exp", "v_rcp")) else 4


def interleave(a, mfmas, fill, gap=8):
    total = sum(fill_cost(f) for f in fill)
    per = max(gap, -(-total // max(len(mfmas), 1))) if mfmas else 0
    i, credit = 0, 0
    for m in mfmas:
        a(m)
        credit += per
        while i < len(fill) and fill_cost(fill[i]) <= credit:
            credit -= fill_cost(fill[i])
            a(fill[i]); i += 1
    while i < len(fill):
        a(fill[i]); i += 1


def multi():
    return not opt.fused_tail


def dump_regs(a, base, n):
    a("s_lshl_b32 s%d, s2, 3" % sT0)
    a("s_add_u32 s%d, s%d, s%d" % (sT0, sT0, sW))
    a("s_mul_i32 s%d, s%d, %d" % (sT0, sT0, 96 * 256))
    a("s_add_u32 s%d, s%d, 0x%x" % (sT0, sT0, WS_DUMP))
    a("v_lshlrev_b32 v%d, 4, v%d" % (vT[8], vL))
    for g in range(n // 4):
        a("buffer_store_dwordx4 %s, v%d, s[%d:%d], s%d offen" % (vr(base + g * 4, 4), vT[8], SRD_WS, SRD_WS + 3, sT0))
        a("s_add_u32 s%d, s%d, 1024" % (sT0, sT0))
    a("s_waitcnt vmcnt(0)")


RT = [64, 65, 66, 67, 68, 69]


def reduce_pre(a, s_w, s_wgoff, s_grp, s_dest, lds_base):
    t = RT
    a("s_cmp_ge_u32 s%d, 3" % s_w)
    a("s_cselect_b32 s%d, 1, 0" % t[3])
    a("s_mul_i32 s%d, s%d, 3" % (t[4], t[3]))
    a("s_sub_u32 s%d, s%d, s%d" % (t[4], s_w, t[4]))
    a("v_lshlrev_b32 v46, 4, v0")
    a("s_lshl_b32 s%d, s%d, 10" % (t[0], t[4]))
    a("s_add_u32 s%d, s%d, s%d" % (t[0], t[0], s_wgoff))
    a("s_mul_i32 s%d, s%d, %d" % (t[1], t[3], 8 * 3072))
    a("s_add_u32 s%d, s%d, s%d" % (t[0], t[0], t[1]))
    a("s_lshl_b32 s%d, s%d, 11" % (t[2], t[4]))
    a("s_add_u32 s%d, s%d, %d" % (t[2], t[2], lds_base))
    a("v_lshlrev_b32 v47, 5, v0")
    a("v_add_u32 v47, s%d, v47" % t[2])
    a("s_and_b32 s%d, s%d, 7" % (t[1], s_grp))
    a("s_lshr_b32 s%d, s%d, 3" % (t[2], s_grp))
    a("s_mul_i32 s%d, s%d, 48" % (t[1], t[1]))
    a("s_lshl_b32 s%d, s%d, 4" % (t[4], t[4]))
    a("s_add_u32 s%d, s%d, s%d" % (t[1], t[1], t[4]))
    a("s_lshl_b32 s%d, s%d, 11" % (t[1], t[1]))
    a("s_lshl_b32 s%d, s%d, 10" % (t[2], t[2]))
    a("s_add_u32 s%d, s%d, s%d" % (t[1], t[1], t[2]))
    a("s_lshl_b32 s%d, s%d, 6" % (t[2], s_dest))
    a("s_add_u32 s%d, s%d, s%d" % (t[1], t[1], t[2]))
    a("v_and_b32 v48, 15, v0")
    a("v_lshrrev_b32 v49, 4, v0")
    a("v_lshlrev_b32 v48, 11, v48")
    a("v_lshl_add_u32 v48, v49, 3, v48")
    a("s_mov_b32 s%d, 0xffff0000" % t[5])


def reduce_body(a, srd_ws, srd_out, aux):
    t = RT
    if opt.stamps == 4:
        a("s_memtime s[72:73]")
    for s in range(8):
        a("buffer_load_dwordx4 %s, v46, s[%d:%d], s%d offen %s" % (vr(12 + 4 * s, 4), srd_ws, srd_ws + 3, t[0], aux))
        if s < 7:
            a("s_add_u32 s%d, s%d, 3072" % (t[0], t[0]))
    for s in range(8):
        a("s_waitcnt vmcnt(%d)" % (7 - s))
        for d in range(4):
            x = 12 + 4 * s + d
            if s == 0:
                a("v_lshlrev_b32 v%d, 16, v%d" % (4 + 2 * d, x))
                a("v_and_b32 v%d, s%d, v%d" % (5 + 2 * d, t[5], x))
            else:
                a("v_lshlrev_b32 v44, 16, v%d" % x)
                a("v_and_b32 v45, s%d, v%d" % (t[5], x))
                a("v_add_f32 v%d, v%d, v44" % (4 + 2 * d, 4 + 2 * d))
                a("v_add_f32 v%d, v%d, v45" % (5 + 2 * d, 5 + 2 * d))
    a("s_cmp_eq_u32 s%d, 0" % t[3])
    a("s_cbranch_scc1 L_RED_LOW")
    a("ds_write_b128 v47, v[4:7]")
    a("ds_write_b128 v47, v[8:11] offset:16")
    a("s_waitcnt lgkmcnt(0)")
    a("s_barrier")
    a("s_branch L_RED_DONE")
    a.label("L_RED_LOW")
    a("s_barrier")
    a("ds_read_b128 v[12:15], v47")
    a("ds_read_b128 v[16:19], v47 offset:16")
    a("s_waitcnt lgkmcnt(0)")
    for d in range(8):
        a("v_add_f32 v%d, v%d, v%d" % (4 + d, 4 + d, 12 + d))
    for d in range(4):
        a("v_cvt_pk_bf16_f32 v%d, v%d, v%d" % (4 + d, 4 + 2 * d, 5 + 2 * d))
    a("buffer_store_dwordx2 v[4:5], v48, s[%d:%d], s%d offen" % (srd_out, srd_out + 3, t[1]))
    a("buffer_store_dwordx2 v[6:7], v48, s[%d:%d], s%d offen offset:32" % (srd_out, srd_out + 3, t[1]))
    a.label("L_RED_DONE")


def gen_main(a, name):
    bars = {"C": [], "I": [], "L": []}
    part_aux = "sc1" if opt.fused_tail else ""

    def bar(roles, nm, skip=False):
        if not skip:
            a("s_barrier")
        for r in roles:
            bars[r].append(nm)

    a.label(name)
    if opt.stamps:
        a("s_memrealtime s[100:101]")
    a("s_cmp_ge_u32 s2, 256")
    a("s_cbranch_scc1 L_END")
    a("s_load_dwordx16 s[%d:%d], s[0:1], 0" % (KA, KA + 15))
    a("s_load_dwordx8 s[%d:%d], s[0:1], 64" % (KA + 16, KA + 23))
    a("s_load_dwordx2 s[%d:%d], s[0:1], 96" % (KA + 24, KA + 25))
    if opt.x_stretch:
        a("s_memrealtime s[100:101]")
    a("s_and_b32 s%d, s2, 7" % sT0)
    a("s_lshr_b32 s%d, s2, 3" % sT1)
    a("s_lshr_b32 s%d, s%d, 4" % (sT2, sT1))
    a("s_lshl_b32 s%d, s%d, 1" % (sT0, sT0))
    a("s_add_u32 s%d, s%d, s%d" % (sT0, sT0, sT2))
    a("s_lshr_b32 s%d, s%d, 3" % (sBR, sT0))
    a("s_and_b32 s%d, s%d, 7" % (sKVH, sT0))
    a("s_bfe_u32 s%d, s%d, 0x30001" % (sB, sT1))
    a("s_and_b32 s%d, s%d, 1" % (sT2, sT1))
    a("s_lshl_b32 s%d, s%d, 1" % (sHP, sKVH))
    a("s_add_u32 s%d, s%d, s%d" % (sHP, sHP, sT2))
    a("v_lshrrev_b32 v1, 6, v0")
    a("v_and_b32 v0, 63, v0")
    a("v_readfirstlane_b32 s%d, v1" % sW)
    a("s_lshl_b32 s%d, s%d, 3" % (sGRP, sBR))
    a("s_add_u32 s%d, s%d, s%d" % (sGRP, sGRP, sB))
    if opt.codepf:
        a("s_cmp_lg_u32 s%d, 3" % sW)
        a("s_cbranch_scc1 L_NOPF")
        a("s_getpc_b64 s[%d:%d]" % (sT2, sT3))
        a.label("L_PC")
        a("v_lshlrev_b32 v2, 7, v0")
        a("v_mov_b32 v5, s%d" % sT3)
        a("v_add_co_u32 v4, vcc, s%d, v2" % sT2)
        a("s_nop 1")
        a("v_addc_co_u32 v5, vcc, 0, v5, vcc")
        a(".set PF_BYTES, L_END - L_PC")
        for i in range(opt.codepf_n):
            if i:
                a("v_add_co_u32 v4, vcc, 0x2000, v4")
                a("s_nop 1")
                a("v_addc_co_u32 v5, vcc, 0, v5, vcc")
            a("v_add_u32 v3, %d, v2" % (i * 8192))
            a("v_cmp_gt_u32 vcc, PF_BYTES, v3")
            a("s_and_saveexec_b64 s[%d:%d], vcc" % (sT0, sT1))
            a("s_cbranch_execz L_PF_SKIP%d" % i)
            a("global_load_dword v%d, v[4:5], off" % vDUM)
            a.label("L_PF_SKIP%d" % i)
            a("s_mov_b64 exec, s[%d:%d]" % (sT0, sT1))
        a.label("L_NOPF")
    a("s_waitcnt lgkmcnt(0)")
    a("s_cmp_eq_u32 s%d, 0" % sBR)
    for dst, pa, pb in ((P_WQ, KA + 6, KA + 16), (P_X, KA + 0, KA + 10), (P_K, KA + 2, KA + 12),
                        (P_V, KA + 4, KA + 14), (P_WO, KA + 8, KA + 18)):
        a("s_cselect_b32 s%d, s%d, s%d" % (dst, pa, pb))
        a("s_cselect_b32 s%d, s%d, s%d" % (dst + 1, pa + 1, pb + 1))
    if opt.stamps:
        srd(a, SRD_ST, P_WS, WS_BYTES)
        a("s_lshl_b32 s%d, s2, 3" % sSTOFF)
        a("s_add_u32 s%d, s%d, s%d" % (sSTOFF, sSTOFF, sW))
        a("s_lshl_b32 s%d, s%d, 8" % (sSTOFF, sSTOFF))
        a("s_add_u32 s%d, s%d, 0x%x" % (sSTOFF, sSTOFF, WS_STAMP))
        a("v_mov_b32 v%d, s100" % vSTA)
        a("v_mov_b32 v%d, s%d" % (vSTB, sSTOFF))
        a("buffer_store_dword v%d, v%d, s[%d:%d], 0 offen offset:%d" % (vSTA, vSTB, SRD_ST, SRD_ST + 3, 31 * 4))
        stamp(a, 0)
    a("s_cmp_ge_u32 s%d, 4" % sW)
    a("s_cbranch_scc1 L_LOADER")

    a("s_cmp_eq_u32 s%d, 3" % sW)
    a("s_cbranch_scc1 L_W3_START")
    a("s_mul_i32 s%d, s%d, 49152" % (sT0, sB))
    srd(a, SRD_X, P_X, 49152, sT0)
    a("v_lshrrev_b32 v2, 3, v0")
    a("v_and_b32 v3, 7, v0")
    a("v_lshrrev_b32 v4, 4, v0")
    a("v_xor_b32 v3, v3, v4")
    a("v_lshlrev_b32 v3, 4, v3")
    a("v_lshl_add_u32 v2, v2, 10, v3")
    a("v_xor_b32 v3, 64, v2")
    a("v_add_u32 v3, 7168, v3")
    a("s_lshl_b32 s%d, s%d, 14" % (sT1, sW))
    a("s_lshl_b32 s%d, s%d, 11" % (sT3, sW))
    a("s_add_u32 s%d, s%d, %d" % (sT3, sT3, X_BASE))
    for c in range(8):
        a("s_add_u32 s%d, s%d, %d" % (sT0, sB, c))
        a("s_and_b32 s%d, s%d, 7" % (sT0, sT0))
        a("s_mul_i32 s%d, s%d, 6144" % (sT4, sT0))
        a("s_lshl_b32 s%d, s%d, 7" % (sT2, sT0))
        a("s_add_u32 m0, s%d, s%d" % (sT4, sT3))
        a("s_add_u32 s%d, s%d, s%d" % (sT2, sT2, sT1))
        a("buffer_load_dwordx4 v2, s[%d:%d], s%d offen %s lds" % (SRD_X, SRD_X + 3, sT2, opt.w_aux))
        a("buffer_load_dwordx4 v3, s[%d:%d], s%d offen offset:1024 %s lds" % (SRD_X, SRD_X + 3, sT2, opt.w_aux))

    a("s_branch L_WORK_SETUP")
    a.label("L_W3_START")
    if opt.fused_tail:
        a("s_cmp_lg_u32 s%d, 0" % sHP)
        a("s_cbranch_scc1 L_WORK_SETUP")
        srd(a, SRD_WS, P_WS, WS_BYTES)
        srd(a, SRD_DBG, P_DBG, 256)
        a("s_lshl_b32 s%d, s%d, 8" % (sT0, sGRP))
        a("s_add_u32 s%d, s%d, 0x%x" % (sT0, sT0, WS_CNT))
        a("s_lshl_b32 s%d, s%d, 4" % (sT1, sGRP))
        a("s_mov_b64 s[%d:%d], exec" % (sT2, sT3))
        a("v_mov_b32 v2, 0")
        a("v_mov_b32 v3, 1")
        a("s_mov_b64 exec, 1")
        a("buffer_store_dword v2, v2, s[%d:%d], s%d offen sc1" % (SRD_WS, SRD_WS + 3, sT0))
        a("s_waitcnt vmcnt(0)")
        a("buffer_atomic_add v3, v2, s[%d:%d], s%d offen sc1" % (SRD_DBG, SRD_DBG + 3, sT1))
        a("s_mov_b64 exec, s[%d:%d]" % (sT2, sT3))

    a.label("L_WORK_SETUP")
    l = vL
    t1, t2, t3, t4, t5 = vT[0:5]
    G, rp, cp = vT[5], vT[6], vT[7]
    a("v_and_b32 v%d, 15, v%d" % (t3, l))
    a("v_lshrrev_b32 v%d, 4, v%d" % (G, l))
    a("v_bfe_u32 v%d, v%d, 2, 2" % (rp, l))
    a("v_and_b32 v%d, 3, v%d" % (cp, l))
    a("v_lshrrev_b32 v%d, 1, v%d" % (t4, t3))
    a("v_xor_b32 v%d, v%d, v%d" % (t4, G, t4))
    a("v_lshlrev_b32 v%d, 4, v%d" % (t4, t4))
    a("v_lshl_add_u32 v%d, v%d, 7, v%d" % (t5, t3, t4))
    a("v_add_u32 v%d, 0x%x, v%d" % (vXB, X_BASE, t5))
    a("v_xor_b32 v%d, 64, v%d" % (vXB1, vXB))
    a("v_and_b32 v%d, 1, v%d" % (t4, G))
    a("v_lshl_add_u32 v%d, v%d, 2, v%d" % (t4, t4, rp))
    a("s_lshl_b32 s%d, s%d, 2" % (sT0, sW))
    a("v_xor_b32 v%d, s%d, v%d" % (t5, sT0, t4))
    a("v_lshlrev_b32 v%d, 5, v%d" % (t5, t5))
    a("v_lshl_add_u32 v%d, v%d, 3, v%d" % (t1, G, rp))
    a("v_lshl_add_u32 v%d, v%d, 9, v%d" % (t5, t1, t5))
    a("v_lshl_add_u32 v%d, v%d, 3, v%d" % (vWA[0], cp, t5))
    for nb in range(1, 4):
        a("v_xor_b32 v%d, %d, v%d" % (vWA[nb], nb * 32, vWA[0]))
    later = []
    d = later.append
    sD0, sD1 = sT3, sT4
    for nb in range(4):
        d("v_add_u32 v%d, 0x10000, v%d" % (vWA2[nb], vWA[nb]))
    d("s_lshl_b32 s%d, s%d, 1" % (sD0, sW))
    d("v_xor_b32 v%d, s%d, v%d" % (t5, sD0, t4))
    d("v_lshlrev_b32 v%d, 5, v%d" % (t5, t5))
    d("v_lshl_add_u32 v%d, v%d, 8, v%d" % (t5, t1, t5))
    d("v_lshl_add_u32 v%d, v%d, 3, v%d" % (vWOA, cp, t5))
    d("v_mul_u32_u24 v%d, %d, v%d" % (t5, MROW, t3))
    d("v_lshl_add_u32 v%d, v%d, 4, v%d" % (t4, G, t5))
    d("v_add_u32 v%d, 0x%x, v%d" % (vOR, O_BASE, t4))
    d("v_lshl_add_u32 v%d, v%d, 3, v%d" % (t4, G, t5))
    d("s_lshr_b32 s%d, s%d, 1" % (sD0, sW))
    d("s_mul_i32 s%d, s%d, %d" % (sD0, sD0, 48 * MROW))
    d("s_and_b32 s%d, s%d, 1" % (sD1, sW))
    d("s_lshl_b32 s%d, s%d, 7" % (sD1, sD1))
    d("s_add_u32 s%d, s%d, s%d" % (sD0, sD0, sD1))
    d("s_add_u32 s%d, s%d, %d" % (sD0, sD0, M_BASE))
    d("v_add_u32 v%d, s%d, v%d" % (vQW, sD0, t4))
    d("v_and_b32 v%d, 31, v%d" % (t1, l))
    d("v_lshrrev_b32 v%d, 5, v%d" % (t2, l))
    d("v_xor_b32 v%d, v%d, v%d" % (t4, t2, t3))
    d("v_lshlrev_b32 v%d, 4, v%d" % (t4, t4))
    d("v_lshl_add_u32 v%d, v%d, 8, v%d" % (vKA[0], t1, t4))
    for ks in range(1, 8):
        d("v_xor_b32 v%d, %d, v%d" % (vKA[ks], ks * 32, vKA[0]))
    d("v_mul_u32_u24 v%d, %d, v%d" % (t4, MROW, t1))
    d("s_mul_i32 s%d, s%d, %d" % (sD0, sW, 32 * MROW))
    d("v_add_u32 v%d, s%d, v%d" % (t4, sD0, t4))
    d("v_lshl_add_u32 v%d, v%d, 3, v%d" % (t5, t2, t4))
    d("v_add_u32 v%d, 0x%x, v%d" % (vOW, O_BASE, t5))
    d("v_lshl_add_u32 v%d, v%d, 4, v%d" % (t5, t2, t4))
    d("v_add_u32 v%d, 0x%x, v%d" % (vQR, M_BASE, t5))
    d("v_lshl_add_u32 v%d, v%d, 2, v%d" % (t1, t2, rp))
    d("v_and_b32 v%d, 1, v%d" % (t4, G))
    d("v_lshlrev_b32 v%d, 1, v%d" % (t4, t4))
    d("v_lshrrev_b32 v%d, 1, v%d" % (t5, cp))
    d("v_add_u32 v%d, v%d, v%d" % (t4, t4, t5))
    d("v_lshlrev_b32 v%d, 2, v%d" % (t5, rp))
    d("v_xor_b32 v%d, v%d, v%d" % (t4, t4, t5))
    d("v_lshlrev_b32 v%d, 4, v%d" % (t4, t4))
    d("v_lshl_add_u32 v%d, v%d, 8, v%d" % (t4, t1, t4))
    d("v_and_b32 v%d, 1, v%d" % (t5, cp))
    d("v_lshl_add_u32 v%d, v%d, 3, v%d" % (t4, t5, t4))
    d("v_add_u32 v%d, 0x%x, v%d" % (vVA[0], V_BASE, t4))
    for db in range(1, 4):
        d("v_xor_b32 v%d, %d, v%d" % (vVA[db], db * 64, vVA[0]))
    d("v_lshlrev_b32 v%d, 4, v%d" % (vST, l))
    d("s_lshl_b32 s%d, s%d, 8" % (sD0, sGRP))
    d("s_add_u32 s%d, s%d, s%d" % (sD0, sD0, sHP))
    d("s_lshl_b32 s%d, s%d, 4" % (sD1, sW))
    d("s_add_u32 s%d, s%d, s%d" % (sD0, sD0, sD1))
    d("s_mul_i32 s%d, s%d, 3072" % (sPOFF, sD0))
    d("s_mov_b32 s%d, s%d" % (SRD_WS, P_WS))
    d("s_mov_b32 s%d, s%d" % (SRD_WS + 1, P_WS + 1))
    d("s_mov_b32 s%d, 0x%x" % (SRD_WS + 2, WS_BYTES))
    d("s_mov_b32 s%d, 0x20000" % (SRD_WS + 3))
    d("s_mov_b32 s%d, 0x%08x" % (sTHR, f32bits(2.0 ** opt.thr_log2)))
    for r in range(64):
        if opt.accmode == 1 or r >= 48:
            d("v_mov_b32 v%d, 0" % (vO + r))
    d("v_mov_b32 v%d, 0" % vLACC)
    if not opt.defer:
        for ins in later:
            a(ins)
        later = []
    if opt.pf_tiles:
        a("s_cmp_lg_u32 s%d, 3" % sW)
        a("s_cbranch_scc1 L_X_LANDED")
        a("s_and_b32 s%d, s%d, 1" % (sT1, sHP))
        a("s_cmp_eq_u32 s%d, 0" % sT1)
        a("s_cselect_b32 s%d, s%d, s%d" % (sT2, P_K, P_V))
        a("s_cselect_b32 s%d, s%d, s%d" % (sT3, P_K + 1, P_V + 1))
        a("s_lshl_b32 s%d, s%d, 3" % (sT0, sB))
        a("s_add_u32 s%d, s%d, s%d" % (sT0, sT0, sKVH))
        a("s_lshl_b32 s%d, s%d, 18" % (sT0, sT0))
        srd(a, SRD_K, sT2, 262144, sT0)
        a("v_lshlrev_b32 v2, 7, v0")
        a("s_mov_b32 s%d, %d" % (sT0, opt.pf_first * 8192))
        for i in range(opt.pf_tiles):
            a("buffer_load_dword v%d, v2, s[%d:%d], s%d offen %s" % (vDUM, SRD_K, SRD_K + 3, sT0, opt.pf_aux))
            if i + 1 < opt.pf_tiles:
                a("s_add_u32 s%d, s%d, 8192" % (sT0, sT0))
    if opt.dum == 3:
        a("s_cmp_lg_u32 s%d, 3" % sW)
        a("s_cbranch_scc1 L_X_LANDED")
        a("s_lshl_b32 s%d, s%d, 9" % (sT0, sHP))
        srd(a, SRD_WQ, P_WQ, 4194304 - 15 * 512, sT0)
        a("v_lshrrev_b32 v2, 5, v0")
        a("v_and_b32 v3, 31, v0")
        a("v_lshlrev_b32 v3, 4, v3")
        a("v_lshl_add_u32 v2, v2, 13, v3")
        a("s_lshl_b32 s%d, s%d, 1" % (sT0, sB))
        a("s_add_u32 s%d, s%d, 1" % (sT0, sT0))
        a("s_lshl_b32 s%d, s%d, 18" % (sT0, sT0))
        for i in range(16):
            a("buffer_load_dwordx4 %s, v2, s[%d:%d], s%d offen" % (vr(vE, 4), SRD_WQ, SRD_WQ + 3, sT0))
            if i < 15:
                a("s_add_u32 s%d, s%d, 16384" % (sT0, sT0))
    a.label("L_X_LANDED")
    stamp(a, 1)

    def q_mfma_list(pb, first=False):
        if opt.x_q_nomfma:
            return []
        out = []
        for nb in range(4):
            for qb in range(3):
                acc = acc1(nb * 3 + qb)
                out.append("v_mfma_f32_16x16x32_bf16 %s, %s, %s, %s" % (vr(acc, 4), vr(vA1[pb] + nb * 4, 4), vr(vB1[pb] + qb * 4, 4), "0" if first else vr(acc, 4)))
        return out
    vXTT = [vXT, vT[8]]
    def x_addr(e):
        v = vXTT[e & 1]
        out = []
        if opt.korder:
            out += ["s_add_u32 s%d, s%d, %d" % (sT0, sB, e & 7),
                    "s_and_b32 s%d, s%d, 7" % (sT0, sT0),
                    "s_mul_i32 s%d, s%d, 6144" % (sKS, sT0)]
            return out + ["v_add_u32 v%d, s%d, v%d" % (v, sKS, (vXB, vXB1)[e >> 3])]
        if e % 2 == 0:
            out += ["s_add_u32 s%d, s%d, %d" % (sT0, sB, e >> 1),
                    "s_and_b32 s%d, s%d, 7" % (sT0, sT0),
                    "s_mul_i32 s%d, s%d, 6144" % (sKS, sT0)]
        return out + ["v_add_u32 v%d, s%d, v%d" % (v, sKS, (vXB, vXB1)[e & 1])]
    for ins in x_addr(0):
        a(ins)
    for e in range(16):
        if opt.korder and e < 8:
            if opt.dum == 3:
                a("s_cmp_eq_u32 s%d, 3" % sW)
                a("s_cbranch_scc1 L_NOXW%d" % e)
            a("s_waitcnt vmcnt(%d)" % (14 - 2 * e))
            if opt.dum == 3:
                a.label("L_NOXW%d" % e)
        if e % 2 == 0 and not opt.korder:
            if opt.pf_tiles:
                a("s_cmp_eq_u32 s%d, 3" % sW)
                a("s_cbranch_scc1 L_NOXW%d" % e)
            a("s_waitcnt vmcnt(%d)" % (14 - e))
            if opt.pf_tiles:
                a.label("L_NOXW%d" % e)
        if opt.stamps == 5 and e == 0:
            stamp(a, 22)
        bar("CI", "Q%d" % e)
        if opt.stamps == 5 and e in (0, 1, 2, 4, 8):
            stamp(a, {0: 23, 1: 24, 2: 25, 4: 26, 8: 27}[e])
        if e in (0, 4, 8, 12):
            stamp(a, 9 + e // 4)
        pb = e & 1
        slot = e % NWS
        wa, so = (vWA, slot * 16384) if slot < 4 else (vWA2, (slot - 4) * 16384)
        fill = []
        if not opt.x_q_nods:
            for nb in range(4):
                for jj in range(2):
                    fill.append("ds_read_b64_tr_b16 %s, v%d offset:%d" % (vr(vA1[pb] + nb * 4 + jj * 2, 2), wa[nb], so + jj * 2048))
                if nb == 0:
                    for qb in range(3):
                        fill.append("ds_read_b128 %s, v%d offset:%d" % (vr(vB1[pb] + qb * 4, 4), vXTT[e & 1], qb * 2048))
        if e < 15:
            fill += x_addr(e + 1)
        n_def = 4 if e == 0 else (-(-len(later) // (15 - e)) if e < 15 else len(later))
        fill += later[:n_def]
        later = later[n_def:]
        interleave(a, q_mfma_list(pb ^ 1, first=(e == 1)) if e > 0 else [], fill)
        a("s_waitcnt lgkmcnt(0)")
    assert not later
    bar("CI", "Q16")
    stamp(a, 13)
    for m in q_mfma_list(1):
        a(m)
    scale = math.log2(math.e) / math.sqrt(128.0)
    a("s_mov_b32 s%d, 0x%08x" % (sT2, f32bits(scale)))
    a("s_mov_b32 s%d, 0x%08x" % (sT3, f32bits(scale)))
    a("s_nop 5")
    for nb in range(4):
        for qb in range(3):
            acc = acc1(nb * 3 + qb)
            a("v_pk_mul_f32 %s, %s, s[%d:%d]" % (vr(acc, 2), vr(acc, 2), sT2, sT3))
            a("v_pk_mul_f32 %s, %s, s[%d:%d]" % (vr(acc + 2, 2), vr(acc + 2, 2), sT2, sT3))
            a("v_cvt_pk_bf16_f32 v%d, v%d, v%d" % (acc, acc, acc + 1))
            a("v_cvt_pk_bf16_f32 v%d, v%d, v%d" % (acc + 1, acc + 2, acc + 3))
            a("ds_write_b64 v%d, %s offset:%d" % (vQW, vr(acc, 2), qb * 16 * MROW + nb * 32))
    if opt.accmode == 0:
        for r in range(48):
            a("v_mov_b32 v%d, 0" % (vO + r))
    a("s_waitcnt lgkmcnt(0)")
    bar("CI", "Q17")
    stamp(a, 2)
    a("s_cmp_eq_u32 s%d, 3" % sW)
    a("s_cbranch_scc1 L_TRANS")

    if opt.prio:
        a("s_setprio %d" % opt.prio)
    dq = Queue(1000)
    for ks in range(8):
        a("ds_read_b128 %s, v%d offset:%d" % (vr(vQ + ks * 4, 4), vQR, ks * 32))
        dq.issue("Q")
    L, WS = opt.L, opt.waitstep

    def frag_ops(p):
        return 1 if (p & 15) < 8 else 2

    def frag_read(t, p):
        if p >= 16:
            t, p = t + 1, p - 16
        fb = vF + (p & 7) * 4
        if p < 8:
            if not opt.x_nods:
                a("ds_read_b128 %s, v%d offset:%d" % (vr(fb, 4), vKA[p], kslot(t + 1) * 8192))
            dq.issue("F%d" % (p & 7), 1)
        else:
            u, db = (p - 8) >> 2, (p - 8) & 3
            for jj in range(2):
                if not opt.x_nods:
                    a("ds_read_b64_tr_b16 %s, v%d offset:%d" % (vr(fb + jj * 2, 2), vVA[db], ((t - 1) % 8) * 8192 + (16 * u + 8 * jj) * 256))
            dq.issue("F%d" % (p & 7), 2)

    def wait_frags(p):
        if (p - opt.waitphase) % WS:
            return
        n = dq.need({"F%d" % ((p + i) & 7) for i in range(WS)})
        if n is not None and not opt.x_nods:
            assert n <= 15
            a("s_waitcnt lgkmcnt(%d)" % n)

    def sm_ops(t):
        S, P = vS[t & 1], vP[t & 1]
        def E(k, i):
            return ("v_exp_f32 v%d, v%d" % (vE + (k & 1) * 2 + i, S + 2 * k + i), 8)
        def adds(k):
            e0, e1 = vE + (k & 1) * 2, vE + (k & 1) * 2 + 1
            if k < 2:
                return [("v_add_f32 v%d, v%d, v%d" % ((vPSA, vPSB)[k], e0, e1), 4)]
            return [("v_add_f32 v%d, v%d, v%d" % (vPSA, vPSA, e0), 4), ("v_add_f32 v%d, v%d, v%d" % (vPSB, vPSB, e1), 4)]
        def C(k):
            return ("v_cvt_pk_bf16_f32 v%d, v%d, v%d" % (P + k, vE + (k & 1) * 2, vE + (k & 1) * 2 + 1), 4)
        if opt.x_fast:
            ops = [E(0, 0), E(0, 1)]
            for k in range(1, 8):
                ops += [E(k, 0), E(k, 1), C(k - 1)]
            return ops + [("s_nop 0", 4), C(7)]
        ops = [E(0, 0), E(0, 1)]
        for k in range(1, 8):
            ops += [E(k, 0)] + adds(k - 1) + [E(k, 1), C(k - 1)]
        ops += adds(7) + [C(7)]
        ops.append(("v_add_f32 v%d, v%d, v%d" % (vPSA, vPSA, vPSB), 4))
        ops.append(("v_cmp_nge_f32 vcc, s%d, v%d" % (sTHR, vPSA), 4))
        return ops

    def sm_schedule(ops, base):
        room = [max(opt.slotcap - base[p], 4) for p in range(15)]
        total = sum(c for _, c in ops)
        scale_ = total / float(sum(room))
        slots = [[] for _ in range(16)]
        i, cum_room, cum = 0, 0.0, 0
        for p in range(15):
            cum_room += room[p] * scale_
            while i < len(ops) and (cum + ops[i][1] / 2.0 <= cum_room or p == 14):
                slots[p].append(ops[i][0])
                cum += ops[i][1]
                i += 1
        return slots

    rare = []

    def period(t, tag, do_qk, do_sm, do_pv, c_zero=False, has_bar=True, next_qk=True):
        Sn, Pp = vS[(t + 1) & 1], vP[(t - 1) & 1]
        def want(pn):
            return (pn < 8 and do_qk) or (8 <= pn < 16 and do_pv) or (pn >= 16 and next_qk)
        base = []
        for p in range(16):
            c = 8 + (opt.dscost * frag_ops(p + L) if want(p + L) else 0) + (4 if p % WS == 0 else 0) + (4 if p == 16 - L else 0)
            base.append(c)
        sm = sm_schedule(sm_ops(t), base) if do_sm and not opt.x_nosm else [[] for _ in range(16)]
        lab = "L_RARE_%s" % tag
        check = do_sm and not opt.x_fast and not opt.x_norare and not opt.x_nosm
        last = []
        for p in range(16):
            mf = None
            if p < 8 and do_qk:
                c = "0" if (p == 0 and c_zero) else (vr(vNM, 16) if p == 0 else vr(Sn, 16))
                mf = "v_mfma_f32_32x32x16_bf16 %s, %s, %s, %s" % (vr(Sn, 16), vr(vF + (p & 7) * 4, 4), vr(vQ + p * 4, 4), c)
            if p >= 8 and do_pv:
                u, db = (p - 8) >> 2, (p - 8) & 3
                mf = "v_mfma_f32_32x32x16_bf16 %s, %s, %s, %s" % (vr(vO + db * 16, 16), vr(vF + (p & 7) * 4, 4), vr(Pp + u * 4, 4), vr(vO + db * 16, 16))
            if p == 16 - L and has_bar:
                bar("C", "A%s" % tag, opt.x_nobar)
            if p == 15 and check and opt.brpos == 1:
                a("s_cbranch_vccnz %s" % lab)
            n0 = len(a.lines)
            if mf:
                wait_frags(p)
                if not opt.x_nomfma:
                    a(mf)
            if opt.x_fast and do_pv and p in (11, 15):
                u = 0 if p == 11 else 1
                a("v_mfma_f32_16x16x32_bf16 v[228:231], v[24:27], %s, v[228:231]" % vr(Pp + u * 4, 4))
            if want(p + L):
                frag_read(t, p + L)
            if p == 15:
                last = list(a.lines[n0:])
            for ins in sm[p]:
                if ins == "v_exp_pad":
                    continue
                prev = next(x for x in reversed(a.lines) if x.strip() and not x.strip().endswith(":")).strip()
                if prev.startswith("v_exp_f32") and not ins.startswith("v_exp") and prev.split()[1].rstrip(",") in [o.strip() for o in ins.split(None, 1)[1].split(",")[1:]]:
                    a("s_nop 0")
                a(ins)
        if do_sm and not opt.x_fast:
            if check:
                if opt.brpos == 0:
                    a("s_cbranch_vccnz %s" % lab)
                rare.append((lab, t, do_qk, last if opt.brpos == 1 else []))
                a.label(lab + "_BACK")
            a("v_add_f32 v%d, v%d, v%d" % (vLACC, vLACC, vPSA))

    def row_max(S, dst):
        a("v_max3_f32 v%d, v%d, v%d, v%d" % (dst, S, S + 1, S + 2))
        for r in range(3, 15, 2):
            a("v_max3_f32 v%d, v%d, v%d, v%d" % (dst, dst, S + r, S + r + 1))
        a("v_max_f32 v%d, v%d, v%d" % (dst, dst, S + 15))
        a("v_mov_b32 v%d, v%d" % (vTMP, dst))
        a("s_nop 1")
        a("v_permlane32_swap_b32 v%d, v%d" % (dst, vTMP))
        a("s_nop 1")
        a("v_max_f32 v%d, v%d, v%d" % (dst, dst, vTMP))

    def emit_rare(lab, t, fix_next, first):
        S, Sn, P = vS[t & 1], vS[(t + 1) & 1], vP[t & 1]
        d, f = vE + 4, vE + 5
        a.label(lab)
        for ins in first:
            a(ins)
        a("s_nop 15")
        row_max(S, d)
        a("v_max_f32 v%d, 0, v%d" % (d, d))
        a("v_exp_f32 v%d, -v%d" % (f, d))
        for r in range(16):
            a("v_sub_f32 v%d, v%d, v%d" % (vNM + r, vNM + r, d))
        for r in range(16):
            a("v_sub_f32 v%d, v%d, v%d" % (S + r, S + r, d))
        if fix_next:
            for r in range(16):
                a("v_sub_f32 v%d, v%d, v%d" % (Sn + r, Sn + r, d))
        for r in range(64):
            a("v_mul_f32 v%d, v%d, v%d" % (vO + r, vO + r, f))
        a("v_mul_f32 v%d, v%d, v%d" % (vLACC, vLACC, f))
        a("v_mov_b32 v%d, 0" % vPSA)
        for k in range(8):
            a("v_exp_f32 v%d, v%d" % (vE, S + 2 * k))
            a("v_exp_f32 v%d, v%d" % (vE + 1, S + 2 * k + 1))
            a("v_add_f32 v%d, v%d, v%d" % (vPSA, vPSA, vE))
            a("v_add_f32 v%d, v%d, v%d" % (vPSA, vPSA, vE + 1))
            a("v_cvt_pk_bf16_f32 v%d, v%d, v%d" % (P + k, vE, vE + 1))
        a("s_nop 1")
        a("s_branch %s_BACK" % lab)

    def a3_list(p):
        out = ["v_add_u32 v%d, 0x%x, v%d" % (vWOT[0], (RWO if opt.osched else RWO0)[p], vWOA),
               "v_xor_b32 v%d, 32, v%d" % (vWOT[1], vWOT[0])]
        for ks in range(4 if not opt.x_o_nods else 0):
            for nb in range(2):
                for jj in range(2):
                    out.append("ds_read_b64_tr_b16 %s, v%d offset:%d" % (vr(vA3[p & 1] + (ks * 2 + nb) * 4 + jj * 2, 2), vWOT[nb], ks * 8192 + jj * 1024))
        return out

    for p in range(L):
        frag_read(-1, p)
    a("s_waitcnt lgkmcnt(%d)" % dq.need({"Q"}))
    if opt.dump == "q":
        dump_regs(a, vQ, 32)
    period(-1, "m1", True, False, False, c_zero=True)
    a("s_nop 15")
    row_max(vS[0], vE + 4)
    for r in range(16):
        a("v_sub_f32 v%d, 0, v%d" % (vNM + r, vE + 4))
    for r in range(16):
        a("v_sub_f32 v%d, v%d, v%d" % (vS[0] + r, vS[0] + r, vE + 4))
    a("s_nop 1")
    period(0, "0", True, True, False)
    q_entry = list(dq.q)
    a("s_mov_b32 s%d, 0" % sPASS)
    a(".p2align %d" % opt.loop_align)
    for _ in range(opt.loop_pad):
        a("s_nop 0")
    a.label("L_ATT_LOOP")
    n0 = len(bars["C"])
    for t in range(1, 9):
        period(t, "L%d" % t, True, True, True)
        if t == 6:
            q_exit = list(dq.q)
            a("s_cmp_eq_u32 s%d, 3" % sPASS)
            a("s_cbranch_scc1 L_ATT_EXIT")
    assert dq.q == q_entry, (dq.q, q_entry)
    a("s_add_u32 s%d, s%d, 1" % (sPASS, sPASS))
    a("s_branch L_ATT_LOOP")
    del bars["C"][n0:]
    bars["C"] += ["A%d" % t for t in range(1, 31)]
    a.label("L_ATT_EXIT")
    dq.q = list(q_exit)
    period(31, "31", False, True, True, next_qk=False)
    period(32, "32", False, False, True, has_bar=False, next_qk=False)
    bar("C", "E00")
    stamp(a, 3)
    for ins in a3_list(0):
        a(ins)
    a("v_mov_b32 v%d, v%d" % (vTMP, vLACC))
    a("s_nop 1")
    a("v_permlane32_swap_b32 v%d, v%d" % (vLACC, vTMP))
    a("s_nop 1")
    a("v_add_f32 v%d, v%d, v%d" % (vLACC, vLACC, vTMP))
    a("v_rcp_f32 v%d, v%d" % (vLACC, vLACC))
    a("s_nop 7")
    for db in range(4):
        for rr in range(4):
            b = vO + db * 16 + rr * 4
            a("v_pk_mul_f32 %s, %s, %s op_sel_hi:[1,0]" % (vr(b, 2), vr(b, 2), vr(vLACC, 2)))
            a("v_pk_mul_f32 %s, %s, %s op_sel_hi:[1,0]" % (vr(b + 2, 2), vr(b + 2, 2), vr(vLACC, 2)))
            a("v_cvt_pk_bf16_f32 v%d, v%d, v%d" % (b, b, b + 1))
            a("v_cvt_pk_bf16_f32 v%d, v%d, v%d" % (b + 1, b + 2, b + 3))
            a("ds_write_b64 v%d, %s offset:%d" % (vOW, vr(b, 2), db * 64 + rr * 16))
    if opt.prio:
        a("s_setprio 0")
    a("s_waitcnt lgkmcnt(0)")
    a("s_branch L_E0")

    a.label("L_TRANS")
    if not opt.x_nobar:
        a("s_mov_b32 s%d, 33" % sPASS)
        a.label("L_IDLE3_LOOP")
        a("s_barrier")
        a("s_sub_u32 s%d, s%d, 1" % (sPASS, sPASS))
        a("s_cmp_lg_u32 s%d, 0" % sPASS)
        a("s_cbranch_scc1 L_IDLE3_LOOP")
    bars["I"] += ["Am1"] + ["A%d" % t for t in range(0, 32)]
    bar("I", "E00")
    for ins in a3_list(0):
        a(ins)
    a("s_waitcnt lgkmcnt(0)")

    a.label("L_E0")
    if opt.oprio:
        a("s_setprio %d" % opt.oprio)
    bar("CI", "E0")
    stamp(a, 4)

    def mf3_list(p):
        if opt.x_o_nomfma:
            return []
        out = []
        kh = p & 1
        for ks in range(4):
            for nb in range(2):
                for qb in range(3):
                    acc = vACC3[(p >> 1) & 1] + (qb * 2 + nb) * 4
                    c = "0" if (ks == 0 and kh == 0) else vr(acc, 4)
                    out.append("v_mfma_f32_16x16x32_bf16 %s, %s, %s, %s" % (vr(acc, 4), vr(vA3[p & 1] + (ks * 2 + nb) * 4, 4), vr(vB3 + ((kh * 4 + ks) * 3 + qb) * 4, 4), c))
        return out
    def pk_base(c, qb):
        if c < min(opt.latest, 2):
            return 8 + c * 12 + qb * 4
        return vACC3[c & 1] + qb * 8
    def cvt3_list(c):
        if opt.x_o_nost:
            return []
        out = []
        for qb in range(3):
            acc = vACC3[c & 1] + qb * 8
            for d in range(4):
                out.append("v_cvt_pk_bf16_f32 v%d, v%d, v%d" % (pk_base(c, qb) + d, acc + 2 * d, acc + 2 * d + 1))
        return out
    def st3_list(c):
        if opt.x_o_nost:
            return []
        out = ["s_add_u32 s%d, s%d, %d" % (sT0, sB, c),
               "s_and_b32 s%d, s%d, 3" % (sT0, sT0),
               "s_mul_i32 s%d, s%d, %d" % (sT0, sT0, 4 * 16 * 3072),
               "s_add_u32 s%d, s%d, s%d" % (sT0, sT0, sPOFF)]
        sts = ["buffer_store_dwordx4 %s, v%d, s[%d:%d], s%d offen offset:%d %s" % (vr(pk_base(c, qb), 4), vST, SRD_WS, SRD_WS + 3, sT0, qb * 1024, part_aux) for qb in range(3)]
        return out, sts
    def b3_list(kh):
        out = []
        for ks in range(4 * kh, 4 * kh + 4):
            for qb in range(3):
                out.append("ds_read_b128 %s, v%d offset:%d" % (vr(vB3 + (ks * 3 + qb) * 4, 4), vOR, (48 * kh + 16 * qb) * MROW + (ks & 3) * 64))
        return out
    if opt.osched == 0:
        for ins in b3_list(0):
            a(ins)
        a("s_waitcnt lgkmcnt(0)")
        for p in range(8):
            if p <= 6:
                bar("CI", "P%d" % (p + 1))
            if p in (0, 3, 6):
                stamp(a, 14 + p // 3)
            fill = []
            if p == 0:
                fill += b3_list(1)
            if p <= 6:
                fill += a3_list(p + 1)
            if p >= 2 and p % 2 == 0 and not opt.x_o_nost:
                c = p // 2 - 1
                fill += cvt3_list(c)
                if c >= opt.latest:
                    fill += st3_list(c)[0] + st3_list(c)[1]
            if p == 7 and not opt.x_o_nost:
                for c in range(min(opt.latest, 3)):
                    fill += st3_list(c)[0] + st3_list(c)[1]
            interleave(a, mf3_list(p), fill)
            if p <= 6:
                a("s_waitcnt lgkmcnt(0)")
        a("s_nop 7")
        if not opt.x_o_nost:
            for ins in cvt3_list(3) + st3_list(3)[0] + st3_list(3)[1]:
                a(ins)
    else:
        for ins in b3_list(0) + b3_list(1):
            a(ins)
        a("s_waitcnt lgkmcnt(0)")
        if opt.dump == "o":
            dump_regs(a, vB3, 96)
        pre_store = {3: 0, 5: 1}
        for p in range(8):
            if p in pre_store and not opt.x_o_nost:
                for ins in st3_list(pre_store[p])[0]:
                    a(ins)
            if p in (0, 3, 5, 6):
                bar("CI", "P%d" % (p + 1))
            if p in pre_store and not opt.x_o_nost:
                for ins in st3_list(pre_store[p])[1]:
                    a(ins)
            if p in (0, 3, 6):
                stamp(a, 14 + p // 3)
            fill = []
            if p <= 6:
                fill += a3_list(p + 1)
            if p in (2, 4):
                fill += cvt3_list(p // 2 - 1)
            if p == 6 and not opt.x_o_nost:
                fill += cvt3_list(2) + st3_list(2)[0] + st3_list(2)[1]
            interleave(a, mf3_list(p), fill)
            if p <= 6:
                a("s_waitcnt lgkmcnt(0)")
        a("s_nop 7")
        if not opt.x_o_nost:
            for ins in cvt3_list(3) + st3_list(3)[0] + st3_list(3)[1]:
                a(ins)
    stamp(a, 5)
    if opt.fused_tail:
        srd(a, SRD_OUT, P_OUT, 8 * 48 * 1024 * 2)
        a("s_lshl_b32 s%d, s%d, 4" % (sKS, sGRP))
        a("s_add_u32 s%d, s%d, s%d" % (sKS, sKS, sHP))
        a("s_mul_i32 s%d, s%d, %d" % (sKS, sKS, 16 * 3072))
        reduce_pre(a, sW, sKS, sGRP, sHP, 0)
    a("s_waitcnt vmcnt(0)")
    stamp(a, 6)
    if opt.fused_tail:
        bar("CI", "F0")
        a("s_branch L_REDUCE")
    else:
        if opt.x_stretch:
            a("s_cmp_lg_u32 s%d, 0" % sW)
            a("s_cbranch_scc1 L_END")
            a("s_mul_i32 s%d, s%d, %d" % (sDBG, sDBG, opt.x_stretch))
            a.label("L_STRETCH")
            a("s_memrealtime s[%d:%d]" % (sSTAMP, sSTAMP + 1))
            a("s_waitcnt lgkmcnt(0)")
            a("s_sub_u32 s%d, s%d, s100" % (sSTAMP, sSTAMP))
            a("s_cmp_lt_u32 s%d, s%d" % (sSTAMP, sDBG))
            a("s_cbranch_scc1 L_STRETCH")
        a("s_branch L_END")

    a.label("L_LOADER")
    qL = Queue(63)
    t1, t2, t3, t4 = vT[0:4]
    a("s_sub_u32 s%d, s%d, 4" % (sJ, sW))
    a("s_lshl_b32 s%d, s%d, 9" % (sT0, sHP))
    srd(a, SRD_WQ, P_WQ, 4194304 - 15 * 512, sT0)
    a("s_lshl_b32 s%d, s%d, 16" % (sJ64K, sJ))
    a("v_lshrrev_b32 v%d, 5, v%d" % (t1, vL))
    a("v_and_b32 v%d, 31, v%d" % (t2, vL))
    a("v_lshlrev_b32 v%d, 1, v%d" % (t3, t1))
    a("v_xor_b32 v%d, v%d, v%d" % (t2, t2, t3))
    a("v_lshlrev_b32 v%d, 4, v%d" % (t2, t2))
    a("s_and_b32 s%d, s%d, 1" % (sT1, sJ))
    a("s_lshl_b32 s%d, s%d, 7" % (sT1, sT1))
    a("v_xor_b32 v%d, s%d, v%d" % (t2, sT1, t2))
    a("v_lshl_add_u32 v%d, v%d, 13, v%d" % (t2, t1, t2))
    for aa in range(4):
        c = 2 * aa * 8192 - aa * 1024
        if aa & 1:
            a("v_xor_b32 v%d, 64, v%d" % (vLW[aa], t2))
            a("v_add_u32 v%d, 0x%x, v%d" % (vLW[aa], c, vLW[aa]))
        else:
            a("v_add_u32 v%d, 0x%x, v%d" % (vLW[aa], c, t2))
    a("s_lshl_b32 s%d, s%d, 1" % (sKS, sB))
    a("s_lshl_b32 s%d, s%d, 12" % (sT5, sJ))

    def dma_w(e, slot=None, tag=None):
        step = e if not opt.korder else (2 * e if e < 8 else 2 * (e - 8) + 1)
        a("s_add_u32 s%d, s%d, %d" % (sT0, sKS, step))
        a("s_and_b32 s%d, s%d, 15" % (sT0, sT0))
        a("s_lshl_b32 s%d, s%d, 18" % (sT0, sT0))
        a("s_add_u32 m0, s%d, 0x%x" % (sT5, (e % NWS if slot is None else slot) * 16384))
        a("s_add_u32 s%d, s%d, s%d" % (sT0, sT0, sJ64K))
        if opt.x_q_nodma:
            return
        for aa in range(4):
            a("buffer_load_dwordx4 v%d, s[%d:%d], s%d offen offset:%d %s lds" % (vLW[aa], SRD_WQ, SRD_WQ + 3, sT0, aa * 1024, opt.w_aux))
        qL.issue(tag or "W%d" % e, 4)
    for e in range(opt.wfirst):
        dma_w(e)
    if opt.dum == 1:
        dma_w(8, NWS - 1, "DUM")
    def later_setup():
        a("s_lshl_b32 s%d, s%d, 3" % (sT0, sB))
        a("s_add_u32 s%d, s%d, s%d" % (sT0, sT0, sKVH))
        a("s_lshl_b32 s%d, s%d, 18" % (sT0, sT0))
        srd(a, SRD_K, P_K, 262144, sT0)
        srd(a, SRD_V, P_V, 262144, sT0)
        a("s_lshl_b32 s%d, s%d, 18" % (sT0, sHP))
        srd(a, SRD_WO, P_WO, 262144, sT0)
        a("s_lshl_b32 s%d, s%d, 11" % (sJ2K, sJ))
        a("v_lshrrev_b32 v%d, 4, v%d" % (t1, vL))
        a("v_and_b32 v%d, 15, v%d" % (t2, vL))
        a("v_xor_b32 v%d, v%d, v%d" % (t3, t2, t1))
        a("s_and_b32 s%d, s%d, 1" % (sT1, sJ))
        a("s_lshl_b32 s%d, s%d, 3" % (sT1, sT1))
        a("v_xor_b32 v%d, s%d, v%d" % (t3, sT1, t3))
        a("v_lshlrev_b32 v%d, 4, v%d" % (t3, t3))
        a("v_lshl_add_u32 v%d, v%d, 8, v%d" % (vLK[0], t1, t3))
        a("v_xor_b32 v%d, 64, v%d" % (vLK[1], vLK[0]))
        a("v_lshlrev_b32 v%d, 2, v%d" % (t3, t1))
        a("v_xor_b32 v%d, v%d, v%d" % (t3, t2, t3))
        a("v_lshlrev_b32 v%d, 4, v%d" % (t3, t3))
        a("v_lshl_add_u32 v%d, v%d, 8, v%d" % (vLV, t1, t3))
        a("v_lshrrev_b32 v%d, 4, v%d" % (t1, vL))
        a("v_and_b32 v%d, 15, v%d" % (t2, vL))
        a("v_lshlrev_b32 v%d, 1, v%d" % (t3, t1))
        a("v_xor_b32 v%d, v%d, v%d" % (t2, t2, t3))
        a("v_lshlrev_b32 v%d, 4, v%d" % (t2, t2))
        a("v_lshl_add_u32 v%d, v%d, 10, v%d" % (t2, t1, t2))
        for aa in range(4):
            if aa >> 1:
                a("v_xor_b32 v%d, 128, v%d" % (vLWO[aa], t2))
                a("v_add_u32 v%d, %d, v%d" % (vLWO[aa], 3072 * aa, vLWO[aa]))
            else:
                a("v_add_u32 v%d, %d, v%d" % (vLWO[aa], 3072 * aa, t2))


    if not opt.defer:
        later_setup()

    def lwait(tags):
        n = qL.need(set(tags))
        if n is not None:
            a("s_waitcnt vmcnt(%d)" % n)
    if opt.wfirst < NWS and not opt.wramp:
        if opt.stamps == 5:
            stamp(a, 20)
        lwait(["W0"])
        if opt.stamps == 5:
            stamp(a, 21)
        if opt.dum == 2:
            dma_w(8, NWS - 1, "DUM")
        for e in range(opt.wfirst, NWS):
            dma_w(e)

    def dma_tile(kind, t):
        if opt.x_kv_nodma:
            return
        base = K_BASE + kslot(t) * 8192 if kind == "K" else V_BASE + (t % 8) * 8192
        s_, v_ = (SRD_K, vLK) if kind == "K" else (SRD_V, [vLV, vLV])
        a("s_add_u32 m0, s%d, 0x%x" % (sJ2K, base))
        a("s_add_u32 s%d, s%d, 0x%x" % (sOFF, sJ2K, t * 8192))
        for aa in range(2):
            a("buffer_load_dwordx4 v%d, s[%d:%d], s%d offen offset:%d %s lds" % (v_[aa], s_, s_ + 3, sOFF, aa * 1024, (opt.k_aux if kind == "K" else opt.v_aux) if opt.k_aux != "same" else opt.kv_aux))
        qL.issue("%s%d" % (kind, t), 2)
    def dma_wo(p, nl=4):
        if opt.x_o_nodma:
            return
        R = (RWO if opt.osched else RWO0)[p]
        if nl == 2:
            a("s_cmp_ge_u32 s%d, 2" % sJ)
            a("s_cbranch_scc1 L_WO_SKIP%d" % p)
        a("s_add_u32 s%d, s%d, %d" % (sT0, sB, p >> 1))
        a("s_and_b32 s%d, s%d, 3" % (sT0, sT0))
        a("s_lshl_b32 s%d, s%d, 8" % (sT0, sT0))
        a("s_lshl_b32 s%d, s%d, 3" % (sT1, sT5))
        a("s_add_u32 s%d, s%d, s%d" % (sT0, sT0, sT1))
        if p & 1:
            a("s_add_u32 s%d, s%d, 0x20000" % (sT0, sT0))
        a("s_lshl_b32 s%d, s%d, 1" % (sT1, sT5))
        for sh in range(4 // nl):
            for hf in range(2):
                a("s_add_u32 m0, s%d, 0x%x" % (sT1, R + sh * 16384 + hf * 4096))
                if hf:
                    a("s_add_u32 s%d, s%d, 16384" % (sT0, sT0))
                elif sh:
                    a("s_add_u32 s%d, s%d, %d" % (sT0, sT0, 65536 - 16384))
                else:
                    a("s_nop 0")
                for aa in range(4):
                    a("buffer_load_dwordx4 v%d, s[%d:%d], s%d offen offset:%d %s lds" % (vLWO[aa], SRD_WO, SRD_WO + 3, sT0, aa * 1024, opt.wo_aux))
        if nl == 2:
            a.label("L_WO_SKIP%d" % p)
        qL.issue("WO%d" % p, 8 * 4 // nl)
    fill = {10: [("K", 0)], 11: [("K", 1)], 12: [("V", 0)], 13: [("K", 2)], 14: [("V", 1)], 15: [("K", 3)], 16: [("V", 2)]}
    nk, nv = 4, 3
    nw = opt.wfirst
    for e in range(17):
        if e < 16:
            lwait(["W%d" % e])
        if opt.lstamps and e >= 10:
            stamp(a, 17 + e - 10)
        bar("L", "Q%d" % e)
        if opt.wramp:
            for _ in range(2):
                if nw <= 15 and nw <= (e + NWS - 1 if e >= 1 else NWS - 1):
                    dma_w(nw); nw += 1
        elif e >= 1 and e + NWS - 1 <= 15:
            dma_w(e + NWS - 1)
        if e == 2 and opt.defer:
            later_setup()
        for kind, t in fill.get(e, []):
            dma_tile(kind, t)
        if opt.lstamps and e >= 10:
            stamp(a, 24 + e - 10)
    lwait(["K0"])
    bar("L", "Q17")
    stamp(a, 2)
    for _ in range(2):
        if nk <= opt.klead - 2:
            dma_tile("K", nk); nk += 1
        if nv <= opt.vlead - 2 or nv <= 0:
            dma_tile("V", nv); nv += 1
    if opt.fused_tail:
        srd(a, SRD_WS, P_WS, WS_BYTES)
        srd(a, SRD_DBG, P_DBG, 256)
        a("s_lshl_b32 s%d, s%d, 4" % (sT0, sGRP))
        a("v_mov_b32 v2, s%d" % sT0)
    wo_at = [int(x) for x in opt.wo_at.split(",")]
    assert wo_at[0] >= 26 and wo_at[1] >= 29 and wo_at[2] >= 30
    for t in range(-1, 32):
        lwait(["K%d" % (t + 2), "V%d" % t])
        bar("L", "A%s" % ("m1" if t < 0 else str(t)), opt.x_nobar)
        for _ in range(2):
            if nk <= 31 and nk <= t + opt.klead:
                dma_tile("K", nk); nk += 1
            if nv <= 31 and nv <= t + opt.vlead and (nv <= 5 or nv <= t + 6):
                dma_tile("V", nv); nv += 1
        if opt.fused_tail and t == 2:
            a("buffer_load_dword v%d, v2, s[%d:%d], 0 offen sc1" % (vFLAG, SRD_DBG, SRD_DBG + 3))
            qL.issue("FLAG", 1)
        if opt.fused_tail and t == 14:
            lwait(["FLAG"])
            a("s_mov_b32 s%d, 0" % sT4)
            a.label("L_FLAG_CHECK")
            a("v_readfirstlane_b32 s%d, v%d" % (sT1, vFLAG))
            a("s_add_u32 s%d, s%d, 1" % (sT4, sT4))
            a("s_cmp_lg_u32 s%d, 0" % sT1)
            a("s_cbranch_scc1 L_FLAG_OK")
            a("s_cmp_ge_u32 s%d, 0x%x" % (sT4, opt.spin_limit))
            a("s_cbranch_scc1 L_FLAG_OK")
            a("s_sleep 8")
            a("buffer_load_dword v%d, v2, s[%d:%d], 0 offen sc1" % (vFLAG, SRD_DBG, SRD_DBG + 3))
            a("s_waitcnt vmcnt(0)")
            a("s_branch L_FLAG_CHECK")
            a.label("L_FLAG_OK")
        for p_, t_ in enumerate(wo_at):
            if t == t_:
                dma_wo(p_)
    assert nk == 32 and nv == 32
    lwait(["WO0"])
    bar("L", "E00")
    for p_, t_ in enumerate(wo_at):
        if t_ == 32:
            dma_wo(p_)
    bar("L", "E0")
    stamp(a, 4)
    if opt.osched == 0:
        for p in range(1, 8):
            lwait(["WO%d" % p])
            bar("L", "P%d" % p)
            if p + 3 <= 7:
                dma_wo(p + 3, opt.onl)
    else:
        lwait(["WO1", "WO2", "WO3"])
        bar("L", "P1")
        dma_wo(4)
        dma_wo(5)
        lwait(["WO4", "WO5"])
        bar("L", "P4")
        dma_wo(6)
        dma_wo(7)
        lwait(["WO6"])
        bar("L", "P6")
        lwait(["WO7"])
        bar("L", "P7")
    stamp(a, 6)
    if opt.fused_tail:
        srd(a, SRD_OUT, P_OUT, 8 * 48 * 1024 * 2)
        a("s_lshl_b32 s%d, s%d, 4" % (sKS, sGRP))
        a("s_add_u32 s%d, s%d, s%d" % (sKS, sKS, sHP))
        a("s_mul_i32 s%d, s%d, %d" % (sKS, sKS, 16 * 3072))
        reduce_pre(a, sW, sKS, sGRP, sHP, 0)
        a("s_lshl_b32 s%d, s%d, 8" % (sT0, sGRP))
        a("s_add_u32 s%d, s%d, 0x%x" % (sT0, sT0, WS_CNT))
        a("v_mov_b32 v2, s%d" % sT0)
        a("v_mov_b32 v3, 1")
        bar("L", "F0")
        a("s_cmp_lg_u32 s%d, 4" % sW)
        a("s_cbranch_scc1 L_REDUCE")
        a("s_mov_b64 s[%d:%d], exec" % (sT2, sT3))
        a("s_mov_b64 exec, 1")
        a("buffer_atomic_add v3, v2, s[%d:%d], 0 offen sc0 sc1" % (SRD_WS, SRD_WS + 3))
        a("s_mov_b32 s%d, 0" % sT4)
        a("s_waitcnt vmcnt(0)")
        a("v_readfirstlane_b32 s%d, v3" % sT1)
        a("s_cmp_ge_u32 s%d, 15" % sT1)
        a("s_cbranch_scc1 L_POLL_DONE")
        for i in range(opt.npoll - 1):
            a("buffer_load_dword v%d, v2, s[%d:%d], 0 offen sc1" % (52 + i, SRD_WS, SRD_WS + 3))
            a("s_sleep %d" % opt.sleep)
        a.label("L_POLL")
        for i in range(opt.npoll):
            a("buffer_load_dword v%d, v2, s[%d:%d], 0 offen sc1" % (52 + (i + opt.npoll - 1) % opt.npoll, SRD_WS, SRD_WS + 3))
            a("s_add_u32 s%d, s%d, 1" % (sT4, sT4))
            a("s_waitcnt vmcnt(%d)" % (opt.npoll - 1))
            a("v_readfirstlane_b32 s%d, v%d" % (sT1, 52 + i))
            a("s_cmp_ge_u32 s%d, 16" % sT1)
            a("s_cbranch_scc1 L_POLL_DONE")
            if opt.sleep:
                a("s_sleep %d" % opt.sleep)
        a("s_cmp_lt_u32 s%d, 0x%x" % (sT4, opt.spin_limit))
        a("s_cbranch_scc1 L_POLL")
        a.label("L_POLL_DONE")
        a("s_mov_b64 exec, s[%d:%d]" % (sT2, sT3))
        a.label("L_REDUCE")
        a("s_barrier")
        stamp(a, 7)
        a("s_cmp_ge_u32 s%d, 6" % sW)
        a("s_cbranch_scc1 L_RED_IDLE")
        reduce_body(a, SRD_WS, SRD_OUT, "sc1")
        stamp(a, 8)
        if opt.x_stretch:
            a("s_cmp_lg_u32 s%d, 0" % sW)
            a("s_cbranch_scc1 L_END")
            a("s_mul_i32 s%d, s%d, %d" % (sDBG, sDBG, opt.x_stretch))
            a.label("L_STRETCH")
            a("s_memrealtime s[%d:%d]" % (sSTAMP, sSTAMP + 1))
            a("s_waitcnt lgkmcnt(0)")
            a("s_sub_u32 s%d, s%d, s100" % (sSTAMP, sSTAMP))
            a("s_cmp_lt_u32 s%d, s%d" % (sSTAMP, sDBG))
            a("s_cbranch_scc1 L_STRETCH")
        a("s_branch L_END")
        a.label("L_RED_IDLE")
        a("s_barrier")

    a.label("L_END")
    a("s_endpgm")
    for lab, t, fix, first in rare:
        emit_rare(lab, t, fix, first)

    assert bars["C"] == bars["I"] == bars["L"], "barrier sequences differ:\n%s\n%s\n%s" % (bars["C"], bars["I"], bars["L"])


def gen_reduce(a):
    name = "attn_reduce_kernel"
    a(".p2align 8")
    a(".globl %s" % name)
    a(".type %s,@function" % name)
    a.label(name)
    if opt.stamps:
        a("s_memrealtime s[100:101]")
    a("s_cmp_ge_u32 s2, 256")
    a("s_cbranch_scc1 R_END")
    a("s_load_dwordx2 s[4:5], s[0:1], 80")
    a("s_load_dwordx2 s[6:7], s[0:1], 96")
    a("v_lshrrev_b32 v1, 6, v0")
    a("v_and_b32 v0, 63, v0")
    a("v_readfirstlane_b32 s3, v1")
    a("s_mul_i32 s16, s2, %d" % (16 * 3072))
    a("s_lshr_b32 s18, s2, 4")
    a("s_and_b32 s19, s2, 15")
    a("s_waitcnt lgkmcnt(0)")
    srd(a, 8, 6, WS_PART_BYTES)
    srd(a, 12, 4, 8 * 48 * 1024 * 2)
    reduce_pre(a, 3, 16, 18, 19, 0)
    reduce_body(a, 8, 12, "")
    a.label("R_END")
    a("s_endpgm")
    return name


VOP3_ONLY = ("v_mfma", "v_cvt_pk_bf16_f32", "v_max3", "v_lshl_add_u32", "v_bfe_u32", "v_dot2_f32_bf16", "v_pk_", "v_mul_lo", "v_add3",
             "v_writelane", "v_readlane", "v_and_or", "v_perm_b32", "v_lshl_or")
MEM = ("ds_", "buffer_", "global_", "s_load", "s_memtime", "s_memrealtime")
INLINE_F = ("0.5", "-0.5", "1.0", "-1.0", "2.0", "-2.0", "4.0", "-4.0")


def has_literal(ops):
    for o in ops:
        o = o.strip()
        if re.fullmatch(r"[A-Z][A-Z_]+", o):
            return True
        if re.fullmatch(r"-?(0x[0-9a-fA-F]+|\d+)", o):
            v = int(o, 0)
            if not -16 <= v <= 64:
                return True
    return False


def ins_size(ln):
    op, _, rest = ln.partition(" ")
    ops = rest.split(",")
    if op.startswith(MEM):
        return 8
    if op.startswith(("s_waitcnt", "s_barrier", "s_nop", "s_branch", "s_cbranch", "s_setprio", "s_endpgm", "s_sleep")):
        return 4
    if op.startswith("v_"):
        if op.startswith(VOP3_ONLY) or op.endswith("_e64") or re.search(r"[ ,]-v\d|abs\(", " " + rest):
            return 8
        return 8 if has_literal(ops) else 4
    return 8 if has_literal(ops) else 4


def widenable(ln):
    op, _, rest = ln.partition(" ")
    return op.startswith("v_") and ins_size(ln) == 4 and not op.startswith(("v_readfirstlane", "v_permlane", "v_nop")) and not op.endswith("_e32")


def align_pass(lines):
    out = list(lines)
    off, run = 0, []
    fixed = missed = 0
    for i, ln in enumerate(out):
        t = ln.strip()
        if not t or t[0] == ";":
            continue
        if t.endswith(":"):
            continue
        if t.startswith(".p2align"):
            n = 1 << int(t.split()[1].rstrip(","))
            off = (off + n - 1) // n * n
            run = []
            continue
        if t[0] == ".":
            continue
        sz = ins_size(t)
        if sz == 8:
            if off % 8 == 4:
                cand = [j for j in run if widenable(out[j].strip())]
                if cand:
                    j = cand[-1]
                    op, _, rest = out[j].strip().partition(" ")
                    out[j] = "    %s_e64 %s" % (op, rest)
                    off += 4
                    fixed += 1
                else:
                    missed += 1
            run = []
        else:
            run.append(i)
        off += sz
    return out, fixed, missed


def kd(name, vgpr, sgpr):
    acc = (vgpr + 3) // 4 * 4
    return """.p2align 6
.amdhsa_kernel %s
  .amdhsa_next_free_vgpr %d
  .amdhsa_next_free_sgpr %d
  .amdhsa_accum_offset %d
  .amdhsa_group_segment_fixed_size 0
  .amdhsa_kernarg_size 104
  .amdhsa_user_sgpr_count 2
  .amdhsa_user_sgpr_kernarg_segment_ptr 1
  .amdhsa_system_sgpr_workgroup_id_x 1
.end_amdhsa_kernel
""" % (name, vgpr, sgpr, acc)


def build():
    hdr = open("cdna_kernels/%s.s.ref" % NAME).read().split("\n")
    head = [ln for ln in hdr if ln.startswith(";") and "@launch" not in ln][:14]
    a = Prog()
    main = "attn_main_kernel" if multi() else NAME + "_kernel"
    if multi():
        head.append("; @launch kernel=attn_main_kernel grid=(256,1,1) block=(512,1,1) lds=%d" % LDS_BYTES)
        head.append("; @launch kernel=attn_reduce_kernel grid=(256,1,1) block=(384,1,1) lds=6144")
    else:
        head.append("; @launch grid=(256,1,1) block=(512,1,1) lds=%d" % LDS_BYTES)
    a('.amdgcn_target "amdgcn-amd-amdhsa--gfx950"')
    a(".text")
    a(".globl %s" % main)
    a(".p2align 8")
    a(".type %s,@function" % main)
    gen_main(a, main)
    kds = kd(main, NVGPR, NSGPR)
    if multi():
        kds += kd(gen_reduce(a), 56, 80)
    body = a.text()
    if opt.align:
        lines, fixed, missed = align_pass(body.split("\n"))
        body = "\n".join(lines)
        print("alignment pass: widened %d, unfixable %d" % (fixed, missed))
    return "\n".join(head) + "\n" + body + '.section .rodata,"a"\n' + kds


if __name__ == "__main__":
    out = sys.argv[1] if len(sys.argv) > 1 else "cdna_kernels/%s.s" % NAME
    for kv in sys.argv[2:]:
        k, v = kv.split("=", 1)
        cur = getattr(opt, k)
        if isinstance(cur, bool):
            v = v in ("1", "True", "true")
        elif isinstance(cur, int):
            v = int(v)
        elif v == "None":
            v = None
        setattr(opt, k, v)
    s = build()
    open(out, "w").write(s)
    print("wrote", out, len(s), "bytes,", s.count("\n"), "lines")
```

```python
import sys, math, struct, re

NAME = "concat_heads__gqa_block_cached__gqa_block_cached__near_ridge"


class Opt:
    fused_tail = True
    kv_aux = "nt"
    w_aux = ""
    dump = None
    L = 6
    waitstep = 4
    thr_log2 = 12
    stamps = 0
    sumop = "add"
    prio = 0
    sleep = 2
    rotbr = 16
    rot = 1
    shortend = True
    twostage = True
    k_aux = 'same'
    v_aux = ''
    accmode = 1
    defer = True
    loop_align = 3
    loop_pad = 0
    wramp = 1
    latest = 0
    korder = 0
    dum = 0
    npoll = 1
    brpos = 0
    waitphase = 0
    x_fast = False
    oprio = 0
    osched = 0
    onl = 4
    wo_at = '26,29,30,31'
    wo_aux = ''
    pf_tiles = 0
    pf_first = 0
    pf_aux = ''
    wosched = 0
    wfirst = 3
    mtrick = True
    klead = 7
    vlead = 5
    spin_limit = 1 << 20
    lstamps = False
    x_stretch = 0
    x_mark = 'end'
    codepf = False
    codepf_n = 3
    dscost = 8
    slotcap = 40
    align = True
    x_nobar = False
    x_nosm = False
    x_nods = False
    x_norare = False
    x_nomfma = False
    x_kv_nodma = False
    x_q_nomfma = False
    x_q_nods = False
    x_q_nodma = False
    x_o_nodma = False
    x_o_nomfma = False
    x_o_nost = False
    x_o_nods = False
    x_t_nords = False
    x_t_nowr = False


opt = Opt()

KB = 1024
K_BASE = 0
V_BASE = 64 * KB
M_BASE = 128 * KB
MROW = 272
X_BASE = 112 * KB
NWS = 7
LDS_BYTES = 160 * KB
RWO = [32 * KB, 64 * KB, 0, 128 * KB, 32 * KB, 96 * KB, 64 * KB, 0]
RWO0 = [32 * KB, 64 * KB, 0, 128 * KB, 32 * KB, 64 * KB, 0, 128 * KB]
O_BASE = 96 * KB
def kslot(t):
    return (t + 4) % 8

WS_PART_BYTES = 16 * 16 * 16 * 3072
WS_CNT = 14 << 20
WS_DUMP = 16 << 20
WS_STAMP = 48 << 20
WS_BYTES = 268435456

sW = 3
sB, sHP, sBR, sKVH = 4, 5, 6, 7
SRD_X, SRD_WQ, SRD_K, SRD_V, SRD_WO, SRD_WS = 8, 12, 16, 20, 24, 28
sT0, sT1, sT2, sT3, sT4, sT5 = 32, 33, 34, 35, 36, 37
sGRP = 38
sOFF = 39
sPASS = 40
sTHR = 41
sKS = 42
sPOFF = 43
sSTAMP = 44
sDBG = 46
SRD_OUT = 48
SRD_ST = 52
P_X, P_K, P_V, P_WQ = 56, 58, 60, 62
KA = 64
P_OUT, P_DBG, P_WS = KA + 20, KA + 22, KA + 24
P_WO = 90
sSTOFF = 92
sJ, sJ64K, sJ2K = 93, 94, 95
sROT = 70
SRD_DBG = 96
NSGPR = 102

vL = 0
vT = [1, 2, 3, 4, 5, 6, 7, 8, 9]
vKA = list(range(10, 18))
vVA = list(range(18, 22))
vWA = list(range(22, 26))
vXB, vXT = 26, 27
vXB1 = 248
vPSA, vPSB, vLACC, vTMP = 28, 29, 30, 31
vQ = 32
vO = 64
vS = [128, 144]
vNM = 160
vP = [176, 184]
vF = 192
vE = 224
vWA2 = [232, 233, 234, 235]
vQW = 236
vOW = 237
vOR = 240
vQR = 241
vVP = 242
vFLAG = 243
vWOA = 244
vWOT = [245, 246]
vST = 247
vDUM = 249
vSTA, vSTB = 250, 251
NVGPR = 252
def acc1(i):
    if opt.accmode == 0:
        return vO + 4 * i
    return vQ + 4 * i if i < 8 else vF + 4 * (i - 8)
vA1 = [128, 144]
vB1 = [160, 172]
vB3 = 32
vA3 = [128, 160]
vACC3 = [192, 216]
vLW = [10, 11, 12, 13]
vLK = [14, 15]
vLV = 16
vLWO = [18, 19, 20, 21]


def f32bits(x):
    return struct.unpack("<I", struct.pack("<f", x))[0]


class Prog:
    def __init__(self):
        self.lines = []
    def __call__(self, s):
        self.lines += s.split("\n")
    def label(self, s):
        self.lines.append(s + ":")
    def text(self):
        out = []
        for ln in self.lines:
            ln = ln.strip()
            if ln:
                out.append(ln if ln.endswith(":") or ln[0] in ".;" else "    " + ln)
        return "\n".join(out) + "\n"


def vr(b, n):
    return "v[%d:%d]" % (b, b + n - 1) if n > 1 else "v%d" % b


class Queue:
    def __init__(self, limit):
        self.q = []
        self.limit = limit
    def issue(self, tag, n=1):
        self.q += [tag] * n
        assert len(self.q) <= self.limit, (tag, len(self.q))
    def need(self, tags):
        last = -1
        for i, t in enumerate(self.q):
            if t in tags:
                last = i
        if last < 0:
            return None
        n = len(self.q) - 1 - last
        self.q = self.q[last + 1:]
        return n
    def drain(self):
        self.q = []


def srd(a, base, ptr, size, off_s=None):
    if off_s is None:
        a("s_mov_b32 s%d, s%d" % (base, ptr))
        a("s_mov_b32 s%d, s%d" % (base + 1, ptr + 1))
    else:
        a("s_add_u32 s%d, s%d, s%d" % (base, ptr, off_s))
        a("s_addc_u32 s%d, s%d, 0" % (base + 1, ptr + 1))
    a("s_mov_b32 s%d, 0x%x" % (base + 2, size))
    a("s_mov_b32 s%d, 0x20000" % (base + 3))


MARKS = {1: "x", 2: "q", 3: "att", 5: "gemm", 6: "drain", 7: "sync", 8: "end"}


def stamp(a, idx):
    if opt.x_stretch and MARKS.get(idx) == opt.x_mark:
        a("s_memrealtime s[%d:%d]" % (sSTAMP, sSTAMP + 1))
        a("s_waitcnt lgkmcnt(0)")
        a("s_sub_u32 s%d, s%d, s100" % (sDBG, sSTAMP))
    if not opt.stamps or (opt.stamps == 2 and idx not in (0, 8)) or (opt.stamps in (3, 4) and idx not in (0, 2, 3, 4, 5, 6, 7, 8)) or (opt.stamps == 5 and idx not in (0, 2, 8, 20, 21, 22, 23, 24, 25, 26, 27)):
        return
    a("s_memrealtime s[%d:%d]" % (sSTAMP, sSTAMP + 1))
    a("s_memtime s[%d:%d]" % (sDBG, sDBG + 1))
    a("s_waitcnt lgkmcnt(0)")
    a("v_mov_b32 v%d, s%d" % (vSTA, sSTAMP))
    a("v_mov_b32 v%d, s%d" % (vSTB, sSTOFF))
    a("buffer_store_dword v%d, v%d, s[%d:%d], 0 offen offset:%d" % (vSTA, vSTB, SRD_ST, SRD_ST + 3, idx * 4))
    a("v_mov_b32 v%d, s%d" % (vSTA, sDBG))
    a("buffer_store_dword v%d, v%d, s[%d:%d], 0 offen offset:%d" % (vSTA, vSTB, SRD_ST, SRD_ST + 3, 128 + idx * 4))


def fill_cost(ins):
    op = ins.split()[0]
    return 8 if op.startswith(("ds_", "buffer_", "v_exp", "v_rcp")) else 4


def interleave(a, mfmas, fill, gap=8):
    total = sum(fill_cost(f) for f in fill)
    per = max(gap, -(-total // max(len(mfmas), 1))) if mfmas else 0
    i, credit = 0, 0
    for m in mfmas:
        a(m)
        credit += per
        while i < len(fill) and fill_cost(fill[i]) <= credit:
            credit -= fill_cost(fill[i])
            a(fill[i]); i += 1
    while i < len(fill):
        a(fill[i]); i += 1


def multi():
    return not opt.fused_tail


def dump_regs(a, base, n):
    a("s_lshl_b32 s%d, s2, 3" % sT0)
    a("s_add_u32 s%d, s%d, s%d" % (sT0, sT0, sW))
    a("s_mul_i32 s%d, s%d, %d" % (sT0, sT0, 96 * 256))
    a("s_add_u32 s%d, s%d, 0x%x" % (sT0, sT0, WS_DUMP))
    a("v_lshlrev_b32 v%d, 4, v%d" % (vT[8], vL))
    for g in range(n // 4):
        a("buffer_store_dwordx4 %s, v%d, s[%d:%d], s%d offen" % (vr(base + g * 4, 4), vT[8], SRD_WS, SRD_WS + 3, sT0))
        a("s_add_u32 s%d, s%d, 1024" % (sT0, sT0))
    a("s_waitcnt vmcnt(0)")


RT = [64, 65, 66, 67, 68, 69]


def reduce_pre(a, s_w, s_wgoff, s_grp, s_dest, lds_base):
    t = RT
    a("s_cmp_ge_u32 s%d, 3" % s_w)
    a("s_cselect_b32 s%d, 1, 0" % t[3])
    a("s_mul_i32 s%d, s%d, 3" % (t[4], t[3]))
    a("s_sub_u32 s%d, s%d, s%d" % (t[4], s_w, t[4]))
    a("v_lshlrev_b32 v46, 4, v0")
    a("s_lshl_b32 s%d, s%d, 10" % (t[0], t[4]))
    a("s_add_u32 s%d, s%d, s%d" % (t[0], t[0], s_wgoff))
    a("s_mul_i32 s%d, s%d, %d" % (t[1], t[3], 8 * 3072))
    a("s_add_u32 s%d, s%d, s%d" % (t[0], t[0], t[1]))
    a("s_lshl_b32 s%d, s%d, 11" % (t[2], t[4]))
    a("s_add_u32 s%d, s%d, %d" % (t[2], t[2], lds_base))
    a("v_lshlrev_b32 v47, 5, v0")
    a("v_add_u32 v47, s%d, v47" % t[2])
    a("s_and_b32 s%d, s%d, 7" % (t[1], s_grp))
    a("s_lshr_b32 s%d, s%d, 3" % (t[2], s_grp))
    a("s_mul_i32 s%d, s%d, 48" % (t[1], t[1]))
    a("s_lshl_b32 s%d, s%d, 4" % (t[4], t[4]))
    a("s_add_u32 s%d, s%d, s%d" % (t[1], t[1], t[4]))
    a("s_lshl_b32 s%d, s%d, 11" % (t[1], t[1]))
    a("s_lshl_b32 s%d, s%d, 10" % (t[2], t[2]))
    a("s_add_u32 s%d, s%d, s%d" % (t[1], t[1], t[2]))
    a("s_lshl_b32 s%d, s%d, 6" % (t[2], s_dest))
    a("s_add_u32 s%d, s%d, s%d" % (t[1], t[1], t[2]))
    a("v_and_b32 v48, 15, v0")
    a("v_lshrrev_b32 v49, 4, v0")
    a("v_lshlrev_b32 v48, 11, v48")
    a("v_lshl_add_u32 v48, v49, 3, v48")
    a("s_mov_b32 s%d, 0xffff0000" % t[5])


def reduce_body(a, srd_ws, srd_out, aux):
    t = RT
    if opt.stamps == 4:
        a("s_memtime s[72:73]")
    for s in range(8):
        a("buffer_load_dwordx4 %s, v46, s[%d:%d], s%d offen %s" % (vr(12 + 4 * s, 4), srd_ws, srd_ws + 3, t[0], aux))
        if s < 7:
            a("s_add_u32 s%d, s%d, 3072" % (t[0], t[0]))
    for s in range(8):
        a("s_waitcnt vmcnt(%d)" % (7 - s))
        for d in range(4):
            x = 12 + 4 * s + d
            if s == 0:
                a("v_lshlrev_b32 v%d, 16, v%d" % (4 + 2 * d, x))
                a("v_and_b32 v%d, s%d, v%d" % (5 + 2 * d, t[5], x))
            else:
                a("v_lshlrev_b32 v44, 16, v%d" % x)
                a("v_and_b32 v45, s%d, v%d" % (t[5], x))
                a("v_add_f32 v%d, v%d, v44" % (4 + 2 * d, 4 + 2 * d))
                a("v_add_f32 v%d, v%d, v45" % (5 + 2 * d, 5 + 2 * d))
    a("s_cmp_eq_u32 s%d, 0" % t[3])
    a("s_cbranch_scc1 L_RED_LOW")
    a("ds_write_b128 v47, v[4:7]")
    a("ds_write_b128 v47, v[8:11] offset:16")
    a("s_waitcnt lgkmcnt(0)")
    a("s_barrier")
    a("s_branch L_RED_DONE")
    a.label("L_RED_LOW")
    a("s_barrier")
    a("ds_read_b128 v[12:15], v47")
    a("ds_read_b128 v[16:19], v47 offset:16")
    a("s_waitcnt lgkmcnt(0)")
    for d in range(8):
        a("v_add_f32 v%d, v%d, v%d" % (4 + d, 4 + d, 12 + d))
    for d in range(4):
        a("v_cvt_pk_bf16_f32 v%d, v%d, v%d" % (4 + d, 4 + 2 * d, 5 + 2 * d))
    a("buffer_store_dwordx2 v[4:5], v48, s[%d:%d], s%d offen" % (srd_out, srd_out + 3, t[1]))
    a("buffer_store_dwordx2 v[6:7], v48, s[%d:%d], s%d offen offset:32" % (srd_out, srd_out + 3, t[1]))
    a.label("L_RED_DONE")


def gen_main(a, name):
    bars = {"C": [], "I": [], "L": []}
    part_aux = "sc1" if opt.fused_tail else ""

    def bar(roles, nm, skip=False):
        if not skip:
            a("s_barrier")
        for r in roles:
            bars[r].append(nm)

    a.label(name)
    if opt.stamps:
        a("s_memrealtime s[100:101]")
    a("s_cmp_ge_u32 s2, 256")
    a("s_cbranch_scc1 L_END")
    a("s_load_dwordx16 s[%d:%d], s[0:1], 0" % (KA, KA + 15))
    a("s_load_dwordx8 s[%d:%d], s[0:1], 64" % (KA + 16, KA + 23))
    a("s_load_dwordx2 s[%d:%d], s[0:1], 96" % (KA + 24, KA + 25))
    if opt.x_stretch:
        a("s_memrealtime s[100:101]")
    a("s_and_b32 s%d, s2, 7" % sT0)
    a("s_lshr_b32 s%d, s2, 3" % sT1)
    a("s_lshr_b32 s%d, s%d, 4" % (sT2, sT1))
    a("s_lshl_b32 s%d, s%d, 1" % (sT0, sT0))
    a("s_add_u32 s%d, s%d, s%d" % (sT0, sT0, sT2))
    a("s_lshr_b32 s%d, s%d, 3" % (sBR, sT0))
    a("s_and_b32 s%d, s%d, 7" % (sKVH, sT0))
    a("s_bfe_u32 s%d, s%d, 0x30001" % (sB, sT1))
    a("s_and_b32 s%d, s%d, 1" % (sT2, sT1))
    a("s_lshl_b32 s%d, s%d, 1" % (sHP, sKVH))
    a("s_add_u32 s%d, s%d, s%d" % (sHP, sHP, sT2))
    a("v_lshrrev_b32 v1, 6, v0")
    a("v_and_b32 v0, 63, v0")
    a("v_readfirstlane_b32 s%d, v1" % sW)
    a("s_lshl_b32 s%d, s%d, 3" % (sGRP, sBR))
    a("s_add_u32 s%d, s%d, s%d" % (sGRP, sGRP, sB))
    if opt.codepf:
        a("s_cmp_lg_u32 s%d, 3" % sW)
        a("s_cbranch_scc1 L_NOPF")
        a("s_getpc_b64 s[%d:%d]" % (sT2, sT3))
        a.label("L_PC")
        a("v_lshlrev_b32 v2, 7, v0")
        a("v_mov_b32 v5, s%d" % sT3)
        a("v_add_co_u32 v4, vcc, s%d, v2" % sT2)
        a("s_nop 1")
        a("v_addc_co_u32 v5, vcc, 0, v5, vcc")
        a(".set PF_BYTES, L_END - L_PC")
        for i in range(opt.codepf_n):
            if i:
                a("v_add_co_u32 v4, vcc, 0x2000, v4")
                a("s_nop 1")
                a("v_addc_co_u32 v5, vcc, 0, v5, vcc")
            a("v_add_u32 v3, %d, v2" % (i * 8192))
            a("v_cmp_gt_u32 vcc, PF_BYTES, v3")
            a("s_and_saveexec_b64 s[%d:%d], vcc" % (sT0, sT1))
            a("s_cbranch_execz L_PF_SKIP%d" % i)
            a("global_load_dword v%d, v[4:5], off" % vDUM)
            a.label("L_PF_SKIP%d" % i)
            a("s_mov_b64 exec, s[%d:%d]" % (sT0, sT1))
        a.label("L_NOPF")
    a("s_waitcnt lgkmcnt(0)")
    a("s_cmp_eq_u32 s%d, 0" % sBR)
    for dst, pa, pb in ((P_WQ, KA + 6, KA + 16), (P_X, KA + 0, KA + 10), (P_K, KA + 2, KA + 12),
                        (P_V, KA + 4, KA + 14), (P_WO, KA + 8, KA + 18)):
        a("s_cselect_b32 s%d, s%d, s%d" % (dst, pa, pb))
        a("s_cselect_b32 s%d, s%d, s%d" % (dst + 1, pa + 1, pb + 1))
    if opt.stamps:
        srd(a, SRD_ST, P_WS, WS_BYTES)
        a("s_lshl_b32 s%d, s2, 3" % sSTOFF)
        a("s_add_u32 s%d, s%d, s%d" % (sSTOFF, sSTOFF, sW))
        a("s_lshl_b32 s%d, s%d, 8" % (sSTOFF, sSTOFF))
        a("s_add_u32 s%d, s%d, 0x%x" % (sSTOFF, sSTOFF, WS_STAMP))
        a("v_mov_b32 v%d, s100" % vSTA)
        a("v_mov_b32 v%d, s%d" % (vSTB, sSTOFF))
        a("buffer_store_dword v%d, v%d, s[%d:%d], 0 offen offset:%d" % (vSTA, vSTB, SRD_ST, SRD_ST + 3, 31 * 4))
        stamp(a, 0)
    a("s_cmp_ge_u32 s%d, 4" % sW)
    a("s_cbranch_scc1 L_LOADER")

    a("s_cmp_eq_u32 s%d, 3" % sW)
    a("s_cbranch_scc1 L_W3_START")
    a("s_mul_i32 s%d, s%d, 49152" % (sT0, sB))
    srd(a, SRD_X, P_X, 49152, sT0)
    a("v_lshrrev_b32 v2, 3, v0")
    a("v_and_b32 v3, 7, v0")
    a("v_lshrrev_b32 v4, 4, v0")
    a("v_xor_b32 v3, v3, v4")
    a("v_lshlrev_b32 v3, 4, v3")
    a("v_lshl_add_u32 v2, v2, 10, v3")
    a("v_xor_b32 v3, 64, v2")
    a("v_add_u32 v3, 7168, v3")
    a("s_lshl_b32 s%d, s%d, 14" % (sT1, sW))
    a("s_lshl_b32 s%d, s%d, 11" % (sT3, sW))
    a("s_add_u32 s%d, s%d, %d" % (sT3, sT3, X_BASE))
    for c in range(8):
        a("s_add_u32 s%d, s%d, %d" % (sT0, sB, c))
        a("s_and_b32 s%d, s%d, 7" % (sT0, sT0))
        a("s_mul_i32 s%d, s%d, 6144" % (sT4, sT0))
        a("s_lshl_b32 s%d, s%d, 7" % (sT2, sT0))
        a("s_add_u32 m0, s%d, s%d" % (sT4, sT3))
        a("s_add_u32 s%d, s%d, s%d" % (sT2, sT2, sT1))
        a("buffer_load_dwordx4 v2, s[%d:%d], s%d offen %s lds" % (SRD_X, SRD_X + 3, sT2, opt.w_aux))
        a("buffer_load_dwordx4 v3, s[%d:%d], s%d offen offset:1024 %s lds" % (SRD_X, SRD_X + 3, sT2, opt.w_aux))

    a("s_branch L_WORK_SETUP")
    a.label("L_W3_START")
    if opt.fused_tail:
        a("s_cmp_lg_u32 s%d, 0" % sHP)
        a("s_cbranch_scc1 L_WORK_SETUP")
        srd(a, SRD_WS, P_WS, WS_BYTES)
        srd(a, SRD_DBG, P_DBG, 256)
        a("s_lshl_b32 s%d, s%d, 8" % (sT0, sGRP))
        a("s_add_u32 s%d, s%d, 0x%x" % (sT0, sT0, WS_CNT))
        a("s_lshl_b32 s%d, s%d, 4" % (sT1, sGRP))
        a("s_mov_b64 s[%d:%d], exec" % (sT2, sT3))
        a("v_mov_b32 v2, 0")
        a("v_mov_b32 v3, 1")
        a("v_lshlrev_b32 v4, 7, v0")
        a("s_mov_b64 exec, 3")
        a("buffer_store_dword v2, v4, s[%d:%d], s%d offen sc1" % (SRD_WS, SRD_WS + 3, sT0))
        a("s_mov_b64 exec, 1")
        a("s_waitcnt vmcnt(0)")
        a("buffer_atomic_add v3, v2, s[%d:%d], s%d offen sc1" % (SRD_DBG, SRD_DBG + 3, sT1))
        a("s_mov_b64 exec, s[%d:%d]" % (sT2, sT3))

    a.label("L_WORK_SETUP")
    l = vL
    t1, t2, t3, t4, t5 = vT[0:5]
    G, rp, cp = vT[5], vT[6], vT[7]
    a("v_and_b32 v%d, 15, v%d" % (t3, l))
    a("v_lshrrev_b32 v%d, 4, v%d" % (G, l))
    a("v_bfe_u32 v%d, v%d, 2, 2" % (rp, l))
    a("v_and_b32 v%d, 3, v%d" % (cp, l))
    a("v_lshrrev_b32 v%d, 1, v%d" % (t4, t3))
    a("v_xor_b32 v%d, v%d, v%d" % (t4, G, t4))
    a("v_lshlrev_b32 v%d, 4, v%d" % (t4, t4))
    a("v_lshl_add_u32 v%d, v%d, 7, v%d" % (t5, t3, t4))
    a("v_add_u32 v%d, 0x%x, v%d" % (vXB, X_BASE, t5))
    a("v_xor_b32 v%d, 64, v%d" % (vXB1, vXB))
    a("v_and_b32 v%d, 1, v%d" % (t4, G))
    a("v_lshl_add_u32 v%d, v%d, 2, v%d" % (t4, t4, rp))
    a("s_lshl_b32 s%d, s%d, 2" % (sT0, sW))
    a("v_xor_b32 v%d, s%d, v%d" % (t5, sT0, t4))
    a("v_lshlrev_b32 v%d, 5, v%d" % (t5, t5))
    a("v_lshl_add_u32 v%d, v%d, 3, v%d" % (t1, G, rp))
    a("v_lshl_add_u32 v%d, v%d, 9, v%d" % (t5, t1, t5))
    a("v_lshl_add_u32 v%d, v%d, 3, v%d" % (vWA[0], cp, t5))
    for nb in range(1, 4):
        a("v_xor_b32 v%d, %d, v%d" % (vWA[nb], nb * 32, vWA[0]))
    later = []
    d = later.append
    sD0, sD1 = sT3, sT4
    for nb in range(4):
        d("v_add_u32 v%d, 0x10000, v%d" % (vWA2[nb], vWA[nb]))
    d("s_lshl_b32 s%d, s%d, 1" % (sD0, sW))
    d("v_xor_b32 v%d, s%d, v%d" % (t5, sD0, t4))
    d("v_lshlrev_b32 v%d, 5, v%d" % (t5, t5))
    d("v_lshl_add_u32 v%d, v%d, 8, v%d" % (t5, t1, t5))
    d("v_lshl_add_u32 v%d, v%d, 3, v%d" % (vWOA, cp, t5))
    d("v_mul_u32_u24 v%d, %d, v%d" % (t5, MROW, t3))
    d("v_lshl_add_u32 v%d, v%d, 4, v%d" % (t4, G, t5))
    d("v_add_u32 v%d, 0x%x, v%d" % (vOR, O_BASE, t4))
    d("v_lshl_add_u32 v%d, v%d, 3, v%d" % (t4, G, t5))
    d("s_lshr_b32 s%d, s%d, 1" % (sD0, sW))
    d("s_mul_i32 s%d, s%d, %d" % (sD0, sD0, 48 * MROW))
    d("s_and_b32 s%d, s%d, 1" % (sD1, sW))
    d("s_lshl_b32 s%d, s%d, 7" % (sD1, sD1))
    d("s_add_u32 s%d, s%d, s%d" % (sD0, sD0, sD1))
    d("s_add_u32 s%d, s%d, %d" % (sD0, sD0, M_BASE))
    d("v_add_u32 v%d, s%d, v%d" % (vQW, sD0, t4))
    d("v_and_b32 v%d, 31, v%d" % (t1, l))
    d("v_lshrrev_b32 v%d, 5, v%d" % (t2, l))
    d("v_xor_b32 v%d, v%d, v%d" % (t4, t2, t3))
    d("v_lshlrev_b32 v%d, 4, v%d" % (t4, t4))
    d("v_lshl_add_u32 v%d, v%d, 8, v%d" % (vKA[0], t1, t4))
    for ks in range(1, 8):
        d("v_xor_b32 v%d, %d, v%d" % (vKA[ks], ks * 32, vKA[0]))
    d("v_mul_u32_u24 v%d, %d, v%d" % (t4, MROW, t1))
    d("s_mul_i32 s%d, s%d, %d" % (sD0, sW, 32 * MROW))
    d("v_add_u32 v%d, s%d, v%d" % (t4, sD0, t4))
    d("v_lshl_add_u32 v%d, v%d, 3, v%d" % (t5, t2, t4))
    d("v_add_u32 v%d, 0x%x, v%d" % (vOW, O_BASE, t5))
    d("v_lshl_add_u32 v%d, v%d, 4, v%d" % (t5, t2, t4))
    d("v_add_u32 v%d, 0x%x, v%d" % (vQR, M_BASE, t5))
    d("v_lshl_add_u32 v%d, v%d, 2, v%d" % (t1, t2, rp))
    d("v_and_b32 v%d, 1, v%d" % (t4, G))
    d("v_lshlrev_b32 v%d, 1, v%d" % (t4, t4))
    d("v_lshrrev_b32 v%d, 1, v%d" % (t5, cp))
    d("v_add_u32 v%d, v%d, v%d" % (t4, t4, t5))
    d("v_lshlrev_b32 v%d, 2, v%d" % (t5, rp))
    d("v_xor_b32 v%d, v%d, v%d" % (t4, t4, t5))
    d("v_lshlrev_b32 v%d, 4, v%d" % (t4, t4))
    d("v_lshl_add_u32 v%d, v%d, 8, v%d" % (t4, t1, t4))
    d("v_and_b32 v%d, 1, v%d" % (t5, cp))
    d("v_lshl_add_u32 v%d, v%d, 3, v%d" % (t4, t5, t4))
    d("v_add_u32 v%d, 0x%x, v%d" % (vVA[0], V_BASE, t4))
    for db in range(1, 4):
        d("v_xor_b32 v%d, %d, v%d" % (vVA[db], db * 64, vVA[0]))
    d("v_lshlrev_b32 v%d, 4, v%d" % (vST, l))
    d("s_lshl_b32 s%d, s%d, 8" % (sD0, sGRP))
    d("s_add_u32 s%d, s%d, s%d" % (sD0, sD0, sHP))
    d("s_lshl_b32 s%d, s%d, 4" % (sD1, sW))
    d("s_add_u32 s%d, s%d, s%d" % (sD0, sD0, sD1))
    d("s_mul_i32 s%d, s%d, 3072" % (sPOFF, sD0))
    d("s_mov_b32 s%d, s%d" % (SRD_WS, P_WS))
    d("s_mov_b32 s%d, s%d" % (SRD_WS + 1, P_WS + 1))
    d("s_mov_b32 s%d, 0x%x" % (SRD_WS + 2, WS_BYTES))
    d("s_mov_b32 s%d, 0x20000" % (SRD_WS + 3))
    d("s_mov_b32 s%d, 0x%08x" % (sTHR, f32bits(2.0 ** opt.thr_log2)))
    for r in range(64):
        if opt.accmode == 1 or r >= 48:
            d("v_mov_b32 v%d, 0" % (vO + r))
    d("v_mov_b32 v%d, 0" % vLACC)
    if not opt.defer:
        for ins in later:
            a(ins)
        later = []
    if opt.pf_tiles:
        a("s_cmp_lg_u32 s%d, 3" % sW)
        a("s_cbranch_scc1 L_X_LANDED")
        a("s_and_b32 s%d, s%d, 1" % (sT1, sHP))
        a("s_cmp_eq_u32 s%d, 0" % sT1)
        a("s_cselect_b32 s%d, s%d, s%d" % (sT2, P_K, P_V))
        a("s_cselect_b32 s%d, s%d, s%d" % (sT3, P_K + 1, P_V + 1))
        a("s_lshl_b32 s%d, s%d, 3" % (sT0, sB))
        a("s_add_u32 s%d, s%d, s%d" % (sT0, sT0, sKVH))
        a("s_lshl_b32 s%d, s%d, 18" % (sT0, sT0))
        srd(a, SRD_K, sT2, 262144, sT0)
        a("v_lshlrev_b32 v2, 7, v0")
        a("s_mov_b32 s%d, %d" % (sT0, opt.pf_first * 8192))
        for i in range(opt.pf_tiles):
            a("buffer_load_dword v%d, v2, s[%d:%d], s%d offen %s" % (vDUM, SRD_K, SRD_K + 3, sT0, opt.pf_aux))
            if i + 1 < opt.pf_tiles:
                a("s_add_u32 s%d, s%d, 8192" % (sT0, sT0))
    if opt.dum == 3:
        a("s_cmp_lg_u32 s%d, 3" % sW)
        a("s_cbranch_scc1 L_X_LANDED")
        a("s_lshl_b32 s%d, s%d, 9" % (sT0, sHP))
        srd(a, SRD_WQ, P_WQ, 4194304 - 15 * 512, sT0)
        a("v_lshrrev_b32 v2, 5, v0")
        a("v_and_b32 v3, 31, v0")
        a("v_lshlrev_b32 v3, 4, v3")
        a("v_lshl_add_u32 v2, v2, 13, v3")
        a("s_lshl_b32 s%d, s%d, 1" % (sT0, sB))
        a("s_add_u32 s%d, s%d, 1" % (sT0, sT0))
        a("s_lshl_b32 s%d, s%d, 18" % (sT0, sT0))
        for i in range(16):
            a("buffer_load_dwordx4 %s, v2, s[%d:%d], s%d offen" % (vr(vE, 4), SRD_WQ, SRD_WQ + 3, sT0))
            if i < 15:
                a("s_add_u32 s%d, s%d, 16384" % (sT0, sT0))
    a.label("L_X_LANDED")
    stamp(a, 1)

    def q_mfma_list(pb, first=False):
        if opt.x_q_nomfma:
            return []
        out = []
        for nb in range(4):
            for qb in range(3):
                acc = acc1(nb * 3 + qb)
                out.append("v_mfma_f32_16x16x32_bf16 %s, %s, %s, %s" % (vr(acc, 4), vr(vA1[pb] + nb * 4, 4), vr(vB1[pb] + qb * 4, 4), "0" if first else vr(acc, 4)))
        return out
    vXTT = [vXT, vT[8]]
    def x_addr(e):
        v = vXTT[e & 1]
        out = []
        if opt.korder:
            out += ["s_add_u32 s%d, s%d, %d" % (sT0, sB, e & 7),
                    "s_and_b32 s%d, s%d, 7" % (sT0, sT0),
                    "s_mul_i32 s%d, s%d, 6144" % (sKS, sT0)]
            return out + ["v_add_u32 v%d, s%d, v%d" % (v, sKS, (vXB, vXB1)[e >> 3])]
        if e % 2 == 0:
            out += ["s_add_u32 s%d, s%d, %d" % (sT0, sB, e >> 1),
                    "s_and_b32 s%d, s%d, 7" % (sT0, sT0),
                    "s_mul_i32 s%d, s%d, 6144" % (sKS, sT0)]
        return out + ["v_add_u32 v%d, s%d, v%d" % (v, sKS, (vXB, vXB1)[e & 1])]
    for ins in x_addr(0):
        a(ins)
    for e in range(16):
        if opt.korder and e < 8:
            if opt.dum == 3:
                a("s_cmp_eq_u32 s%d, 3" % sW)
                a("s_cbranch_scc1 L_NOXW%d" % e)
            a("s_waitcnt vmcnt(%d)" % (14 - 2 * e))
            if opt.dum == 3:
                a.label("L_NOXW%d" % e)
        if e % 2 == 0 and not opt.korder:
            if opt.pf_tiles:
                a("s_cmp_eq_u32 s%d, 3" % sW)
                a("s_cbranch_scc1 L_NOXW%d" % e)
            a("s_waitcnt vmcnt(%d)" % (14 - e))
            if opt.pf_tiles:
                a.label("L_NOXW%d" % e)
        if opt.stamps == 5 and e == 0:
            stamp(a, 22)
        bar("CI", "Q%d" % e)
        if opt.stamps == 5 and e in (0, 1, 2, 4, 8):
            stamp(a, {0: 23, 1: 24, 2: 25, 4: 26, 8: 27}[e])
        if e in (0, 4, 8, 12):
            stamp(a, 9 + e // 4)
        pb = e & 1
        slot = e % NWS
        wa, so = (vWA, slot * 16384) if slot < 4 else (vWA2, (slot - 4) * 16384)
        fill = []
        if not opt.x_q_nods:
            for nb in range(4):
                for jj in range(2):
                    fill.append("ds_read_b64_tr_b16 %s, v%d offset:%d" % (vr(vA1[pb] + nb * 4 + jj * 2, 2), wa[nb], so + jj * 2048))
                if nb == 0:
                    for qb in range(3):
                        fill.append("ds_read_b128 %s, v%d offset:%d" % (vr(vB1[pb] + qb * 4, 4), vXTT[e & 1], qb * 2048))
        if e < 15:
            fill += x_addr(e + 1)
        n_def = 4 if e == 0 else (-(-len(later) // (15 - e)) if e < 15 else len(later))
        fill += later[:n_def]
        later = later[n_def:]
        interleave(a, q_mfma_list(pb ^ 1, first=(e == 1)) if e > 0 else [], fill)
        a("s_waitcnt lgkmcnt(0)")
    assert not later
    bar("CI", "Q16")
    stamp(a, 13)
    for m in q_mfma_list(1):
        a(m)
    scale = math.log2(math.e) / math.sqrt(128.0)
    a("s_mov_b32 s%d, 0x%08x" % (sT2, f32bits(scale)))
    a("s_mov_b32 s%d, 0x%08x" % (sT3, f32bits(scale)))
    a("s_nop 5")
    for nb in range(4):
        for qb in range(3):
            acc = acc1(nb * 3 + qb)
            a("v_pk_mul_f32 %s, %s, s[%d:%d]" % (vr(acc, 2), vr(acc, 2), sT2, sT3))
            a("v_pk_mul_f32 %s, %s, s[%d:%d]" % (vr(acc + 2, 2), vr(acc + 2, 2), sT2, sT3))
            a("v_cvt_pk_bf16_f32 v%d, v%d, v%d" % (acc, acc, acc + 1))
            a("v_cvt_pk_bf16_f32 v%d, v%d, v%d" % (acc + 1, acc + 2, acc + 3))
            a("ds_write_b64 v%d, %s offset:%d" % (vQW, vr(acc, 2), qb * 16 * MROW + nb * 32))
    if opt.accmode == 0:
        for r in range(48):
            a("v_mov_b32 v%d, 0" % (vO + r))
    a("s_waitcnt lgkmcnt(0)")
    bar("CI", "Q17")
    stamp(a, 2)
    a("s_cmp_eq_u32 s%d, 3" % sW)
    a("s_cbranch_scc1 L_TRANS")

    if opt.prio:
        a("s_setprio %d" % opt.prio)
    dq = Queue(1000)
    for ks in range(8):
        a("ds_read_b128 %s, v%d offset:%d" % (vr(vQ + ks * 4, 4), vQR, ks * 32))
        dq.issue("Q")
    L, WS = opt.L, opt.waitstep

    def frag_ops(p):
        return 1 if (p & 15) < 8 else 2

    def frag_read(t, p):
        if p >= 16:
            t, p = t + 1, p - 16
        fb = vF + (p & 7) * 4
        if p < 8:
            if not opt.x_nods:
                a("ds_read_b128 %s, v%d offset:%d" % (vr(fb, 4), vKA[p], kslot(t + 1) * 8192))
            dq.issue("F%d" % (p & 7), 1)
        else:
            u, db = (p - 8) >> 2, (p - 8) & 3
            for jj in range(2):
                if not opt.x_nods:
                    a("ds_read_b64_tr_b16 %s, v%d offset:%d" % (vr(fb + jj * 2, 2), vVA[db], ((t - 1) % 8) * 8192 + (16 * u + 8 * jj) * 256))
            dq.issue("F%d" % (p & 7), 2)

    def last_v_read(f):
        u, db = f >> 2, f & 3
        for jj in range(2):
            if not opt.x_nods:
                a("ds_read_b64_tr_b16 %s, v%d offset:%d" % (vr(vF + f * 4 + jj * 2, 2), vVA[db], (31 % 8) * 8192 + (16 * u + 8 * jj) * 256))
        dq.issue("F%d" % f, 2)

    def wait_frags(p):
        if (p - opt.waitphase) % WS:
            return
        n = dq.need({"F%d" % ((p + i) & 7) for i in range(WS)})
        if n is not None and not opt.x_nods:
            assert n <= 15
            a("s_waitcnt lgkmcnt(%d)" % n)

    def sm_ops(t):
        S, P = vS[t & 1], vP[t & 1]
        def E(k, i):
            return ("v_exp_f32 v%d, v%d" % (vE + (k & 1) * 2 + i, S + 2 * k + i), 8)
        def adds(k):
            e0, e1 = vE + (k & 1) * 2, vE + (k & 1) * 2 + 1
            if k < 2:
                return [("v_add_f32 v%d, v%d, v%d" % ((vPSA, vPSB)[k], e0, e1), 4)]
            return [("v_add_f32 v%d, v%d, v%d" % (vPSA, vPSA, e0), 4), ("v_add_f32 v%d, v%d, v%d" % (vPSB, vPSB, e1), 4)]
        def C(k):
            return ("v_cvt_pk_bf16_f32 v%d, v%d, v%d" % (P + k, vE + (k & 1) * 2, vE + (k & 1) * 2 + 1), 4)
        if opt.x_fast:
            ops = [E(0, 0), E(0, 1)]
            for k in range(1, 8):
                ops += [E(k, 0), E(k, 1), C(k - 1)]
            return ops + [("s_nop 0", 4), C(7)]
        ops = [E(0, 0), E(0, 1)]
        for k in range(1, 8):
            ops += [E(k, 0)] + adds(k - 1) + [E(k, 1), C(k - 1)]
        ops += adds(7) + [C(7)]
        ops.append(("v_add_f32 v%d, v%d, v%d" % (vPSA, vPSA, vPSB), 4))
        ops.append(("v_cmp_nge_f32 vcc, s%d, v%d" % (sTHR, vPSA), 4))
        return ops

    def sm_schedule(ops, base):
        room = [max(opt.slotcap - base[p], 4) for p in range(15)]
        total = sum(c for _, c in ops)
        scale_ = total / float(sum(room))
        slots = [[] for _ in range(16)]
        i, cum_room, cum = 0, 0.0, 0
        for p in range(15):
            cum_room += room[p] * scale_
            while i < len(ops) and (cum + ops[i][1] / 2.0 <= cum_room or p == 14):
                slots[p].append(ops[i][0])
                cum += ops[i][1]
                i += 1
        return slots

    rare = []

    def period(t, tag, do_qk, do_sm, do_pv, c_zero=False, has_bar=True, next_qk=True, next_v=False):
        Sn, Pp = vS[(t + 1) & 1], vP[(t - 1) & 1]
        def want(pn):
            return (pn < 8 and do_qk) or (8 <= pn < 16 and do_pv) or (pn >= 16 and (next_qk or next_v))
        base = []
        for p in range(16):
            c = 8 + (opt.dscost * (2 if next_v and p + L >= 16 else frag_ops(p + L)) if want(p + L) else 0) + (4 if p % WS == 0 else 0) + (4 if p == 16 - L else 0)
            base.append(c)
        sm = sm_schedule(sm_ops(t), base) if do_sm and not opt.x_nosm else [[] for _ in range(16)]
        lab = "L_RARE_%s" % tag
        check = do_sm and not opt.x_fast and not opt.x_norare and not opt.x_nosm
        last = []
        for p in range(16):
            mf = None
            if p < 8 and do_qk:
                c = "0" if (p == 0 and c_zero) else (vr(vNM, 16) if p == 0 else vr(Sn, 16))
                mf = "v_mfma_f32_32x32x16_bf16 %s, %s, %s, %s" % (vr(Sn, 16), vr(vF + (p & 7) * 4, 4), vr(vQ + p * 4, 4), c)
            if p >= 8 and do_pv:
                u, db = (p - 8) >> 2, (p - 8) & 3
                mf = "v_mfma_f32_32x32x16_bf16 %s, %s, %s, %s" % (vr(vO + db * 16, 16), vr(vF + (p & 7) * 4, 4), vr(Pp + u * 4, 4), vr(vO + db * 16, 16))
            if p == 16 - L and has_bar:
                bar("C", "A%s" % tag, opt.x_nobar)
            if p == 15 and check and opt.brpos == 1:
                a("s_cbranch_vccnz %s" % lab)
            n0 = len(a.lines)
            if mf:
                wait_frags(p)
                if not opt.x_nomfma:
                    a(mf)
            if opt.x_fast and do_pv and p in (11, 15):
                u = 0 if p == 11 else 1
                a("v_mfma_f32_16x16x32_bf16 v[228:231], v[24:27], %s, v[228:231]" % vr(Pp + u * 4, 4))
            if want(p + L):
                if next_v and p + L >= 16:
                    last_v_read(p + L - 16)
                else:
                    frag_read(t, p + L)
            if p == 15:
                last = list(a.lines[n0:])
            for ins in sm[p]:
                if ins == "v_exp_pad":
                    continue
                prev = next(x for x in reversed(a.lines) if x.strip() and not x.strip().endswith(":")).strip()
                if prev.startswith("v_exp_f32") and not ins.startswith("v_exp") and prev.split()[1].rstrip(",") in [o.strip() for o in ins.split(None, 1)[1].split(",")[1:]]:
                    a("s_nop 0")
                a(ins)
        if do_sm and not opt.x_fast:
            if check:
                if opt.brpos == 0:
                    a("s_cbranch_vccnz %s" % lab)
                rare.append((lab, t, do_qk, last if opt.brpos == 1 else []))
                a.label(lab + "_BACK")
            a("v_add_f32 v%d, v%d, v%d" % (vLACC, vLACC, vPSA))

    def row_max(S, dst):
        a("v_max3_f32 v%d, v%d, v%d, v%d" % (dst, S, S + 1, S + 2))
        for r in range(3, 15, 2):
            a("v_max3_f32 v%d, v%d, v%d, v%d" % (dst, dst, S + r, S + r + 1))
        a("v_max_f32 v%d, v%d, v%d" % (dst, dst, S + 15))
        a("v_mov_b32 v%d, v%d" % (vTMP, dst))
        a("s_nop 1")
        a("v_permlane32_swap_b32 v%d, v%d" % (dst, vTMP))
        a("s_nop 1")
        a("v_max_f32 v%d, v%d, v%d" % (dst, dst, vTMP))

    def emit_rare(lab, t, fix_next, first):
        S, Sn, P = vS[t & 1], vS[(t + 1) & 1], vP[t & 1]
        d, f = vE + 4, vE + 5
        a.label(lab)
        for ins in first:
            a(ins)
        a("s_nop 15")
        row_max(S, d)
        a("v_max_f32 v%d, 0, v%d" % (d, d))
        a("v_exp_f32 v%d, -v%d" % (f, d))
        for r in range(16):
            a("v_sub_f32 v%d, v%d, v%d" % (vNM + r, vNM + r, d))
        for r in range(16):
            a("v_sub_f32 v%d, v%d, v%d" % (S + r, S + r, d))
        if fix_next:
            for r in range(16):
                a("v_sub_f32 v%d, v%d, v%d" % (Sn + r, Sn + r, d))
        for r in range(64):
            a("v_mul_f32 v%d, v%d, v%d" % (vO + r, vO + r, f))
        a("v_mul_f32 v%d, v%d, v%d" % (vLACC, vLACC, f))
        a("v_mov_b32 v%d, 0" % vPSA)
        for k in range(8):
            a("v_exp_f32 v%d, v%d" % (vE, S + 2 * k))
            a("v_exp_f32 v%d, v%d" % (vE + 1, S + 2 * k + 1))
            a("v_add_f32 v%d, v%d, v%d" % (vPSA, vPSA, vE))
            a("v_add_f32 v%d, v%d, v%d" % (vPSA, vPSA, vE + 1))
            a("v_cvt_pk_bf16_f32 v%d, v%d, v%d" % (P + k, vE, vE + 1))
        a("s_nop 1")
        a("s_branch %s_BACK" % lab)

    def a3_list(p):
        out = ["v_add_u32 v%d, 0x%x, v%d" % (vWOT[0], (RWO if opt.osched else RWO0)[p], vWOA),
               "v_xor_b32 v%d, 32, v%d" % (vWOT[1], vWOT[0])]
        for ks in range(4 if not opt.x_o_nods else 0):
            for nb in range(2):
                for jj in range(2):
                    out.append("ds_read_b64_tr_b16 %s, v%d offset:%d" % (vr(vA3[p & 1] + (ks * 2 + nb) * 4 + jj * 2, 2), vWOT[nb], ks * 8192 + jj * 1024))
        return out

    for p in range(L):
        frag_read(-1, p)
    a("s_waitcnt lgkmcnt(%d)" % dq.need({"Q"}))
    if opt.dump == "q":
        dump_regs(a, vQ, 32)
    period(-1, "m1", True, False, False, c_zero=True)
    a("s_nop 15")
    row_max(vS[0], vE + 4)
    for r in range(16):
        a("v_sub_f32 v%d, 0, v%d" % (vNM + r, vE + 4))
    for r in range(16):
        a("v_sub_f32 v%d, v%d, v%d" % (vS[0] + r, vS[0] + r, vE + 4))
    a("s_nop 1")
    period(0, "0", True, True, False)
    q_entry = list(dq.q)
    a("s_mov_b32 s%d, 0" % sPASS)
    a(".p2align %d" % opt.loop_align)
    for _ in range(opt.loop_pad):
        a("s_nop 0")
    a.label("L_ATT_LOOP")
    n0 = len(bars["C"])
    for t in range(1, 9):
        period(t, "L%d" % t, True, True, True)
        if t == 6:
            q_exit = list(dq.q)
            a("s_cmp_eq_u32 s%d, 3" % sPASS)
            a("s_cbranch_scc1 L_ATT_EXIT")
    assert dq.q == q_entry, (dq.q, q_entry)
    a("s_add_u32 s%d, s%d, 1" % (sPASS, sPASS))
    a("s_branch L_ATT_LOOP")
    del bars["C"][n0:]
    bars["C"] += ["A%d" % t for t in range(1, 31)]
    a.label("L_ATT_EXIT")
    dq.q = list(q_exit)
    lsum = ["v_mov_b32 v%d, v%d" % (vTMP, vLACC), "s_nop 1", "v_permlane32_swap_b32 v%d, v%d" % (vLACC, vTMP), "s_nop 1",
            "v_add_f32 v%d, v%d, v%d" % (vLACC, vLACC, vTMP), "v_rcp_f32 v%d, v%d" % (vLACC, vLACC)]
    if opt.shortend:
        period(31, "31", False, True, True, next_qk=False, next_v=True)
        Pl = vP[31 & 1]
        for p in range(8):
            wait_frags(p)
            a("v_mfma_f32_32x32x16_bf16 %s, %s, %s, %s" % (vr(vO + (p & 3) * 16, 16), vr(vF + p * 4, 4), vr(Pl + (p >> 2) * 4, 4), vr(vO + (p & 3) * 16, 16)))
            if p + L < 8:
                last_v_read(p + L)
            if p == 2:
                for ins in lsum:
                    a(ins)
        lsum = []
    else:
        period(31, "31", False, True, True, next_qk=False)
        period(32, "32", False, False, True, has_bar=False, next_qk=False)
    bar("C", "E00")
    stamp(a, 3)
    for ins in a3_list(0):
        a(ins)
    for ins in lsum:
        a(ins)
    a("s_nop 7")
    for db in range(4):
        for rr in range(4):
            b = vO + db * 16 + rr * 4
            a("v_pk_mul_f32 %s, %s, %s op_sel_hi:[1,0]" % (vr(b, 2), vr(b, 2), vr(vLACC, 2)))
            a("v_pk_mul_f32 %s, %s, %s op_sel_hi:[1,0]" % (vr(b + 2, 2), vr(b + 2, 2), vr(vLACC, 2)))
            a("v_cvt_pk_bf16_f32 v%d, v%d, v%d" % (b, b, b + 1))
            a("v_cvt_pk_bf16_f32 v%d, v%d, v%d" % (b + 1, b + 2, b + 3))
            a("ds_write_b64 v%d, %s offset:%d" % (vOW, vr(b, 2), db * 64 + rr * 16))
    if opt.prio:
        a("s_setprio 0")
    a("s_waitcnt lgkmcnt(0)")
    a("s_branch L_E0")

    a.label("L_TRANS")
    if not opt.x_nobar:
        a("s_mov_b32 s%d, 33" % sPASS)
        a.label("L_IDLE3_LOOP")
        a("s_barrier")
        a("s_sub_u32 s%d, s%d, 1" % (sPASS, sPASS))
        a("s_cmp_lg_u32 s%d, 0" % sPASS)
        a("s_cbranch_scc1 L_IDLE3_LOOP")
    bars["I"] += ["Am1"] + ["A%d" % t for t in range(0, 32)]
    bar("I", "E00")
    for ins in a3_list(0):
        a(ins)
    a("s_waitcnt lgkmcnt(0)")

    a.label("L_E0")
    if opt.oprio:
        a("s_setprio %d" % opt.oprio)
    bar("CI", "E0")
    stamp(a, 4)

    def mf3_list(p):
        if opt.x_o_nomfma:
            return []
        out = []
        kh = p & 1
        for ks in range(4):
            for nb in range(2):
                for qb in range(3):
                    acc = vACC3[(p >> 1) & 1] + (qb * 2 + nb) * 4
                    c = "0" if (ks == 0 and kh == 0) else vr(acc, 4)
                    out.append("v_mfma_f32_16x16x32_bf16 %s, %s, %s, %s" % (vr(acc, 4), vr(vA3[p & 1] + (ks * 2 + nb) * 4, 4), vr(vB3 + ((kh * 4 + ks) * 3 + qb) * 4, 4), c))
        return out
    def pk_base(c, qb):
        if c < min(opt.latest, 2):
            return 8 + c * 12 + qb * 4
        return vACC3[c & 1] + qb * 8
    def cvt3_list(c):
        if opt.x_o_nost:
            return []
        out = []
        for qb in range(3):
            acc = vACC3[c & 1] + qb * 8
            for d in range(4):
                out.append("v_cvt_pk_bf16_f32 v%d, v%d, v%d" % (pk_base(c, qb) + d, acc + 2 * d, acc + 2 * d + 1))
        return out
    def st3_list(c):
        if opt.x_o_nost:
            return []
        out = ["s_add_u32 s%d, s%d, %d" % (sT0, sB, c),
               "s_and_b32 s%d, s%d, 3" % (sT0, sT0),
               "s_mul_i32 s%d, s%d, %d" % (sT0, sT0, 4 * 16 * 3072),
               "s_add_u32 s%d, s%d, s%d" % (sT0, sT0, sPOFF)]
        sts = ["buffer_store_dwordx4 %s, v%d, s[%d:%d], s%d offen offset:%d %s" % (vr(pk_base(c, qb), 4), vST, SRD_WS, SRD_WS + 3, sT0, qb * 1024, part_aux) for qb in range(3)]
        return out, sts
    def b3_list(kh):
        out = []
        for ks in range(4 * kh, 4 * kh + 4):
            for qb in range(3):
                out.append("ds_read_b128 %s, v%d offset:%d" % (vr(vB3 + (ks * 3 + qb) * 4, 4), vOR, (48 * kh + 16 * qb) * MROW + (ks & 3) * 64))
        return out
    if opt.osched == 0:
        for ins in b3_list(0):
            a(ins)
        a("s_waitcnt lgkmcnt(0)")
        for p in range(8):
            if p <= 6:
                bar("CI", "P%d" % (p + 1))
            if p in (0, 3, 6):
                stamp(a, 14 + p // 3)
            fill = []
            if p == 0:
                fill += b3_list(1)
            if p <= 6:
                fill += a3_list(p + 1)
            if p >= 2 and p % 2 == 0 and not opt.x_o_nost:
                c = p // 2 - 1
                fill += cvt3_list(c)
                if c >= opt.latest:
                    fill += st3_list(c)[0] + st3_list(c)[1]
            if p == 7 and not opt.x_o_nost:
                for c in range(min(opt.latest, 3)):
                    fill += st3_list(c)[0] + st3_list(c)[1]
            interleave(a, mf3_list(p), fill)
            if p <= 6:
                a("s_waitcnt lgkmcnt(0)")
        a("s_nop 7")
        if not opt.x_o_nost:
            for ins in cvt3_list(3) + st3_list(3)[0] + st3_list(3)[1]:
                a(ins)
    else:
        for ins in b3_list(0) + b3_list(1):
            a(ins)
        a("s_waitcnt lgkmcnt(0)")
        if opt.dump == "o":
            dump_regs(a, vB3, 96)
        pre_store = {3: 0, 5: 1}
        for p in range(8):
            if p in pre_store and not opt.x_o_nost:
                for ins in st3_list(pre_store[p])[0]:
                    a(ins)
            if p in (0, 3, 5, 6):
                bar("CI", "P%d" % (p + 1))
            if p in pre_store and not opt.x_o_nost:
                for ins in st3_list(pre_store[p])[1]:
                    a(ins)
            if p in (0, 3, 6):
                stamp(a, 14 + p // 3)
            fill = []
            if p <= 6:
                fill += a3_list(p + 1)
            if p in (2, 4):
                fill += cvt3_list(p // 2 - 1)
            if p == 6 and not opt.x_o_nost:
                fill += cvt3_list(2) + st3_list(2)[0] + st3_list(2)[1]
            interleave(a, mf3_list(p), fill)
            if p <= 6:
                a("s_waitcnt lgkmcnt(0)")
        a("s_nop 7")
        if not opt.x_o_nost:
            for ins in cvt3_list(3) + st3_list(3)[0] + st3_list(3)[1]:
                a(ins)
    stamp(a, 5)
    if opt.fused_tail:
        srd(a, SRD_OUT, P_OUT, 8 * 48 * 1024 * 2)
        a("s_lshl_b32 s%d, s%d, 4" % (sKS, sGRP))
        a("s_add_u32 s%d, s%d, s%d" % (sKS, sKS, sHP))
        a("s_mul_i32 s%d, s%d, %d" % (sKS, sKS, 16 * 3072))
        reduce_pre(a, sW, sKS, sGRP, sHP, 0)
        if opt.twostage:
            a("s_waitcnt vmcnt(6)")
            bar("CI", "Fa")
    a("s_waitcnt vmcnt(0)")
    stamp(a, 6)
    if opt.fused_tail:
        bar("CI", "F0")
        a("s_branch L_REDUCE")
    else:
        if opt.x_stretch:
            a("s_cmp_lg_u32 s%d, 0" % sW)
            a("s_cbranch_scc1 L_END")
            a("s_mul_i32 s%d, s%d, %d" % (sDBG, sDBG, opt.x_stretch))
            a.label("L_STRETCH")
            a("s_memrealtime s[%d:%d]" % (sSTAMP, sSTAMP + 1))
            a("s_waitcnt lgkmcnt(0)")
            a("s_sub_u32 s%d, s%d, s100" % (sSTAMP, sSTAMP))
            a("s_cmp_lt_u32 s%d, s%d" % (sSTAMP, sDBG))
            a("s_cbranch_scc1 L_STRETCH")
        a("s_branch L_END")

    a.label("L_LOADER")
    qL = Queue(63)
    t1, t2, t3, t4 = vT[0:4]
    a("s_sub_u32 s%d, s%d, 4" % (sJ, sW))
    a("s_lshl_b32 s%d, s%d, 9" % (sT0, sHP))
    srd(a, SRD_WQ, P_WQ, 4194304 - 15 * 512, sT0)
    a("s_lshl_b32 s%d, s%d, 16" % (sJ64K, sJ))
    a("v_lshrrev_b32 v%d, 5, v%d" % (t1, vL))
    a("v_and_b32 v%d, 31, v%d" % (t2, vL))
    a("v_lshlrev_b32 v%d, 1, v%d" % (t3, t1))
    a("v_xor_b32 v%d, v%d, v%d" % (t2, t2, t3))
    a("v_lshlrev_b32 v%d, 4, v%d" % (t2, t2))
    a("s_and_b32 s%d, s%d, 1" % (sT1, sJ))
    a("s_lshl_b32 s%d, s%d, 7" % (sT1, sT1))
    a("v_xor_b32 v%d, s%d, v%d" % (t2, sT1, t2))
    a("v_lshl_add_u32 v%d, v%d, 13, v%d" % (t2, t1, t2))
    for aa in range(4):
        c = 2 * aa * 8192 - aa * 1024
        if aa & 1:
            a("v_xor_b32 v%d, 64, v%d" % (vLW[aa], t2))
            a("v_add_u32 v%d, 0x%x, v%d" % (vLW[aa], c, vLW[aa]))
        else:
            a("v_add_u32 v%d, 0x%x, v%d" % (vLW[aa], c, t2))
    a("s_lshl_b32 s%d, s%d, 1" % (sKS, sB))
    a("s_lshl_b32 s%d, s%d, 12" % (sT5, sJ))

    def dma_w(e, slot=None, tag=None):
        step = e if not opt.korder else (2 * e if e < 8 else 2 * (e - 8) + 1)
        a("s_add_u32 s%d, s%d, %d" % (sT0, sKS, step))
        a("s_and_b32 s%d, s%d, 15" % (sT0, sT0))
        a("s_lshl_b32 s%d, s%d, 18" % (sT0, sT0))
        a("s_add_u32 m0, s%d, 0x%x" % (sT5, (e % NWS if slot is None else slot) * 16384))
        a("s_add_u32 s%d, s%d, s%d" % (sT0, sT0, sJ64K))
        if opt.x_q_nodma:
            return
        for aa in range(4):
            a("buffer_load_dwordx4 v%d, s[%d:%d], s%d offen offset:%d %s lds" % (vLW[aa], SRD_WQ, SRD_WQ + 3, sT0, aa * 1024, opt.w_aux))
        qL.issue(tag or "W%d" % e, 4)
    for e in range(opt.wfirst):
        dma_w(e)
    if opt.dum == 1:
        dma_w(8, NWS - 1, "DUM")
    def later_setup():
        a("s_lshl_b32 s%d, s%d, 3" % (sT0, sB))
        a("s_add_u32 s%d, s%d, s%d" % (sT0, sT0, sKVH))
        a("s_lshl_b32 s%d, s%d, 18" % (sT0, sT0))
        srd(a, SRD_K, P_K, 262144, sT0)
        srd(a, SRD_V, P_V, 262144, sT0)
        a("s_lshl_b32 s%d, s%d, 18" % (sT0, sHP))
        srd(a, SRD_WO, P_WO, 262144, sT0)
        a("s_lshl_b32 s%d, s%d, 11" % (sJ2K, sJ))
        if opt.rot:
            a("s_lshl_b32 s%d, s%d, 3" % (sROT, sB))
            a("s_add_u32 s%d, s%d, s%d" % (sROT, sROT, sKVH))
            a("s_mul_i32 s%d, s%d, %d" % (sROT, sROT, opt.rot))
            if opt.rotbr:
                a("s_mul_i32 s%d, s%d, %d" % (sT1, sBR, opt.rotbr))
                a("s_add_u32 s%d, s%d, s%d" % (sROT, sROT, sT1))
            a("s_and_b32 s%d, s%d, 31" % (sROT, sROT))
            a("s_lshl_b32 s%d, s%d, 13" % (sROT, sROT))
        a("v_lshrrev_b32 v%d, 4, v%d" % (t1, vL))
        a("v_and_b32 v%d, 15, v%d" % (t2, vL))
        a("v_xor_b32 v%d, v%d, v%d" % (t3, t2, t1))
        a("s_and_b32 s%d, s%d, 1" % (sT1, sJ))
        a("s_lshl_b32 s%d, s%d, 3" % (sT1, sT1))
        a("v_xor_b32 v%d, s%d, v%d" % (t3, sT1, t3))
        a("v_lshlrev_b32 v%d, 4, v%d" % (t3, t3))
        a("v_lshl_add_u32 v%d, v%d, 8, v%d" % (vLK[0], t1, t3))
        a("v_xor_b32 v%d, 64, v%d" % (vLK[1], vLK[0]))
        a("v_lshlrev_b32 v%d, 2, v%d" % (t3, t1))
        a("v_xor_b32 v%d, v%d, v%d" % (t3, t2, t3))
        a("v_lshlrev_b32 v%d, 4, v%d" % (t3, t3))
        a("v_lshl_add_u32 v%d, v%d, 8, v%d" % (vLV, t1, t3))
        a("v_lshrrev_b32 v%d, 4, v%d" % (t1, vL))
        a("v_and_b32 v%d, 15, v%d" % (t2, vL))
        a("v_lshlrev_b32 v%d, 1, v%d" % (t3, t1))
        a("v_xor_b32 v%d, v%d, v%d" % (t2, t2, t3))
        a("v_lshlrev_b32 v%d, 4, v%d" % (t2, t2))
        a("v_lshl_add_u32 v%d, v%d, 10, v%d" % (t2, t1, t2))
        for aa in range(4):
            if aa >> 1:
                a("v_xor_b32 v%d, 128, v%d" % (vLWO[aa], t2))
                a("v_add_u32 v%d, %d, v%d" % (vLWO[aa], 3072 * aa, vLWO[aa]))
            else:
                a("v_add_u32 v%d, %d, v%d" % (vLWO[aa], 3072 * aa, t2))


    if not opt.defer:
        later_setup()

    def lwait(tags):
        n = qL.need(set(tags))
        if n is not None:
            a("s_waitcnt vmcnt(%d)" % n)
    if opt.wfirst < NWS and not opt.wramp:
        if opt.stamps == 5:
            stamp(a, 20)
        lwait(["W0"])
        if opt.stamps == 5:
            stamp(a, 21)
        if opt.dum == 2:
            dma_w(8, NWS - 1, "DUM")
        for e in range(opt.wfirst, NWS):
            dma_w(e)

    def dma_tile(kind, t):
        if opt.x_kv_nodma:
            return
        base = K_BASE + kslot(t) * 8192 if kind == "K" else V_BASE + (t % 8) * 8192
        s_, v_ = (SRD_K, vLK) if kind == "K" else (SRD_V, [vLV, vLV])
        if opt.rot:
            a("s_add_u32 s%d, s%d, 0x%x" % (sOFF, sROT, t * 8192))
            a("s_and_b32 s%d, s%d, 0x3ffff" % (sOFF, sOFF))
            a("s_add_u32 m0, s%d, 0x%x" % (sJ2K, base))
            a("s_add_u32 s%d, s%d, s%d" % (sOFF, sOFF, sJ2K))
        else:
            a("s_add_u32 m0, s%d, 0x%x" % (sJ2K, base))
            a("s_add_u32 s%d, s%d, 0x%x" % (sOFF, sJ2K, t * 8192))
        for aa in range(2):
            a("buffer_load_dwordx4 v%d, s[%d:%d], s%d offen offset:%d %s lds" % (v_[aa], s_, s_ + 3, sOFF, aa * 1024, (opt.k_aux if kind == "K" else opt.v_aux) if opt.k_aux != "same" else opt.kv_aux))
        qL.issue("%s%d" % (kind, t), 2)
    def dma_wo(p, nl=4):
        if opt.x_o_nodma:
            return
        R = (RWO if opt.osched else RWO0)[p]
        if nl == 2:
            a("s_cmp_ge_u32 s%d, 2" % sJ)
            a("s_cbranch_scc1 L_WO_SKIP%d" % p)
        a("s_add_u32 s%d, s%d, %d" % (sT0, sB, p >> 1))
        a("s_and_b32 s%d, s%d, 3" % (sT0, sT0))
        a("s_lshl_b32 s%d, s%d, 8" % (sT0, sT0))
        a("s_lshl_b32 s%d, s%d, 3" % (sT1, sT5))
        a("s_add_u32 s%d, s%d, s%d" % (sT0, sT0, sT1))
        if p & 1:
            a("s_add_u32 s%d, s%d, 0x20000" % (sT0, sT0))
        a("s_lshl_b32 s%d, s%d, 1" % (sT1, sT5))
        for sh in range(4 // nl):
            for hf in range(2):
                a("s_add_u32 m0, s%d, 0x%x" % (sT1, R + sh * 16384 + hf * 4096))
                if hf:
                    a("s_add_u32 s%d, s%d, 16384" % (sT0, sT0))
                elif sh:
                    a("s_add_u32 s%d, s%d, %d" % (sT0, sT0, 65536 - 16384))
                else:
                    a("s_nop 0")
                for aa in range(4):
                    a("buffer_load_dwordx4 v%d, s[%d:%d], s%d offen offset:%d %s lds" % (vLWO[aa], SRD_WO, SRD_WO + 3, sT0, aa * 1024, opt.wo_aux))
        if nl == 2:
            a.label("L_WO_SKIP%d" % p)
        qL.issue("WO%d" % p, 8 * 4 // nl)
    fill = {10: [("K", 0)], 11: [("K", 1)], 12: [("V", 0)], 13: [("K", 2)], 14: [("V", 1)], 15: [("K", 3)], 16: [("V", 2)]}
    nk, nv = 4, 3
    nw = opt.wfirst
    for e in range(17):
        if e < 16:
            lwait(["W%d" % e])
        if opt.lstamps and e >= 10:
            stamp(a, 17 + e - 10)
        bar("L", "Q%d" % e)
        if opt.wramp:
            for _ in range(2):
                if nw <= 15 and nw <= (e + NWS - 1 if e >= 1 else NWS - 1):
                    dma_w(nw); nw += 1
        elif e >= 1 and e + NWS - 1 <= 15:
            dma_w(e + NWS - 1)
        if e == 2 and opt.defer:
            later_setup()
        for kind, t in fill.get(e, []):
            dma_tile(kind, t)
        if opt.lstamps and e >= 10:
            stamp(a, 24 + e - 10)
    lwait(["K0"])
    bar("L", "Q17")
    stamp(a, 2)
    for _ in range(2):
        if nk <= opt.klead - 2:
            dma_tile("K", nk); nk += 1
        if nv <= opt.vlead - 2 or nv <= 0:
            dma_tile("V", nv); nv += 1
    if opt.fused_tail:
        srd(a, SRD_WS, P_WS, WS_BYTES)
        srd(a, SRD_DBG, P_DBG, 256)
        a("s_lshl_b32 s%d, s%d, 4" % (sT0, sGRP))
        a("v_mov_b32 v2, s%d" % sT0)
    wo_at = [int(x) for x in opt.wo_at.split(",")]
    assert wo_at[0] >= 26 and wo_at[1] >= 29 and wo_at[2] >= 30
    for t in range(-1, 32):
        lwait(["K%d" % (t + 2), "V%d" % t])
        bar("L", "A%s" % ("m1" if t < 0 else str(t)), opt.x_nobar)
        for _ in range(2):
            if nk <= 31 and nk <= t + opt.klead:
                dma_tile("K", nk); nk += 1
            if nv <= 31 and nv <= t + opt.vlead and (nv <= 5 or nv <= t + 6):
                dma_tile("V", nv); nv += 1
        if opt.fused_tail and t == 2:
            a("buffer_load_dword v%d, v2, s[%d:%d], 0 offen sc1" % (vFLAG, SRD_DBG, SRD_DBG + 3))
            qL.issue("FLAG", 1)
        if opt.fused_tail and t == 14:
            lwait(["FLAG"])
            a("s_mov_b32 s%d, 0" % sT4)
            a.label("L_FLAG_CHECK")
            a("v_readfirstlane_b32 s%d, v%d" % (sT1, vFLAG))
            a("s_add_u32 s%d, s%d, 1" % (sT4, sT4))
            a("s_cmp_lg_u32 s%d, 0" % sT1)
            a("s_cbranch_scc1 L_FLAG_OK")
            a("s_cmp_ge_u32 s%d, 0x%x" % (sT4, opt.spin_limit))
            a("s_cbranch_scc1 L_FLAG_OK")
            a("s_sleep 8")
            a("buffer_load_dword v%d, v2, s[%d:%d], 0 offen sc1" % (vFLAG, SRD_DBG, SRD_DBG + 3))
            a("s_waitcnt vmcnt(0)")
            a("s_branch L_FLAG_CHECK")
            a.label("L_FLAG_OK")
        for p_, t_ in enumerate(wo_at):
            if t == t_:
                dma_wo(p_)
    assert nk == 32 and nv == 32
    lwait(["WO0"])
    bar("L", "E00")
    for p_, t_ in enumerate(wo_at):
        if t_ == 32:
            dma_wo(p_)
    bar("L", "E0")
    stamp(a, 4)
    if opt.osched == 0:
        for p in range(1, 8):
            lwait(["WO%d" % p])
            bar("L", "P%d" % p)
            if p + 3 <= 7:
                dma_wo(p + 3, opt.onl)
    else:
        lwait(["WO1", "WO2", "WO3"])
        bar("L", "P1")
        dma_wo(4)
        dma_wo(5)
        lwait(["WO4", "WO5"])
        bar("L", "P4")
        dma_wo(6)
        dma_wo(7)
        lwait(["WO6"])
        bar("L", "P6")
        lwait(["WO7"])
        bar("L", "P7")
    stamp(a, 6)
    if opt.fused_tail:
        srd(a, SRD_OUT, P_OUT, 8 * 48 * 1024 * 2)
        a("s_lshl_b32 s%d, s%d, 4" % (sKS, sGRP))
        a("s_add_u32 s%d, s%d, s%d" % (sKS, sKS, sHP))
        a("s_mul_i32 s%d, s%d, %d" % (sKS, sKS, 16 * 3072))
        reduce_pre(a, sW, sKS, sGRP, sHP, 0)
        a("s_lshl_b32 s%d, s%d, 8" % (sT0, sGRP))
        a("s_add_u32 s%d, s%d, 0x%x" % (sT0, sT0, WS_CNT))
        a("v_mov_b32 v5, s%d" % sT0)
        a("s_add_u32 s%d, s%d, 128" % (sT0, sT0))
        a("v_mov_b32 v2, s%d" % sT0)
        a("v_mov_b32 v3, 1")
        a("v_mov_b32 v6, 1")
        if opt.twostage:
            bar("L", "Fa")
            a("s_cmp_lg_u32 s%d, 4" % sW)
            a("s_cbranch_scc1 L_NOSIG_A")
            a("s_mov_b64 s[%d:%d], exec" % (sT2, sT3))
            a("s_mov_b64 exec, 1")
            a("buffer_atomic_add v6, v5, s[%d:%d], 0 offen sc1" % (SRD_WS, SRD_WS + 3))
            a("s_mov_b64 exec, s[%d:%d]" % (sT2, sT3))
            a.label("L_NOSIG_A")
        bar("L", "F0")
        a("s_cmp_lg_u32 s%d, 4" % sW)
        a("s_cbranch_scc1 L_REDUCE")
        a("s_mov_b64 s[%d:%d], exec" % (sT2, sT3))
        a("s_mov_b64 exec, 1")
        a("buffer_atomic_add v3, v2, s[%d:%d], 0 offen sc0 sc1" % (SRD_WS, SRD_WS + 3))
        a("s_mov_b32 s%d, 0" % sT4)
        if opt.twostage:
            a("s_lshr_b32 s%d, s%d, 2" % (sT0, sHP))
            a("s_sub_u32 s%d, s%d, s%d" % (sT0, sT0, sB))
            a("s_and_b32 s%d, s%d, 3" % (sT0, sT0))
            a("s_cmp_ge_u32 s%d, 2" % sT0)
            a("s_cbranch_scc1 L_LATE_SLICE")
            a("v_mov_b32 v2, v5")
            a("s_branch L_POLL_START")
            a.label("L_LATE_SLICE")
        a("s_waitcnt vmcnt(0)")
        a("v_readfirstlane_b32 s%d, v3" % sT1)
        a("s_cmp_ge_u32 s%d, 15" % sT1)
        a("s_cbranch_scc1 L_POLL_DONE")
        a.label("L_POLL_START")
        for i in range(opt.npoll - 1):
            a("buffer_load_dword v%d, v2, s[%d:%d], 0 offen sc1" % (52 + i, SRD_WS, SRD_WS + 3))
            a("s_sleep %d" % opt.sleep)
        a.label("L_POLL")
        for i in range(opt.npoll):
            a("buffer_load_dword v%d, v2, s[%d:%d], 0 offen sc1" % (52 + (i + opt.npoll - 1) % opt.npoll, SRD_WS, SRD_WS + 3))
            a("s_add_u32 s%d, s%d, 1" % (sT4, sT4))
            a("s_waitcnt vmcnt(%d)" % (opt.npoll - 1))
            a("v_readfirstlane_b32 s%d, v%d" % (sT1, 52 + i))
            a("s_cmp_ge_u32 s%d, 16" % sT1)
            a("s_cbranch_scc1 L_POLL_DONE")
            if opt.sleep:
                a("s_sleep %d" % opt.sleep)
        a("s_cmp_lt_u32 s%d, 0x%x" % (sT4, opt.spin_limit))
        a("s_cbranch_scc1 L_POLL")
        a.label("L_POLL_DONE")
        a("s_mov_b64 exec, s[%d:%d]" % (sT2, sT3))
        a.label("L_REDUCE")
        a("s_barrier")
        stamp(a, 7)
        a("s_cmp_ge_u32 s%d, 6" % sW)
        a("s_cbranch_scc1 L_RED_IDLE")
        reduce_body(a, SRD_WS, SRD_OUT, "sc1")
        stamp(a, 8)
        if opt.x_stretch:
            a("s_cmp_lg_u32 s%d, 0" % sW)
            a("s_cbranch_scc1 L_END")
            a("s_mul_i32 s%d, s%d, %d" % (sDBG, sDBG, opt.x_stretch))
            a.label("L_STRETCH")
            a("s_memrealtime s[%d:%d]" % (sSTAMP, sSTAMP + 1))
            a("s_waitcnt lgkmcnt(0)")
            a("s_sub_u32 s%d, s%d, s100" % (sSTAMP, sSTAMP))
            a("s_cmp_lt_u32 s%d, s%d" % (sSTAMP, sDBG))
            a("s_cbranch_scc1 L_STRETCH")
        a("s_branch L_END")
        a.label("L_RED_IDLE")
        a("s_barrier")

    a.label("L_END")
    a("s_endpgm")
    for lab, t, fix, first in rare:
        emit_rare(lab, t, fix, first)

    assert bars["C"] == bars["I"] == bars["L"], "barrier sequences differ:\n%s\n%s\n%s" % (bars["C"], bars["I"], bars["L"])


def gen_reduce(a):
    name = "attn_reduce_kernel"
    a(".p2align 8")
    a(".globl %s" % name)
    a(".type %s,@function" % name)
    a.label(name)
    if opt.stamps:
        a("s_memrealtime s[100:101]")
    a("s_cmp_ge_u32 s2, 256")
    a("s_cbranch_scc1 R_END")
    a("s_load_dwordx2 s[4:5], s[0:1], 80")
    a("s_load_dwordx2 s[6:7], s[0:1], 96")
    a("v_lshrrev_b32 v1, 6, v0")
    a("v_and_b32 v0, 63, v0")
    a("v_readfirstlane_b32 s3, v1")
    a("s_mul_i32 s16, s2, %d" % (16 * 3072))
    a("s_lshr_b32 s18, s2, 4")
    a("s_and_b32 s19, s2, 15")
    a("s_waitcnt lgkmcnt(0)")
    srd(a, 8, 6, WS_PART_BYTES)
    srd(a, 12, 4, 8 * 48 * 1024 * 2)
    reduce_pre(a, 3, 16, 18, 19, 0)
    reduce_body(a, 8, 12, "")
    a.label("R_END")
    a("s_endpgm")
    return name


VOP3_ONLY = ("v_mfma", "v_cvt_pk_bf16_f32", "v_max3", "v_lshl_add_u32", "v_bfe_u32", "v_dot2_f32_bf16", "v_pk_", "v_mul_lo", "v_add3",
             "v_writelane", "v_readlane", "v_and_or", "v_perm_b32", "v_lshl_or")
MEM = ("ds_", "buffer_", "global_", "s_load", "s_memtime", "s_memrealtime")
INLINE_F = ("0.5", "-0.5", "1.0", "-1.0", "2.0", "-2.0", "4.0", "-4.0")


def has_literal(ops):
    for o in ops:
        o = o.strip()
        if re.fullmatch(r"[A-Z][A-Z_]+", o):
            return True
        if re.fullmatch(r"-?(0x[0-9a-fA-F]+|\d+)", o):
            v = int(o, 0)
            if not -16 <= v <= 64:
                return True
    return False


def ins_size(ln):
    op, _, rest = ln.partition(" ")
    ops = rest.split(",")
    if op.startswith(MEM):
        return 8
    if op.startswith(("s_waitcnt", "s_barrier", "s_nop", "s_branch", "s_cbranch", "s_setprio", "s_endpgm", "s_sleep")):
        return 4
    if op.startswith("v_"):
        if op.startswith(VOP3_ONLY) or op.endswith("_e64") or re.search(r"[ ,]-v\d|abs\(", " " + rest):
            return 8
        return 8 if has_literal(ops) else 4
    return 8 if has_literal(ops) else 4


def widenable(ln):
    op, _, rest = ln.partition(" ")
    return op.startswith("v_") and ins_size(ln) == 4 and not op.startswith(("v_readfirstlane", "v_permlane", "v_nop")) and not op.endswith("_e32")


def align_pass(lines):
    out = list(lines)
    off, run = 0, []
    fixed = missed = 0
    for i, ln in enumerate(out):
        t = ln.strip()
        if not t or t[0] == ";":
            continue
        if t.endswith(":"):
            continue
        if t.startswith(".p2align"):
            n = 1 << int(t.split()[1].rstrip(","))
            off = (off + n - 1) // n * n
            run = []
            continue
        if t[0] == ".":
            continue
        sz = ins_size(t)
        if sz == 8:
            if off % 8 == 4:
                cand = [j for j in run if widenable(out[j].strip())]
                if cand:
                    j = cand[-1]
                    op, _, rest = out[j].strip().partition(" ")
                    out[j] = "    %s_e64 %s" % (op, rest)
                    off += 4
                    fixed += 1
                else:
                    missed += 1
            run = []
        else:
            run.append(i)
        off += sz
    return out, fixed, missed


def kd(name, vgpr, sgpr):
    acc = (vgpr + 3) // 4 * 4
    return """.p2align 6
.amdhsa_kernel %s
  .amdhsa_next_free_vgpr %d
  .amdhsa_next_free_sgpr %d
  .amdhsa_accum_offset %d
  .amdhsa_group_segment_fixed_size 0
  .amdhsa_kernarg_size 104
  .amdhsa_user_sgpr_count 2
  .amdhsa_user_sgpr_kernarg_segment_ptr 1
  .amdhsa_system_sgpr_workgroup_id_x 1
.end_amdhsa_kernel
""" % (name, vgpr, sgpr, acc)


def build():
    hdr = open("cdna_kernels/%s.s.ref" % NAME).read().split("\n")
    head = [ln for ln in hdr if ln.startswith(";") and "@launch" not in ln][:14]
    a = Prog()
    main = "attn_main_kernel" if multi() else NAME + "_kernel"
    if multi():
        head.append("; @launch kernel=attn_main_kernel grid=(256,1,1) block=(512,1,1) lds=%d" % LDS_BYTES)
        head.append("; @launch kernel=attn_reduce_kernel grid=(256,1,1) block=(384,1,1) lds=6144")
    else:
        head.append("; @launch grid=(256,1,1) block=(512,1,1) lds=%d" % LDS_BYTES)
    a('.amdgcn_target "amdgcn-amd-amdhsa--gfx950"')
    a(".text")
    a(".globl %s" % main)
    a(".p2align 8")
    a(".type %s,@function" % main)
    gen_main(a, main)
    kds = kd(main, NVGPR, NSGPR)
    if multi():
        kds += kd(gen_reduce(a), 56, 80)
    body = a.text()
    if opt.align:
        lines, fixed, missed = align_pass(body.split("\n"))
        body = "\n".join(lines)
        print("alignment pass: widened %d, unfixable %d" % (fixed, missed))
    return "\n".join(head) + "\n" + body + '.section .rodata,"a"\n' + kds


if __name__ == "__main__":
    out = sys.argv[1] if len(sys.argv) > 1 else "cdna_kernels/%s.s" % NAME
    for kv in sys.argv[2:]:
        k, v = kv.split("=", 1)
        cur = getattr(opt, k)
        if isinstance(cur, bool):
            v = v in ("1", "True", "true")
        elif isinstance(cur, int):
            v = int(v)
        elif v == "None":
            v = None
        setattr(opt, k, v)
    s = build()
    open(out, "w").write(s)
    print("wrote", out, len(s), "bytes,", s.count("\n"), "lines")
```

```python
import sys, math, struct, re

NAME = "concat_heads__gqa_block_cached__gqa_block_cached__near_ridge"


class Opt:
    fused_tail = True
    kv_aux = "nt"
    w_aux = ""
    dump = None
    L = 6
    waitstep = 4
    thr_log2 = 12
    stamps = 0
    sumop = "add"
    prio = 0
    sleep = 2
    persrc = False
    halfbar = False
    rotbr = 16
    rot = 1
    shortend = True
    twostage = True
    k_aux = 'same'
    v_aux = ''
    accmode = 1
    defer = True
    loop_align = 3
    loop_pad = 0
    wramp = 1
    latest = 0
    korder = 0
    dum = 0
    npoll = 1
    brpos = 0
    waitphase = 0
    x_fast = False
    oprio = 0
    osched = 0
    onl = 4
    wo_at = '26,29,30,31'
    wo_aux = ''
    pf_tiles = 0
    pf_first = 0
    pf_aux = ''
    wosched = 0
    wfirst = 3
    mtrick = True
    klead = 7
    vlead = 5
    spin_limit = 1 << 20
    lstamps = False
    x_stretch = 0
    x_mark = 'end'
    codepf = False
    codepf_n = 3
    dscost = 8
    slotcap = 40
    align = True
    x_nobar = False
    x_nosm = False
    x_nods = False
    x_norare = False
    x_nomfma = False
    x_kv_nodma = False
    x_q_nomfma = False
    x_q_nods = False
    x_q_nodma = False
    x_o_nodma = False
    x_o_nomfma = False
    x_o_nost = False
    x_o_nods = False
    x_t_nords = False
    x_t_nowr = False


opt = Opt()

KB = 1024
K_BASE = 0
V_BASE = 64 * KB
M_BASE = 128 * KB
MROW = 272
X_BASE = 112 * KB
NWS = 7
LDS_BYTES = 160 * KB
RWO = [32 * KB, 64 * KB, 0, 128 * KB, 32 * KB, 96 * KB, 64 * KB, 0]
RWO0 = [32 * KB, 64 * KB, 0, 128 * KB, 32 * KB, 64 * KB, 0, 128 * KB]
O_BASE = 96 * KB
def kslot(t):
    return (t + 4) % 8

WS_PART_BYTES = 16 * 16 * 16 * 3072
WS_CNT = 14 << 20
WS_DUMP = 16 << 20
WS_STAMP = 48 << 20
WS_BYTES = 268435456

sW = 3
sB, sHP, sBR, sKVH = 4, 5, 6, 7
SRD_X, SRD_WQ, SRD_K, SRD_V, SRD_WO, SRD_WS = 8, 12, 16, 20, 24, 28
sT0, sT1, sT2, sT3, sT4, sT5 = 32, 33, 34, 35, 36, 37
sGRP = 38
sOFF = 39
sPASS = 40
sTHR = 41
sKS = 42
sPOFF = 43
sSTAMP = 44
sDBG = 46
SRD_OUT = 48
SRD_ST = 52
P_X, P_K, P_V, P_WQ = 56, 58, 60, 62
KA = 64
P_OUT, P_DBG, P_WS = KA + 20, KA + 22, KA + 24
P_WO = 90
sSTOFF = 92
sJ, sJ64K, sJ2K = 93, 94, 95
sROT = 70
SRD_DBG = 96
NSGPR = 102

vL = 0
vT = [1, 2, 3, 4, 5, 6, 7, 8, 9]
vKA = list(range(10, 18))
vVA = list(range(18, 22))
vWA = list(range(22, 26))
vXB, vXT = 26, 27
vXB1 = 248
vPSA, vPSB, vLACC, vTMP = 28, 29, 30, 31
vQ = 32
vO = 64
vS = [128, 144]
vNM = 160
vP = [176, 184]
vF = 192
vE = 224
vWA2 = [232, 233, 234, 235]
vQW = 236
vOW = 237
vOR = 240
vQR = 241
vVP = 242
vFLAG = 243
vWOA = 244
vWOT = [245, 246]
vST = 247
vDUM = 249
vSTA, vSTB = 250, 251
NVGPR = 252
def acc1(i):
    if opt.accmode == 0:
        return vO + 4 * i
    return vQ + 4 * i if i < 8 else vF + 4 * (i - 8)
vA1 = [128, 144]
vB1 = [160, 172]
vB3 = 32
vA3 = [128, 160]
vACC3 = [192, 216]
vLW = [10, 11, 12, 13]
vLK = [14, 15]
vLV = 16
vLWO = [18, 19, 20, 21]


def f32bits(x):
    return struct.unpack("<I", struct.pack("<f", x))[0]


def att_bar(t):
    return (not opt.halfbar) or t <= 0 or t == 31 or t % 2 == 0


class Prog:
    def __init__(self):
        self.lines = []
    def __call__(self, s):
        self.lines += s.split("\n")
    def label(self, s):
        self.lines.append(s + ":")
    def text(self):
        out = []
        for ln in self.lines:
            ln = ln.strip()
            if ln:
                out.append(ln if ln.endswith(":") or ln[0] in ".;" else "    " + ln)
        return "\n".join(out) + "\n"


def vr(b, n):
    return "v[%d:%d]" % (b, b + n - 1) if n > 1 else "v%d" % b


class Queue:
    def __init__(self, limit):
        self.q = []
        self.limit = limit
    def issue(self, tag, n=1):
        self.q += [tag] * n
        assert len(self.q) <= self.limit, (tag, len(self.q))
    def need(self, tags):
        last = -1
        for i, t in enumerate(self.q):
            if t in tags:
                last = i
        if last < 0:
            return None
        n = len(self.q) - 1 - last
        self.q = self.q[last + 1:]
        return n
    def drain(self):
        self.q = []


def srd(a, base, ptr, size, off_s=None):
    if off_s is None:
        a("s_mov_b32 s%d, s%d" % (base, ptr))
        a("s_mov_b32 s%d, s%d" % (base + 1, ptr + 1))
    else:
        a("s_add_u32 s%d, s%d, s%d" % (base, ptr, off_s))
        a("s_addc_u32 s%d, s%d, 0" % (base + 1, ptr + 1))
    a("s_mov_b32 s%d, 0x%x" % (base + 2, size))
    a("s_mov_b32 s%d, 0x20000" % (base + 3))


MARKS = {1: "x", 2: "q", 3: "att", 5: "gemm", 6: "drain", 7: "sync", 8: "end"}


def stamp(a, idx):
    if opt.x_stretch and MARKS.get(idx) == opt.x_mark:
        a("s_memrealtime s[%d:%d]" % (sSTAMP, sSTAMP + 1))
        a("s_waitcnt lgkmcnt(0)")
        a("s_sub_u32 s%d, s%d, s100" % (sDBG, sSTAMP))
    if not opt.stamps or (opt.stamps == 2 and idx not in (0, 8)) or (opt.stamps in (3, 4) and idx not in (0, 2, 3, 4, 5, 6, 7, 8)) or (opt.stamps == 5 and idx not in (0, 2, 8, 20, 21, 22, 23, 24, 25, 26, 27)):
        return
    a("s_memrealtime s[%d:%d]" % (sSTAMP, sSTAMP + 1))
    a("s_memtime s[%d:%d]" % (sDBG, sDBG + 1))
    a("s_waitcnt lgkmcnt(0)")
    a("v_mov_b32 v%d, s%d" % (vSTA, sSTAMP))
    a("v_mov_b32 v%d, s%d" % (vSTB, sSTOFF))
    a("buffer_store_dword v%d, v%d, s[%d:%d], 0 offen offset:%d" % (vSTA, vSTB, SRD_ST, SRD_ST + 3, idx * 4))
    a("v_mov_b32 v%d, s%d" % (vSTA, sDBG))
    a("buffer_store_dword v%d, v%d, s[%d:%d], 0 offen offset:%d" % (vSTA, vSTB, SRD_ST, SRD_ST + 3, 128 + idx * 4))


def fill_cost(ins):
    op = ins.split()[0]
    return 8 if op.startswith(("ds_", "buffer_", "v_exp", "v_rcp")) else 4


def interleave(a, mfmas, fill, gap=8):
    total = sum(fill_cost(f) for f in fill)
    per = max(gap, -(-total // max(len(mfmas), 1))) if mfmas else 0
    i, credit = 0, 0
    for m in mfmas:
        a(m)
        credit += per
        while i < len(fill) and fill_cost(fill[i]) <= credit:
            credit -= fill_cost(fill[i])
            a(fill[i]); i += 1
    while i < len(fill):
        a(fill[i]); i += 1


def multi():
    return not opt.fused_tail


def dump_regs(a, base, n):
    a("s_lshl_b32 s%d, s2, 3" % sT0)
    a("s_add_u32 s%d, s%d, s%d" % (sT0, sT0, sW))
    a("s_mul_i32 s%d, s%d, %d" % (sT0, sT0, 96 * 256))
    a("s_add_u32 s%d, s%d, 0x%x" % (sT0, sT0, WS_DUMP))
    a("v_lshlrev_b32 v%d, 4, v%d" % (vT[8], vL))
    for g in range(n // 4):
        a("buffer_store_dwordx4 %s, v%d, s[%d:%d], s%d offen" % (vr(base + g * 4, 4), vT[8], SRD_WS, SRD_WS + 3, sT0))
        a("s_add_u32 s%d, s%d, 1024" % (sT0, sT0))
    a("s_waitcnt vmcnt(0)")


RT = [64, 65, 66, 67, 68, 69]


def reduce_pre(a, s_w, s_wgoff, s_grp, s_dest, lds_base):
    t = RT
    a("s_cmp_ge_u32 s%d, 3" % s_w)
    a("s_cselect_b32 s%d, 1, 0" % t[3])
    a("s_mul_i32 s%d, s%d, 3" % (t[4], t[3]))
    a("s_sub_u32 s%d, s%d, s%d" % (t[4], s_w, t[4]))
    a("v_lshlrev_b32 v46, 4, v0")
    a("s_lshl_b32 s%d, s%d, 10" % (t[0], t[4]))
    a("s_add_u32 s%d, s%d, s%d" % (t[0], t[0], s_wgoff))
    a("s_mul_i32 s%d, s%d, %d" % (t[1], t[3], 8 * 3072))
    a("s_add_u32 s%d, s%d, s%d" % (t[0], t[0], t[1]))
    a("s_lshl_b32 s%d, s%d, 11" % (t[2], t[4]))
    a("s_add_u32 s%d, s%d, %d" % (t[2], t[2], lds_base))
    a("v_lshlrev_b32 v47, 5, v0")
    a("v_add_u32 v47, s%d, v47" % t[2])
    a("s_and_b32 s%d, s%d, 7" % (t[1], s_grp))
    a("s_lshr_b32 s%d, s%d, 3" % (t[2], s_grp))
    a("s_mul_i32 s%d, s%d, 48" % (t[1], t[1]))
    a("s_lshl_b32 s%d, s%d, 4" % (t[4], t[4]))
    a("s_add_u32 s%d, s%d, s%d" % (t[1], t[1], t[4]))
    a("s_lshl_b32 s%d, s%d, 11" % (t[1], t[1]))
    a("s_lshl_b32 s%d, s%d, 10" % (t[2], t[2]))
    a("s_add_u32 s%d, s%d, s%d" % (t[1], t[1], t[2]))
    a("s_lshl_b32 s%d, s%d, 6" % (t[2], s_dest))
    a("s_add_u32 s%d, s%d, s%d" % (t[1], t[1], t[2]))
    a("v_and_b32 v48, 15, v0")
    a("v_lshrrev_b32 v49, 4, v0")
    a("v_lshlrev_b32 v48, 11, v48")
    a("v_lshl_add_u32 v48, v49, 3, v48")
    a("s_mov_b32 s%d, 0xffff0000" % t[5])
    a("v_mov_b32 v50, 0x2000")


def reduce_body(a, srd_ws, srd_out, aux, dynamic=False):
    t = RT
    if dynamic:
        sPEND, sNEW, sSH, sA = 72, 73, 74, 75
        a("s_mov_b32 s%d, 0xff" % sPEND)
        a("s_lshl_b32 s%d, s%d, 3" % (sSH, t[3]))
        a.label("L_RED_WAIT")
        a("ds_read_b32 v51, v50")
        a("s_waitcnt lgkmcnt(0)")
        a("v_readfirstlane_b32 s%d, v51" % sNEW)
        a("s_nop 3")
        a("s_lshr_b32 s%d, s%d, s%d" % (sNEW, sNEW, sSH))
        a("s_and_b32 s%d, s%d, s%d" % (sNEW, sNEW, sPEND))
        a("s_cbranch_scc0 L_RED_WAIT")
        a("s_xor_b32 s%d, s%d, s%d" % (sPEND, sPEND, sNEW))
        for s in range(8):
            a("s_bitcmp1_b32 s%d, %d" % (sNEW, s))
            a("s_cbranch_scc0 L_RED_SKIP%d" % s)
            a("s_add_u32 s%d, s%d, %d" % (sA, t[0], s * 3072))
            a("buffer_load_dwordx4 %s, v46, s[%d:%d], s%d offen %s" % (vr(12 + 4 * s, 4), srd_ws, srd_ws + 3, sA, aux))
            a.label("L_RED_SKIP%d" % s)
        a("s_cmp_lg_u32 s%d, 0" % sPEND)
        a("s_cbranch_scc1 L_RED_WAIT")
        a("s_waitcnt vmcnt(0)")
    else:
        for s in range(8):
            a("buffer_load_dwordx4 %s, v46, s[%d:%d], s%d offen %s" % (vr(12 + 4 * s, 4), srd_ws, srd_ws + 3, t[0], aux))
            if s < 7:
                a("s_add_u32 s%d, s%d, 3072" % (t[0], t[0]))
    for s in range(8):
        if not dynamic:
            a("s_waitcnt vmcnt(%d)" % (7 - s))
        for d in range(4):
            x = 12 + 4 * s + d
            if s == 0:
                a("v_lshlrev_b32 v%d, 16, v%d" % (4 + 2 * d, x))
                a("v_and_b32 v%d, s%d, v%d" % (5 + 2 * d, t[5], x))
            else:
                a("v_lshlrev_b32 v44, 16, v%d" % x)
                a("v_and_b32 v45, s%d, v%d" % (t[5], x))
                a("v_add_f32 v%d, v%d, v44" % (4 + 2 * d, 4 + 2 * d))
                a("v_add_f32 v%d, v%d, v45" % (5 + 2 * d, 5 + 2 * d))
    a("s_cmp_eq_u32 s%d, 0" % t[3])
    a("s_cbranch_scc1 L_RED_LOW")
    a("ds_write_b128 v47, v[4:7]")
    a("ds_write_b128 v47, v[8:11] offset:16")
    a("s_waitcnt lgkmcnt(0)")
    a("s_barrier")
    a("s_branch L_RED_DONE")
    a.label("L_RED_LOW")
    a("s_barrier")
    a("ds_read_b128 v[12:15], v47")
    a("ds_read_b128 v[16:19], v47 offset:16")
    a("s_waitcnt lgkmcnt(0)")
    for d in range(8):
        a("v_add_f32 v%d, v%d, v%d" % (4 + d, 4 + d, 12 + d))
    for d in range(4):
        a("v_cvt_pk_bf16_f32 v%d, v%d, v%d" % (4 + d, 4 + 2 * d, 5 + 2 * d))
    a("buffer_store_dwordx2 v[4:5], v48, s[%d:%d], s%d offen" % (srd_out, srd_out + 3, t[1]))
    a("buffer_store_dwordx2 v[6:7], v48, s[%d:%d], s%d offen offset:32" % (srd_out, srd_out + 3, t[1]))
    a.label("L_RED_DONE")


def gen_main(a, name):
    bars = {"C": [], "I": [], "L": []}
    part_aux = "sc1" if opt.fused_tail else ""

    def bar(roles, nm, skip=False):
        if not skip:
            a("s_barrier")
        for r in roles:
            bars[r].append(nm)

    a.label(name)
    if opt.stamps:
        a("s_memrealtime s[100:101]")
    a("s_cmp_ge_u32 s2, 256")
    a("s_cbranch_scc1 L_END")
    a("s_load_dwordx16 s[%d:%d], s[0:1], 0" % (KA, KA + 15))
    a("s_load_dwordx8 s[%d:%d], s[0:1], 64" % (KA + 16, KA + 23))
    a("s_load_dwordx2 s[%d:%d], s[0:1], 96" % (KA + 24, KA + 25))
    if opt.x_stretch:
        a("s_memrealtime s[100:101]")
    a("s_and_b32 s%d, s2, 7" % sT0)
    a("s_lshr_b32 s%d, s2, 3" % sT1)
    a("s_lshr_b32 s%d, s%d, 4" % (sT2, sT1))
    a("s_lshl_b32 s%d, s%d, 1" % (sT0, sT0))
    a("s_add_u32 s%d, s%d, s%d" % (sT0, sT0, sT2))
    a("s_lshr_b32 s%d, s%d, 3" % (sBR, sT0))
    a("s_and_b32 s%d, s%d, 7" % (sKVH, sT0))
    a("s_bfe_u32 s%d, s%d, 0x30001" % (sB, sT1))
    a("s_and_b32 s%d, s%d, 1" % (sT2, sT1))
    a("s_lshl_b32 s%d, s%d, 1" % (sHP, sKVH))
    a("s_add_u32 s%d, s%d, s%d" % (sHP, sHP, sT2))
    a("v_lshrrev_b32 v1, 6, v0")
    a("v_and_b32 v0, 63, v0")
    a("v_readfirstlane_b32 s%d, v1" % sW)
    a("s_lshl_b32 s%d, s%d, 3" % (sGRP, sBR))
    a("s_add_u32 s%d, s%d, s%d" % (sGRP, sGRP, sB))
    if opt.codepf:
        a("s_cmp_lg_u32 s%d, 3" % sW)
        a("s_cbranch_scc1 L_NOPF")
        a("s_getpc_b64 s[%d:%d]" % (sT2, sT3))
        a.label("L_PC")
        a("v_lshlrev_b32 v2, 7, v0")
        a("v_mov_b32 v5, s%d" % sT3)
        a("v_add_co_u32 v4, vcc, s%d, v2" % sT2)
        a("s_nop 1")
        a("v_addc_co_u32 v5, vcc, 0, v5, vcc")
        a(".set PF_BYTES, L_END - L_PC")
        for i in range(opt.codepf_n):
            if i:
                a("v_add_co_u32 v4, vcc, 0x2000, v4")
                a("s_nop 1")
                a("v_addc_co_u32 v5, vcc, 0, v5, vcc")
            a("v_add_u32 v3, %d, v2" % (i * 8192))
            a("v_cmp_gt_u32 vcc, PF_BYTES, v3")
            a("s_and_saveexec_b64 s[%d:%d], vcc" % (sT0, sT1))
            a("s_cbranch_execz L_PF_SKIP%d" % i)
            a("global_load_dword v%d, v[4:5], off" % vDUM)
            a.label("L_PF_SKIP%d" % i)
            a("s_mov_b64 exec, s[%d:%d]" % (sT0, sT1))
        a.label("L_NOPF")
    a("s_waitcnt lgkmcnt(0)")
    a("s_cmp_eq_u32 s%d, 0" % sBR)
    for dst, pa, pb in ((P_WQ, KA + 6, KA + 16), (P_X, KA + 0, KA + 10), (P_K, KA + 2, KA + 12),
                        (P_V, KA + 4, KA + 14), (P_WO, KA + 8, KA + 18)):
        a("s_cselect_b32 s%d, s%d, s%d" % (dst, pa, pb))
        a("s_cselect_b32 s%d, s%d, s%d" % (dst + 1, pa + 1, pb + 1))
    if opt.stamps:
        srd(a, SRD_ST, P_WS, WS_BYTES)
        a("s_lshl_b32 s%d, s2, 3" % sSTOFF)
        a("s_add_u32 s%d, s%d, s%d" % (sSTOFF, sSTOFF, sW))
        a("s_lshl_b32 s%d, s%d, 8" % (sSTOFF, sSTOFF))
        a("s_add_u32 s%d, s%d, 0x%x" % (sSTOFF, sSTOFF, WS_STAMP))
        a("v_mov_b32 v%d, s100" % vSTA)
        a("v_mov_b32 v%d, s%d" % (vSTB, sSTOFF))
        a("buffer_store_dword v%d, v%d, s[%d:%d], 0 offen offset:%d" % (vSTA, vSTB, SRD_ST, SRD_ST + 3, 31 * 4))
        stamp(a, 0)
    a("s_cmp_ge_u32 s%d, 4" % sW)
    a("s_cbranch_scc1 L_LOADER")

    a("s_cmp_eq_u32 s%d, 3" % sW)
    a("s_cbranch_scc1 L_W3_START")
    a("s_mul_i32 s%d, s%d, 49152" % (sT0, sB))
    srd(a, SRD_X, P_X, 49152, sT0)
    a("v_lshrrev_b32 v2, 3, v0")
    a("v_and_b32 v3, 7, v0")
    a("v_lshrrev_b32 v4, 4, v0")
    a("v_xor_b32 v3, v3, v4")
    a("v_lshlrev_b32 v3, 4, v3")
    a("v_lshl_add_u32 v2, v2, 10, v3")
    a("v_xor_b32 v3, 64, v2")
    a("v_add_u32 v3, 7168, v3")
    a("s_lshl_b32 s%d, s%d, 14" % (sT1, sW))
    a("s_lshl_b32 s%d, s%d, 11" % (sT3, sW))
    a("s_add_u32 s%d, s%d, %d" % (sT3, sT3, X_BASE))
    for c in range(8):
        a("s_add_u32 s%d, s%d, %d" % (sT0, sB, c))
        a("s_and_b32 s%d, s%d, 7" % (sT0, sT0))
        a("s_mul_i32 s%d, s%d, 6144" % (sT4, sT0))
        a("s_lshl_b32 s%d, s%d, 7" % (sT2, sT0))
        a("s_add_u32 m0, s%d, s%d" % (sT4, sT3))
        a("s_add_u32 s%d, s%d, s%d" % (sT2, sT2, sT1))
        a("buffer_load_dwordx4 v2, s[%d:%d], s%d offen %s lds" % (SRD_X, SRD_X + 3, sT2, opt.w_aux))
        a("buffer_load_dwordx4 v3, s[%d:%d], s%d offen offset:1024 %s lds" % (SRD_X, SRD_X + 3, sT2, opt.w_aux))

    a("s_branch L_WORK_SETUP")
    a.label("L_W3_START")
    if opt.fused_tail:
        a("s_cmp_lg_u32 s%d, 0" % sHP)
        a("s_cbranch_scc1 L_WORK_SETUP")
        srd(a, SRD_WS, P_WS, WS_BYTES)
        srd(a, SRD_DBG, P_DBG, 256)
        a("s_lshl_b32 s%d, s%d, 8" % (sT0, sGRP))
        a("s_add_u32 s%d, s%d, 0x%x" % (sT0, sT0, WS_CNT))
        a("s_lshl_b32 s%d, s%d, 4" % (sT1, sGRP))
        a("s_mov_b64 s[%d:%d], exec" % (sT2, sT3))
        a("v_mov_b32 v2, 0")
        a("v_mov_b32 v3, 1")
        if opt.persrc:
            a("v_lshrrev_b32 v4, 4, v0")
            a("v_and_b32 v5, 15, v0")
            a("v_lshlrev_b32 v4, 7, v4")
            a("v_lshl_add_u32 v4, v5, 2, v4")
            a("s_mov_b32 exec_lo, -1")
            a("s_mov_b32 exec_hi, 0")
        else:
            a("v_lshlrev_b32 v4, 7, v0")
            a("s_mov_b64 exec, 3")
        a("buffer_store_dword v2, v4, s[%d:%d], s%d offen sc1" % (SRD_WS, SRD_WS + 3, sT0))
        a("s_mov_b64 exec, 1")
        a("s_waitcnt vmcnt(0)")
        a("buffer_atomic_add v3, v2, s[%d:%d], s%d offen sc1" % (SRD_DBG, SRD_DBG + 3, sT1))
        a("s_mov_b64 exec, s[%d:%d]" % (sT2, sT3))

    a.label("L_WORK_SETUP")
    l = vL
    t1, t2, t3, t4, t5 = vT[0:5]
    G, rp, cp = vT[5], vT[6], vT[7]
    a("v_and_b32 v%d, 15, v%d" % (t3, l))
    a("v_lshrrev_b32 v%d, 4, v%d" % (G, l))
    a("v_bfe_u32 v%d, v%d, 2, 2" % (rp, l))
    a("v_and_b32 v%d, 3, v%d" % (cp, l))
    a("v_lshrrev_b32 v%d, 1, v%d" % (t4, t3))
    a("v_xor_b32 v%d, v%d, v%d" % (t4, G, t4))
    a("v_lshlrev_b32 v%d, 4, v%d" % (t4, t4))
    a("v_lshl_add_u32 v%d, v%d, 7, v%d" % (t5, t3, t4))
    a("v_add_u32 v%d, 0x%x, v%d" % (vXB, X_BASE, t5))
    a("v_xor_b32 v%d, 64, v%d" % (vXB1, vXB))
    a("v_and_b32 v%d, 1, v%d" % (t4, G))
    a("v_lshl_add_u32 v%d, v%d, 2, v%d" % (t4, t4, rp))
    a("s_lshl_b32 s%d, s%d, 2" % (sT0, sW))
    a("v_xor_b32 v%d, s%d, v%d" % (t5, sT0, t4))
    a("v_lshlrev_b32 v%d, 5, v%d" % (t5, t5))
    a("v_lshl_add_u32 v%d, v%d, 3, v%d" % (t1, G, rp))
    a("v_lshl_add_u32 v%d, v%d, 9, v%d" % (t5, t1, t5))
    a("v_lshl_add_u32 v%d, v%d, 3, v%d" % (vWA[0], cp, t5))
    for nb in range(1, 4):
        a("v_xor_b32 v%d, %d, v%d" % (vWA[nb], nb * 32, vWA[0]))
    later = []
    d = later.append
    sD0, sD1 = sT3, sT4
    for nb in range(4):
        d("v_add_u32 v%d, 0x10000, v%d" % (vWA2[nb], vWA[nb]))
    d("s_lshl_b32 s%d, s%d, 1" % (sD0, sW))
    d("v_xor_b32 v%d, s%d, v%d" % (t5, sD0, t4))
    d("v_lshlrev_b32 v%d, 5, v%d" % (t5, t5))
    d("v_lshl_add_u32 v%d, v%d, 8, v%d" % (t5, t1, t5))
    d("v_lshl_add_u32 v%d, v%d, 3, v%d" % (vWOA, cp, t5))
    d("v_mul_u32_u24 v%d, %d, v%d" % (t5, MROW, t3))
    d("v_lshl_add_u32 v%d, v%d, 4, v%d" % (t4, G, t5))
    d("v_add_u32 v%d, 0x%x, v%d" % (vOR, O_BASE, t4))
    d("v_lshl_add_u32 v%d, v%d, 3, v%d" % (t4, G, t5))
    d("s_lshr_b32 s%d, s%d, 1" % (sD0, sW))
    d("s_mul_i32 s%d, s%d, %d" % (sD0, sD0, 48 * MROW))
    d("s_and_b32 s%d, s%d, 1" % (sD1, sW))
    d("s_lshl_b32 s%d, s%d, 7" % (sD1, sD1))
    d("s_add_u32 s%d, s%d, s%d" % (sD0, sD0, sD1))
    d("s_add_u32 s%d, s%d, %d" % (sD0, sD0, M_BASE))
    d("v_add_u32 v%d, s%d, v%d" % (vQW, sD0, t4))
    d("v_and_b32 v%d, 31, v%d" % (t1, l))
    d("v_lshrrev_b32 v%d, 5, v%d" % (t2, l))
    d("v_xor_b32 v%d, v%d, v%d" % (t4, t2, t3))
    d("v_lshlrev_b32 v%d, 4, v%d" % (t4, t4))
    d("v_lshl_add_u32 v%d, v%d, 8, v%d" % (vKA[0], t1, t4))
    for ks in range(1, 8):
        d("v_xor_b32 v%d, %d, v%d" % (vKA[ks], ks * 32, vKA[0]))
    d("v_mul_u32_u24 v%d, %d, v%d" % (t4, MROW, t1))
    d("s_mul_i32 s%d, s%d, %d" % (sD0, sW, 32 * MROW))
    d("v_add_u32 v%d, s%d, v%d" % (t4, sD0, t4))
    d("v_lshl_add_u32 v%d, v%d, 3, v%d" % (t5, t2, t4))
    d("v_add_u32 v%d, 0x%x, v%d" % (vOW, O_BASE, t5))
    d("v_lshl_add_u32 v%d, v%d, 4, v%d" % (t5, t2, t4))
    d("v_add_u32 v%d, 0x%x, v%d" % (vQR, M_BASE, t5))
    d("v_lshl_add_u32 v%d, v%d, 2, v%d" % (t1, t2, rp))
    d("v_and_b32 v%d, 1, v%d" % (t4, G))
    d("v_lshlrev_b32 v%d, 1, v%d" % (t4, t4))
    d("v_lshrrev_b32 v%d, 1, v%d" % (t5, cp))
    d("v_add_u32 v%d, v%d, v%d" % (t4, t4, t5))
    d("v_lshlrev_b32 v%d, 2, v%d" % (t5, rp))
    d("v_xor_b32 v%d, v%d, v%d" % (t4, t4, t5))
    d("v_lshlrev_b32 v%d, 4, v%d" % (t4, t4))
    d("v_lshl_add_u32 v%d, v%d, 8, v%d" % (t4, t1, t4))
    d("v_and_b32 v%d, 1, v%d" % (t5, cp))
    d("v_lshl_add_u32 v%d, v%d, 3, v%d" % (t4, t5, t4))
    d("v_add_u32 v%d, 0x%x, v%d" % (vVA[0], V_BASE, t4))
    for db in range(1, 4):
        d("v_xor_b32 v%d, %d, v%d" % (vVA[db], db * 64, vVA[0]))
    d("v_lshlrev_b32 v%d, 4, v%d" % (vST, l))
    d("s_lshl_b32 s%d, s%d, 8" % (sD0, sGRP))
    d("s_add_u32 s%d, s%d, s%d" % (sD0, sD0, sHP))
    d("s_lshl_b32 s%d, s%d, 4" % (sD1, sW))
    d("s_add_u32 s%d, s%d, s%d" % (sD0, sD0, sD1))
    d("s_mul_i32 s%d, s%d, 3072" % (sPOFF, sD0))
    d("s_mov_b32 s%d, s%d" % (SRD_WS, P_WS))
    d("s_mov_b32 s%d, s%d" % (SRD_WS + 1, P_WS + 1))
    d("s_mov_b32 s%d, 0x%x" % (SRD_WS + 2, WS_BYTES))
    d("s_mov_b32 s%d, 0x20000" % (SRD_WS + 3))
    d("s_mov_b32 s%d, 0x%08x" % (sTHR, f32bits(2.0 ** opt.thr_log2)))
    for r in range(64):
        if opt.accmode == 1 or r >= 48:
            d("v_mov_b32 v%d, 0" % (vO + r))
    d("v_mov_b32 v%d, 0" % vLACC)
    if not opt.defer:
        for ins in later:
            a(ins)
        later = []
    if opt.pf_tiles:
        a("s_cmp_lg_u32 s%d, 3" % sW)
        a("s_cbranch_scc1 L_X_LANDED")
        a("s_and_b32 s%d, s%d, 1" % (sT1, sHP))
        a("s_cmp_eq_u32 s%d, 0" % sT1)
        a("s_cselect_b32 s%d, s%d, s%d" % (sT2, P_K, P_V))
        a("s_cselect_b32 s%d, s%d, s%d" % (sT3, P_K + 1, P_V + 1))
        a("s_lshl_b32 s%d, s%d, 3" % (sT0, sB))
        a("s_add_u32 s%d, s%d, s%d" % (sT0, sT0, sKVH))
        a("s_lshl_b32 s%d, s%d, 18" % (sT0, sT0))
        srd(a, SRD_K, sT2, 262144, sT0)
        a("v_lshlrev_b32 v2, 7, v0")
        a("s_mov_b32 s%d, %d" % (sT0, opt.pf_first * 8192))
        for i in range(opt.pf_tiles):
            a("buffer_load_dword v%d, v2, s[%d:%d], s%d offen %s" % (vDUM, SRD_K, SRD_K + 3, sT0, opt.pf_aux))
            if i + 1 < opt.pf_tiles:
                a("s_add_u32 s%d, s%d, 8192" % (sT0, sT0))
    if opt.dum == 3:
        a("s_cmp_lg_u32 s%d, 3" % sW)
        a("s_cbranch_scc1 L_X_LANDED")
        a("s_lshl_b32 s%d, s%d, 9" % (sT0, sHP))
        srd(a, SRD_WQ, P_WQ, 4194304 - 15 * 512, sT0)
        a("v_lshrrev_b32 v2, 5, v0")
        a("v_and_b32 v3, 31, v0")
        a("v_lshlrev_b32 v3, 4, v3")
        a("v_lshl_add_u32 v2, v2, 13, v3")
        a("s_lshl_b32 s%d, s%d, 1" % (sT0, sB))
        a("s_add_u32 s%d, s%d, 1" % (sT0, sT0))
        a("s_lshl_b32 s%d, s%d, 18" % (sT0, sT0))
        for i in range(16):
            a("buffer_load_dwordx4 %s, v2, s[%d:%d], s%d offen" % (vr(vE, 4), SRD_WQ, SRD_WQ + 3, sT0))
            if i < 15:
                a("s_add_u32 s%d, s%d, 16384" % (sT0, sT0))
    a.label("L_X_LANDED")
    stamp(a, 1)

    def q_mfma_list(pb, first=False):
        if opt.x_q_nomfma:
            return []
        out = []
        for nb in range(4):
            for qb in range(3):
                acc = acc1(nb * 3 + qb)
                out.append("v_mfma_f32_16x16x32_bf16 %s, %s, %s, %s" % (vr(acc, 4), vr(vA1[pb] + nb * 4, 4), vr(vB1[pb] + qb * 4, 4), "0" if first else vr(acc, 4)))
        return out
    vXTT = [vXT, vT[8]]
    def x_addr(e):
        v = vXTT[e & 1]
        out = []
        if opt.korder:
            out += ["s_add_u32 s%d, s%d, %d" % (sT0, sB, e & 7),
                    "s_and_b32 s%d, s%d, 7" % (sT0, sT0),
                    "s_mul_i32 s%d, s%d, 6144" % (sKS, sT0)]
            return out + ["v_add_u32 v%d, s%d, v%d" % (v, sKS, (vXB, vXB1)[e >> 3])]
        if e % 2 == 0:
            out += ["s_add_u32 s%d, s%d, %d" % (sT0, sB, e >> 1),
                    "s_and_b32 s%d, s%d, 7" % (sT0, sT0),
                    "s_mul_i32 s%d, s%d, 6144" % (sKS, sT0)]
        return out + ["v_add_u32 v%d, s%d, v%d" % (v, sKS, (vXB, vXB1)[e & 1])]
    for ins in x_addr(0):
        a(ins)
    for e in range(16):
        if opt.korder and e < 8:
            if opt.dum == 3:
                a("s_cmp_eq_u32 s%d, 3" % sW)
                a("s_cbranch_scc1 L_NOXW%d" % e)
            a("s_waitcnt vmcnt(%d)" % (14 - 2 * e))
            if opt.dum == 3:
                a.label("L_NOXW%d" % e)
        if e % 2 == 0 and not opt.korder:
            if opt.pf_tiles:
                a("s_cmp_eq_u32 s%d, 3" % sW)
                a("s_cbranch_scc1 L_NOXW%d" % e)
            a("s_waitcnt vmcnt(%d)" % (14 - e))
            if opt.pf_tiles:
                a.label("L_NOXW%d" % e)
        if opt.stamps == 5 and e == 0:
            stamp(a, 22)
        bar("CI", "Q%d" % e)
        if opt.stamps == 5 and e in (0, 1, 2, 4, 8):
            stamp(a, {0: 23, 1: 24, 2: 25, 4: 26, 8: 27}[e])
        if e in (0, 4, 8, 12):
            stamp(a, 9 + e // 4)
        pb = e & 1
        slot = e % NWS
        wa, so = (vWA, slot * 16384) if slot < 4 else (vWA2, (slot - 4) * 16384)
        fill = []
        if not opt.x_q_nods:
            for nb in range(4):
                for jj in range(2):
                    fill.append("ds_read_b64_tr_b16 %s, v%d offset:%d" % (vr(vA1[pb] + nb * 4 + jj * 2, 2), wa[nb], so + jj * 2048))
                if nb == 0:
                    for qb in range(3):
                        fill.append("ds_read_b128 %s, v%d offset:%d" % (vr(vB1[pb] + qb * 4, 4), vXTT[e & 1], qb * 2048))
        if e < 15:
            fill += x_addr(e + 1)
        n_def = 4 if e == 0 else (-(-len(later) // (15 - e)) if e < 15 else len(later))
        fill += later[:n_def]
        later = later[n_def:]
        interleave(a, q_mfma_list(pb ^ 1, first=(e == 1)) if e > 0 else [], fill)
        a("s_waitcnt lgkmcnt(0)")
    assert not later
    bar("CI", "Q16")
    stamp(a, 13)
    for m in q_mfma_list(1):
        a(m)
    scale = math.log2(math.e) / math.sqrt(128.0)
    a("s_mov_b32 s%d, 0x%08x" % (sT2, f32bits(scale)))
    a("s_mov_b32 s%d, 0x%08x" % (sT3, f32bits(scale)))
    a("s_nop 5")
    for nb in range(4):
        for qb in range(3):
            acc = acc1(nb * 3 + qb)
            a("v_pk_mul_f32 %s, %s, s[%d:%d]" % (vr(acc, 2), vr(acc, 2), sT2, sT3))
            a("v_pk_mul_f32 %s, %s, s[%d:%d]" % (vr(acc + 2, 2), vr(acc + 2, 2), sT2, sT3))
            a("v_cvt_pk_bf16_f32 v%d, v%d, v%d" % (acc, acc, acc + 1))
            a("v_cvt_pk_bf16_f32 v%d, v%d, v%d" % (acc + 1, acc + 2, acc + 3))
            a("ds_write_b64 v%d, %s offset:%d" % (vQW, vr(acc, 2), qb * 16 * MROW + nb * 32))
    if opt.accmode == 0:
        for r in range(48):
            a("v_mov_b32 v%d, 0" % (vO + r))
    a("s_waitcnt lgkmcnt(0)")
    bar("CI", "Q17")
    stamp(a, 2)
    a("s_cmp_eq_u32 s%d, 3" % sW)
    a("s_cbranch_scc1 L_TRANS")

    if opt.prio:
        a("s_setprio %d" % opt.prio)
    dq = Queue(1000)
    for ks in range(8):
        a("ds_read_b128 %s, v%d offset:%d" % (vr(vQ + ks * 4, 4), vQR, ks * 32))
        dq.issue("Q")
    L, WS = opt.L, opt.waitstep

    def frag_ops(p):
        return 1 if (p & 15) < 8 else 2

    def frag_read(t, p):
        if p >= 16:
            t, p = t + 1, p - 16
        fb = vF + (p & 7) * 4
        if p < 8:
            if not opt.x_nods:
                a("ds_read_b128 %s, v%d offset:%d" % (vr(fb, 4), vKA[p], kslot(t + 1) * 8192))
            dq.issue("F%d" % (p & 7), 1)
        else:
            u, db = (p - 8) >> 2, (p - 8) & 3
            for jj in range(2):
                if not opt.x_nods:
                    a("ds_read_b64_tr_b16 %s, v%d offset:%d" % (vr(fb + jj * 2, 2), vVA[db], ((t - 1) % 8) * 8192 + (16 * u + 8 * jj) * 256))
            dq.issue("F%d" % (p & 7), 2)

    def last_v_read(f):
        u, db = f >> 2, f & 3
        for jj in range(2):
            if not opt.x_nods:
                a("ds_read_b64_tr_b16 %s, v%d offset:%d" % (vr(vF + f * 4 + jj * 2, 2), vVA[db], (31 % 8) * 8192 + (16 * u + 8 * jj) * 256))
        dq.issue("F%d" % f, 2)

    def wait_frags(p):
        if (p - opt.waitphase) % WS:
            return
        n = dq.need({"F%d" % ((p + i) & 7) for i in range(WS)})
        if n is not None and not opt.x_nods:
            assert n <= 15
            a("s_waitcnt lgkmcnt(%d)" % n)

    def sm_ops(t):
        S, P = vS[t & 1], vP[t & 1]
        def E(k, i):
            return ("v_exp_f32 v%d, v%d" % (vE + (k & 1) * 2 + i, S + 2 * k + i), 8)
        def adds(k):
            e0, e1 = vE + (k & 1) * 2, vE + (k & 1) * 2 + 1
            if k < 2:
                return [("v_add_f32 v%d, v%d, v%d" % ((vPSA, vPSB)[k], e0, e1), 4)]
            return [("v_add_f32 v%d, v%d, v%d" % (vPSA, vPSA, e0), 4), ("v_add_f32 v%d, v%d, v%d" % (vPSB, vPSB, e1), 4)]
        def C(k):
            return ("v_cvt_pk_bf16_f32 v%d, v%d, v%d" % (P + k, vE + (k & 1) * 2, vE + (k & 1) * 2 + 1), 4)
        if opt.x_fast:
            ops = [E(0, 0), E(0, 1)]
            for k in range(1, 8):
                ops += [E(k, 0), E(k, 1), C(k - 1)]
            return ops + [("s_nop 0", 4), C(7)]
        ops = [E(0, 0), E(0, 1)]
        for k in range(1, 8):
            ops += [E(k, 0)] + adds(k - 1) + [E(k, 1), C(k - 1)]
        ops += adds(7) + [C(7)]
        ops.append(("v_add_f32 v%d, v%d, v%d" % (vPSA, vPSA, vPSB), 4))
        ops.append(("v_cmp_nge_f32 vcc, s%d, v%d" % (sTHR, vPSA), 4))
        return ops

    def sm_schedule(ops, base):
        room = [max(opt.slotcap - base[p], 4) for p in range(15)]
        total = sum(c for _, c in ops)
        scale_ = total / float(sum(room))
        slots = [[] for _ in range(16)]
        i, cum_room, cum = 0, 0.0, 0
        for p in range(15):
            cum_room += room[p] * scale_
            while i < len(ops) and (cum + ops[i][1] / 2.0 <= cum_room or p == 14):
                slots[p].append(ops[i][0])
                cum += ops[i][1]
                i += 1
        return slots

    rare = []

    def period(t, tag, do_qk, do_sm, do_pv, c_zero=False, has_bar=True, next_qk=True, next_v=False):
        Sn, Pp = vS[(t + 1) & 1], vP[(t - 1) & 1]
        def want(pn):
            return (pn < 8 and do_qk) or (8 <= pn < 16 and do_pv) or (pn >= 16 and (next_qk or next_v))
        base = []
        for p in range(16):
            c = 8 + (opt.dscost * (2 if next_v and p + L >= 16 else frag_ops(p + L)) if want(p + L) else 0) + (4 if p % WS == 0 else 0) + (4 if p == 16 - L else 0)
            base.append(c)
        sm = sm_schedule(sm_ops(t), base) if do_sm and not opt.x_nosm else [[] for _ in range(16)]
        lab = "L_RARE_%s" % tag
        check = do_sm and not opt.x_fast and not opt.x_norare and not opt.x_nosm
        last = []
        for p in range(16):
            mf = None
            if p < 8 and do_qk:
                c = "0" if (p == 0 and c_zero) else (vr(vNM, 16) if p == 0 else vr(Sn, 16))
                mf = "v_mfma_f32_32x32x16_bf16 %s, %s, %s, %s" % (vr(Sn, 16), vr(vF + (p & 7) * 4, 4), vr(vQ + p * 4, 4), c)
            if p >= 8 and do_pv:
                u, db = (p - 8) >> 2, (p - 8) & 3
                mf = "v_mfma_f32_32x32x16_bf16 %s, %s, %s, %s" % (vr(vO + db * 16, 16), vr(vF + (p & 7) * 4, 4), vr(Pp + u * 4, 4), vr(vO + db * 16, 16))
            if p == 16 - L and has_bar:
                bar("C", "A%s" % tag, opt.x_nobar)
            if p == 15 and check and opt.brpos == 1:
                a("s_cbranch_vccnz %s" % lab)
            n0 = len(a.lines)
            if mf:
                wait_frags(p)
                if not opt.x_nomfma:
                    a(mf)
            if opt.x_fast and do_pv and p in (11, 15):
                u = 0 if p == 11 else 1
                a("v_mfma_f32_16x16x32_bf16 v[228:231], v[24:27], %s, v[228:231]" % vr(Pp + u * 4, 4))
            if want(p + L):
                if next_v and p + L >= 16:
                    last_v_read(p + L - 16)
                else:
                    frag_read(t, p + L)
            if p == 15:
                last = list(a.lines[n0:])
            for ins in sm[p]:
                if ins == "v_exp_pad":
                    continue
                prev = next(x for x in reversed(a.lines) if x.strip() and not x.strip().endswith(":")).strip()
                if prev.startswith("v_exp_f32") and not ins.startswith("v_exp") and prev.split()[1].rstrip(",") in [o.strip() for o in ins.split(None, 1)[1].split(",")[1:]]:
                    a("s_nop 0")
                a(ins)
        if do_sm and not opt.x_fast:
            if check:
                if opt.brpos == 0:
                    a("s_cbranch_vccnz %s" % lab)
                rare.append((lab, t, do_qk, last if opt.brpos == 1 else []))
                a.label(lab + "_BACK")
            a("v_add_f32 v%d, v%d, v%d" % (vLACC, vLACC, vPSA))

    def row_max(S, dst):
        a("v_max3_f32 v%d, v%d, v%d, v%d" % (dst, S, S + 1, S + 2))
        for r in range(3, 15, 2):
            a("v_max3_f32 v%d, v%d, v%d, v%d" % (dst, dst, S + r, S + r + 1))
        a("v_max_f32 v%d, v%d, v%d" % (dst, dst, S + 15))
        a("v_mov_b32 v%d, v%d" % (vTMP, dst))
        a("s_nop 1")
        a("v_permlane32_swap_b32 v%d, v%d" % (dst, vTMP))
        a("s_nop 1")
        a("v_max_f32 v%d, v%d, v%d" % (dst, dst, vTMP))

    def emit_rare(lab, t, fix_next, first):
        S, Sn, P = vS[t & 1], vS[(t + 1) & 1], vP[t & 1]
        d, f = vE + 4, vE + 5
        a.label(lab)
        for ins in first:
            a(ins)
        a("s_nop 15")
        row_max(S, d)
        a("v_max_f32 v%d, 0, v%d" % (d, d))
        a("v_exp_f32 v%d, -v%d" % (f, d))
        for r in range(16):
            a("v_sub_f32 v%d, v%d, v%d" % (vNM + r, vNM + r, d))
        for r in range(16):
            a("v_sub_f32 v%d, v%d, v%d" % (S + r, S + r, d))
        if fix_next:
            for r in range(16):
                a("v_sub_f32 v%d, v%d, v%d" % (Sn + r, Sn + r, d))
        for r in range(64):
            a("v_mul_f32 v%d, v%d, v%d" % (vO + r, vO + r, f))
        a("v_mul_f32 v%d, v%d, v%d" % (vLACC, vLACC, f))
        a("v_mov_b32 v%d, 0" % vPSA)
        for k in range(8):
            a("v_exp_f32 v%d, v%d" % (vE, S + 2 * k))
            a("v_exp_f32 v%d, v%d" % (vE + 1, S + 2 * k + 1))
            a("v_add_f32 v%d, v%d, v%d" % (vPSA, vPSA, vE))
            a("v_add_f32 v%d, v%d, v%d" % (vPSA, vPSA, vE + 1))
            a("v_cvt_pk_bf16_f32 v%d, v%d, v%d" % (P + k, vE, vE + 1))
        a("s_nop 1")
        a("s_branch %s_BACK" % lab)

    def a3_list(p):
        out = ["v_add_u32 v%d, 0x%x, v%d" % (vWOT[0], (RWO if opt.osched else RWO0)[p], vWOA),
               "v_xor_b32 v%d, 32, v%d" % (vWOT[1], vWOT[0])]
        for ks in range(4 if not opt.x_o_nods else 0):
            for nb in range(2):
                for jj in range(2):
                    out.append("ds_read_b64_tr_b16 %s, v%d offset:%d" % (vr(vA3[p & 1] + (ks * 2 + nb) * 4 + jj * 2, 2), vWOT[nb], ks * 8192 + jj * 1024))
        return out

    for p in range(L):
        frag_read(-1, p)
    a("s_waitcnt lgkmcnt(%d)" % dq.need({"Q"}))
    if opt.dump == "q":
        dump_regs(a, vQ, 32)
    period(-1, "m1", True, False, False, c_zero=True)
    a("s_nop 15")
    row_max(vS[0], vE + 4)
    for r in range(16):
        a("v_sub_f32 v%d, 0, v%d" % (vNM + r, vE + 4))
    for r in range(16):
        a("v_sub_f32 v%d, v%d, v%d" % (vS[0] + r, vS[0] + r, vE + 4))
    a("s_nop 1")
    period(0, "0", True, True, False)
    q_entry = list(dq.q)
    a("s_mov_b32 s%d, 0" % sPASS)
    a(".p2align %d" % opt.loop_align)
    for _ in range(opt.loop_pad):
        a("s_nop 0")
    a.label("L_ATT_LOOP")
    n0 = len(bars["C"])
    for t in range(1, 9):
        period(t, "L%d" % t, True, True, True, has_bar=att_bar(t))
        if t == 6:
            q_exit = list(dq.q)
            a("s_cmp_eq_u32 s%d, 3" % sPASS)
            a("s_cbranch_scc1 L_ATT_EXIT")
    assert dq.q == q_entry, (dq.q, q_entry)
    a("s_add_u32 s%d, s%d, 1" % (sPASS, sPASS))
    a("s_branch L_ATT_LOOP")
    del bars["C"][n0:]
    bars["C"] += ["A%d" % t for t in range(1, 31) if att_bar(t)]
    a.label("L_ATT_EXIT")
    dq.q = list(q_exit)
    lsum = ["v_mov_b32 v%d, v%d" % (vTMP, vLACC), "s_nop 1", "v_permlane32_swap_b32 v%d, v%d" % (vLACC, vTMP), "s_nop 1",
            "v_add_f32 v%d, v%d, v%d" % (vLACC, vLACC, vTMP), "v_rcp_f32 v%d, v%d" % (vLACC, vLACC)]
    if opt.shortend:
        period(31, "31", False, True, True, next_qk=False, next_v=True)
        Pl = vP[31 & 1]
        for p in range(8):
            wait_frags(p)
            a("v_mfma_f32_32x32x16_bf16 %s, %s, %s, %s" % (vr(vO + (p & 3) * 16, 16), vr(vF + p * 4, 4), vr(Pl + (p >> 2) * 4, 4), vr(vO + (p & 3) * 16, 16)))
            if p + L < 8:
                last_v_read(p + L)
            if p == 2:
                for ins in lsum:
                    a(ins)
        lsum = []
    else:
        period(31, "31", False, True, True, next_qk=False)
        period(32, "32", False, False, True, has_bar=False, next_qk=False)
    bar("C", "E00")
    stamp(a, 3)
    for ins in a3_list(0):
        a(ins)
    for ins in lsum:
        a(ins)
    a("s_nop 7")
    for db in range(4):
        for rr in range(4):
            b = vO + db * 16 + rr * 4
            a("v_pk_mul_f32 %s, %s, %s op_sel_hi:[1,0]" % (vr(b, 2), vr(b, 2), vr(vLACC, 2)))
            a("v_pk_mul_f32 %s, %s, %s op_sel_hi:[1,0]" % (vr(b + 2, 2), vr(b + 2, 2), vr(vLACC, 2)))
            a("v_cvt_pk_bf16_f32 v%d, v%d, v%d" % (b, b, b + 1))
            a("v_cvt_pk_bf16_f32 v%d, v%d, v%d" % (b + 1, b + 2, b + 3))
            a("ds_write_b64 v%d, %s offset:%d" % (vOW, vr(b, 2), db * 64 + rr * 16))
    if opt.prio:
        a("s_setprio 0")
    a("s_waitcnt lgkmcnt(0)")
    a("s_branch L_E0")

    a.label("L_TRANS")
    if not opt.x_nobar:
        a("s_mov_b32 s%d, %d" % (sPASS, sum(att_bar(t) for t in range(-1, 32))))
        a.label("L_IDLE3_LOOP")
        a("s_barrier")
        a("s_sub_u32 s%d, s%d, 1" % (sPASS, sPASS))
        a("s_cmp_lg_u32 s%d, 0" % sPASS)
        a("s_cbranch_scc1 L_IDLE3_LOOP")
    bars["I"] += ["Am1"] + ["A%d" % t for t in range(0, 32) if att_bar(t)]
    bar("I", "E00")
    for ins in a3_list(0):
        a(ins)
    a("s_waitcnt lgkmcnt(0)")

    a.label("L_E0")
    if opt.oprio:
        a("s_setprio %d" % opt.oprio)
    bar("CI", "E0")
    stamp(a, 4)

    def mf3_list(p):
        if opt.x_o_nomfma:
            return []
        out = []
        kh = p & 1
        for ks in range(4):
            for nb in range(2):
                for qb in range(3):
                    acc = vACC3[(p >> 1) & 1] + (qb * 2 + nb) * 4
                    c = "0" if (ks == 0 and kh == 0) else vr(acc, 4)
                    out.append("v_mfma_f32_16x16x32_bf16 %s, %s, %s, %s" % (vr(acc, 4), vr(vA3[p & 1] + (ks * 2 + nb) * 4, 4), vr(vB3 + ((kh * 4 + ks) * 3 + qb) * 4, 4), c))
        return out
    def pk_base(c, qb):
        if c < min(opt.latest, 2):
            return 8 + c * 12 + qb * 4
        return vACC3[c & 1] + qb * 8
    def cvt3_list(c):
        if opt.x_o_nost:
            return []
        out = []
        for qb in range(3):
            acc = vACC3[c & 1] + qb * 8
            for d in range(4):
                out.append("v_cvt_pk_bf16_f32 v%d, v%d, v%d" % (pk_base(c, qb) + d, acc + 2 * d, acc + 2 * d + 1))
        return out
    def st3_list(c):
        if opt.x_o_nost:
            return []
        out = ["s_add_u32 s%d, s%d, %d" % (sT0, sB, c),
               "s_and_b32 s%d, s%d, 3" % (sT0, sT0),
               "s_mul_i32 s%d, s%d, %d" % (sT0, sT0, 4 * 16 * 3072),
               "s_add_u32 s%d, s%d, s%d" % (sT0, sT0, sPOFF)]
        sts = ["buffer_store_dwordx4 %s, v%d, s[%d:%d], s%d offen offset:%d %s" % (vr(pk_base(c, qb), 4), vST, SRD_WS, SRD_WS + 3, sT0, qb * 1024, part_aux) for qb in range(3)]
        return out, sts
    def b3_list(kh):
        out = []
        for ks in range(4 * kh, 4 * kh + 4):
            for qb in range(3):
                out.append("ds_read_b128 %s, v%d offset:%d" % (vr(vB3 + (ks * 3 + qb) * 4, 4), vOR, (48 * kh + 16 * qb) * MROW + (ks & 3) * 64))
        return out
    if opt.osched == 0:
        for ins in b3_list(0):
            a(ins)
        a("s_waitcnt lgkmcnt(0)")
        for p in range(8):
            if p <= 6:
                bar("CI", "P%d" % (p + 1))
            if p in (0, 3, 6):
                stamp(a, 14 + p // 3)
            fill = []
            if p == 0:
                fill += b3_list(1)
            if p <= 6:
                fill += a3_list(p + 1)
            if p >= 2 and p % 2 == 0 and not opt.x_o_nost:
                c = p // 2 - 1
                fill += cvt3_list(c)
                if c >= opt.latest:
                    fill += st3_list(c)[0] + st3_list(c)[1]
            if p == 7 and not opt.x_o_nost:
                for c in range(min(opt.latest, 3)):
                    fill += st3_list(c)[0] + st3_list(c)[1]
            interleave(a, mf3_list(p), fill)
            if p <= 6:
                a("s_waitcnt lgkmcnt(0)")
        a("s_nop 7")
        if not opt.x_o_nost:
            for ins in cvt3_list(3) + st3_list(3)[0] + st3_list(3)[1]:
                a(ins)
    else:
        for ins in b3_list(0) + b3_list(1):
            a(ins)
        a("s_waitcnt lgkmcnt(0)")
        if opt.dump == "o":
            dump_regs(a, vB3, 96)
        pre_store = {3: 0, 5: 1}
        for p in range(8):
            if p in pre_store and not opt.x_o_nost:
                for ins in st3_list(pre_store[p])[0]:
                    a(ins)
            if p in (0, 3, 5, 6):
                bar("CI", "P%d" % (p + 1))
            if p in pre_store and not opt.x_o_nost:
                for ins in st3_list(pre_store[p])[1]:
                    a(ins)
            if p in (0, 3, 6):
                stamp(a, 14 + p // 3)
            fill = []
            if p <= 6:
                fill += a3_list(p + 1)
            if p in (2, 4):
                fill += cvt3_list(p // 2 - 1)
            if p == 6 and not opt.x_o_nost:
                fill += cvt3_list(2) + st3_list(2)[0] + st3_list(2)[1]
            interleave(a, mf3_list(p), fill)
            if p <= 6:
                a("s_waitcnt lgkmcnt(0)")
        a("s_nop 7")
        if not opt.x_o_nost:
            for ins in cvt3_list(3) + st3_list(3)[0] + st3_list(3)[1]:
                a(ins)
    stamp(a, 5)
    if opt.fused_tail:
        srd(a, SRD_OUT, P_OUT, 8 * 48 * 1024 * 2)
        a("s_lshl_b32 s%d, s%d, 4" % (sKS, sGRP))
        a("s_add_u32 s%d, s%d, s%d" % (sKS, sKS, sHP))
        a("s_mul_i32 s%d, s%d, %d" % (sKS, sKS, 16 * 3072))
        reduce_pre(a, sW, sKS, sGRP, sHP, 0)
        if opt.twostage:
            a("s_waitcnt vmcnt(6)")
            bar("CI", "Fa")
    a("s_waitcnt vmcnt(0)")
    stamp(a, 6)
    if opt.fused_tail:
        bar("CI", "F0")
        a("s_branch L_REDUCE")
    else:
        if opt.x_stretch:
            a("s_cmp_lg_u32 s%d, 0" % sW)
            a("s_cbranch_scc1 L_END")
            a("s_mul_i32 s%d, s%d, %d" % (sDBG, sDBG, opt.x_stretch))
            a.label("L_STRETCH")
            a("s_memrealtime s[%d:%d]" % (sSTAMP, sSTAMP + 1))
            a("s_waitcnt lgkmcnt(0)")
            a("s_sub_u32 s%d, s%d, s100" % (sSTAMP, sSTAMP))
            a("s_cmp_lt_u32 s%d, s%d" % (sSTAMP, sDBG))
            a("s_cbranch_scc1 L_STRETCH")
        a("s_branch L_END")

    a.label("L_LOADER")
    qL = Queue(63)
    t1, t2, t3, t4 = vT[0:4]
    a("s_sub_u32 s%d, s%d, 4" % (sJ, sW))
    a("s_lshl_b32 s%d, s%d, 9" % (sT0, sHP))
    srd(a, SRD_WQ, P_WQ, 4194304 - 15 * 512, sT0)
    a("s_lshl_b32 s%d, s%d, 16" % (sJ64K, sJ))
    a("v_lshrrev_b32 v%d, 5, v%d" % (t1, vL))
    a("v_and_b32 v%d, 31, v%d" % (t2, vL))
    a("v_lshlrev_b32 v%d, 1, v%d" % (t3, t1))
    a("v_xor_b32 v%d, v%d, v%d" % (t2, t2, t3))
    a("v_lshlrev_b32 v%d, 4, v%d" % (t2, t2))
    a("s_and_b32 s%d, s%d, 1" % (sT1, sJ))
    a("s_lshl_b32 s%d, s%d, 7" % (sT1, sT1))
    a("v_xor_b32 v%d, s%d, v%d" % (t2, sT1, t2))
    a("v_lshl_add_u32 v%d, v%d, 13, v%d" % (t2, t1, t2))
    for aa in range(4):
        c = 2 * aa * 8192 - aa * 1024
        if aa & 1:
            a("v_xor_b32 v%d, 64, v%d" % (vLW[aa], t2))
            a("v_add_u32 v%d, 0x%x, v%d" % (vLW[aa], c, vLW[aa]))
        else:
            a("v_add_u32 v%d, 0x%x, v%d" % (vLW[aa], c, t2))
    a("s_lshl_b32 s%d, s%d, 1" % (sKS, sB))
    a("s_lshl_b32 s%d, s%d, 12" % (sT5, sJ))

    def dma_w(e, slot=None, tag=None):
        step = e if not opt.korder else (2 * e if e < 8 else 2 * (e - 8) + 1)
        a("s_add_u32 s%d, s%d, %d" % (sT0, sKS, step))
        a("s_and_b32 s%d, s%d, 15" % (sT0, sT0))
        a("s_lshl_b32 s%d, s%d, 18" % (sT0, sT0))
        a("s_add_u32 m0, s%d, 0x%x" % (sT5, (e % NWS if slot is None else slot) * 16384))
        a("s_add_u32 s%d, s%d, s%d" % (sT0, sT0, sJ64K))
        if opt.x_q_nodma:
            return
        for aa in range(4):
            a("buffer_load_dwordx4 v%d, s[%d:%d], s%d offen offset:%d %s lds" % (vLW[aa], SRD_WQ, SRD_WQ + 3, sT0, aa * 1024, opt.w_aux))
        qL.issue(tag or "W%d" % e, 4)
    for e in range(opt.wfirst):
        dma_w(e)
    if opt.dum == 1:
        dma_w(8, NWS - 1, "DUM")
    def later_setup():
        a("s_lshl_b32 s%d, s%d, 3" % (sT0, sB))
        a("s_add_u32 s%d, s%d, s%d" % (sT0, sT0, sKVH))
        a("s_lshl_b32 s%d, s%d, 18" % (sT0, sT0))
        srd(a, SRD_K, P_K, 262144, sT0)
        srd(a, SRD_V, P_V, 262144, sT0)
        a("s_lshl_b32 s%d, s%d, 18" % (sT0, sHP))
        srd(a, SRD_WO, P_WO, 262144, sT0)
        a("s_lshl_b32 s%d, s%d, 11" % (sJ2K, sJ))
        if opt.rot:
            a("s_lshl_b32 s%d, s%d, 3" % (sROT, sB))
            a("s_add_u32 s%d, s%d, s%d" % (sROT, sROT, sKVH))
            a("s_mul_i32 s%d, s%d, %d" % (sROT, sROT, opt.rot))
            if opt.rotbr:
                a("s_mul_i32 s%d, s%d, %d" % (sT1, sBR, opt.rotbr))
                a("s_add_u32 s%d, s%d, s%d" % (sROT, sROT, sT1))
            a("s_and_b32 s%d, s%d, 31" % (sROT, sROT))
            a("s_lshl_b32 s%d, s%d, 13" % (sROT, sROT))
        a("v_lshrrev_b32 v%d, 4, v%d" % (t1, vL))
        a("v_and_b32 v%d, 15, v%d" % (t2, vL))
        a("v_xor_b32 v%d, v%d, v%d" % (t3, t2, t1))
        a("s_and_b32 s%d, s%d, 1" % (sT1, sJ))
        a("s_lshl_b32 s%d, s%d, 3" % (sT1, sT1))
        a("v_xor_b32 v%d, s%d, v%d" % (t3, sT1, t3))
        a("v_lshlrev_b32 v%d, 4, v%d" % (t3, t3))
        a("v_lshl_add_u32 v%d, v%d, 8, v%d" % (vLK[0], t1, t3))
        a("v_xor_b32 v%d, 64, v%d" % (vLK[1], vLK[0]))
        a("v_lshlrev_b32 v%d, 2, v%d" % (t3, t1))
        a("v_xor_b32 v%d, v%d, v%d" % (t3, t2, t3))
        a("v_lshlrev_b32 v%d, 4, v%d" % (t3, t3))
        a("v_lshl_add_u32 v%d, v%d, 8, v%d" % (vLV, t1, t3))
        a("v_lshrrev_b32 v%d, 4, v%d" % (t1, vL))
        a("v_and_b32 v%d, 15, v%d" % (t2, vL))
        a("v_lshlrev_b32 v%d, 1, v%d" % (t3, t1))
        a("v_xor_b32 v%d, v%d, v%d" % (t2, t2, t3))
        a("v_lshlrev_b32 v%d, 4, v%d" % (t2, t2))
        a("v_lshl_add_u32 v%d, v%d, 10, v%d" % (t2, t1, t2))
        for aa in range(4):
            if aa >> 1:
                a("v_xor_b32 v%d, 128, v%d" % (vLWO[aa], t2))
                a("v_add_u32 v%d, %d, v%d" % (vLWO[aa], 3072 * aa, vLWO[aa]))
            else:
                a("v_add_u32 v%d, %d, v%d" % (vLWO[aa], 3072 * aa, t2))


    if not opt.defer:
        later_setup()

    def lwait(tags):
        n = qL.need(set(tags))
        if n is not None:
            a("s_waitcnt vmcnt(%d)" % n)
    if opt.wfirst < NWS and not opt.wramp:
        if opt.stamps == 5:
            stamp(a, 20)
        lwait(["W0"])
        if opt.stamps == 5:
            stamp(a, 21)
        if opt.dum == 2:
            dma_w(8, NWS - 1, "DUM")
        for e in range(opt.wfirst, NWS):
            dma_w(e)

    def dma_tile(kind, t):
        if opt.x_kv_nodma:
            return
        base = K_BASE + kslot(t) * 8192 if kind == "K" else V_BASE + (t % 8) * 8192
        s_, v_ = (SRD_K, vLK) if kind == "K" else (SRD_V, [vLV, vLV])
        if opt.rot:
            a("s_add_u32 s%d, s%d, 0x%x" % (sOFF, sROT, t * 8192))
            a("s_and_b32 s%d, s%d, 0x3ffff" % (sOFF, sOFF))
            a("s_add_u32 m0, s%d, 0x%x" % (sJ2K, base))
            a("s_add_u32 s%d, s%d, s%d" % (sOFF, sOFF, sJ2K))
        else:
            a("s_add_u32 m0, s%d, 0x%x" % (sJ2K, base))
            a("s_add_u32 s%d, s%d, 0x%x" % (sOFF, sJ2K, t * 8192))
        for aa in range(2):
            a("buffer_load_dwordx4 v%d, s[%d:%d], s%d offen offset:%d %s lds" % (v_[aa], s_, s_ + 3, sOFF, aa * 1024, (opt.k_aux if kind == "K" else opt.v_aux) if opt.k_aux != "same" else opt.kv_aux))
        qL.issue("%s%d" % (kind, t), 2)
    def dma_wo(p, nl=4):
        if opt.x_o_nodma:
            return
        R = (RWO if opt.osched else RWO0)[p]
        if nl == 2:
            a("s_cmp_ge_u32 s%d, 2" % sJ)
            a("s_cbranch_scc1 L_WO_SKIP%d" % p)
        a("s_add_u32 s%d, s%d, %d" % (sT0, sB, p >> 1))
        a("s_and_b32 s%d, s%d, 3" % (sT0, sT0))
        a("s_lshl_b32 s%d, s%d, 8" % (sT0, sT0))
        a("s_lshl_b32 s%d, s%d, 3" % (sT1, sT5))
        a("s_add_u32 s%d, s%d, s%d" % (sT0, sT0, sT1))
        if p & 1:
            a("s_add_u32 s%d, s%d, 0x20000" % (sT0, sT0))
        a("s_lshl_b32 s%d, s%d, 1" % (sT1, sT5))
        for sh in range(4 // nl):
            for hf in range(2):
                a("s_add_u32 m0, s%d, 0x%x" % (sT1, R + sh * 16384 + hf * 4096))
                if hf:
                    a("s_add_u32 s%d, s%d, 16384" % (sT0, sT0))
                elif sh:
                    a("s_add_u32 s%d, s%d, %d" % (sT0, sT0, 65536 - 16384))
                else:
                    a("s_nop 0")
                for aa in range(4):
                    a("buffer_load_dwordx4 v%d, s[%d:%d], s%d offen offset:%d %s lds" % (vLWO[aa], SRD_WO, SRD_WO + 3, sT0, aa * 1024, opt.wo_aux))
        if nl == 2:
            a.label("L_WO_SKIP%d" % p)
        qL.issue("WO%d" % p, 8 * 4 // nl)
    fill = {10: [("K", 0)], 11: [("K", 1)], 12: [("V", 0)], 13: [("K", 2)], 14: [("V", 1)], 15: [("K", 3)], 16: [("V", 2)]}
    nk, nv = 4, 3
    nw = opt.wfirst
    for e in range(17):
        if e < 16:
            lwait(["W%d" % e])
        if opt.lstamps and e >= 10:
            stamp(a, 17 + e - 10)
        bar("L", "Q%d" % e)
        if opt.wramp:
            for _ in range(2):
                if nw <= 15 and nw <= (e + NWS - 1 if e >= 1 else NWS - 1):
                    dma_w(nw); nw += 1
        elif e >= 1 and e + NWS - 1 <= 15:
            dma_w(e + NWS - 1)
        if e == 2 and opt.defer:
            later_setup()
        for kind, t in fill.get(e, []):
            dma_tile(kind, t)
        if opt.lstamps and e >= 10:
            stamp(a, 24 + e - 10)
    lwait(["K0"])
    bar("L", "Q17")
    stamp(a, 2)
    for _ in range(2):
        if nk <= opt.klead - 2:
            dma_tile("K", nk); nk += 1
        if nv <= opt.vlead - 2 or nv <= 0:
            dma_tile("V", nv); nv += 1
    if opt.fused_tail:
        srd(a, SRD_WS, P_WS, WS_BYTES)
        srd(a, SRD_DBG, P_DBG, 256)
        a("s_lshl_b32 s%d, s%d, 4" % (sT0, sGRP))
        a("v_mov_b32 v2, s%d" % sT0)
    wo_at = [int(x) for x in opt.wo_at.split(",")]
    if opt.halfbar:
        wo_at = [26, 30, 30, 31]
    assert wo_at[0] >= 26 and wo_at[1] >= 29 and wo_at[2] >= 30
    for t in range(-1, 32):
        if not att_bar(t):
            continue
        span = 1 if att_bar(t + 1) or t >= 31 else 2
        lwait(["K%d" % (t + 2 + i) for i in range(span)] + ["V%d" % (t + i) for i in range(span)])
        bar("L", "A%s" % ("m1" if t < 0 else str(t)), opt.x_nobar)
        for _ in range(2 if not opt.halfbar else 3):
            if nk <= 31 and nk <= t + opt.klead:
                dma_tile("K", nk); nk += 1
            if nv <= 31 and nv <= t + opt.vlead and (nv <= 5 or nv <= t + 6):
                dma_tile("V", nv); nv += 1
        if opt.fused_tail and t == 2:
            a("buffer_load_dword v%d, v2, s[%d:%d], 0 offen sc1" % (vFLAG, SRD_DBG, SRD_DBG + 3))
            qL.issue("FLAG", 1)
        if opt.fused_tail and t == 14:
            lwait(["FLAG"])
            a("s_mov_b32 s%d, 0" % sT4)
            a.label("L_FLAG_CHECK")
            a("v_readfirstlane_b32 s%d, v%d" % (sT1, vFLAG))
            a("s_add_u32 s%d, s%d, 1" % (sT4, sT4))
            a("s_cmp_lg_u32 s%d, 0" % sT1)
            a("s_cbranch_scc1 L_FLAG_OK")
            a("s_cmp_ge_u32 s%d, 0x%x" % (sT4, opt.spin_limit))
            a("s_cbranch_scc1 L_FLAG_OK")
            a("s_sleep 8")
            a("buffer_load_dword v%d, v2, s[%d:%d], 0 offen sc1" % (vFLAG, SRD_DBG, SRD_DBG + 3))
            a("s_waitcnt vmcnt(0)")
            a("s_branch L_FLAG_CHECK")
            a.label("L_FLAG_OK")
        for p_, t_ in enumerate(wo_at):
            if t == t_:
                dma_wo(p_)
    assert nk == 32 and nv == 32
    lwait(["WO0"])
    bar("L", "E00")
    for p_, t_ in enumerate(wo_at):
        if t_ == 32:
            dma_wo(p_)
    bar("L", "E0")
    stamp(a, 4)
    if opt.osched == 0:
        for p in range(1, 8):
            lwait(["WO%d" % p])
            bar("L", "P%d" % p)
            if p + 3 <= 7:
                dma_wo(p + 3, opt.onl)
    else:
        lwait(["WO1", "WO2", "WO3"])
        bar("L", "P1")
        dma_wo(4)
        dma_wo(5)
        lwait(["WO4", "WO5"])
        bar("L", "P4")
        dma_wo(6)
        dma_wo(7)
        lwait(["WO6"])
        bar("L", "P6")
        lwait(["WO7"])
        bar("L", "P7")
    stamp(a, 6)
    if opt.fused_tail:
        srd(a, SRD_OUT, P_OUT, 8 * 48 * 1024 * 2)
        a("s_lshl_b32 s%d, s%d, 4" % (sKS, sGRP))
        a("s_add_u32 s%d, s%d, s%d" % (sKS, sKS, sHP))
        a("s_mul_i32 s%d, s%d, %d" % (sKS, sKS, 16 * 3072))
        reduce_pre(a, sW, sKS, sGRP, sHP, 0)
        if opt.persrc:
            assert opt.twostage
            a("s_lshl_b32 s%d, s%d, 8" % (sT0, sGRP))
            a("s_add_u32 s%d, s%d, 0x%x" % (sT0, sT0, WS_CNT))
            a("s_lshl_b32 s%d, s%d, 2" % (sT1, sHP))
            a("s_add_u32 s%d, s%d, s%d" % (sT1, sT1, sT0))
            a("v_mov_b32 v5, s%d" % sT1)
            a("s_add_u32 s%d, s%d, 128" % (sT1, sT1))
            a("v_mov_b32 v2, s%d" % sT1)
            a("v_mov_b32 v6, 1")
            a("s_lshr_b32 s%d, s%d, 2" % (sT1, sHP))
            a("s_sub_u32 s%d, s%d, s%d" % (sT1, sT1, sB))
            a("s_and_b32 s%d, s%d, 2" % (sT1, sT1))
            a("s_lshl_b32 s%d, s%d, 6" % (sT1, sT1))
            a("s_add_u32 s%d, s%d, s%d" % (sT0, sT0, sT1))
            a("v_lshlrev_b32 v7, 2, v0")
            a("v_add_u32 v7, s%d, v7" % sT0)
            a("v_mov_b32 v8, 0")
            a("s_cmp_lg_u32 s%d, 6" % sW)
            a("s_cbranch_scc1 L_NOMASK")
            a("ds_write_b32 v50, v8")
            a("s_waitcnt lgkmcnt(0)")
            a.label("L_NOMASK")
            bar("L", "Fa")
            a("s_mov_b64 s[%d:%d], exec" % (sT2, sT3))
            a("s_cmp_lg_u32 s%d, 4" % sW)
            a("s_cbranch_scc1 L_NOSIG_A")
            a("s_mov_b64 exec, 1")
            a("buffer_atomic_add v6, v5, s[%d:%d], 0 offen sc1" % (SRD_WS, SRD_WS + 3))
            a("s_mov_b64 exec, s[%d:%d]" % (sT2, sT3))
            a.label("L_NOSIG_A")
            bar("L", "F0")
            a("s_cmp_eq_u32 s%d, 7" % sW)
            a("s_cbranch_scc1 L_END")
            a("s_cmp_eq_u32 s%d, 5" % sW)
            a("s_cbranch_scc1 L_REDUCE")
            a("s_cmp_eq_u32 s%d, 6" % sW)
            a("s_cbranch_scc1 L_POLLER")
            a("s_mov_b64 exec, 1")
            a("buffer_atomic_add v6, v2, s[%d:%d], 0 offen sc1" % (SRD_WS, SRD_WS + 3))
            a("s_mov_b64 exec, s[%d:%d]" % (sT2, sT3))
            a("s_branch L_REDUCE")
            a.label("L_POLLER")
            a("s_mov_b64 exec, 0xffff")
            a("s_mov_b32 s%d, 0" % sT4)
            a.label("L_POLL")
            a("buffer_load_dword v9, v7, s[%d:%d], 0 offen sc1" % (SRD_WS, SRD_WS + 3))
            a("s_add_u32 s%d, s%d, 1" % (sT4, sT4))
            a("s_waitcnt vmcnt(0)")
            a("v_cmp_ne_u32 vcc, 0, v9")
            a("s_nop 3")
            a("s_and_b32 s%d, vcc_lo, 0xffff" % sT1)
            a("s_cmp_ge_u32 s%d, 0x%x" % (sT4, opt.spin_limit))
            a("s_cselect_b32 s%d, 0xffff, s%d" % (sT1, sT1))
            a("v_mov_b32 v10, s%d" % sT1)
            a("ds_write_b32 v50, v10")
            a("s_cmp_eq_u32 s%d, 0xffff" % sT1)
            a("s_cbranch_scc1 L_END")
            if opt.sleep:
                a("s_sleep %d" % opt.sleep)
            a("s_branch L_POLL")
            a.label("L_REDUCE")
            stamp(a, 7)
            reduce_body(a, SRD_WS, SRD_OUT, "sc1", dynamic=True)
        else:
            a("s_lshl_b32 s%d, s%d, 8" % (sT0, sGRP))
            a("s_add_u32 s%d, s%d, 0x%x" % (sT0, sT0, WS_CNT))
            a("v_mov_b32 v5, s%d" % sT0)
            a("s_add_u32 s%d, s%d, 128" % (sT0, sT0))
            a("v_mov_b32 v2, s%d" % sT0)
            a("v_mov_b32 v3, 1")
            a("v_mov_b32 v6, 1")
            if opt.twostage:
                bar("L", "Fa")
                a("s_cmp_lg_u32 s%d, 4" % sW)
                a("s_cbranch_scc1 L_NOSIG_A")
                a("s_mov_b64 s[%d:%d], exec" % (sT2, sT3))
                a("s_mov_b64 exec, 1")
                a("buffer_atomic_add v6, v5, s[%d:%d], 0 offen sc1" % (SRD_WS, SRD_WS + 3))
                a("s_mov_b64 exec, s[%d:%d]" % (sT2, sT3))
                a.label("L_NOSIG_A")
            bar("L", "F0")
            a("s_cmp_lg_u32 s%d, 4" % sW)
            a("s_cbranch_scc1 L_REDUCE")
            a("s_mov_b64 s[%d:%d], exec" % (sT2, sT3))
            a("s_mov_b64 exec, 1")
            a("buffer_atomic_add v3, v2, s[%d:%d], 0 offen sc0 sc1" % (SRD_WS, SRD_WS + 3))
            a("s_mov_b32 s%d, 0" % sT4)
            if opt.twostage:
                a("s_lshr_b32 s%d, s%d, 2" % (sT0, sHP))
                a("s_sub_u32 s%d, s%d, s%d" % (sT0, sT0, sB))
                a("s_and_b32 s%d, s%d, 3" % (sT0, sT0))
                a("s_cmp_ge_u32 s%d, 2" % sT0)
                a("s_cbranch_scc1 L_LATE_SLICE")
                a("v_mov_b32 v2, v5")
                a("s_branch L_POLL_START")
                a.label("L_LATE_SLICE")
            a("s_waitcnt vmcnt(0)")
            a("v_readfirstlane_b32 s%d, v3" % sT1)
            a("s_cmp_ge_u32 s%d, 15" % sT1)
            a("s_cbranch_scc1 L_POLL_DONE")
            a.label("L_POLL_START")
            for i in range(opt.npoll - 1):
                a("buffer_load_dword v%d, v2, s[%d:%d], 0 offen sc1" % (52 + i, SRD_WS, SRD_WS + 3))
                a("s_sleep %d" % opt.sleep)
            a.label("L_POLL")
            for i in range(opt.npoll):
                a("buffer_load_dword v%d, v2, s[%d:%d], 0 offen sc1" % (52 + (i + opt.npoll - 1) % opt.npoll, SRD_WS, SRD_WS + 3))
                a("s_add_u32 s%d, s%d, 1" % (sT4, sT4))
                a("s_waitcnt vmcnt(%d)" % (opt.npoll - 1))
                a("v_readfirstlane_b32 s%d, v%d" % (sT1, 52 + i))
                a("s_cmp_ge_u32 s%d, 16" % sT1)
                a("s_cbranch_scc1 L_POLL_DONE")
                if opt.sleep:
                    a("s_sleep %d" % opt.sleep)
            a("s_cmp_lt_u32 s%d, 0x%x" % (sT4, opt.spin_limit))
            a("s_cbranch_scc1 L_POLL")
            a.label("L_POLL_DONE")
            a("s_mov_b64 exec, s[%d:%d]" % (sT2, sT3))
            a.label("L_REDUCE")
            a("s_barrier")
            stamp(a, 7)
            a("s_cmp_ge_u32 s%d, 6" % sW)
            a("s_cbranch_scc1 L_RED_IDLE")
            reduce_body(a, SRD_WS, SRD_OUT, "sc1")
        stamp(a, 8)
        if opt.x_stretch:
            a("s_cmp_lg_u32 s%d, 0" % sW)
            a("s_cbranch_scc1 L_END")
            a("s_mul_i32 s%d, s%d, %d" % (sDBG, sDBG, opt.x_stretch))
            a.label("L_STRETCH")
            a("s_memrealtime s[%d:%d]" % (sSTAMP, sSTAMP + 1))
            a("s_waitcnt lgkmcnt(0)")
            a("s_sub_u32 s%d, s%d, s100" % (sSTAMP, sSTAMP))
            a("s_cmp_lt_u32 s%d, s%d" % (sSTAMP, sDBG))
            a("s_cbranch_scc1 L_STRETCH")
        a("s_branch L_END")
        if not opt.persrc:
            a.label("L_RED_IDLE")
            a("s_barrier")

    a.label("L_END")
    a("s_endpgm")
    for lab, t, fix, first in rare:
        emit_rare(lab, t, fix, first)

    assert bars["C"] == bars["I"] == bars["L"], "barrier sequences differ:\n%s\n%s\n%s" % (bars["C"], bars["I"], bars["L"])


def gen_reduce(a):
    name = "attn_reduce_kernel"
    a(".p2align 8")
    a(".globl %s" % name)
    a(".type %s,@function" % name)
    a.label(name)
    if opt.stamps:
        a("s_memrealtime s[100:101]")
    a("s_cmp_ge_u32 s2, 256")
    a("s_cbranch_scc1 R_END")
    a("s_load_dwordx2 s[4:5], s[0:1], 80")
    a("s_load_dwordx2 s[6:7], s[0:1], 96")
    a("v_lshrrev_b32 v1, 6, v0")
    a("v_and_b32 v0, 63, v0")
    a("v_readfirstlane_b32 s3, v1")
    a("s_mul_i32 s16, s2, %d" % (16 * 3072))
    a("s_lshr_b32 s18, s2, 4")
    a("s_and_b32 s19, s2, 15")
    a("s_waitcnt lgkmcnt(0)")
    srd(a, 8, 6, WS_PART_BYTES)
    srd(a, 12, 4, 8 * 48 * 1024 * 2)
    reduce_pre(a, 3, 16, 18, 19, 0)
    reduce_body(a, 8, 12, "")
    a.label("R_END")
    a("s_endpgm")
    return name


VOP3_ONLY = ("v_mfma", "v_cvt_pk_bf16_f32", "v_max3", "v_lshl_add_u32", "v_bfe_u32", "v_dot2_f32_bf16", "v_pk_", "v_mul_lo", "v_add3",
             "v_writelane", "v_readlane", "v_and_or", "v_perm_b32", "v_lshl_or")
MEM = ("ds_", "buffer_", "global_", "s_load", "s_memtime", "s_memrealtime")
INLINE_F = ("0.5", "-0.5", "1.0", "-1.0", "2.0", "-2.0", "4.0", "-4.0")


def has_literal(ops):
    for o in ops:
        o = o.strip()
        if re.fullmatch(r"[A-Z][A-Z_]+", o):
            return True
        if re.fullmatch(r"-?(0x[0-9a-fA-F]+|\d+)", o):
            v = int(o, 0)
            if not -16 <= v <= 64:
                return True
    return False


def ins_size(ln):
    op, _, rest = ln.partition(" ")
    ops = rest.split(",")
    if op.startswith(MEM):
        return 8
    if op.startswith(("s_waitcnt", "s_barrier", "s_nop", "s_branch", "s_cbranch", "s_setprio", "s_endpgm", "s_sleep")):
        return 4
    if op.startswith("v_"):
        if op.startswith(VOP3_ONLY) or op.endswith("_e64") or re.search(r"[ ,]-v\d|abs\(", " " + rest):
            return 8
        return 8 if has_literal(ops) else 4
    return 8 if has_literal(ops) else 4


def widenable(ln):
    op, _, rest = ln.partition(" ")
    return op.startswith("v_") and ins_size(ln) == 4 and not op.startswith(("v_readfirstlane", "v_permlane", "v_nop")) and not op.endswith("_e32")


def align_pass(lines):
    out = list(lines)
    off, run = 0, []
    fixed = missed = 0
    for i, ln in enumerate(out):
        t = ln.strip()
        if not t or t[0] == ";":
            continue
        if t.endswith(":"):
            continue
        if t.startswith(".p2align"):
            n = 1 << int(t.split()[1].rstrip(","))
            off = (off + n - 1) // n * n
            run = []
            continue
        if t[0] == ".":
            continue
        sz = ins_size(t)
        if sz == 8:
            if off % 8 == 4:
                cand = [j for j in run if widenable(out[j].strip())]
                if cand:
                    j = cand[-1]
                    op, _, rest = out[j].strip().partition(" ")
                    out[j] = "    %s_e64 %s" % (op, rest)
                    off += 4
                    fixed += 1
                else:
                    missed += 1
            run = []
        else:
            run.append(i)
        off += sz
    return out, fixed, missed


def kd(name, vgpr, sgpr):
    acc = (vgpr + 3) // 4 * 4
    return """.p2align 6
.amdhsa_kernel %s
  .amdhsa_next_free_vgpr %d
  .amdhsa_next_free_sgpr %d
  .amdhsa_accum_offset %d
  .amdhsa_group_segment_fixed_size 0
  .amdhsa_kernarg_size 104
  .amdhsa_user_sgpr_count 2
  .amdhsa_user_sgpr_kernarg_segment_ptr 1
  .amdhsa_system_sgpr_workgroup_id_x 1
.end_amdhsa_kernel
""" % (name, vgpr, sgpr, acc)


DESCRIPTION = """;
; One launch, 256 workgroups of 8 waves, one workgroup per CU:  workgroup = (branch, batch, head pair) = 96 query rows x 1024 keys.
;   phase 1  Q^T = wq^T x^T (16x16x32 MFMA, waves 0-3), scaled by log2(e)/sqrt(128), handed over through LDS
;   phase 2  attention: waves 0-2 own 32 rows each; S^T = K Q^T - m and O^T += V^T P^T on 32x32x16 MFMA, software pipelined over
;            32-key tiles.  m starts at the true row max of the first tile; whenever a lane's exp sum leaves the safe range the
;            out-of-line path raises m to the true running max and rescales O, l and the pending scores.
;   phase 3  partial out^T = wo^T O^T over this workgroup's 256 k values, stored as bf16 (write-through) in d_ws
;   phase 4  after a counter hand-off the 16 workgroups of a (branch, batch) each sum 16 partials of a 48 x 32 output slice
; Waves 4-7 stream x-independent operands (wq, K, V, wo) into LDS rings with LDS-DMA; every hand-over inside a workgroup is an s_barrier
; preceded by the producer's counted s_waitcnt.  d_debug carries one flag per group (its counters in d_ws have been cleared).
; Generated by the author's own script (gen3.py).""".split("\n")


def build():
    hdr = open("cdna_kernels/%s.s.ref" % NAME).read().split("\n")
    head = [ln for ln in hdr if ln.startswith(";") and "@launch" not in ln][:14]
    a = Prog()
    main = "attn_main_kernel" if multi() else NAME + "_kernel"
    if multi():
        head.append("; @launch kernel=attn_main_kernel grid=(256,1,1) block=(512,1,1) lds=%d" % LDS_BYTES)
        head.append("; @launch kernel=attn_reduce_kernel grid=(256,1,1) block=(384,1,1) lds=6144")
    else:
        head.append("; @launch grid=(256,1,1) block=(512,1,1) lds=%d" % LDS_BYTES)
        head += DESCRIPTION
    a('.amdgcn_target "amdgcn-amd-amdhsa--gfx950"')
    a(".text")
    a(".globl %s" % main)
    a(".p2align 8")
    a(".type %s,@function" % main)
    gen_main(a, main)
    kds = kd(main, NVGPR, NSGPR)
    if multi():
        kds += kd(gen_reduce(a), 56, 80)
    body = a.text()
    if opt.align:
        lines, fixed, missed = align_pass(body.split("\n"))
        body = "\n".join(lines)
        print("alignment pass: widened %d, unfixable %d" % (fixed, missed))
    return "\n".join(head) + "\n" + body + '.section .rodata,"a"\n' + kds


if __name__ == "__main__":
    out = sys.argv[1] if len(sys.argv) > 1 else "cdna_kernels/%s.s" % NAME
    for kv in sys.argv[2:]:
        k, v = kv.split("=", 1)
        cur = getattr(opt, k)
        if isinstance(cur, bool):
            v = v in ("1", "True", "true")
        elif isinstance(cur, int):
            v = int(v)
        elif v == "None":
            v = None
        setattr(opt, k, v)
    s = build()
    open(out, "w").write(s)
    print("wrote", out, len(s), "bytes,", s.count("\n"), "lines")
```

```python
import sys, math, struct, re

NAME = "concat_heads__gqa_block_cached__gqa_block_cached__near_ridge"


class Opt:
    fused_tail = True
    kv_aux = "nt"
    w_aux = ""
    dump = None
    L = 6
    waitstep = 4
    thr_log2 = 12
    stamps = 0
    sumop = "add"
    prio = 0
    sleep = 2
    out_aux = ''
    swap = 0
    pf0 = 2
    npe = 8
    wopf = False
    persrc = False
    halfbar = False
    rotbr = 16
    rot = 1
    shortend = True
    twostage = True
    k_aux = 'same'
    v_aux = ''
    accmode = 1
    defer = True
    loop_align = 3
    loop_pad = 0
    wramp = 1
    latest = 0
    korder = 0
    dum = 0
    npoll = 1
    brpos = 0
    waitphase = 0
    x_fast = False
    oprio = 0
    osched = 0
    onl = 4
    wo_at = '26,29,30,31'
    wo_aux = ''
    pf_tiles = 0
    pf_first = 0
    pf_aux = ''
    wosched = 0
    wfirst = 3
    mtrick = True
    klead = 7
    vlead = 5
    spin_limit = 1 << 20
    lstamps = False
    x_stretch = 0
    x_mark = 'end'
    codepf = False
    codepf_n = 3
    dscost = 8
    slotcap = 40
    align = True
    x_nobar = False
    x_nosm = False
    x_nods = False
    x_norare = False
    x_nomfma = False
    x_kv_nodma = False
    x_q_nomfma = False
    x_q_nods = False
    x_q_nodma = False
    x_o_nodma = False
    x_o_nomfma = False
    x_o_nost = False
    x_o_nods = False
    x_t_nords = False
    x_t_nowr = False


opt = Opt()

KB = 1024
K_BASE = 0
V_BASE = 64 * KB
M_BASE = 128 * KB
MROW = 272
X_BASE = 112 * KB
NWS = 7
LDS_BYTES = 160 * KB
RWO = [32 * KB, 64 * KB, 0, 128 * KB, 32 * KB, 96 * KB, 64 * KB, 0]
RWO0 = [32 * KB, 64 * KB, 0, 128 * KB, 32 * KB, 64 * KB, 0, 128 * KB]
O_BASE = 96 * KB
def kslot(t):
    return (t + 4) % 8

WS_PART_BYTES = 16 * 16 * 16 * 3072
WS_CNT = 14 << 20
WS_DUMP = 16 << 20
WS_STAMP = 48 << 20
WS_BYTES = 268435456

sW = 3
sB, sHP, sBR, sKVH = 4, 5, 6, 7
SRD_X, SRD_WQ, SRD_K, SRD_V, SRD_WO, SRD_WS = 8, 12, 16, 20, 24, 28
sT0, sT1, sT2, sT3, sT4, sT5 = 32, 33, 34, 35, 36, 37
sGRP = 38
sOFF = 39
sPASS = 40
sTHR = 41
sKS = 42
sPOFF = 43
sSTAMP = 44
sDBG = 46
SRD_OUT = 48
SRD_ST = 52
P_X, P_K, P_V, P_WQ = 56, 58, 60, 62
KA = 64
P_OUT, P_DBG, P_WS = KA + 20, KA + 22, KA + 24
P_WO = 90
sSTOFF = 92
sJ, sJ64K, sJ2K = 93, 94, 95
sROT = 70
sSWP = 76
SRD_DBG = 96
NSGPR = 102

vL = 0
vT = [1, 2, 3, 4, 5, 6, 7, 8, 9]
vKA = list(range(10, 18))
vVA = list(range(18, 22))
vWA = list(range(22, 26))
vXB, vXT = 26, 27
vXB1 = 248
vPSA, vPSB, vLACC, vTMP = 28, 29, 30, 31
vQ = 32
vO = 64
vS = [128, 144]
vNM = 160
vP = [176, 184]
vF = 192
vE = 224
vWA2 = [232, 233, 234, 235]
vQW = 236
vOW = 237
vOR = 240
vQR = 241
vVP = 242
vFLAG = 243
vWOA = 244
vWOT = [245, 246]
vST = 247
vDUM = 249
vSTA, vSTB = 250, 251
NVGPR = 252
def acc1(i):
    if opt.accmode == 0:
        return vO + 4 * i
    return vQ + 4 * i if i < 8 else vF + 4 * (i - 8)
vA1 = [128, 144]
vB1 = [160, 172]
vB3 = 32
vA3 = [128, 160]
vACC3 = [192, 216]
vLW = [10, 11, 12, 13]
vLK = [14, 15]
vLV = 16
vLWO = [18, 19, 20, 21]


def f32bits(x):
    return struct.unpack("<I", struct.pack("<f", x))[0]


def att_bar(t):
    return (not opt.halfbar) or t <= 0 or t == 31 or t % 2 == 0


class Prog:
    def __init__(self):
        self.lines = []
    def __call__(self, s):
        self.lines += s.split("\n")
    def label(self, s):
        self.lines.append(s + ":")
    def text(self):
        out = []
        for ln in self.lines:
            ln = ln.strip()
            if ln:
                out.append(ln if ln.endswith(":") or ln[0] in ".;" else "    " + ln)
        return "\n".join(out) + "\n"


def vr(b, n):
    return "v[%d:%d]" % (b, b + n - 1) if n > 1 else "v%d" % b


class Queue:
    def __init__(self, limit):
        self.q = []
        self.limit = limit
    def issue(self, tag, n=1):
        self.q += [tag] * n
        assert len(self.q) <= self.limit, (tag, len(self.q))
    def need(self, tags):
        last = -1
        for i, t in enumerate(self.q):
            if t in tags:
                last = i
        if last < 0:
            return None
        n = len(self.q) - 1 - last
        self.q = self.q[last + 1:]
        return n
    def drain(self):
        self.q = []


def srd(a, base, ptr, size, off_s=None):
    if off_s is None:
        a("s_mov_b32 s%d, s%d" % (base, ptr))
        a("s_mov_b32 s%d, s%d" % (base + 1, ptr + 1))
    else:
        a("s_add_u32 s%d, s%d, s%d" % (base, ptr, off_s))
        a("s_addc_u32 s%d, s%d, 0" % (base + 1, ptr + 1))
    a("s_mov_b32 s%d, 0x%x" % (base + 2, size))
    a("s_mov_b32 s%d, 0x20000" % (base + 3))


MARKS = {1: "x", 2: "q", 3: "att", 5: "gemm", 6: "drain", 7: "sync", 8: "end"}


def stamp(a, idx):
    if opt.x_stretch and MARKS.get(idx) == opt.x_mark:
        a("s_memrealtime s[%d:%d]" % (sSTAMP, sSTAMP + 1))
        a("s_waitcnt lgkmcnt(0)")
        a("s_sub_u32 s%d, s%d, s100" % (sDBG, sSTAMP))
    if not opt.stamps or (opt.stamps == 2 and idx not in (0, 8)) or (opt.stamps in (3, 4) and idx not in (0, 2, 3, 4, 5, 6, 7, 8)) or (opt.stamps == 5 and idx not in (0, 2, 8, 20, 21, 22, 23, 24, 25, 26, 27)):
        return
    a("s_memrealtime s[%d:%d]" % (sSTAMP, sSTAMP + 1))
    a("s_memtime s[%d:%d]" % (sDBG, sDBG + 1))
    a("s_waitcnt lgkmcnt(0)")
    a("v_mov_b32 v%d, s%d" % (vSTA, sSTAMP))
    a("v_mov_b32 v%d, s%d" % (vSTB, sSTOFF))
    a("buffer_store_dword v%d, v%d, s[%d:%d], 0 offen offset:%d" % (vSTA, vSTB, SRD_ST, SRD_ST + 3, idx * 4))
    a("v_mov_b32 v%d, s%d" % (vSTA, sDBG))
    a("buffer_store_dword v%d, v%d, s[%d:%d], 0 offen offset:%d" % (vSTA, vSTB, SRD_ST, SRD_ST + 3, 128 + idx * 4))


def fill_cost(ins):
    op = ins.split()[0]
    return 8 if op.startswith(("ds_", "buffer_", "v_exp", "v_rcp")) else 4


def interleave(a, mfmas, fill, gap=8):
    total = sum(fill_cost(f) for f in fill)
    per = max(gap, -(-total // max(len(mfmas), 1))) if mfmas else 0
    i, credit = 0, 0
    for m in mfmas:
        a(m)
        credit += per
        while i < len(fill) and fill_cost(fill[i]) <= credit:
            credit -= fill_cost(fill[i])
            a(fill[i]); i += 1
    while i < len(fill):
        a(fill[i]); i += 1


def multi():
    return not opt.fused_tail


def dump_regs(a, base, n):
    a("s_lshl_b32 s%d, s2, 3" % sT0)
    a("s_add_u32 s%d, s%d, s%d" % (sT0, sT0, sW))
    a("s_mul_i32 s%d, s%d, %d" % (sT0, sT0, 96 * 256))
    a("s_add_u32 s%d, s%d, 0x%x" % (sT0, sT0, WS_DUMP))
    a("v_lshlrev_b32 v%d, 4, v%d" % (vT[8], vL))
    for g in range(n // 4):
        a("buffer_store_dwordx4 %s, v%d, s[%d:%d], s%d offen" % (vr(base + g * 4, 4), vT[8], SRD_WS, SRD_WS + 3, sT0))
        a("s_add_u32 s%d, s%d, 1024" % (sT0, sT0))
    a("s_waitcnt vmcnt(0)")


RT = [64, 65, 66, 67, 68, 69]


def reduce_pre(a, s_w, s_wgoff, s_grp, s_dest, lds_base):
    t = RT
    a("s_cmp_ge_u32 s%d, 3" % s_w)
    a("s_cselect_b32 s%d, 1, 0" % t[3])
    a("s_mul_i32 s%d, s%d, 3" % (t[4], t[3]))
    a("s_sub_u32 s%d, s%d, s%d" % (t[4], s_w, t[4]))
    a("v_lshlrev_b32 v46, 4, v0")
    a("s_lshl_b32 s%d, s%d, 10" % (t[0], t[4]))
    a("s_add_u32 s%d, s%d, s%d" % (t[0], t[0], s_wgoff))
    a("s_mul_i32 s%d, s%d, %d" % (t[1], t[3], 8 * 3072))
    a("s_add_u32 s%d, s%d, s%d" % (t[0], t[0], t[1]))
    a("s_lshl_b32 s%d, s%d, 11" % (t[2], t[4]))
    a("s_add_u32 s%d, s%d, %d" % (t[2], t[2], lds_base))
    a("v_lshlrev_b32 v47, 5, v0")
    a("v_add_u32 v47, s%d, v47" % t[2])
    a("s_and_b32 s%d, s%d, 7" % (t[1], s_grp))
    a("s_lshr_b32 s%d, s%d, 3" % (t[2], s_grp))
    a("s_mul_i32 s%d, s%d, 48" % (t[1], t[1]))
    a("s_lshl_b32 s%d, s%d, 4" % (t[4], t[4]))
    a("s_add_u32 s%d, s%d, s%d" % (t[1], t[1], t[4]))
    a("s_lshl_b32 s%d, s%d, 11" % (t[1], t[1]))
    a("s_lshl_b32 s%d, s%d, 10" % (t[2], t[2]))
    a("s_add_u32 s%d, s%d, s%d" % (t[1], t[1], t[2]))
    a("s_lshl_b32 s%d, s%d, 6" % (t[2], s_dest))
    a("s_add_u32 s%d, s%d, s%d" % (t[1], t[1], t[2]))
    a("v_and_b32 v48, 15, v0")
    a("v_lshrrev_b32 v49, 4, v0")
    a("v_lshlrev_b32 v48, 11, v48")
    a("v_lshl_add_u32 v48, v49, 3, v48")
    a("s_mov_b32 s%d, 0xffff0000" % t[5])
    a("v_mov_b32 v50, 0x2000")


def reduce_body(a, srd_ws, srd_out, aux, dynamic=False):
    t = RT
    if dynamic:
        sPEND, sNEW, sSH, sA = 72, 73, 74, 75
        a("s_mov_b32 s%d, 0xff" % sPEND)
        a("s_lshl_b32 s%d, s%d, 3" % (sSH, t[3]))
        a.label("L_RED_WAIT")
        a("ds_read_b32 v51, v50")
        a("s_waitcnt lgkmcnt(0)")
        a("v_readfirstlane_b32 s%d, v51" % sNEW)
        a("s_nop 3")
        a("s_lshr_b32 s%d, s%d, s%d" % (sNEW, sNEW, sSH))
        a("s_and_b32 s%d, s%d, s%d" % (sNEW, sNEW, sPEND))
        a("s_cbranch_scc0 L_RED_WAIT")
        a("s_xor_b32 s%d, s%d, s%d" % (sPEND, sPEND, sNEW))
        for s in range(8):
            a("s_bitcmp1_b32 s%d, %d" % (sNEW, s))
            a("s_cbranch_scc0 L_RED_SKIP%d" % s)
            a("s_add_u32 s%d, s%d, %d" % (sA, t[0], s * 3072))
            a("buffer_load_dwordx4 %s, v46, s[%d:%d], s%d offen %s" % (vr(12 + 4 * s, 4), srd_ws, srd_ws + 3, sA, aux))
            a.label("L_RED_SKIP%d" % s)
        a("s_cmp_lg_u32 s%d, 0" % sPEND)
        a("s_cbranch_scc1 L_RED_WAIT")
        a("s_waitcnt vmcnt(0)")
    else:
        for s in range(8):
            a("buffer_load_dwordx4 %s, v46, s[%d:%d], s%d offen %s" % (vr(12 + 4 * s, 4), srd_ws, srd_ws + 3, t[0], aux))
            if s < 7:
                a("s_add_u32 s%d, s%d, 3072" % (t[0], t[0]))
    for s in range(8):
        if not dynamic:
            a("s_waitcnt vmcnt(%d)" % (7 - s))
        for d in range(4):
            x = 12 + 4 * s + d
            if s == 0:
                a("v_lshlrev_b32 v%d, 16, v%d" % (4 + 2 * d, x))
                a("v_and_b32 v%d, s%d, v%d" % (5 + 2 * d, t[5], x))
            else:
                a("v_lshlrev_b32 v44, 16, v%d" % x)
                a("v_and_b32 v45, s%d, v%d" % (t[5], x))
                a("v_add_f32 v%d, v%d, v44" % (4 + 2 * d, 4 + 2 * d))
                a("v_add_f32 v%d, v%d, v45" % (5 + 2 * d, 5 + 2 * d))
    a("s_cmp_eq_u32 s%d, 0" % t[3])
    a("s_cbranch_scc1 L_RED_LOW")
    a("ds_write_b128 v47, v[4:7]")
    a("ds_write_b128 v47, v[8:11] offset:16")
    a("s_waitcnt lgkmcnt(0)")
    a("s_barrier")
    a("s_branch L_RED_DONE")
    a.label("L_RED_LOW")
    a("s_barrier")
    a("ds_read_b128 v[12:15], v47")
    a("ds_read_b128 v[16:19], v47 offset:16")
    a("s_waitcnt lgkmcnt(0)")
    for d in range(8):
        a("v_add_f32 v%d, v%d, v%d" % (4 + d, 4 + d, 12 + d))
    for d in range(4):
        a("v_cvt_pk_bf16_f32 v%d, v%d, v%d" % (4 + d, 4 + 2 * d, 5 + 2 * d))
    a("buffer_store_dwordx2 v[4:5], v48, s[%d:%d], s%d offen %s" % (srd_out, srd_out + 3, t[1], opt.out_aux))
    a("buffer_store_dwordx2 v[6:7], v48, s[%d:%d], s%d offen offset:32 %s" % (srd_out, srd_out + 3, t[1], opt.out_aux))
    a.label("L_RED_DONE")


def gen_main(a, name):
    bars = {"C": [], "I": [], "L": []}
    part_aux = "sc1" if opt.fused_tail else ""

    def bar(roles, nm, skip=False):
        if not skip:
            a("s_barrier")
        for r in roles:
            bars[r].append(nm)

    a.label(name)
    if opt.stamps:
        a("s_memrealtime s[100:101]")
    a("s_cmp_ge_u32 s2, 256")
    a("s_cbranch_scc1 L_END")
    a("s_load_dwordx16 s[%d:%d], s[0:1], 0" % (KA, KA + 15))
    a("s_load_dwordx8 s[%d:%d], s[0:1], 64" % (KA + 16, KA + 23))
    a("s_load_dwordx2 s[%d:%d], s[0:1], 96" % (KA + 24, KA + 25))
    if opt.x_stretch:
        a("s_memrealtime s[100:101]")
    a("s_and_b32 s%d, s2, 7" % sT0)
    a("s_lshr_b32 s%d, s2, 3" % sT1)
    a("s_lshr_b32 s%d, s%d, 4" % (sT2, sT1))
    a("s_lshl_b32 s%d, s%d, 1" % (sT0, sT0))
    a("s_add_u32 s%d, s%d, s%d" % (sT0, sT0, sT2))
    a("s_lshr_b32 s%d, s%d, 3" % (sBR, sT0))
    a("s_and_b32 s%d, s%d, 7" % (sKVH, sT0))
    a("s_bfe_u32 s%d, s%d, 0x30001" % (sB, sT1))
    a("s_and_b32 s%d, s%d, 1" % (sT2, sT1))
    a("s_lshl_b32 s%d, s%d, 1" % (sHP, sKVH))
    a("s_add_u32 s%d, s%d, s%d" % (sHP, sHP, sT2))
    a("v_lshrrev_b32 v1, 6, v0")
    a("v_and_b32 v0, 63, v0")
    a("v_readfirstlane_b32 s%d, v1" % sW)
    a("s_lshl_b32 s%d, s%d, 3" % (sGRP, sBR))
    a("s_add_u32 s%d, s%d, s%d" % (sGRP, sGRP, sB))
    if opt.codepf:
        a("s_cmp_lg_u32 s%d, 3" % sW)
        a("s_cbranch_scc1 L_NOPF")
        a("s_getpc_b64 s[%d:%d]" % (sT2, sT3))
        a.label("L_PC")
        a("v_lshlrev_b32 v2, 7, v0")
        a("v_mov_b32 v5, s%d" % sT3)
        a("v_add_co_u32 v4, vcc, s%d, v2" % sT2)
        a("s_nop 1")
        a("v_addc_co_u32 v5, vcc, 0, v5, vcc")
        a(".set PF_BYTES, L_END - L_PC")
        for i in range(opt.codepf_n):
            if i:
                a("v_add_co_u32 v4, vcc, 0x2000, v4")
                a("s_nop 1")
                a("v_addc_co_u32 v5, vcc, 0, v5, vcc")
            a("v_add_u32 v3, %d, v2" % (i * 8192))
            a("v_cmp_gt_u32 vcc, PF_BYTES, v3")
            a("s_and_saveexec_b64 s[%d:%d], vcc" % (sT0, sT1))
            a("s_cbranch_execz L_PF_SKIP%d" % i)
            a("global_load_dword v%d, v[4:5], off" % vDUM)
            a.label("L_PF_SKIP%d" % i)
            a("s_mov_b64 exec, s[%d:%d]" % (sT0, sT1))
        a.label("L_NOPF")
    a("s_waitcnt lgkmcnt(0)")
    a("s_cmp_eq_u32 s%d, 0" % sBR)
    for dst, pa, pb in ((P_WQ, KA + 6, KA + 16), (P_X, KA + 0, KA + 10), (P_K, KA + 2, KA + 12),
                        (P_V, KA + 4, KA + 14), (P_WO, KA + 8, KA + 18)):
        a("s_cselect_b32 s%d, s%d, s%d" % (dst, pa, pb))
        a("s_cselect_b32 s%d, s%d, s%d" % (dst + 1, pa + 1, pb + 1))
    if opt.stamps:
        srd(a, SRD_ST, P_WS, WS_BYTES)
        a("s_lshl_b32 s%d, s2, 3" % sSTOFF)
        a("s_add_u32 s%d, s%d, s%d" % (sSTOFF, sSTOFF, sW))
        a("s_lshl_b32 s%d, s%d, 8" % (sSTOFF, sSTOFF))
        a("s_add_u32 s%d, s%d, 0x%x" % (sSTOFF, sSTOFF, WS_STAMP))
        a("v_mov_b32 v%d, s100" % vSTA)
        a("v_mov_b32 v%d, s%d" % (vSTB, sSTOFF))
        a("buffer_store_dword v%d, v%d, s[%d:%d], 0 offen offset:%d" % (vSTA, vSTB, SRD_ST, SRD_ST + 3, 31 * 4))
        stamp(a, 0)
    a("s_cmp_ge_u32 s%d, 4" % sW)
    a("s_cbranch_scc1 L_LOADER")

    a("s_cmp_eq_u32 s%d, 3" % sW)
    a("s_cbranch_scc1 L_W3_START")
    a("s_mul_i32 s%d, s%d, 49152" % (sT0, sB))
    srd(a, SRD_X, P_X, 49152, sT0)
    a("v_lshrrev_b32 v2, 3, v0")
    a("v_and_b32 v3, 7, v0")
    a("v_lshrrev_b32 v4, 4, v0")
    a("v_xor_b32 v3, v3, v4")
    a("v_lshlrev_b32 v3, 4, v3")
    a("v_lshl_add_u32 v2, v2, 10, v3")
    a("v_xor_b32 v3, 64, v2")
    a("v_add_u32 v3, 7168, v3")
    a("s_lshl_b32 s%d, s%d, 14" % (sT1, sW))
    a("s_lshl_b32 s%d, s%d, 11" % (sT3, sW))
    a("s_add_u32 s%d, s%d, %d" % (sT3, sT3, X_BASE))
    for c in range(8):
        a("s_add_u32 s%d, s%d, %d" % (sT0, sB, c))
        a("s_and_b32 s%d, s%d, 7" % (sT0, sT0))
        a("s_mul_i32 s%d, s%d, 6144" % (sT4, sT0))
        a("s_lshl_b32 s%d, s%d, 7" % (sT2, sT0))
        a("s_add_u32 m0, s%d, s%d" % (sT4, sT3))
        a("s_add_u32 s%d, s%d, s%d" % (sT2, sT2, sT1))
        a("buffer_load_dwordx4 v2, s[%d:%d], s%d offen %s lds" % (SRD_X, SRD_X + 3, sT2, opt.w_aux))
        a("buffer_load_dwordx4 v3, s[%d:%d], s%d offen offset:1024 %s lds" % (SRD_X, SRD_X + 3, sT2, opt.w_aux))

    a("s_branch L_WORK_SETUP")
    a.label("L_W3_START")
    if opt.fused_tail:
        a("s_cmp_lg_u32 s%d, 0" % sHP)
        a("s_cbranch_scc1 L_WORK_SETUP")
        srd(a, SRD_WS, P_WS, WS_BYTES)
        srd(a, SRD_DBG, P_DBG, 256)
        a("s_lshl_b32 s%d, s%d, 8" % (sT0, sGRP))
        a("s_add_u32 s%d, s%d, 0x%x" % (sT0, sT0, WS_CNT))
        a("s_lshl_b32 s%d, s%d, 4" % (sT1, sGRP))
        a("s_mov_b64 s[%d:%d], exec" % (sT2, sT3))
        a("v_mov_b32 v2, 0")
        a("v_mov_b32 v3, 1")
        if opt.persrc:
            a("v_lshrrev_b32 v4, 4, v0")
            a("v_and_b32 v5, 15, v0")
            a("v_lshlrev_b32 v4, 7, v4")
            a("v_lshl_add_u32 v4, v5, 2, v4")
            a("s_mov_b32 exec_lo, -1")
            a("s_mov_b32 exec_hi, 0")
        else:
            a("v_lshlrev_b32 v4, 7, v0")
            a("s_mov_b64 exec, 3")
        a("buffer_store_dword v2, v4, s[%d:%d], s%d offen sc1" % (SRD_WS, SRD_WS + 3, sT0))
        a("s_mov_b64 exec, 1")
        a("s_waitcnt vmcnt(0)")
        a("buffer_atomic_add v3, v2, s[%d:%d], s%d offen sc1" % (SRD_DBG, SRD_DBG + 3, sT1))
        a("s_mov_b64 exec, s[%d:%d]" % (sT2, sT3))

    a.label("L_WORK_SETUP")
    l = vL
    t1, t2, t3, t4, t5 = vT[0:5]
    G, rp, cp = vT[5], vT[6], vT[7]
    a("v_and_b32 v%d, 15, v%d" % (t3, l))
    a("v_lshrrev_b32 v%d, 4, v%d" % (G, l))
    a("v_bfe_u32 v%d, v%d, 2, 2" % (rp, l))
    a("v_and_b32 v%d, 3, v%d" % (cp, l))
    a("v_lshrrev_b32 v%d, 1, v%d" % (t4, t3))
    a("v_xor_b32 v%d, v%d, v%d" % (t4, G, t4))
    a("v_lshlrev_b32 v%d, 4, v%d" % (t4, t4))
    a("v_lshl_add_u32 v%d, v%d, 7, v%d" % (t5, t3, t4))
    a("v_add_u32 v%d, 0x%x, v%d" % (vXB, X_BASE, t5))
    a("v_xor_b32 v%d, 64, v%d" % (vXB1, vXB))
    a("v_and_b32 v%d, 1, v%d" % (t4, G))
    a("v_lshl_add_u32 v%d, v%d, 2, v%d" % (t4, t4, rp))
    a("s_lshl_b32 s%d, s%d, 2" % (sT0, sW))
    a("v_xor_b32 v%d, s%d, v%d" % (t5, sT0, t4))
    a("v_lshlrev_b32 v%d, 5, v%d" % (t5, t5))
    a("v_lshl_add_u32 v%d, v%d, 3, v%d" % (t1, G, rp))
    a("v_lshl_add_u32 v%d, v%d, 9, v%d" % (t5, t1, t5))
    a("v_lshl_add_u32 v%d, v%d, 3, v%d" % (vWA[0], cp, t5))
    for nb in range(1, 4):
        a("v_xor_b32 v%d, %d, v%d" % (vWA[nb], nb * 32, vWA[0]))
    later = []
    d = later.append
    sD0, sD1 = sT3, sT4
    for nb in range(4):
        d("v_add_u32 v%d, 0x10000, v%d" % (vWA2[nb], vWA[nb]))
    d("s_lshl_b32 s%d, s%d, 1" % (sD0, sW))
    d("v_xor_b32 v%d, s%d, v%d" % (t5, sD0, t4))
    d("v_lshlrev_b32 v%d, 5, v%d" % (t5, t5))
    d("v_lshl_add_u32 v%d, v%d, 8, v%d" % (t5, t1, t5))
    d("v_lshl_add_u32 v%d, v%d, 3, v%d" % (vWOA, cp, t5))
    d("v_mul_u32_u24 v%d, %d, v%d" % (t5, MROW, t3))
    d("v_lshl_add_u32 v%d, v%d, 4, v%d" % (t4, G, t5))
    d("v_add_u32 v%d, 0x%x, v%d" % (vOR, O_BASE, t4))
    d("v_lshl_add_u32 v%d, v%d, 3, v%d" % (t4, G, t5))
    d("s_lshr_b32 s%d, s%d, 1" % (sD0, sW))
    d("s_mul_i32 s%d, s%d, %d" % (sD0, sD0, 48 * MROW))
    d("s_and_b32 s%d, s%d, 1" % (sD1, sW))
    d("s_lshl_b32 s%d, s%d, 7" % (sD1, sD1))
    d("s_add_u32 s%d, s%d, s%d" % (sD0, sD0, sD1))
    d("s_add_u32 s%d, s%d, %d" % (sD0, sD0, M_BASE))
    d("v_add_u32 v%d, s%d, v%d" % (vQW, sD0, t4))
    d("v_and_b32 v%d, 31, v%d" % (t1, l))
    d("v_lshrrev_b32 v%d, 5, v%d" % (t2, l))
    d("v_xor_b32 v%d, v%d, v%d" % (t4, t2, t3))
    d("v_lshlrev_b32 v%d, 4, v%d" % (t4, t4))
    d("v_lshl_add_u32 v%d, v%d, 8, v%d" % (vKA[0], t1, t4))
    for ks in range(1, 8):
        d("v_xor_b32 v%d, %d, v%d" % (vKA[ks], ks * 32, vKA[0]))
    d("v_mul_u32_u24 v%d, %d, v%d" % (t4, MROW, t1))
    d("s_mul_i32 s%d, s%d, %d" % (sD0, sW, 32 * MROW))
    d("v_add_u32 v%d, s%d, v%d" % (t4, sD0, t4))
    d("v_lshl_add_u32 v%d, v%d, 3, v%d" % (t5, t2, t4))
    d("v_add_u32 v%d, 0x%x, v%d" % (vOW, O_BASE, t5))
    d("v_lshl_add_u32 v%d, v%d, 4, v%d" % (t5, t2, t4))
    d("v_add_u32 v%d, 0x%x, v%d" % (vQR, M_BASE, t5))
    d("v_lshl_add_u32 v%d, v%d, 2, v%d" % (t1, t2, rp))
    d("v_and_b32 v%d, 1, v%d" % (t4, G))
    d("v_lshlrev_b32 v%d, 1, v%d" % (t4, t4))
    d("v_lshrrev_b32 v%d, 1, v%d" % (t5, cp))
    d("v_add_u32 v%d, v%d, v%d" % (t4, t4, t5))
    d("v_lshlrev_b32 v%d, 2, v%d" % (t5, rp))
    d("v_xor_b32 v%d, v%d, v%d" % (t4, t4, t5))
    d("v_lshlrev_b32 v%d, 4, v%d" % (t4, t4))
    d("v_lshl_add_u32 v%d, v%d, 8, v%d" % (t4, t1, t4))
    d("v_and_b32 v%d, 1, v%d" % (t5, cp))
    d("v_lshl_add_u32 v%d, v%d, 3, v%d" % (t4, t5, t4))
    d("v_add_u32 v%d, 0x%x, v%d" % (vVA[0], V_BASE, t4))
    for db in range(1, 4):
        d("v_xor_b32 v%d, %d, v%d" % (vVA[db], db * 64, vVA[0]))
    d("v_lshlrev_b32 v%d, 4, v%d" % (vST, l))
    d("s_lshl_b32 s%d, s%d, 8" % (sD0, sGRP))
    d("s_add_u32 s%d, s%d, s%d" % (sD0, sD0, sHP))
    d("s_lshl_b32 s%d, s%d, 4" % (sD1, sW))
    d("s_add_u32 s%d, s%d, s%d" % (sD0, sD0, sD1))
    d("s_mul_i32 s%d, s%d, 3072" % (sPOFF, sD0))
    d("s_mov_b32 s%d, s%d" % (SRD_WS, P_WS))
    d("s_mov_b32 s%d, s%d" % (SRD_WS + 1, P_WS + 1))
    d("s_mov_b32 s%d, 0x%x" % (SRD_WS + 2, WS_BYTES))
    d("s_mov_b32 s%d, 0x20000" % (SRD_WS + 3))
    d("s_mov_b32 s%d, 0x%08x" % (sTHR, f32bits(2.0 ** opt.thr_log2)))
    for r in range(64):
        if opt.accmode == 1 or r >= 48:
            d("v_mov_b32 v%d, 0" % (vO + r))
    d("v_mov_b32 v%d, 0" % vLACC)
    if not opt.defer:
        for ins in later:
            a(ins)
        later = []
    if opt.pf_tiles:
        a("s_cmp_lg_u32 s%d, 3" % sW)
        a("s_cbranch_scc1 L_X_LANDED")
        a("s_and_b32 s%d, s%d, 1" % (sT1, sHP))
        a("s_cmp_eq_u32 s%d, 0" % sT1)
        a("s_cselect_b32 s%d, s%d, s%d" % (sT2, P_K, P_V))
        a("s_cselect_b32 s%d, s%d, s%d" % (sT3, P_K + 1, P_V + 1))
        a("s_lshl_b32 s%d, s%d, 3" % (sT0, sB))
        a("s_add_u32 s%d, s%d, s%d" % (sT0, sT0, sKVH))
        a("s_lshl_b32 s%d, s%d, 18" % (sT0, sT0))
        srd(a, SRD_K, sT2, 262144, sT0)
        a("v_lshlrev_b32 v2, 7, v0")
        a("s_mov_b32 s%d, %d" % (sT0, opt.pf_first * 8192))
        for i in range(opt.pf_tiles):
            a("buffer_load_dword v%d, v2, s[%d:%d], s%d offen %s" % (vDUM, SRD_K, SRD_K + 3, sT0, opt.pf_aux))
            if i + 1 < opt.pf_tiles:
                a("s_add_u32 s%d, s%d, 8192" % (sT0, sT0))
    if opt.dum == 3:
        a("s_cmp_lg_u32 s%d, 3" % sW)
        a("s_cbranch_scc1 L_X_LANDED")
        a("s_lshl_b32 s%d, s%d, 9" % (sT0, sHP))
        srd(a, SRD_WQ, P_WQ, 4194304 - 15 * 512, sT0)
        a("v_lshrrev_b32 v2, 5, v0")
        a("v_and_b32 v3, 31, v0")
        a("v_lshlrev_b32 v3, 4, v3")
        a("v_lshl_add_u32 v2, v2, 13, v3")
        a("s_lshl_b32 s%d, s%d, 1" % (sT0, sB))
        a("s_add_u32 s%d, s%d, 1" % (sT0, sT0))
        a("s_lshl_b32 s%d, s%d, 18" % (sT0, sT0))
        for i in range(16):
            a("buffer_load_dwordx4 %s, v2, s[%d:%d], s%d offen" % (vr(vE, 4), SRD_WQ, SRD_WQ + 3, sT0))
            if i < 15:
                a("s_add_u32 s%d, s%d, 16384" % (sT0, sT0))
    a.label("L_X_LANDED")
    stamp(a, 1)

    def q_mfma_list(pb, first=False):
        if opt.x_q_nomfma:
            return []
        out = []
        for nb in range(4):
            for qb in range(3):
                acc = acc1(nb * 3 + qb)
                out.append("v_mfma_f32_16x16x32_bf16 %s, %s, %s, %s" % (vr(acc, 4), vr(vA1[pb] + nb * 4, 4), vr(vB1[pb] + qb * 4, 4), "0" if first else vr(acc, 4)))
        return out
    vXTT = [vXT, vT[8]]
    def x_addr(e):
        v = vXTT[e & 1]
        out = []
        if opt.korder:
            out += ["s_add_u32 s%d, s%d, %d" % (sT0, sB, e & 7),
                    "s_and_b32 s%d, s%d, 7" % (sT0, sT0),
                    "s_mul_i32 s%d, s%d, 6144" % (sKS, sT0)]
            return out + ["v_add_u32 v%d, s%d, v%d" % (v, sKS, (vXB, vXB1)[e >> 3])]
        if e % 2 == 0:
            out += ["s_add_u32 s%d, s%d, %d" % (sT0, sB, e >> 1),
                    "s_and_b32 s%d, s%d, 7" % (sT0, sT0),
                    "s_mul_i32 s%d, s%d, 6144" % (sKS, sT0)]
        return out + ["v_add_u32 v%d, s%d, v%d" % (v, sKS, (vXB, vXB1)[e & 1])]
    for ins in x_addr(0):
        a(ins)
    for e in range(16):
        if opt.korder and e < 8:
            if opt.dum == 3:
                a("s_cmp_eq_u32 s%d, 3" % sW)
                a("s_cbranch_scc1 L_NOXW%d" % e)
            a("s_waitcnt vmcnt(%d)" % (14 - 2 * e))
            if opt.dum == 3:
                a.label("L_NOXW%d" % e)
        if e % 2 == 0 and not opt.korder:
            if opt.pf_tiles:
                a("s_cmp_eq_u32 s%d, 3" % sW)
                a("s_cbranch_scc1 L_NOXW%d" % e)
            a("s_waitcnt vmcnt(%d)" % (14 - e))
            if opt.pf_tiles:
                a.label("L_NOXW%d" % e)
        if opt.stamps == 5 and e == 0:
            stamp(a, 22)
        bar("CI", "Q%d" % e)
        if opt.stamps == 5 and e in (0, 1, 2, 4, 8):
            stamp(a, {0: 23, 1: 24, 2: 25, 4: 26, 8: 27}[e])
        if e in (0, 4, 8, 12):
            stamp(a, 9 + e // 4)
        pb = e & 1
        slot = e % NWS
        wa, so = (vWA, slot * 16384) if slot < 4 else (vWA2, (slot - 4) * 16384)
        fill = []
        if not opt.x_q_nods:
            for nb in range(4):
                for jj in range(2):
                    fill.append("ds_read_b64_tr_b16 %s, v%d offset:%d" % (vr(vA1[pb] + nb * 4 + jj * 2, 2), wa[nb], so + jj * 2048))
                if nb == 0:
                    for qb in range(3):
                        fill.append("ds_read_b128 %s, v%d offset:%d" % (vr(vB1[pb] + qb * 4, 4), vXTT[e & 1], qb * 2048))
        if e < 15:
            fill += x_addr(e + 1)
        n_def = 4 if e == 0 else (-(-len(later) // (15 - e)) if e < 15 else len(later))
        fill += later[:n_def]
        later = later[n_def:]
        interleave(a, q_mfma_list(pb ^ 1, first=(e == 1)) if e > 0 else [], fill)
        a("s_waitcnt lgkmcnt(0)")
    assert not later
    bar("CI", "Q16")
    stamp(a, 13)
    for m in q_mfma_list(1):
        a(m)
    scale = math.log2(math.e) / math.sqrt(128.0)
    a("s_mov_b32 s%d, 0x%08x" % (sT2, f32bits(scale)))
    a("s_mov_b32 s%d, 0x%08x" % (sT3, f32bits(scale)))
    a("s_nop 5")
    for nb in range(4):
        for qb in range(3):
            acc = acc1(nb * 3 + qb)
            a("v_pk_mul_f32 %s, %s, s[%d:%d]" % (vr(acc, 2), vr(acc, 2), sT2, sT3))
            a("v_pk_mul_f32 %s, %s, s[%d:%d]" % (vr(acc + 2, 2), vr(acc + 2, 2), sT2, sT3))
            a("v_cvt_pk_bf16_f32 v%d, v%d, v%d" % (acc, acc, acc + 1))
            a("v_cvt_pk_bf16_f32 v%d, v%d, v%d" % (acc + 1, acc + 2, acc + 3))
            a("ds_write_b64 v%d, %s offset:%d" % (vQW, vr(acc, 2), qb * 16 * MROW + nb * 32))
    if opt.accmode == 0:
        for r in range(48):
            a("v_mov_b32 v%d, 0" % (vO + r))
    a("s_waitcnt lgkmcnt(0)")
    bar("CI", "Q17")
    stamp(a, 2)
    a("s_cmp_eq_u32 s%d, 3" % sW)
    a("s_cbranch_scc1 L_TRANS")

    if opt.prio:
        a("s_setprio %d" % opt.prio)
    dq = Queue(1000)
    for ks in range(8):
        a("ds_read_b128 %s, v%d offset:%d" % (vr(vQ + ks * 4, 4), vQR, ks * 32))
        dq.issue("Q")
    L, WS = opt.L, opt.waitstep

    def frag_ops(p):
        return 1 if (p & 15) < 8 else 2

    def frag_read(t, p):
        if p >= 16:
            t, p = t + 1, p - 16
        fb = vF + (p & 7) * 4
        if p < 8:
            if not opt.x_nods:
                a("ds_read_b128 %s, v%d offset:%d" % (vr(fb, 4), vKA[p], kslot(t + 1) * 8192))
            dq.issue("F%d" % (p & 7), 1)
        else:
            u, db = (p - 8) >> 2, (p - 8) & 3
            for jj in range(2):
                if not opt.x_nods:
                    a("ds_read_b64_tr_b16 %s, v%d offset:%d" % (vr(fb + jj * 2, 2), vVA[db], ((t - 1) % 8) * 8192 + (16 * u + 8 * jj) * 256))
            dq.issue("F%d" % (p & 7), 2)

    def last_v_read(f):
        u, db = f >> 2, f & 3
        for jj in range(2):
            if not opt.x_nods:
                a("ds_read_b64_tr_b16 %s, v%d offset:%d" % (vr(vF + f * 4 + jj * 2, 2), vVA[db], (31 % 8) * 8192 + (16 * u + 8 * jj) * 256))
        dq.issue("F%d" % f, 2)

    def wait_frags(p):
        if (p - opt.waitphase) % WS:
            return
        n = dq.need({"F%d" % ((p + i) & 7) for i in range(WS)})
        if n is not None and not opt.x_nods:
            assert n <= 15
            a("s_waitcnt lgkmcnt(%d)" % n)

    def sm_ops(t):
        S, P = vS[t & 1], vP[t & 1]
        def E(k, i):
            return ("v_exp_f32 v%d, v%d" % (vE + (k & 1) * 2 + i, S + 2 * k + i), 8)
        def adds(k):
            e0, e1 = vE + (k & 1) * 2, vE + (k & 1) * 2 + 1
            if k < 2:
                return [("v_add_f32 v%d, v%d, v%d" % ((vPSA, vPSB)[k], e0, e1), 4)]
            return [("v_add_f32 v%d, v%d, v%d" % (vPSA, vPSA, e0), 4), ("v_add_f32 v%d, v%d, v%d" % (vPSB, vPSB, e1), 4)]
        def C(k):
            return ("v_cvt_pk_bf16_f32 v%d, v%d, v%d" % (P + k, vE + (k & 1) * 2, vE + (k & 1) * 2 + 1), 4)
        if opt.x_fast:
            ops = [E(0, 0), E(0, 1)]
            for k in range(1, 8):
                ops += [E(k, 0), E(k, 1), C(k - 1)]
            return ops + [("s_nop 0", 4), C(7)]
        ops = [E(0, 0), E(0, 1)]
        for k in range(1, 8):
            ops += [E(k, 0)] + adds(k - 1) + [E(k, 1), C(k - 1)]
        ops += adds(7) + [C(7)]
        ops.append(("v_add_f32 v%d, v%d, v%d" % (vPSA, vPSA, vPSB), 4))
        ops.append(("v_cmp_nge_f32 vcc, s%d, v%d" % (sTHR, vPSA), 4))
        return ops

    def sm_schedule(ops, base):
        room = [max(opt.slotcap - base[p], 4) for p in range(15)]
        total = sum(c for _, c in ops)
        scale_ = total / float(sum(room))
        slots = [[] for _ in range(16)]
        i, cum_room, cum = 0, 0.0, 0
        for p in range(15):
            cum_room += room[p] * scale_
            while i < len(ops) and (cum + ops[i][1] / 2.0 <= cum_room or p == 14):
                slots[p].append(ops[i][0])
                cum += ops[i][1]
                i += 1
        return slots

    rare = []

    def period(t, tag, do_qk, do_sm, do_pv, c_zero=False, has_bar=True, next_qk=True, next_v=False):
        Sn, Pp = vS[(t + 1) & 1], vP[(t - 1) & 1]
        def want(pn):
            return (pn < 8 and do_qk) or (8 <= pn < 16 and do_pv) or (pn >= 16 and (next_qk or next_v))
        base = []
        for p in range(16):
            c = 8 + (opt.dscost * (2 if next_v and p + L >= 16 else frag_ops(p + L)) if want(p + L) else 0) + (4 if p % WS == 0 else 0) + (4 if p == 16 - L else 0)
            base.append(c)
        sm = sm_schedule(sm_ops(t), base) if do_sm and not opt.x_nosm else [[] for _ in range(16)]
        lab = "L_RARE_%s" % tag
        check = do_sm and not opt.x_fast and not opt.x_norare and not opt.x_nosm
        last = []
        for p in range(16):
            mf = None
            if p < 8 and do_qk:
                c = "0" if (p == 0 and c_zero) else (vr(vNM, 16) if p == 0 else vr(Sn, 16))
                mf = "v_mfma_f32_32x32x16_bf16 %s, %s, %s, %s" % (vr(Sn, 16), vr(vF + (p & 7) * 4, 4), vr(vQ + p * 4, 4), c)
            if p >= 8 and do_pv:
                u, db = (p - 8) >> 2, (p - 8) & 3
                mf = "v_mfma_f32_32x32x16_bf16 %s, %s, %s, %s" % (vr(vO + db * 16, 16), vr(vF + (p & 7) * 4, 4), vr(Pp + u * 4, 4), vr(vO + db * 16, 16))
            if p == 16 - L and has_bar:
                bar("C", "A%s" % tag, opt.x_nobar)
            if p == 15 and check and opt.brpos == 1:
                a("s_cbranch_vccnz %s" % lab)
            n0 = len(a.lines)
            if mf:
                wait_frags(p)
                if not opt.x_nomfma:
                    a(mf)
            if opt.x_fast and do_pv and p in (11, 15):
                u = 0 if p == 11 else 1
                a("v_mfma_f32_16x16x32_bf16 v[228:231], v[24:27], %s, v[228:231]" % vr(Pp + u * 4, 4))
            if want(p + L):
                if next_v and p + L >= 16:
                    last_v_read(p + L - 16)
                else:
                    frag_read(t, p + L)
            if p == 15:
                last = list(a.lines[n0:])
            for ins in sm[p]:
                if ins == "v_exp_pad":
                    continue
                prev = next(x for x in reversed(a.lines) if x.strip() and not x.strip().endswith(":")).strip()
                if prev.startswith("v_exp_f32") and not ins.startswith("v_exp") and prev.split()[1].rstrip(",") in [o.strip() for o in ins.split(None, 1)[1].split(",")[1:]]:
                    a("s_nop 0")
                a(ins)
        if do_sm and not opt.x_fast:
            if check:
                if opt.brpos == 0:
                    a("s_cbranch_vccnz %s" % lab)
                rare.append((lab, t, do_qk, last if opt.brpos == 1 else []))
                a.label(lab + "_BACK")
            a("v_add_f32 v%d, v%d, v%d" % (vLACC, vLACC, vPSA))

    def row_max(S, dst):
        a("v_max3_f32 v%d, v%d, v%d, v%d" % (dst, S, S + 1, S + 2))
        for r in range(3, 15, 2):
            a("v_max3_f32 v%d, v%d, v%d, v%d" % (dst, dst, S + r, S + r + 1))
        a("v_max_f32 v%d, v%d, v%d" % (dst, dst, S + 15))
        a("v_mov_b32 v%d, v%d" % (vTMP, dst))
        a("s_nop 1")
        a("v_permlane32_swap_b32 v%d, v%d" % (dst, vTMP))
        a("s_nop 1")
        a("v_max_f32 v%d, v%d, v%d" % (dst, dst, vTMP))

    def emit_rare(lab, t, fix_next, first):
        S, Sn, P = vS[t & 1], vS[(t + 1) & 1], vP[t & 1]
        d, f = vE + 4, vE + 5
        a.label(lab)
        for ins in first:
            a(ins)
        a("s_nop 15")
        row_max(S, d)
        a("v_max_f32 v%d, 0, v%d" % (d, d))
        a("v_exp_f32 v%d, -v%d" % (f, d))
        for r in range(16):
            a("v_sub_f32 v%d, v%d, v%d" % (vNM + r, vNM + r, d))
        for r in range(16):
            a("v_sub_f32 v%d, v%d, v%d" % (S + r, S + r, d))
        if fix_next:
            for r in range(16):
                a("v_sub_f32 v%d, v%d, v%d" % (Sn + r, Sn + r, d))
        for r in range(64):
            a("v_mul_f32 v%d, v%d, v%d" % (vO + r, vO + r, f))
        a("v_mul_f32 v%d, v%d, v%d" % (vLACC, vLACC, f))
        a("v_mov_b32 v%d, 0" % vPSA)
        for k in range(8):
            a("v_exp_f32 v%d, v%d" % (vE, S + 2 * k))
            a("v_exp_f32 v%d, v%d" % (vE + 1, S + 2 * k + 1))
            a("v_add_f32 v%d, v%d, v%d" % (vPSA, vPSA, vE))
            a("v_add_f32 v%d, v%d, v%d" % (vPSA, vPSA, vE + 1))
            a("v_cvt_pk_bf16_f32 v%d, v%d, v%d" % (P + k, vE, vE + 1))
        a("s_nop 1")
        a("s_branch %s_BACK" % lab)

    def a3_list(p):
        out = ["v_add_u32 v%d, 0x%x, v%d" % (vWOT[0], (RWO if opt.osched else RWO0)[p], vWOA),
               "v_xor_b32 v%d, 32, v%d" % (vWOT[1], vWOT[0])]
        for ks in range(4 if not opt.x_o_nods else 0):
            for nb in range(2):
                for jj in range(2):
                    out.append("ds_read_b64_tr_b16 %s, v%d offset:%d" % (vr(vA3[p & 1] + (ks * 2 + nb) * 4 + jj * 2, 2), vWOT[nb], ks * 8192 + jj * 1024))
        return out

    for p in range(L):
        frag_read(-1, p)
    a("s_waitcnt lgkmcnt(%d)" % dq.need({"Q"}))
    if opt.dump == "q":
        dump_regs(a, vQ, 32)
    period(-1, "m1", True, False, False, c_zero=True)
    a("s_nop 15")
    row_max(vS[0], vE + 4)
    for r in range(16):
        a("v_sub_f32 v%d, 0, v%d" % (vNM + r, vE + 4))
    for r in range(16):
        a("v_sub_f32 v%d, v%d, v%d" % (vS[0] + r, vS[0] + r, vE + 4))
    a("s_nop 1")
    period(0, "0", True, True, False)
    q_entry = list(dq.q)
    a("s_mov_b32 s%d, 0" % sPASS)
    a(".p2align %d" % opt.loop_align)
    for _ in range(opt.loop_pad):
        a("s_nop 0")
    a.label("L_ATT_LOOP")
    n0 = len(bars["C"])
    for t in range(1, 9):
        period(t, "L%d" % t, True, True, True, has_bar=att_bar(t))
        if t == 6:
            q_exit = list(dq.q)
            a("s_cmp_eq_u32 s%d, 3" % sPASS)
            a("s_cbranch_scc1 L_ATT_EXIT")
    assert dq.q == q_entry, (dq.q, q_entry)
    a("s_add_u32 s%d, s%d, 1" % (sPASS, sPASS))
    a("s_branch L_ATT_LOOP")
    del bars["C"][n0:]
    bars["C"] += ["A%d" % t for t in range(1, 31) if att_bar(t)]
    a.label("L_ATT_EXIT")
    dq.q = list(q_exit)
    lsum = ["v_mov_b32 v%d, v%d" % (vTMP, vLACC), "s_nop 1", "v_permlane32_swap_b32 v%d, v%d" % (vLACC, vTMP), "s_nop 1",
            "v_add_f32 v%d, v%d, v%d" % (vLACC, vLACC, vTMP), "v_rcp_f32 v%d, v%d" % (vLACC, vLACC)]
    if opt.shortend:
        period(31, "31", False, True, True, next_qk=False, next_v=True)
        Pl = vP[31 & 1]
        for p in range(8):
            wait_frags(p)
            a("v_mfma_f32_32x32x16_bf16 %s, %s, %s, %s" % (vr(vO + (p & 3) * 16, 16), vr(vF + p * 4, 4), vr(Pl + (p >> 2) * 4, 4), vr(vO + (p & 3) * 16, 16)))
            if p + L < 8:
                last_v_read(p + L)
            if p == 2:
                for ins in lsum:
                    a(ins)
        lsum = []
    else:
        period(31, "31", False, True, True, next_qk=False)
        period(32, "32", False, False, True, has_bar=False, next_qk=False)
    bar("C", "E00")
    stamp(a, 3)
    for ins in a3_list(0):
        a(ins)
    for ins in lsum:
        a(ins)
    a("s_nop 7")
    for db in range(4):
        for rr in range(4):
            b = vO + db * 16 + rr * 4
            a("v_pk_mul_f32 %s, %s, %s op_sel_hi:[1,0]" % (vr(b, 2), vr(b, 2), vr(vLACC, 2)))
            a("v_pk_mul_f32 %s, %s, %s op_sel_hi:[1,0]" % (vr(b + 2, 2), vr(b + 2, 2), vr(vLACC, 2)))
            a("v_cvt_pk_bf16_f32 v%d, v%d, v%d" % (b, b, b + 1))
            a("v_cvt_pk_bf16_f32 v%d, v%d, v%d" % (b + 1, b + 2, b + 3))
            a("ds_write_b64 v%d, %s offset:%d" % (vOW, vr(b, 2), db * 64 + rr * 16))
    if opt.prio:
        a("s_setprio 0")
    a("s_waitcnt lgkmcnt(0)")
    a("s_branch L_E0")

    a.label("L_TRANS")
    if not opt.x_nobar:
        a("s_mov_b32 s%d, %d" % (sPASS, sum(att_bar(t) for t in range(-1, 32))))
        a.label("L_IDLE3_LOOP")
        a("s_barrier")
        a("s_sub_u32 s%d, s%d, 1" % (sPASS, sPASS))
        a("s_cmp_lg_u32 s%d, 0" % sPASS)
        a("s_cbranch_scc1 L_IDLE3_LOOP")
    bars["I"] += ["Am1"] + ["A%d" % t for t in range(0, 32) if att_bar(t)]
    bar("I", "E00")
    for ins in a3_list(0):
        a(ins)
    a("s_waitcnt lgkmcnt(0)")

    a.label("L_E0")
    if opt.oprio:
        a("s_setprio %d" % opt.oprio)
    bar("CI", "E0")
    stamp(a, 4)

    def mf3_list(p):
        if opt.x_o_nomfma:
            return []
        out = []
        kh = p & 1
        for ks in range(4):
            for nb in range(2):
                for qb in range(3):
                    acc = vACC3[(p >> 1) & 1] + (qb * 2 + nb) * 4
                    c = "0" if (ks == 0 and kh == 0) else vr(acc, 4)
                    out.append("v_mfma_f32_16x16x32_bf16 %s, %s, %s, %s" % (vr(acc, 4), vr(vA3[p & 1] + (ks * 2 + nb) * 4, 4), vr(vB3 + ((kh * 4 + ks) * 3 + qb) * 4, 4), c))
        return out
    def pk_base(c, qb):
        if c < min(opt.latest, 2):
            return 8 + c * 12 + qb * 4
        return vACC3[c & 1] + qb * 8
    def cvt3_list(c):
        if opt.x_o_nost:
            return []
        out = []
        for qb in range(3):
            acc = vACC3[c & 1] + qb * 8
            for d in range(4):
                out.append("v_cvt_pk_bf16_f32 v%d, v%d, v%d" % (pk_base(c, qb) + d, acc + 2 * d, acc + 2 * d + 1))
        return out
    def st3_list(c):
        if opt.x_o_nost:
            return []
        out = ["s_add_u32 s%d, s%d, %d" % (sT0, sB, c),
               "s_and_b32 s%d, s%d, 3" % (sT0, sT0),
               "s_mul_i32 s%d, s%d, %d" % (sT0, sT0, 4 * 16 * 3072),
               "s_add_u32 s%d, s%d, s%d" % (sT0, sT0, sPOFF)]
        sts = ["buffer_store_dwordx4 %s, v%d, s[%d:%d], s%d offen offset:%d %s" % (vr(pk_base(c, qb), 4), vST, SRD_WS, SRD_WS + 3, sT0, qb * 1024, part_aux) for qb in range(3)]
        return out, sts
    def b3_list(kh):
        out = []
        for ks in range(4 * kh, 4 * kh + 4):
            for qb in range(3):
                out.append("ds_read_b128 %s, v%d offset:%d" % (vr(vB3 + (ks * 3 + qb) * 4, 4), vOR, (48 * kh + 16 * qb) * MROW + (ks & 3) * 64))
        return out
    if opt.osched == 0:
        for ins in b3_list(0):
            a(ins)
        a("s_waitcnt lgkmcnt(0)")
        for p in range(8):
            if p <= 6:
                bar("CI", "P%d" % (p + 1))
            if p in (0, 3, 6):
                stamp(a, 14 + p // 3)
            fill = []
            if p == 0:
                fill += b3_list(1)
            if p <= 6:
                fill += a3_list(p + 1)
            if p >= 2 and p % 2 == 0 and not opt.x_o_nost:
                c = p // 2 - 1
                fill += cvt3_list(c)
                if c >= opt.latest:
                    fill += st3_list(c)[0] + st3_list(c)[1]
            if p == 7 and not opt.x_o_nost:
                for c in range(min(opt.latest, 3)):
                    fill += st3_list(c)[0] + st3_list(c)[1]
            interleave(a, mf3_list(p), fill)
            if p <= 6:
                a("s_waitcnt lgkmcnt(0)")
        a("s_nop 7")
        if not opt.x_o_nost:
            for ins in cvt3_list(3) + st3_list(3)[0] + st3_list(3)[1]:
                a(ins)
    else:
        for ins in b3_list(0) + b3_list(1):
            a(ins)
        a("s_waitcnt lgkmcnt(0)")
        if opt.dump == "o":
            dump_regs(a, vB3, 96)
        pre_store = {3: 0, 5: 1}
        for p in range(8):
            if p in pre_store and not opt.x_o_nost:
                for ins in st3_list(pre_store[p])[0]:
                    a(ins)
            if p in (0, 3, 5, 6):
                bar("CI", "P%d" % (p + 1))
            if p in pre_store and not opt.x_o_nost:
                for ins in st3_list(pre_store[p])[1]:
                    a(ins)
            if p in (0, 3, 6):
                stamp(a, 14 + p // 3)
            fill = []
            if p <= 6:
                fill += a3_list(p + 1)
            if p in (2, 4):
                fill += cvt3_list(p // 2 - 1)
            if p == 6 and not opt.x_o_nost:
                fill += cvt3_list(2) + st3_list(2)[0] + st3_list(2)[1]
            interleave(a, mf3_list(p), fill)
            if p <= 6:
                a("s_waitcnt lgkmcnt(0)")
        a("s_nop 7")
        if not opt.x_o_nost:
            for ins in cvt3_list(3) + st3_list(3)[0] + st3_list(3)[1]:
                a(ins)
    stamp(a, 5)
    if opt.fused_tail:
        srd(a, SRD_OUT, P_OUT, 8 * 48 * 1024 * 2)
        a("s_lshl_b32 s%d, s%d, 4" % (sKS, sGRP))
        a("s_add_u32 s%d, s%d, s%d" % (sKS, sKS, sHP))
        a("s_mul_i32 s%d, s%d, %d" % (sKS, sKS, 16 * 3072))
        reduce_pre(a, sW, sKS, sGRP, sHP, 0)
        if opt.twostage:
            a("s_waitcnt vmcnt(6)")
            bar("CI", "Fa")
    a("s_waitcnt vmcnt(0)")
    stamp(a, 6)
    if opt.fused_tail:
        bar("CI", "F0")
        a("s_branch L_REDUCE")
    else:
        if opt.x_stretch:
            a("s_cmp_lg_u32 s%d, 0" % sW)
            a("s_cbranch_scc1 L_END")
            a("s_mul_i32 s%d, s%d, %d" % (sDBG, sDBG, opt.x_stretch))
            a.label("L_STRETCH")
            a("s_memrealtime s[%d:%d]" % (sSTAMP, sSTAMP + 1))
            a("s_waitcnt lgkmcnt(0)")
            a("s_sub_u32 s%d, s%d, s100" % (sSTAMP, sSTAMP))
            a("s_cmp_lt_u32 s%d, s%d" % (sSTAMP, sDBG))
            a("s_cbranch_scc1 L_STRETCH")
        a("s_branch L_END")

    a.label("L_LOADER")
    qL = Queue(63)
    t1, t2, t3, t4 = vT[0:4]
    a("s_sub_u32 s%d, s%d, 4" % (sJ, sW))
    a("s_lshl_b32 s%d, s%d, 9" % (sT0, sHP))
    srd(a, SRD_WQ, P_WQ, 4194304 - 15 * 512, sT0)
    a("s_lshl_b32 s%d, s%d, 16" % (sJ64K, sJ))
    a("v_lshrrev_b32 v%d, 5, v%d" % (t1, vL))
    a("v_and_b32 v%d, 31, v%d" % (t2, vL))
    a("v_lshlrev_b32 v%d, 1, v%d" % (t3, t1))
    a("v_xor_b32 v%d, v%d, v%d" % (t2, t2, t3))
    a("v_lshlrev_b32 v%d, 4, v%d" % (t2, t2))
    a("s_and_b32 s%d, s%d, 1" % (sT1, sJ))
    a("s_lshl_b32 s%d, s%d, 7" % (sT1, sT1))
    a("v_xor_b32 v%d, s%d, v%d" % (t2, sT1, t2))
    a("v_lshl_add_u32 v%d, v%d, 13, v%d" % (t2, t1, t2))
    for aa in range(4):
        c = 2 * aa * 8192 - aa * 1024
        if aa & 1:
            a("v_xor_b32 v%d, 64, v%d" % (vLW[aa], t2))
            a("v_add_u32 v%d, 0x%x, v%d" % (vLW[aa], c, vLW[aa]))
        else:
            a("v_add_u32 v%d, 0x%x, v%d" % (vLW[aa], c, t2))
    a("s_lshl_b32 s%d, s%d, 1" % (sKS, sB))
    a("s_lshl_b32 s%d, s%d, 12" % (sT5, sJ))

    def dma_w(e, slot=None, tag=None):
        step = e if not opt.korder else (2 * e if e < 8 else 2 * (e - 8) + 1)
        lab = "L_W_SKIP%d" % e
        if opt.wopf:
            a("s_cmp_ge_u32 s%d, 2" % sJ)
            a("s_cbranch_scc1 %s" % lab)
        a("s_add_u32 s%d, s%d, %d" % (sT0, sKS, step))
        a("s_and_b32 s%d, s%d, 15" % (sT0, sT0))
        a("s_lshl_b32 s%d, s%d, 18" % (sT0, sT0))
        base = (e % NWS if slot is None else slot) * 16384
        a("s_add_u32 m0, s%d, 0x%x" % (sT5, base))
        a("s_add_u32 s%d, s%d, s%d" % (sT0, sT0, sJ64K))
        if opt.x_q_nodma:
            return
        for sh in range(2 if opt.wopf else 1):
            if sh:
                a("s_add_u32 m0, s%d, 0x%x" % (sT5, base + 8192))
                a("s_add_u32 s%d, s%d, 0x20000" % (sT0, sT0))
            for aa in range(4):
                a("buffer_load_dwordx4 v%d, s[%d:%d], s%d offen offset:%d %s lds" % (vLW[aa], SRD_WQ, SRD_WQ + 3, sT0, aa * 1024, opt.w_aux))
        if opt.wopf:
            a.label(lab)
        qL.issue(tag or "W%d" % e, 8 if opt.wopf else 4)
    def wo_prefetch(i):
        n = 16 // opt.npe
        a("s_cmp_lt_u32 s%d, 2" % sJ)
        a("s_cbranch_scc1 L_PF_SKIP_%d" % i)
        a("s_lshl_b32 s%d, s%d, 15" % (sT0, sB))
        a("s_sub_u32 s%d, s%d, 2" % (sT1, sJ))
        a("s_lshl_b32 s%d, s%d, 14" % (sT1, sT1))
        a("s_add_u32 s%d, s%d, s%d" % (sT0, sT0, sT1))
        a("s_add_u32 s%d, s%d, %d" % (sT0, sT0, i * n * 1024))
        a("v_lshlrev_b32 v44, 4, v0")
        for k in range(n):
            if k and k % 4 == 0:
                a("s_add_u32 s%d, s%d, 4096" % (sT0, sT0))
            a("buffer_load_dwordx4 v[40:43], v44, s[%d:%d], s%d offen offset:%d %s" % (SRD_WO, SRD_WO + 3, sT0, (k % 4) * 1024, opt.pf_aux))
        a.label("L_PF_SKIP_%d" % i)
    for e in range(opt.wfirst):
        dma_w(e)
    if opt.dum == 1:
        dma_w(8, NWS - 1, "DUM")
    def later_setup():
        a("s_lshl_b32 s%d, s%d, 3" % (sT0, sB))
        a("s_add_u32 s%d, s%d, s%d" % (sT0, sT0, sKVH))
        a("s_lshl_b32 s%d, s%d, 18" % (sT0, sT0))
        srd(a, SRD_K, P_K, 262144, sT0)
        srd(a, SRD_V, P_V, 262144, sT0)
        a("s_lshl_b32 s%d, s%d, 18" % (sT0, sHP))
        srd(a, SRD_WO, P_WO, 262144, sT0)
        a("s_lshl_b32 s%d, s%d, 11" % (sJ2K, sJ))
        if opt.rot:
            a("s_lshl_b32 s%d, s%d, 3" % (sROT, sB))
            a("s_add_u32 s%d, s%d, s%d" % (sROT, sROT, sKVH))
            a("s_mul_i32 s%d, s%d, %d" % (sROT, sROT, opt.rot))
            if opt.rotbr:
                a("s_mul_i32 s%d, s%d, %d" % (sT1, sBR, opt.rotbr))
                a("s_add_u32 s%d, s%d, s%d" % (sROT, sROT, sT1))
            a("s_and_b32 s%d, s%d, 31" % (sROT, sROT))
            a("s_lshl_b32 s%d, s%d, 13" % (sROT, sROT))
            if opt.swap:
                a("s_and_b32 s%d, s%d, 1" % (sT1, sHP))
                for low in range(opt.swap + 1):
                    if low & ~opt.swap:
                        continue
                    delta = ((low ^ opt.swap) - low) * 8192
                    a("s_mul_i32 s%d, s%d, %d" % (sSWP + low, sT1, delta))
                    a("s_add_u32 s%d, s%d, s%d" % (sSWP + low, sSWP + low, sROT))
        a("v_lshrrev_b32 v%d, 4, v%d" % (t1, vL))
        a("v_and_b32 v%d, 15, v%d" % (t2, vL))
        a("v_xor_b32 v%d, v%d, v%d" % (t3, t2, t1))
        a("s_and_b32 s%d, s%d, 1" % (sT1, sJ))
        a("s_lshl_b32 s%d, s%d, 3" % (sT1, sT1))
        a("v_xor_b32 v%d, s%d, v%d" % (t3, sT1, t3))
        a("v_lshlrev_b32 v%d, 4, v%d" % (t3, t3))
        a("v_lshl_add_u32 v%d, v%d, 8, v%d" % (vLK[0], t1, t3))
        a("v_xor_b32 v%d, 64, v%d" % (vLK[1], vLK[0]))
        a("v_lshlrev_b32 v%d, 2, v%d" % (t3, t1))
        a("v_xor_b32 v%d, v%d, v%d" % (t3, t2, t3))
        a("v_lshlrev_b32 v%d, 4, v%d" % (t3, t3))
        a("v_lshl_add_u32 v%d, v%d, 8, v%d" % (vLV, t1, t3))
        a("v_lshrrev_b32 v%d, 4, v%d" % (t1, vL))
        a("v_and_b32 v%d, 15, v%d" % (t2, vL))
        a("v_lshlrev_b32 v%d, 1, v%d" % (t3, t1))
        a("v_xor_b32 v%d, v%d, v%d" % (t2, t2, t3))
        a("v_lshlrev_b32 v%d, 4, v%d" % (t2, t2))
        a("v_lshl_add_u32 v%d, v%d, 10, v%d" % (t2, t1, t2))
        for aa in range(4):
            if aa >> 1:
                a("v_xor_b32 v%d, 128, v%d" % (vLWO[aa], t2))
                a("v_add_u32 v%d, %d, v%d" % (vLWO[aa], 3072 * aa, vLWO[aa]))
            else:
                a("v_add_u32 v%d, %d, v%d" % (vLWO[aa], 3072 * aa, t2))


    if not opt.defer:
        later_setup()

    def lwait(tags):
        n = qL.need(set(tags))
        if n is not None:
            a("s_waitcnt vmcnt(%d)" % n)
    if opt.wfirst < NWS and not opt.wramp:
        if opt.stamps == 5:
            stamp(a, 20)
        lwait(["W0"])
        if opt.stamps == 5:
            stamp(a, 21)
        if opt.dum == 2:
            dma_w(8, NWS - 1, "DUM")
        for e in range(opt.wfirst, NWS):
            dma_w(e)

    def dma_tile(kind, t):
        if opt.x_kv_nodma:
            return
        base = K_BASE + kslot(t) * 8192 if kind == "K" else V_BASE + (t % 8) * 8192
        s_, v_ = (SRD_K, vLK) if kind == "K" else (SRD_V, [vLV, vLV])
        if opt.rot:
            if opt.swap:
                a("s_add_u32 s%d, s%d, 0x%x" % (sOFF, sSWP + (t & opt.swap), t * 8192))
            else:
                a("s_add_u32 s%d, s%d, 0x%x" % (sOFF, sROT, t * 8192))
            a("s_and_b32 s%d, s%d, 0x3ffff" % (sOFF, sOFF))
            a("s_add_u32 m0, s%d, 0x%x" % (sJ2K, base))
            a("s_add_u32 s%d, s%d, s%d" % (sOFF, sOFF, sJ2K))
        else:
            a("s_add_u32 m0, s%d, 0x%x" % (sJ2K, base))
            a("s_add_u32 s%d, s%d, 0x%x" % (sOFF, sJ2K, t * 8192))
        for aa in range(2):
            a("buffer_load_dwordx4 v%d, s[%d:%d], s%d offen offset:%d %s lds" % (v_[aa], s_, s_ + 3, sOFF, aa * 1024, (opt.k_aux if kind == "K" else opt.v_aux) if opt.k_aux != "same" else opt.kv_aux))
        qL.issue("%s%d" % (kind, t), 2)
    def dma_wo(p, nl=4):
        if opt.x_o_nodma:
            return
        R = (RWO if opt.osched else RWO0)[p]
        if nl == 2:
            a("s_cmp_ge_u32 s%d, 2" % sJ)
            a("s_cbranch_scc1 L_WO_SKIP%d" % p)
        a("s_add_u32 s%d, s%d, %d" % (sT0, sB, p >> 1))
        a("s_and_b32 s%d, s%d, 3" % (sT0, sT0))
        a("s_lshl_b32 s%d, s%d, 8" % (sT0, sT0))
        a("s_lshl_b32 s%d, s%d, 3" % (sT1, sT5))
        a("s_add_u32 s%d, s%d, s%d" % (sT0, sT0, sT1))
        if p & 1:
            a("s_add_u32 s%d, s%d, 0x20000" % (sT0, sT0))
        a("s_lshl_b32 s%d, s%d, 1" % (sT1, sT5))
        for sh in range(4 // nl):
            for hf in range(2):
                a("s_add_u32 m0, s%d, 0x%x" % (sT1, R + sh * 16384 + hf * 4096))
                if hf:
                    a("s_add_u32 s%d, s%d, 16384" % (sT0, sT0))
                elif sh:
                    a("s_add_u32 s%d, s%d, %d" % (sT0, sT0, 65536 - 16384))
                else:
                    a("s_nop 0")
                for aa in range(4):
                    a("buffer_load_dwordx4 v%d, s[%d:%d], s%d offen offset:%d %s lds" % (vLWO[aa], SRD_WO, SRD_WO + 3, sT0, aa * 1024, opt.wo_aux))
        if nl == 2:
            a.label("L_WO_SKIP%d" % p)
        qL.issue("WO%d" % p, 8 * 4 // nl)
    fill = {10: [("K", 0)], 11: [("K", 1)], 12: [("V", 0)], 13: [("K", 2)], 14: [("V", 1)], 15: [("K", 3)], 16: [("V", 2)]}
    nk, nv = 4, 3
    nw = opt.wfirst
    for e in range(17):
        if e < 16:
            lwait(["W%d" % e])
        if opt.lstamps and e >= 10:
            stamp(a, 17 + e - 10)
        bar("L", "Q%d" % e)
        if opt.wramp:
            for _ in range(2):
                if nw <= 15 and nw <= (e + NWS - 1 if e >= 1 else NWS - 1):
                    dma_w(nw); nw += 1
        elif e >= 1 and e + NWS - 1 <= 15:
            dma_w(e + NWS - 1)
        if e == 2 and opt.defer:
            later_setup()
        if opt.wopf and opt.pf0 <= e < opt.pf0 + opt.npe:
            wo_prefetch(e - opt.pf0)
        for kind, t in fill.get(e, []):
            dma_tile(kind, t)
        if opt.lstamps and e >= 10:
            stamp(a, 24 + e - 10)
    lwait(["K0"])
    bar("L", "Q17")
    stamp(a, 2)
    for _ in range(2):
        if nk <= opt.klead - 2:
            dma_tile("K", nk); nk += 1
        if nv <= opt.vlead - 2 or nv <= 0:
            dma_tile("V", nv); nv += 1
    if opt.fused_tail:
        srd(a, SRD_WS, P_WS, WS_BYTES)
        srd(a, SRD_DBG, P_DBG, 256)
        a("s_lshl_b32 s%d, s%d, 4" % (sT0, sGRP))
        a("v_mov_b32 v2, s%d" % sT0)
    wo_at = [int(x) for x in opt.wo_at.split(",")]
    if opt.halfbar:
        wo_at = [26, 30, 30, 31]
    assert wo_at[0] >= 26 and wo_at[1] >= 29 and wo_at[2] >= 30
    for t in range(-1, 32):
        if not att_bar(t):
            continue
        span = 1 if att_bar(t + 1) or t >= 31 else 2
        lwait(["K%d" % (t + 2 + i) for i in range(span)] + ["V%d" % (t + i) for i in range(span)])
        bar("L", "A%s" % ("m1" if t < 0 else str(t)), opt.x_nobar)
        for _ in range(2 if not opt.halfbar else 3):
            if nk <= 31 and nk <= t + opt.klead:
                dma_tile("K", nk); nk += 1
            if nv <= 31 and nv <= t + opt.vlead and (nv <= 5 or nv <= t + 6):
                dma_tile("V", nv); nv += 1
        if opt.fused_tail and t == 2:
            a("buffer_load_dword v%d, v2, s[%d:%d], 0 offen sc1" % (vFLAG, SRD_DBG, SRD_DBG + 3))
            qL.issue("FLAG", 1)
        if opt.fused_tail and t == 14:
            lwait(["FLAG"])
            a("s_mov_b32 s%d, 0" % sT4)
            a.label("L_FLAG_CHECK")
            a("v_readfirstlane_b32 s%d, v%d" % (sT1, vFLAG))
            a("s_add_u32 s%d, s%d, 1" % (sT4, sT4))
            a("s_cmp_lg_u32 s%d, 0" % sT1)
            a("s_cbranch_scc1 L_FLAG_OK")
            a("s_cmp_ge_u32 s%d, 0x%x" % (sT4, opt.spin_limit))
            a("s_cbranch_scc1 L_FLAG_OK")
            a("s_sleep 8")
            a("buffer_load_dword v%d, v2, s[%d:%d], 0 offen sc1" % (vFLAG, SRD_DBG, SRD_DBG + 3))
            a("s_waitcnt vmcnt(0)")
            a("s_branch L_FLAG_CHECK")
            a.label("L_FLAG_OK")
        for p_, t_ in enumerate(wo_at):
            if t == t_:
                dma_wo(p_)
    assert nk == 32 and nv == 32
    lwait(["WO0"])
    bar("L", "E00")
    for p_, t_ in enumerate(wo_at):
        if t_ == 32:
            dma_wo(p_)
    bar("L", "E0")
    stamp(a, 4)
    if opt.osched == 0:
        for p in range(1, 8):
            lwait(["WO%d" % p])
            bar("L", "P%d" % p)
            if p + 3 <= 7:
                dma_wo(p + 3, opt.onl)
    else:
        lwait(["WO1", "WO2", "WO3"])
        bar("L", "P1")
        dma_wo(4)
        dma_wo(5)
        lwait(["WO4", "WO5"])
        bar("L", "P4")
        dma_wo(6)
        dma_wo(7)
        lwait(["WO6"])
        bar("L", "P6")
        lwait(["WO7"])
        bar("L", "P7")
    stamp(a, 6)
    if opt.fused_tail:
        srd(a, SRD_OUT, P_OUT, 8 * 48 * 1024 * 2)
        a("s_lshl_b32 s%d, s%d, 4" % (sKS, sGRP))
        a("s_add_u32 s%d, s%d, s%d" % (sKS, sKS, sHP))
        a("s_mul_i32 s%d, s%d, %d" % (sKS, sKS, 16 * 3072))
        reduce_pre(a, sW, sKS, sGRP, sHP, 0)
        if opt.persrc:
            assert opt.twostage
            a("s_lshl_b32 s%d, s%d, 8" % (sT0, sGRP))
            a("s_add_u32 s%d, s%d, 0x%x" % (sT0, sT0, WS_CNT))
            a("s_lshl_b32 s%d, s%d, 2" % (sT1, sHP))
            a("s_add_u32 s%d, s%d, s%d" % (sT1, sT1, sT0))
            a("v_mov_b32 v5, s%d" % sT1)
            a("s_add_u32 s%d, s%d, 128" % (sT1, sT1))
            a("v_mov_b32 v2, s%d" % sT1)
            a("v_mov_b32 v6, 1")
            a("s_lshr_b32 s%d, s%d, 2" % (sT1, sHP))
            a("s_sub_u32 s%d, s%d, s%d" % (sT1, sT1, sB))
            a("s_and_b32 s%d, s%d, 2" % (sT1, sT1))
            a("s_lshl_b32 s%d, s%d, 6" % (sT1, sT1))
            a("s_add_u32 s%d, s%d, s%d" % (sT0, sT0, sT1))
            a("v_lshlrev_b32 v7, 2, v0")
            a("v_add_u32 v7, s%d, v7" % sT0)
            a("v_mov_b32 v8, 0")
            a("s_cmp_lg_u32 s%d, 6" % sW)
            a("s_cbranch_scc1 L_NOMASK")
            a("ds_write_b32 v50, v8")
            a("s_waitcnt lgkmcnt(0)")
            a.label("L_NOMASK")
            bar("L", "Fa")
            a("s_mov_b64 s[%d:%d], exec" % (sT2, sT3))
            a("s_cmp_lg_u32 s%d, 4" % sW)
            a("s_cbranch_scc1 L_NOSIG_A")
            a("s_mov_b64 exec, 1")
            a("buffer_atomic_add v6, v5, s[%d:%d], 0 offen sc1" % (SRD_WS, SRD_WS + 3))
            a("s_mov_b64 exec, s[%d:%d]" % (sT2, sT3))
            a.label("L_NOSIG_A")
            bar("L", "F0")
            a("s_cmp_eq_u32 s%d, 7" % sW)
            a("s_cbranch_scc1 L_END")
            a("s_cmp_eq_u32 s%d, 5" % sW)
            a("s_cbranch_scc1 L_REDUCE")
            a("s_cmp_eq_u32 s%d, 6" % sW)
            a("s_cbranch_scc1 L_POLLER")
            a("s_mov_b64 exec, 1")
            a("buffer_atomic_add v6, v2, s[%d:%d], 0 offen sc1" % (SRD_WS, SRD_WS + 3))
            a("s_mov_b64 exec, s[%d:%d]" % (sT2, sT3))
            a("s_branch L_REDUCE")
            a.label("L_POLLER")
            a("s_mov_b64 exec, 0xffff")
            a("s_mov_b32 s%d, 0" % sT4)
            a.label("L_POLL")
            a("buffer_load_dword v9, v7, s[%d:%d], 0 offen sc1" % (SRD_WS, SRD_WS + 3))
            a("s_add_u32 s%d, s%d, 1" % (sT4, sT4))
            a("s_waitcnt vmcnt(0)")
            a("v_cmp_ne_u32 vcc, 0, v9")
            a("s_nop 3")
            a("s_and_b32 s%d, vcc_lo, 0xffff" % sT1)
            a("s_cmp_ge_u32 s%d, 0x%x" % (sT4, opt.spin_limit))
            a("s_cselect_b32 s%d, 0xffff, s%d" % (sT1, sT1))
            a("v_mov_b32 v10, s%d" % sT1)
            a("ds_write_b32 v50, v10")
            a("s_cmp_eq_u32 s%d, 0xffff" % sT1)
            a("s_cbranch_scc1 L_END")
            if opt.sleep:
                a("s_sleep %d" % opt.sleep)
            a("s_branch L_POLL")
            a.label("L_REDUCE")
            stamp(a, 7)
            reduce_body(a, SRD_WS, SRD_OUT, "sc1", dynamic=True)
        else:
            a("s_lshl_b32 s%d, s%d, 8" % (sT0, sGRP))
            a("s_add_u32 s%d, s%d, 0x%x" % (sT0, sT0, WS_CNT))
            a("v_mov_b32 v5, s%d" % sT0)
            a("s_add_u32 s%d, s%d, 128" % (sT0, sT0))
            a("v_mov_b32 v2, s%d" % sT0)
            a("v_mov_b32 v3, 1")
            a("v_mov_b32 v6, 1")
            if opt.twostage:
                bar("L", "Fa")
                a("s_cmp_lg_u32 s%d, 4" % sW)
                a("s_cbranch_scc1 L_NOSIG_A")
                a("s_mov_b64 s[%d:%d], exec" % (sT2, sT3))
                a("s_mov_b64 exec, 1")
                a("buffer_atomic_add v6, v5, s[%d:%d], 0 offen sc1" % (SRD_WS, SRD_WS + 3))
                a("s_mov_b64 exec, s[%d:%d]" % (sT2, sT3))
                a.label("L_NOSIG_A")
            bar("L", "F0")
            a("s_cmp_lg_u32 s%d, 4" % sW)
            a("s_cbranch_scc1 L_REDUCE")
            a("s_mov_b64 s[%d:%d], exec" % (sT2, sT3))
            a("s_mov_b64 exec, 1")
            a("buffer_atomic_add v3, v2, s[%d:%d], 0 offen sc0 sc1" % (SRD_WS, SRD_WS + 3))
            a("s_mov_b32 s%d, 0" % sT4)
            if opt.twostage:
                a("s_lshr_b32 s%d, s%d, 2" % (sT0, sHP))
                a("s_sub_u32 s%d, s%d, s%d" % (sT0, sT0, sB))
                a("s_and_b32 s%d, s%d, 3" % (sT0, sT0))
                a("s_cmp_ge_u32 s%d, 2" % sT0)
                a("s_cbranch_scc1 L_LATE_SLICE")
                a("v_mov_b32 v2, v5")
                a("s_branch L_POLL_START")
                a.label("L_LATE_SLICE")
            a("s_waitcnt vmcnt(0)")
            a("v_readfirstlane_b32 s%d, v3" % sT1)
            a("s_cmp_ge_u32 s%d, 15" % sT1)
            a("s_cbranch_scc1 L_POLL_DONE")
            a.label("L_POLL_START")
            for i in range(opt.npoll - 1):
                a("buffer_load_dword v%d, v2, s[%d:%d], 0 offen sc1" % (52 + i, SRD_WS, SRD_WS + 3))
                a("s_sleep %d" % opt.sleep)
            a.label("L_POLL")
            for i in range(opt.npoll):
                a("buffer_load_dword v%d, v2, s[%d:%d], 0 offen sc1" % (52 + (i + opt.npoll - 1) % opt.npoll, SRD_WS, SRD_WS + 3))
                a("s_add_u32 s%d, s%d, 1" % (sT4, sT4))
                a("s_waitcnt vmcnt(%d)" % (opt.npoll - 1))
                a("v_readfirstlane_b32 s%d, v%d" % (sT1, 52 + i))
                a("s_cmp_ge_u32 s%d, 16" % sT1)
                a("s_cbranch_scc1 L_POLL_DONE")
                if opt.sleep:
                    a("s_sleep %d" % opt.sleep)
            a("s_cmp_lt_u32 s%d, 0x%x" % (sT4, opt.spin_limit))
            a("s_cbranch_scc1 L_POLL")
            a.label("L_POLL_DONE")
            a("s_mov_b64 exec, s[%d:%d]" % (sT2, sT3))
            a.label("L_REDUCE")
            a("s_barrier")
            stamp(a, 7)
            a("s_cmp_ge_u32 s%d, 6" % sW)
            a("s_cbranch_scc1 L_RED_IDLE")
            reduce_body(a, SRD_WS, SRD_OUT, "sc1")
        stamp(a, 8)
        if opt.x_stretch:
            a("s_cmp_lg_u32 s%d, 0" % sW)
            a("s_cbranch_scc1 L_END")
            a("s_mul_i32 s%d, s%d, %d" % (sDBG, sDBG, opt.x_stretch))
            a.label("L_STRETCH")
            a("s_memrealtime s[%d:%d]" % (sSTAMP, sSTAMP + 1))
            a("s_waitcnt lgkmcnt(0)")
            a("s_sub_u32 s%d, s%d, s100" % (sSTAMP, sSTAMP))
            a("s_cmp_lt_u32 s%d, s%d" % (sSTAMP, sDBG))
            a("s_cbranch_scc1 L_STRETCH")
        a("s_branch L_END")
        if not opt.persrc:
            a.label("L_RED_IDLE")
            a("s_barrier")

    a.label("L_END")
    a("s_endpgm")
    for lab, t, fix, first in rare:
        emit_rare(lab, t, fix, first)

    assert bars["C"] == bars["I"] == bars["L"], "barrier sequences differ:\n%s\n%s\n%s" % (bars["C"], bars["I"], bars["L"])


def gen_reduce(a):
    name = "attn_reduce_kernel"
    a(".p2align 8")
    a(".globl %s" % name)
    a(".type %s,@function" % name)
    a.label(name)
    if opt.stamps:
        a("s_memrealtime s[100:101]")
    a("s_cmp_ge_u32 s2, 256")
    a("s_cbranch_scc1 R_END")
    a("s_load_dwordx2 s[4:5], s[0:1], 80")
    a("s_load_dwordx2 s[6:7], s[0:1], 96")
    a("v_lshrrev_b32 v1, 6, v0")
    a("v_and_b32 v0, 63, v0")
    a("v_readfirstlane_b32 s3, v1")
    a("s_mul_i32 s16, s2, %d" % (16 * 3072))
    a("s_lshr_b32 s18, s2, 4")
    a("s_and_b32 s19, s2, 15")
    a("s_waitcnt lgkmcnt(0)")
    srd(a, 8, 6, WS_PART_BYTES)
    srd(a, 12, 4, 8 * 48 * 1024 * 2)
    reduce_pre(a, 3, 16, 18, 19, 0)
    reduce_body(a, 8, 12, "")
    a.label("R_END")
    a("s_endpgm")
    return name


VOP3_ONLY = ("v_mfma", "v_cvt_pk_bf16_f32", "v_max3", "v_lshl_add_u32", "v_bfe_u32", "v_dot2_f32_bf16", "v_pk_", "v_mul_lo", "v_add3",
             "v_writelane", "v_readlane", "v_and_or", "v_perm_b32", "v_lshl_or")
MEM = ("ds_", "buffer_", "global_", "s_load", "s_memtime", "s_memrealtime")
INLINE_F = ("0.5", "-0.5", "1.0", "-1.0", "2.0", "-2.0", "4.0", "-4.0")


def has_literal(ops):
    for o in ops:
        o = o.strip()
        if re.fullmatch(r"[A-Z][A-Z_]+", o):
            return True
        if re.fullmatch(r"-?(0x[0-9a-fA-F]+|\d+)", o):
            v = int(o, 0)
            if not -16 <= v <= 64:
                return True
    return False


def ins_size(ln):
    op, _, rest = ln.partition(" ")
    ops = rest.split(",")
    if op.startswith(MEM):
        return 8
    if op.startswith(("s_waitcnt", "s_barrier", "s_nop", "s_branch", "s_cbranch", "s_setprio", "s_endpgm", "s_sleep")):
        return 4
    if op.startswith("v_"):
        if op.startswith(VOP3_ONLY) or op.endswith("_e64") or re.search(r"[ ,]-v\d|abs\(", " " + rest):
            return 8
        return 8 if has_literal(ops) else 4
    return 8 if has_literal(ops) else 4


def widenable(ln):
    op, _, rest = ln.partition(" ")
    return op.startswith("v_") and ins_size(ln) == 4 and not op.startswith(("v_readfirstlane", "v_permlane", "v_nop")) and not op.endswith("_e32")


def align_pass(lines):
    out = list(lines)
    off, run = 0, []
    fixed = missed = 0
    for i, ln in enumerate(out):
        t = ln.strip()
        if not t or t[0] == ";":
            continue
        if t.endswith(":"):
            continue
        if t.startswith(".p2align"):
            n = 1 << int(t.split()[1].rstrip(","))
            off = (off + n - 1) // n * n
            run = []
            continue
        if t[0] == ".":
            continue
        sz = ins_size(t)
        if sz == 8:
            if off % 8 == 4:
                cand = [j for j in run if widenable(out[j].strip())]
                if cand:
                    j = cand[-1]
                    op, _, rest = out[j].strip().partition(" ")
                    out[j] = "    %s_e64 %s" % (op, rest)
                    off += 4
                    fixed += 1
                else:
                    missed += 1
            run = []
        else:
            run.append(i)
        off += sz
    return out, fixed, missed


def kd(name, vgpr, sgpr):
    acc = (vgpr + 3) // 4 * 4
    return """.p2align 6
.amdhsa_kernel %s
  .amdhsa_next_free_vgpr %d
  .amdhsa_next_free_sgpr %d
  .amdhsa_accum_offset %d
  .amdhsa_group_segment_fixed_size 0
  .amdhsa_kernarg_size 104
  .amdhsa_user_sgpr_count 2
  .amdhsa_user_sgpr_kernarg_segment_ptr 1
  .amdhsa_system_sgpr_workgroup_id_x 1
.end_amdhsa_kernel
""" % (name, vgpr, sgpr, acc)


DESCRIPTION = """;
; One launch, 256 workgroups of 8 waves, one workgroup per CU:  workgroup = (branch, batch, head pair) = 96 query rows x 1024 keys.
;   phase 1  Q^T = wq^T x^T (16x16x32 MFMA, waves 0-3), scaled by log2(e)/sqrt(128), handed over through LDS
;   phase 2  attention: waves 0-2 own 32 rows each; S^T = K Q^T - m and O^T += V^T P^T on 32x32x16 MFMA, software pipelined over
;            32-key tiles.  m starts at the true row max of the first tile; whenever a lane's exp sum leaves the safe range the
;            out-of-line path raises m to the true running max and rescales O, l and the pending scores.
;   phase 3  partial out^T = wo^T O^T over this workgroup's 256 k values, stored as bf16 (write-through) in d_ws
;   phase 4  after a counter hand-off the 16 workgroups of a (branch, batch) each sum 16 partials of a 48 x 32 output slice
; Waves 4-7 stream x-independent operands (wq, K, V, wo) into LDS rings with LDS-DMA; every hand-over inside a workgroup is an s_barrier
; preceded by the producer's counted s_waitcnt.  d_debug carries one flag per group (its counters in d_ws have been cleared).
; Generated by the author's own script (gen3.py).""".split("\n")


def build():
    hdr = open("cdna_kernels/%s.s.ref" % NAME).read().split("\n")
    head = [ln for ln in hdr if ln.startswith(";") and "@launch" not in ln][:14]
    a = Prog()
    main = "attn_main_kernel" if multi() else NAME + "_kernel"
    if multi():
        head.append("; @launch kernel=attn_main_kernel grid=(256,1,1) block=(512,1,1) lds=%d" % LDS_BYTES)
        head.append("; @launch kernel=attn_reduce_kernel grid=(256,1,1) block=(384,1,1) lds=6144")
    else:
        head.append("; @launch grid=(256,1,1) block=(512,1,1) lds=%d" % LDS_BYTES)
        head += DESCRIPTION
    a('.amdgcn_target "amdgcn-amd-amdhsa--gfx950"')
    a(".text")
    a(".globl %s" % main)
    a(".p2align 8")
    a(".type %s,@function" % main)
    gen_main(a, main)
    kds = kd(main, NVGPR, NSGPR)
    if multi():
        kds += kd(gen_reduce(a), 56, 80)
    body = a.text()
    if opt.align:
        lines, fixed, missed = align_pass(body.split("\n"))
        body = "\n".join(lines)
        print("alignment pass: widened %d, unfixable %d" % (fixed, missed))
    return "\n".join(head) + "\n" + body + '.section .rodata,"a"\n' + kds


if __name__ == "__main__":
    out = sys.argv[1] if len(sys.argv) > 1 else "cdna_kernels/%s.s" % NAME
    for kv in sys.argv[2:]:
        k, v = kv.split("=", 1)
        cur = getattr(opt, k)
        if isinstance(cur, bool):
            v = v in ("1", "True", "true")
        elif isinstance(cur, int):
            v = int(v)
        elif v == "None":
            v = None
        setattr(opt, k, v)
    s = build()
    open(out, "w").write(s)
    print("wrote", out, len(s), "bytes,", s.count("\n"), "lines")
```
